```python
import torch

def _softmax(x, axis=-1):
    return torch.softmax(x, dim=axis)
def _gelu(x):
    return torch.nn.functional.gelu(x, approximate="tanh")
def _silu(x):
    return torch.nn.functional.silu(x)
def _sigmoid(x):
    return torch.sigmoid(x)
def _layernorm(x, axis=-1, eps=1e-5):
    m = x.mean(dim=axis, keepdim=True)
    v = x.var(dim=axis, keepdim=True, unbiased=False)
    return (x - m) / torch.sqrt(v + eps)
def _scatter_add(tgt, idx, src, axis=0):
    return tgt.clone().index_add_(axis, idx, src)
def _segment_sum(src, seg, n):
    out = torch.zeros((n,) + src.shape[1:], dtype=src.dtype)
    return out.index_add_(0, seg, src)
def _pad(x, pw):
    flat = tuple(v for pair in reversed(pw) for v in pair)
    return torch.nn.functional.pad(x, flat)

kernel_name = 'sequential_preLN__ssm_conv_h3__mixer_channel_mlp__prompt'

def setup_inputs():

    _w = (lambda a: (lambda t: t.to(torch.bfloat16) if t.is_floating_point() else t)(torch.as_tensor(a)))
    def _A_setup():
        B, S, D = 1, 2048, 1024
        ks = 4
        return {
            "q": _w((lambda *s: torch.randn(*s, dtype=torch.bfloat16) * 0.05)(B, S, D)),
            "k": _w((lambda *s: torch.randn(*s, dtype=torch.bfloat16) * 0.2)(B, S, D)),
            "v": _w((lambda *s: torch.randn(*s, dtype=torch.bfloat16) * 0.2)(B, S, D)),
            "shift_k": _w((lambda *s: torch.randn(*s, dtype=torch.bfloat16) * 0.2)(D, ks) * 0.5),
            "ssm_k": _w((lambda *s: torch.randn(*s, dtype=torch.bfloat16) * 0.8)(D, S) * (1.0 / S ** 0.5)),
            "ssm_D": _w((lambda *s: torch.randn(*s, dtype=torch.bfloat16) * 0.2)(D)),
        }
    _A_in = _A_setup()

    def _B_setup():
        B, S, D, F = 1, 2048, 1024, 3584
        return {
            "x": _w((lambda *s: torch.randn(*s, dtype=torch.bfloat16) * 0.05)(B, S, D)),
            "w1": _w((lambda *s: torch.randn(*s, dtype=torch.bfloat16) * 0.8)(D, F) * (D ** -0.5)),
            "b1": _w((lambda *s: torch.randn(*s, dtype=torch.bfloat16) * 0.4)(F)),
            "w2": _w((lambda *s: torch.randn(*s, dtype=torch.bfloat16) * 0.05)(F, D) * (F ** -0.5)),
            "b2": _w((lambda *s: torch.randn(*s, dtype=torch.bfloat16) * 0.05)(D)),
        }
    _B_in = _B_setup()

    return {
        "A_q": _A_in["q"],
        "A_k": _A_in["k"],
        "A_v": _A_in["v"],
        "A_shift_k": _A_in["shift_k"],
        "A_ssm_k": _A_in["ssm_k"],
        "A_ssm_D": _A_in["ssm_D"],
        "B_x": _B_in["x"],
        "B_w1": _B_in["w1"],
        "B_b1": _B_in["b1"],
        "B_w2": _B_in["w2"],
        "B_b2": _B_in["b2"],
    }

def reference(A_q, A_k, A_v, A_shift_k, A_ssm_k, A_ssm_D, B_x, B_w1, B_b1, B_w2, B_b2):
    def _A_ref(q, k, v, shift_k, ssm_k, ssm_D):
        B, S, D = q.shape
        ks = shift_k.shape[-1]
        k_pad = _pad(k, ((0, 0), (ks - 1, 0), (0, 0)))
        k_shift = torch.zeros_like(k)
        for t in range(ks):
            k_shift = k_shift + k_pad[:, t:t + S, :] * shift_k[:, ks - 1 - t][None, None, :]
        kv = k_shift * v
        L = 2 * S
        kv_pad = _pad(kv, ((0, 0), (0, S), (0, 0)))
        kf_pad = _pad(ssm_k, ((0, 0), (0, S)))
        kv_f = (lambda x, axes=(-2,-1): torch.fft.rfft2(x.float(), dim=axes))(kv_pad[:, None, :, :], axes=(1, 2))
        kf_f = (lambda x, axes=(-2,-1): torch.fft.rfft2(x.float(), dim=axes))(kf_pad[:, None, :], axes=(1, 2))
        kf_f = (lambda x, *d: x.permute(*d))(kf_f, 1, 2, 0)
        y_f = kv_f * kf_f[None, :, :, :]
        y = (lambda x, s, axes=(-2,-1): torch.fft.irfft2(x, s=s, dim=axes).to(torch.bfloat16))(y_f, (1, L), axes=(1, 2))[:, 0, :S, :]
        y = y + kv * ssm_D[None, None, :]
        return q * y

    def _B_ref(x, w1, b1, w2, b2):
        y = _layernorm(x, axis=-1)
        h = _gelu(torch.einsum("bsd,df->bsf", y, w1) + b1)
        return torch.einsum("bsf,fd->bsd", h, w2) + b2

    x = A_q
    h = x + _A_ref(_layernorm(x, axis=-1), A_k, A_v, A_shift_k, A_ssm_k, A_ssm_D)
    h2 = h + _B_ref(_layernorm(h, axis=-1), B_w1, B_b1, B_w2, B_b2)
    return h2
```

```python
import re

def v(n, c=1):
    return "v%d" % n if c == 1 else "v[%d:%d]" % (n, n + c - 1)
def s(n, c=1):
    return "s%d" % n if c == 1 else "s[%d:%d]" % (n, n + c - 1)

_REG = re.compile(r"^(-|abs\()?([vs])(?:(\d+)|\[(\d+):(\d+)\])\)?$")
def regs_of(tok):
    tok = tok.strip()
    if tok in ("vcc",): return {("s", "vcc")}
    if tok in ("exec",): return {("s", "exec")}
    if tok == "m0": return {("s", "m0")}
    m = _REG.match(tok)
    if not m: return set()
    k = m.group(2)
    if m.group(3) is not None: return {(k, int(m.group(3)))}
    return {(k, i) for i in range(int(m.group(4)), int(m.group(5)) + 1)}

TRANS = ("v_exp_f32", "v_log_f32", "v_rcp_f32", "v_rsq_f32", "v_sqrt_f32", "v_sin_f32", "v_cos_f32", "v_rcp_iflag_f32")

class Ins:
    __slots__ = ("text", "op", "ops", "kind", "dst", "src", "mods")
    def __init__(self, text):
        self.text = text
        t = text.split(";")[0].strip()
        parts = t.split(None, 1)
        self.op = parts[0]
        rest = parts[1] if len(parts) > 1 else ""
        ops = []; cur = ""; depth = 0
        for ch in rest:
            if ch in "[(": depth += 1
            if ch in "])": depth -= 1
            if ch == "," and depth == 0:
                ops.append(cur.strip()); cur = ""
            else: cur += ch
        if cur.strip(): ops.append(cur.strip())
        self.mods = ""
        if ops:
            p = ops[-1].split(None, 1)
            ops[-1] = p[0]
            if len(p) > 1: self.mods = p[1]
        self.ops = ops
        op = self.op
        self.dst = set(); self.src = set()
        R = [regs_of(o) for o in ops]
        allr = set().union(*R) if R else set()
        if op.startswith("v_mfma"):
            self.kind = "mfma"; self.dst = R[0]; self.src = set().union(*R[1:])
        elif op.startswith("v_cmp"):
            self.kind = "valu"; self.dst = R[0]; self.src = set().union(*R[1:])
            if op.startswith("v_cmpx"): self.dst |= {("s", "exec")}
        elif op.startswith("v_permlane") and "swap" in op:
            self.kind = "valu"; self.dst = R[0] | R[1]; self.src = R[0] | R[1]
        elif op.startswith("v_readfirstlane") or op.startswith("v_readlane"):
            self.kind = "valu"; self.dst = R[0]; self.src = set().union(*R[1:])
        elif op.startswith(("v_add_co", "v_sub_co", "v_addc_co", "v_subb_co", "v_subrev_co", "v_mad_u64", "v_div_scale")):
            self.kind = "valu"; self.dst = R[0] | R[1]; self.src = set().union(*R[2:])
        elif op.startswith("v_"):
            self.kind = "valu"; self.dst = R[0]; self.src = set().union(*R[1:]) if len(R) > 1 else set()
            if op.startswith(("v_fmac", "v_mac", "v_dot2c", "v_pk_fmac")) or "dpp" in op or "row_" in self.mods or "quad_perm" in self.mods or "wave_" in self.mods:
                self.src |= R[0]
            if op.startswith("v_cndmask") and len(ops) == 3: self.src |= {("s", "vcc")}
            if op.startswith("v_writelane"): self.src |= R[0]
        elif op.startswith("ds_"):
            self.kind = "ds"
            if op.startswith(("ds_read", "ds_bpermute", "ds_permute", "ds_swizzle")):
                self.dst = R[0]; self.src = set().union(*R[1:])
            else:
                self.src = allr
        elif op.startswith(("buffer_", "global_", "flat_")):
            self.kind = "vmem"
            if "load" in op and "lds" not in self.mods.split() and "_lds_" not in op:
                self.dst = R[0]; self.src = set().union(*R[1:])
            elif "atomic" in op and "sc0" in self.mods.split():
                self.dst = R[0]; self.src = set().union(*R[1:])
            else:
                self.src = allr
            if "lds" in self.mods.split() or "_lds_" in op: self.src |= {("s", "m0")}
        elif op.startswith("s_"):
            self.kind = "salu"
            if op.startswith(("s_cmp", "s_cbranch", "s_branch", "s_waitcnt", "s_nop", "s_barrier", "s_endpgm", "s_sleep", "s_setprio", "s_bitcmp")):
                self.src = allr
            else:
                self.dst = R[0] if R else set(); self.src = set().union(*R[1:]) if len(R) > 1 else set()
                if "saveexec" in op: self.dst |= {("s", "exec")}
        else:
            self.kind = "other"

    def is_dpp(self):
        return "dpp" in self.op or any(x in self.mods for x in ("row_", "quad_perm", "wave_"))
    def is_trans(self):
        return any(self.op.startswith(t) for t in TRANS)
    def mfma_passes(self):
        if "16x16x32" in self.op or "16x16x16" in self.op: return 4
        if "32x32x16" in self.op or "32x32x8" in self.op: return 8
        return 16
    def states(self):
        if self.op == "s_nop": return int(self.ops[0]) + 1
        return 1

def need_wait(p, c):
    n = 0
    vd = {r for r in p.dst if r[0] == "v"}
    sd = {r for r in p.dst if r[0] == "s"}
    if p.kind == "valu":
        if c.kind == "mfma" and vd & c.src: n = max(n, 2)
        if c.kind == "valu":
            if (c.op.startswith("v_permlane") or c.is_dpp()) and vd & c.src: n = max(n, 2)
            if c.op.startswith(("v_readlane", "v_readfirstlane")) and vd & c.src: n = max(n, 1)
            if p.is_trans() and vd & (c.src | c.dst) and not c.is_trans(): n = max(n, 1)
            if p.is_trans() and vd & c.src: n = max(n, 1)
            if sd & c.src:
                n = max(n, 4 if c.op.startswith(("v_readlane", "v_writelane")) else 2)
            if ("s", "exec") in sd: n = max(n, 5 if c.is_dpp() else (4 if c.op.startswith(("v_permlane","v_readlane","v_readfirstlane","v_writelane")) else 0))
            if "sdwa" in p.op and vd & c.src: n = max(n, 1)
        if c.kind == "mfma" and ("s", "exec") in sd: n = max(n, 4)
        if c.kind == "vmem" and sd & c.src: n = max(n, 5)
        if c.kind == "salu" and sd & c.src: n = max(n, 1)
    if p.kind == "mfma":
        ps = p.mfma_passes()
        tbl_rw = {2: 5, 4: 8, 8: 12, 16: 20}[ps]
        if c.kind in ("valu", "vmem", "ds") and vd & (c.src | c.dst): n = max(n, tbl_rw)
        if c.kind == "mfma":
            csrcC = regs_of(c.ops[3]) if len(c.ops) > 3 else set()
            cab = regs_of(c.ops[1]) | regs_of(c.ops[2])
            if vd & cab: n = max(n, tbl_rw)
            if vd & csrcC and not (p.ops[0] == c.ops[3] and ps == c.mfma_passes() and ps >= 4):
                n = max(n, {2: 4, 4: 6, 8: 10, 16: 18}[ps])
            if vd & c.dst and p.ops[0] != c.ops[3]: n = max(n, {2: 4, 4: 6, 8: 10, 16: 18}[ps])
        if c.kind == "valu":
            pc = regs_of(p.ops[3]) if len(p.ops) > 3 else set()
            if pc & c.dst: n = max(n, {2: 1, 4: 3, 8: 7, 16: 15}[ps])
    if p.kind == "salu":
        if ("s", "m0") in sd and ("s", "m0") in c.src and c.kind in ("vmem", "ds"): n = max(n, 1)
    if p.kind == "vmem" and "store" in p.op and ("x4" in p.op or "x3" in p.op):
        data = regs_of(p.ops[1]) if p.op.startswith("global") else regs_of(p.ops[0])
        if c.kind == "valu" and data & c.dst: n = max(n, 2)
        elif data & c.dst: n = max(n, 1)
    return n

class Asm:
    def __init__(self):
        self.lines = []
        self.nlabel = 0
    def e(self, text):
        for ln in text.split("\n"):
            ln = ln.strip()
            if ln: self.lines.append(ln)
    def c(self, text):
        self.lines.append("; " + text)
    def label(self, name):
        self.lines.append(name + ":")
    def newlabel(self, base):
        self.nlabel += 1
        return "L_%s_%d" % (base, self.nlabel)
    def finalize(self, lookback=24):
        out = []; hist = []
        labelpos = {}
        items = []
        for ln in self.lines:
            if ln.startswith(";") or ln.startswith("."):
                items.append(("raw", ln))
            elif ln.endswith(":"):
                items.append(("label", ln))
            else:
                items.append(("ins", Ins(ln)))
        nops = 0
        res = []
        for kind, it in items:
            if kind != "ins":
                res.append((kind, it)); continue
            need = 0; dist = 0
            for p in reversed(hist[-lookback:]):
                w = need_wait(p, it)
                if w > dist: need = max(need, w - dist)
                dist += p.states()
                if dist >= 20: break
            while need > 0:
                k = min(need, 16)
                nop = Ins("s_nop %d" % (k - 1)); res.append(("ins", nop)); hist.append(nop); need -= k; nops += 1
            res.append(("ins", it)); hist.append(it)
        lab = {}
        flat = [x for x in res]
        for i, (k, it) in enumerate(flat):
            if k == "label": lab[it[:-1]] = i
        problems = []
        for i, (k, it) in enumerate(flat):
            if k == "ins" and it.op.startswith(("s_cbranch", "s_branch")):
                tgt = it.ops[0]
                if tgt in lab:
                    j = lab[tgt]
                    tail = [x for kk, x in flat[max(0, i - 24):i + 1] if kk == "ins"]
                    head = [x for kk, x in flat[j:j + 24] if kk == "ins"]
                    d0 = 0
                    for hi, c in enumerate(head):
                        dist = d0
                        for p in reversed(tail):
                            w = need_wait(p, c)
                            if w > dist: problems.append((p.text, c.text, w, dist))
                            dist += p.states()
                            if dist >= 20: break
                        d0 += c.states()
                        if d0 >= 20: break
        if problems:
            for p in problems[:20]: print("HAZARD across branch:", p)
            raise RuntimeError("branch hazards")
        txt = []
        for k, it in res:
            if k == "ins": txt.append("    " + it.text)
            elif k == "label": txt.append(it)
            else: txt.append(("    " + it) if it.startswith(";") else it)
        self.nops = nops
        return "\n".join(txt) + "\n"
```

```python
import sys
from asmb import Asm, v, s

KNAME = "sequential_preLN__ssm_conv_h3__mixer_channel_mlp__prompt_kernel"
S_, D_, F_ = 2048, 1024, 3584

WS_FLAGS = 0
WS_EPOCH = 32768
WS_ST    = 65536
WS_TSP   = 131072
WS_CSP   = 393216
WS_STAMP = 786432
WS_XR    = 1 << 20
WS_XT    = 5 << 20
WS_HT    = 9 << 20
WS_HM    = 13 << 20
WS_EX    = 28 << 20
WS_SIZE  = 64 << 20

S_X, S_K, S_V, S_SH, S_SSMK, S_SSMD, S_BX, S_W1 = 8, 10, 12, 14, 16, 18, 20, 22
S_B1, S_W2, S_B2, S_OUT = 24, 26, 28, 30
S_DBG, S_WS = 32, 34
SRD_WS, SRD_A, SRD_B, SRD_C = 36, 40, 44, 48
S_WV, S_XI, S_J, S_EP = 52, 53, 54, 55

LDS_BYTES = 163840

class G(Asm):
    def __init__(self, opts):
        super().__init__()
        self.o = opts
        self.stamp_names = []

    def srd(self, dst, ptr, nbytes):
        self.e(f"s_mov_b32 {s(dst)}, {s(ptr)}")
        self.e(f"s_mov_b32 {s(dst+1)}, {s(ptr+1)}")
        self.e(f"s_mov_b32 {s(dst+2)}, {nbytes}")
        self.e(f"s_mov_b32 {s(dst+3)}, 0x20000")

    def stamp(self, name):
        if not self.o.get("stamps"): return
        if name in self.stamp_names: i = self.stamp_names.index(name)
        else:
            i = len(self.stamp_names)
            assert i < 32
            self.stamp_names.append(name)
        self.e(f"{'s_memtime' if self.o.get('cyc') else 's_memrealtime'} s[100:101]")
        self.e("s_waitcnt lgkmcnt(0)")
        self.e(f"v_writelane_b32 v253, s100, {i}")
    def tick(self, i): pass
    def tick_flush(self, n): pass

    def stamp_flush(self):
        if not self.o.get("stamps"): return
        L = self.newlabel("tf")
        self.e(f"s_and_b32 s98, {s(S_WV)}, 3")
        self.e("s_cmp_lg_u32 s98, 0")
        self.e(f"s_cbranch_scc1 {L}")
        self.e(f"s_lshl_b32 s98, s2, 8")
        self.e(f"s_lshl_b32 s99, {s(S_WV)}, 5")
        self.e("s_add_u32 s98, s98, s99")
        self.e(f"s_add_u32 s98, s98, {WS_STAMP}")
        self.e("v_lshlrev_b32 v255, 2, v0")
        self.e("v_add_u32 v255, s98, v255")
        self.e("s_mov_b32 exec_hi, 0")
        self.e(f"buffer_store_dword v253, v255, {s(SRD_WS,4)}, 0 offen")
        self.e("s_mov_b64 exec, -1")
        self.label(L)

    def prologue(self):
        e = self.e
        e("s_cmp_ge_u32 s2, 256")
        e("s_cbranch_scc1 L_end")
        e("s_load_dwordx16 s[8:23], s[0:1], 0")
        e("s_load_dwordx8 s[24:31], s[0:1], 64")
        e("s_load_dwordx4 s[32:35], s[0:1], 96")
        e("v_lshrrev_b32 v1, 6, v0")
        e(f"v_readfirstlane_b32 {s(S_WV)}, v1")
        e("v_and_b32 v0, 63, v0")
        e(f"s_and_b32 {s(S_XI)}, s2, 7")
        e(f"s_lshr_b32 {s(S_J)}, s2, 3")
        e("s_waitcnt lgkmcnt(0)")
        self.srd(SRD_WS, S_WS, WS_SIZE)
        e(f"s_load_dword {s(S_EP)}, {s(S_WS,2)}, {WS_EPOCH}")

    def epoch_ready(self):
        e = self.e
        e("s_waitcnt lgkmcnt(0)")
        e(f"s_and_b32 {s(S_EP)}, {s(S_EP)}, 0xfffffff0")
        e(f"s_add_u32 {s(S_EP)}, {s(S_EP)}, 16")

    def signal(self, p, wave=0):
        e = self.e
        e("s_waitcnt vmcnt(0) lgkmcnt(0)")
        e("s_barrier")
        L = self.newlabel("sig")
        e(f"s_cmp_lg_u32 {s(S_WV)}, {wave}")
        e(f"s_cbranch_scc1 {L}")
        self.publish(p)
        self.label(L)

    def poll_all(self, p, t0=248, sleep=0):
        e = self.e
        L = self.newlabel("poll"); Lx = self.newlabel("pollx")
        e(f"s_add_u32 s56, {s(S_EP)}, {p}")
        e(f"v_lshlrev_b32 {v(t0+4)}, 7, v0")
        e("s_mov_b32 s57, 0x100000")
        self.label(L)
        if sleep: e(f"s_sleep {sleep}")
        e(f"buffer_load_dwordx4 {v(t0,4)}, {v(t0+4)}, {s(SRD_WS,4)}, 0 offen sc1")
        e("s_sub_u32 s57, s57, 1")
        e("s_cmp_eq_u32 s57, 0")
        e(f"s_cbranch_scc1 {Lx}")
        e("s_waitcnt vmcnt(0)")
        for i in range(4):
            e(f"v_subrev_u32 {v(t0+i)}, s56, {v(t0+i)}")
        e(f"v_max_u32 {v(t0)}, {v(t0)}, {v(t0+1)}")
        e(f"v_max3_u32 {v(t0)}, {v(t0)}, {v(t0+2)}, {v(t0+3)}")
        e(f"v_cmp_le_u32 vcc, 16, {v(t0)}")
        e(f"s_cbranch_vccnz {L}")
        self.label(Lx)
        e("s_waitcnt vmcnt(0)")

    def poll_group(self, p, t0=250):
        e = self.e
        L = self.newlabel("pollg"); Lx = self.newlabel("pollgx")
        e(f"s_add_u32 s56, {s(S_EP)}, {p}")
        e(f"v_and_b32 {v(t0+1)}, 31, v0")
        e(f"v_lshlrev_b32 {v(t0+1)}, 8, {v(t0+1)}")
        e(f"s_lshr_b32 s57, {s(S_XI)}, 2")
        e("s_lshl_b32 s57, s57, 7")
        e(f"v_add_u32 {v(t0+1)}, s57, {v(t0+1)}")
        e(f"s_and_b32 s57, {s(S_XI)}, 3")
        e("s_lshl_b32 s57, s57, 2")
        e(f"v_add_u32 {v(t0+1)}, s57, {v(t0+1)}")
        e("s_mov_b32 s57, 0x100000")
        self.label(L)
        e(f"buffer_load_dword {v(t0)}, {v(t0+1)}, {s(SRD_WS,4)}, 0 offen sc1")
        e("s_sub_u32 s57, s57, 1")
        e("s_cmp_eq_u32 s57, 0")
        e(f"s_cbranch_scc1 {Lx}")
        e("s_waitcnt vmcnt(0)")
        e(f"v_subrev_u32 {v(t0)}, s56, {v(t0)}")
        e(f"v_cmp_le_u32 vcc, 16, {v(t0)}")
        e(f"s_cbranch_vccnz {L}")
        self.label(Lx)
        e("s_waitcnt vmcnt(0)")

    def wait_all(self, p, wave=0):
        e = self.e
        if self.o.get("nosync"):
            e("s_barrier"); return
        L = self.newlabel("wa")
        e(f"s_cmp_lg_u32 {s(S_WV)}, {wave}")
        e(f"s_cbranch_scc1 {L}")
        self.poll_all(p)
        self.label(L)
        e("s_barrier")

    def allreduce_add(self, regs, tmp):
        e = self.e
        for mod in ("quad_perm:[1,0,3,2]", "quad_perm:[2,3,0,1]", "row_half_mirror", "row_mirror"):
            for r in regs:
                e(f"v_add_f32_dpp {v(r)}, {v(r)}, {v(r)} {mod} row_mask:0xf bank_mask:0xf")
        for op in ("v_permlane16_swap_b32", "v_permlane32_swap_b32"):
            for r, t in zip(regs, tmp): e(f"v_mov_b32 {v(t)}, {v(r)}")
            for r, t in zip(regs, tmp): e(f"{op} {v(t)}, {v(r)}")
            for r, t in zip(regs, tmp): e(f"v_add_f32 {v(r)}, {v(r)}, {v(t)}")

    def round_bf16(self, dst, src):
        self.e(f"v_cvt_pk_bf16_f32 {v(dst)}, {v(src)}, {v(src)}")
        self.e(f"v_and_b32 {v(dst)}, 0xffff0000, {v(dst)}")

    C_HC, C_HSTR, C_HCH = 0, 4160, 16640
    C_XR, C_XCH = 66560, 4608
    C_ST = 84992
    C_EX = 101376
    C_XT = 134144
    C_CNT = 150528

    def unpack(self, dst, src, hi):
        if hi: self.e(f"v_and_b32 {v(dst)}, 0xffff0000, {v(src)}")
        else:  self.e(f"v_lshlrev_b32 {v(dst)}, 16, {v(src)}")

    def chC(self, dst):
        e = self.e
        e(f"s_and_b32 s58, {s(S_WV)}, 3")
        e(f"s_lshl_b32 s56, {s(S_XI)}, 7")
        e(f"s_lshl_b32 s57, {s(S_J)}, 2")
        e("s_add_u32 s56, s56, s57")
        e(f"s_add_u32 {s(dst)}, s56, s58")

    def lds_transpose_setup(self):
        e = self.e
        e(f"s_lshl_b32 s56, {s(S_WV)}, 12")
        e(f"s_add_u32 s56, s56, {self.C_EX}")
        e("v_xor_b32 v126, v1, v2")
        e("v_lshlrev_b32 v126, 4, v126")
        e("v_lshl_add_u32 v126, v2, 9, v126")
        e("v_add_u32 v126, s56, v126")
        e("v_lshrrev_b32 v127, 5, v0")
        e("v_lshl_add_u32 v128, v1, 7, s56")
        for i in range(4):
            e(f"v_add_u32 v129, {2*i}, v127")
            e("v_xor_b32 v129, v129, v2")
            e(f"v_lshl_add_u32 {v(130+i)}, v129, 4, v128")

    def h_loads(self):
        e = self.e
        e("s_lshl_b32 s56, s63, 12")
        e(f"s_add_u32 {s(SRD_C)}, {s(S_SSMK)}, s56")
        e(f"s_addc_u32 {s(SRD_C+1)}, {s(S_SSMK+1)}, 0")
        e(f"s_mov_b32 {s(SRD_C+2)}, 4096")
        e(f"s_mov_b32 {s(SRD_C+3)}, 0x20000")
        e(f"s_lshr_b32 s56, {s(S_WV)}, 2")
        e("s_mul_i32 s56, s56, 130")
        e("v_add_u32 v8, s56, v0")
        e("v_lshlrev_b32 v8, 4, v8            ; 16*vv")
        e("v_subrev_u32 v9, 32, v8")
        for it in range(3):
            if it: e(f"v_add_u32 v9, 1024, v9")
            e(f"buffer_load_dwordx4 {v(140+6*it,4)}, v9, {s(SRD_C,4)}, 0 offen")
            e(f"buffer_load_dwordx2 {v(140+6*it+4,2)}, v9, {s(SRD_C,4)}, 0 offen offset:16")

    def h_build(self):
        e = self.e
        e(f"s_and_b32 s58, {s(S_WV)}, 3")
        e(f"s_mul_i32 s56, s58, {self.C_HCH}")
        e("v_add_u32 v8, s56, v8")
        T = 64
        for it in range(3):
            a = 140 + 6*it
            if it == 2: e("s_mov_b64 exec, 3")
            off = 1024 * it
            e(f"ds_write_b128 v8, {v(a,4)} offset:{self.C_HC + off}")
            for d in range(4): e(f"v_mov_b32 {v(T+d)}, {v(a+1+d)}")
            e(f"ds_write_b128 v8, {v(T,4)} offset:{self.C_HC + 2*self.C_HSTR + off}")
            for d in range(4): e(f"v_alignbit_b32 {v(T+4+d)}, {v(a+d+1)}, {v(a+d)}, 16")
            e(f"ds_write_b128 v8, {v(T+4,4)} offset:{self.C_HC + 1*self.C_HSTR + off}")
            for d in range(4): e(f"v_alignbit_b32 {v(T+8+d)}, {v(a+d+2)}, {v(a+d+1)}, 16")
            e(f"ds_write_b128 v8, {v(T+8,4)} offset:{self.C_HC + 3*self.C_HSTR + off}")
            T = 76 if T == 64 else 64
        e("s_mov_b64 exec, -1")

    def phase_p(self):
        e = self.e
        Lb = self.newlabel("p_b"); Le = self.newlabel("p_e")
        self.chC(63)
        e("v_lshrrev_b32 v1, 3, v0           ; pbk")
        e("v_and_b32 v2, 7, v0               ; cq")
        e(f"s_lshl_b32 s56, {s(S_XI)}, 7")
        e("s_lshl_b32 s57, s58, 5")
        e("s_add_u32 s59, s56, s57            ; 128x + 32w")
        e("v_lshl_add_u32 v3, v2, 2, s59      ; ch0")
        e(f"s_lshl_b32 s56, {s(S_J)}, 6")
        e("v_lshl_add_u32 v4, v1, 3, s56")
        e("v_lshlrev_b32 v5, 11, v4")
        e("v_lshl_add_u32 v5, v3, 1, v5")
        e(f"s_cmp_ge_u32 {s(S_WV)}, 4")
        e(f"s_cbranch_scc1 {Lb}")
        self.srd(SRD_A, S_K, S_ * D_ * 2)
        self.srd(SRD_B, S_V, S_ * D_ * 2)
        self.srd(SRD_C, S_SH, D_ * 8)
        KD, VD, WD = 10, 32, 48
        e("v_subrev_u32 v120, 6144, v5")
        for i in range(1, 6): e(f"v_add_u32 {v(120+i)}, {4096*i}, v120")
        for i in range(11):
            e(f"buffer_load_dwordx2 {v(KD+2*i,2)}, {v(120+i//2)}, {s(SRD_A,4)}, 0 offen offset:{2048*(i&1)}")
        e("v_lshlrev_b32 v7, 3, v3            ; ch0*8")
        e(f"buffer_load_dwordx4 {v(WD,4)}, v7, {s(SRD_C,4)}, 0 offen")
        e(f"buffer_load_dwordx4 {v(WD+4,4)}, v7, {s(SRD_C,4)}, 0 offen offset:16")
        for p in range(8):
            i = p + 3
            e(f"buffer_load_dwordx2 {v(VD+2*p,2)}, {v(120+i//2)}, {s(SRD_B,4)}, 0 offen offset:{2048*(i&1)}")
        e("v_mov_b32 v8, 0"); e("v_mov_b32 v9, 0")
        e(f"s_mul_i32 s56, s58, {self.C_XCH}")
        e(f"s_add_u32 s56, s56, {self.C_XR + 4096}")
        e("v_lshl_add_u32 v6, v0, 3, s56")
        e("ds_write_b64 v6, v[8:9]")
        self.lds_transpose_setup()
        e("v_lshlrev_b32 v6, 4, v2")
        e(f"s_lshl_b32 s56, {s(S_J)}, 7")
        e("s_sub_u32 s56, 4080, s56")
        e("v_sub_u32 v6, s56, v6")
        e("v_add_u32 v7, s59, v1")
        e("v_lshl_add_u32 v6, v7, 12, v6")
        e(f"v_add_u32 v6, {WS_XR}, v6")
        for c in range(1, 4): e(f"s_mov_b32 {s(64+c)}, {8*4096*c}")
        e("s_mov_b32 s64, 0")
        WP, KP, R, VP, O = 56, 64, 86, 102, 104
        e("s_waitcnt vmcnt(8)")
        for cp in range(2):
            for j in range(4):
                self.unpack(WP + 2*j,     WD + 2*(2*cp)   + (j >> 1), j & 1)
                self.unpack(WP + 2*j + 1, WD + 2*(2*cp+1) + (j >> 1), j & 1)
            for i in range(11):
                self.unpack(KP + 2*i,     KD + 2*i + cp, 0)
                self.unpack(KP + 2*i + 1, KD + 2*i + cp, 1)
            if cp == 0: e("s_waitcnt vmcnt(0)")
            for p in range(8):
                r = R + 2*p
                e(f"v_pk_mul_f32 {v(r,2)}, {v(KP+2*(p+3),2)}, {v(WP,2)}")
                for j in range(1, 4):
                    e(f"v_pk_fma_f32 {v(r,2)}, {v(KP+2*(p+3-j),2)}, {v(WP+2*j,2)}, {v(r,2)}")
                self.unpack(VP,     VD + 2*p + cp, 0)
                self.unpack(VP + 1, VD + 2*p + cp, 1)
                e(f"v_pk_mul_f32 {v(r,2)}, {v(r,2)}, {v(VP,2)}")
            for cc in range(2):
                c = 2*cp + cc
                for j in range(4):
                    e(f"v_cvt_pk_bf16_f32 {v(O+4*c+j)}, {v(R+2*(7-2*j)+cc)}, {v(R+2*(6-2*j)+cc)}")
                e(f"ds_write_b128 v126, {v(O+4*c,4)} offset:{128*c}")
        e("s_waitcnt lgkmcnt(0)")
        for i in range(4): e(f"ds_read_b128 {v(O+4*i,4)}, {v(130+i)} offset:{1024*i}")
        for i in range(4):
            e(f"s_waitcnt lgkmcnt({3-i})")
            e(f"buffer_store_dwordx4 {v(O+4*i,4)}, v6, {s(SRD_WS,4)}, {s(64+i)} offen sc1")
        e(f"s_branch {Le}")
        self.label(Lb)
        self.srd(SRD_A, S_X, S_ * D_ * 2)
        XD, SD = 10, 26
        e("v_mov_b32 v120, v5")
        for i in range(1, 4): e(f"v_add_u32 {v(120+i)}, {4096*i}, v5")
        for p in range(8):
            e(f"buffer_load_dwordx2 {v(XD+2*p,2)}, {v(120+p//2)}, {s(SRD_A,4)}, 0 offen offset:{2048*(p&1)}")
        e("s_lshl_b32 s56, s2, 3")
        e("s_lshl_b32 s57, s58, 1")
        e("s_add_u32 s62, s56, s57            ; R0 = 8w + 2w'")
        e("s_lshl_b32 s56, s62, 11")
        e("v_lshl_add_u32 v6, v0, 4, s56")
        for i in range(4):
            e(f"buffer_load_dwordx4 {v(SD+4*i,4)}, v6, {s(SRD_A,4)}, 0 offen offset:{1024*i}")
        self.lds_transpose_setup()
        e("v_lshlrev_b32 v6, 4, v2")
        e(f"s_lshl_b32 s56, {s(S_J)}, 7")
        e("v_add_u32 v6, s56, v6")
        e("v_add_u32 v7, s59, v1")
        e("v_lshl_add_u32 v6, v7, 12, v6")
        e(f"v_add_u32 v6, {WS_XT}, v6")
        for c in range(1, 4): e(f"s_mov_b32 {s(64+c)}, {8*4096*c}")
        e("s_mov_b32 s64, 0")
        e("s_mov_b32 s60, 0x05040100")
        e("s_mov_b32 s61, 0x07060302")
        O = 104
        e("s_waitcnt vmcnt(4)")
        for c in range(4):
            sel = s(61) if c & 1 else s(60)
            for j in range(4):
                e(f"v_perm_b32 {v(O+4*c+j)}, {v(XD+2*(2*j+1)+(c>>1))}, {v(XD+2*(2*j)+(c>>1))}, {sel}")
            e(f"ds_write_b128 v126, {v(O+4*c,4)} offset:{128*c}")
        e("s_waitcnt lgkmcnt(0)")
        for i in range(4): e(f"ds_read_b128 {v(O+4*i,4)}, {v(130+i)} offset:{1024*i}")
        for i in range(4):
            e(f"s_waitcnt lgkmcnt({3-i})")
            e(f"buffer_store_dwordx4 {v(O+4*i,4)}, v6, {s(SRD_WS,4)}, {s(64+i)} offen sc1")
        U = 44
        e("s_waitcnt vmcnt(4)")
        for r in range(2):
            for d in range(8):
                self.unpack(U+16*r+2*d, SD+8*r+d, 0)
                self.unpack(U+16*r+2*d+1, SD+8*r+d, 1)
        SUM = [80, 81]; TMP = [82, 83]; VAR = [86, 87]
        for r in range(2):
            b = U + 16*r
            e(f"v_pk_add_f32 v[84:85], {v(b,2)}, {v(b+2,2)}")
            for d in range(2, 8):
                e(f"v_pk_add_f32 v[84:85], v[84:85], {v(b+2*d,2)}")
            e(f"v_add_f32 {v(SUM[r])}, v84, v85")
        self.allreduce_add(SUM, TMP)
        for r in range(2):
            e(f"v_mul_f32 {v(SUM[r])}, 0x3a800000, {v(SUM[r])}")
        for r in range(2):
            b = U + 16*r
            for d in range(0, 16, 2):
                e(f"v_sub_f32 {v(b+d)}, {v(b+d)}, {v(SUM[r])}")
                e(f"v_sub_f32 {v(b+d+1)}, {v(b+d+1)}, {v(SUM[r])}")
            e(f"v_pk_mul_f32 v[84:85], {v(b,2)}, {v(b,2)}")
            for d in range(1, 8):
                e(f"v_pk_fma_f32 v[84:85], {v(b+2*d,2)}, {v(b+2*d,2)}, v[84:85]")
            e(f"v_add_f32 {v(VAR[r])}, v84, v85")
        self.allreduce_add(VAR, TMP)
        ST = 88
        for r in range(2):
            e(f"v_mul_f32 {v(VAR[r])}, 0x3a800000, {v(VAR[r])}")
            self.round_bf16(VAR[r], VAR[r])
            e(f"v_add_f32 {v(VAR[r])}, 0x3727c5ac, {v(VAR[r])}")
            self.round_bf16(VAR[r], VAR[r])
            e(f"v_sqrt_f32 {v(VAR[r])}, {v(VAR[r])}")
            self.round_bf16(VAR[r], VAR[r])
            e(f"v_rcp_f32 {v(ST+2*r+1)}, {v(VAR[r])}")
            self.round_bf16(ST + 2*r, SUM[r])
        e("s_lshl_b32 s56, s62, 3")
        e(f"s_add_u32 s56, s56, {WS_ST}")
        e("v_mov_b32 v6, s56")
        e("s_mov_b64 exec, 1")
        e(f"buffer_store_dwordx4 {v(ST,4)}, v6, {s(SRD_WS,4)}, 0 offen sc1")
        e("s_mov_b64 exec, -1")
        self.label(Le)
        self.stamp("p_stored")
        self.h_loads()
        e("s_and_b32 s56, s63, 0xfffffffe")
        e("s_lshl_b32 s56, s56, 1")
        e(f"s_load_dword s69, {s(S_SSMD,2)}, s56")
        self.epoch_ready()
        e("s_waitcnt vmcnt(6)")
        e("s_barrier")
        L = self.newlabel("psig"); L2 = self.newlabel("psig2")
        e(f"s_cmp_lg_u32 {s(S_WV)}, 4")
        e(f"s_cbranch_scc1 {L}")
        self.publish(1)
        e("s_waitcnt vmcnt(1)")
        e(f"s_branch {L2}")
        self.label(L)
        e("s_waitcnt vmcnt(0)")
        self.label(L2)
        self.stamp("p_sig")
        self.h_build()
        e("s_waitcnt lgkmcnt(0)")
        e("s_barrier")
        self.stamp("p_end")

    def publish(self, p):
        e = self.e
        e(f"s_add_u32 s56, {s(S_EP)}, {p}")
        e("v_mov_b32 v254, s56")
        e("s_lshr_b32 s57, s2, 2")
        e("s_lshl_b32 s57, s57, 7")
        e("s_and_b32 s56, s2, 3")
        e("s_lshl_b32 s56, s56, 2")
        e("s_add_u32 s57, s57, s56")
        e("v_mov_b32 v255, s57")
        e("s_mov_b64 exec, 1")
        e(f"buffer_store_dword v254, v255, {s(SRD_WS,4)}, 0 offen sc1")
        e("s_mov_b64 exec, -1")

    def phase_c(self):
        e = self.e
        Lh = self.newlabel("c_help"); Lj = self.newlabel("c_join"); Lep = self.newlabel("c_epi")
        e(f"s_cmp_ge_u32 {s(S_WV)}, 4")
        e(f"s_cbranch_scc1 {Lh}")
        self.chC(63)
        e("v_lshlrev_b32 v1, 4, v0            ; lane*16")
        if not self.o.get("nosync"): self.poll_group(1)
        self.stamp("c_start")
        e("s_lshl_b32 s56, s63, 12")
        e(f"s_add_u32 s60, s56, {WS_XR}")
        e(f"s_mul_i32 s56, s58, {self.C_XCH}")
        e(f"s_add_u32 m0, s56, {self.C_XR}")
        for i in range(4):
            e(f"buffer_load_dwordx4 v1, {s(SRD_WS,4)}, s60 offen sc1 lds")
            if i < 3: e("s_add_u32 m0, m0, 1024"); e("s_add_u32 s60, s60, 1024")
        e("v_and_b32 v2, 15, v0               ; n / m")
        e("v_lshrrev_b32 v3, 4, v0            ; g / rho")
        e("v_add_u32 v6, 1, v2")
        e("v_and_b32 v7, 3, v6")
        e(f"v_mul_u32_u24 v7, {self.C_HSTR}, v7")
        e("v_and_b32 v6, 0x1c, v6")
        e("v_lshl_add_u32 v7, v6, 1, v7")
        e("v_lshl_add_u32 v7, v3, 4, v7")
        e(f"s_mul_i32 s56, s58, {self.C_HCH}")
        e(f"s_add_u32 s56, s56, {self.C_HC}")
        e("v_add_u32 v8, s56, v7              ; v8 = A base")
        e("v_lshlrev_b32 v6, 5, v2")
        e("v_lshlrev_b32 v7, 4, v3")
        e("v_sub_u32 v6, v7, v6")
        e(f"s_mul_i32 s56, s58, {self.C_XCH}")
        e(f"s_add_u32 s56, s56, {self.C_XR + 480}")
        e("v_add_u32 v9, s56, v6              ; v9 = B base")
        e("s_waitcnt vmcnt(0)")
        self.stamp("c_loop")
        ACC = 10
        FA = [42, 106]; FB = [74, 138]
        def reads(st, tt):
            r = []
            for i in range(8):
                r.append(f"ds_read_b128 {v(FB[st]+4*i,4)}, v9 offset:{512*(7-i) + 64*tt}")
                for hh in range(2):
                    r.append(f"ds_read_b64 {v(FA[st]+4*i+2*hh,2)}, v8 offset:{512*i + 64*tt + 8*hh}")
            return r
        pairs = sorted([(q, cp) for q in range(8) for cp in range(8 - q)], key=lambda t: (max(t), t[0] + t[1]))
        for r in reads(0, 0): e(r)
        for tt in range(8):
            st = tt & 1
            e("s_waitcnt lgkmcnt(0)")
            nxt = reads(st ^ 1, tt + 1) if tt < 7 else []
            seen = set(); i = 0
            for (q, cp) in pairs:
                c = q + cp
                a = ACC + 4*c
                src = "0" if (tt == 0 and c not in seen) else v(a, 4)
                seen.add(c)
                e(f"v_mfma_f32_16x16x32_bf16 {v(a,4)}, {v(FA[st]+4*q,4)}, {v(FB[st]+4*cp,4)}, {src}")
                if i < len(nxt): e(nxt[i]); i += 1
        self.stamp("c_loopend")
        e(f"s_lshl_b32 s56, s58, 12")
        e(f"s_add_u32 s56, s56, {self.C_EX + 16384}")
        e("v_add_u32 v6, s56, v1")
        for i in range(4): e(f"ds_write_b128 v6, {v(ACC+16+4*i,4)} offset:{1024*i}")
        e("s_waitcnt lgkmcnt(0)")
        e("s_barrier")
        e(f"s_branch {Lep}")
        self.label(Lh)
        self.chC(63)
        Lq = self.newlabel("c_q"); Lq2 = self.newlabel("c_q2")
        e(f"s_cmp_eq_u32 {s(S_WV)}, 4")
        e(f"s_cbranch_scc0 {Lq}")
        if not self.o.get("nosync"): self.poll_all(1, sleep=self.o.get('x_sleep', 4))
        e("v_lshlrev_b32 v1, 4, v0")
        e(f"s_mov_b32 s60, {WS_ST}")
        e(f"s_mov_b32 m0, {self.C_ST}")
        for i in range(16):
            e(f"buffer_load_dwordx4 v1, {s(SRD_WS,4)}, s60 offen sc1 lds")
            e("s_add_u32 m0, m0, 1024"); e("s_add_u32 s60, s60, 1024")
        e("s_lshl_b32 s56, s63, 12")
        e(f"s_add_u32 s60, s56, {WS_XT}")
        e(f"s_mov_b32 m0, {self.C_XT}")
        for i in range(16):
            e(f"buffer_load_dwordx4 v1, {s(SRD_WS,4)}, s60 offen sc1 lds")
            if i < 15: e("s_add_u32 m0, m0, 1024"); e("s_add_u32 s60, s60, 1024")
        e("s_waitcnt vmcnt(0)")
        self.stamp("c_xjob")
        e(f"s_branch {Lq2}")
        self.label(Lq)
        e(f"s_cmp_eq_u32 {s(S_WV)}, 5")
        e(f"s_cbranch_scc0 {Lq2}")
        if self.o.get("prefetch_w", True):
            if not self.o.get("nosync"): self.poll_group(1)
            for i in range(8): self.prefetch_w(i)
        self.label(Lq2)
        self.stamp("c_loopend")
        e("s_barrier")
        self.chC(63)
        e("v_lshlrev_b32 v1, 4, v0")
        e("v_and_b32 v2, 15, v0")
        e("v_lshrrev_b32 v3, 4, v0")
        e(f"s_lshl_b32 s56, s58, 12")
        e(f"s_add_u32 s56, s56, {self.C_EX + 16384}")
        e("v_add_u32 v6, s56, v1")
        for i in range(4): e(f"ds_read_b128 {v(ACC+4*i,4)}, v6 offset:{1024*i}")
        self.label(Lep)
        self.stamp("c_exch")
        e(f"s_lshr_b32 s59, {s(S_WV)}, 2       ; kh")
        e("v_and_b32 v4, 1, v3")
        e("s_lshl_b32 s56, s59, 2")
        e("v_add_u32 v4, s56, v4")
        e("v_lshlrev_b32 v4, 8, v4")
        e("v_lshl_add_u32 v4, v2, 4, v4")
        e("v_lshrrev_b32 v5, 1, v3")
        e("v_lshl_add_u32 v4, v5, 3, v4       ; v4 = s (pair 0)")
        KV, STT, XE = 42, 50, 82
        e("v_sub_u32 v5, 2040, v4")
        e("v_lshlrev_b32 v5, 1, v5")
        e(f"s_mul_i32 s56, s58, {self.C_XCH}")
        e(f"s_add_u32 s56, s56, {self.C_XR - 1024}")
        e("v_add_u32 v5, s56, v5")
        e(f"ds_read_b128 {v(KV,4)}, v5 offset:1024")
        e(f"ds_read_b128 {v(KV+4,4)}, v5")
        e("s_lshl_b32 s56, s58, 12")
        e(f"s_add_u32 s56, s56, {self.C_XT}")
        e("v_lshl_add_u32 v5, v4, 1, s56")
        e(f"ds_read_b128 {v(XE,4)}, v5")
        e(f"ds_read_b128 {v(XE+4,4)}, v5 offset:1024")
        e("v_lshlrev_b32 v5, 3, v4")
        e(f"v_add_u32 v5, {self.C_ST}, v5")
        for p in range(2):
            for i in range(4):
                e(f"ds_read_b128 {v(STT+16*p+4*i,4)}, v5 offset:{4096*p + 16*i}")
        e("v_lshrrev_b32 v5, 7, v4")
        e("v_lshlrev_b32 v5, 18, v5")
        e("v_and_b32 v6, 127, v4")
        e("v_lshl_add_u32 v5, v6, 1, v5")
        e("s_lshl_b32 s56, s63, 8")
        e(f"s_add_u32 s60, s56, {WS_HT}")
        e(f"s_add_u32 s62, s60, {4 << 18}")
        e("s_and_b32 s56, s63, 1")
        e("s_lshl_b32 s56, s56, 4")
        e("s_lshr_b32 s61, s69, s56")
        e("s_lshl_b32 s61, s61, 16")
        e("s_waitcnt lgkmcnt(0)")
        H = 110
        for p in range(2):
            a = ACC + 8*p; b = a + 4
            for r in range(4):
                e(f"v_permlane16_swap_b32 {v(a+r)}, {v(b+r)}")
            for el in range(8):
                y = a + el
                xr_ = XE + 4*p + (el >> 1)
                kj = KV + 4*p + ((7 - el) >> 1)
                t0 = H + 16 + (el & 1) * 4
                self.unpack(t0, xr_, el & 1)
                self.unpack(t0 + 1, kj, 1 - (el & 1))
                m_ = STT + 16*p + 2*el
                e(f"v_fmac_f32 {v(y)}, s61, {v(t0+1)}")
                e(f"v_sub_f32 {v(t0+2)}, {v(t0)}, {v(m_)}")
                e(f"v_mul_f32 {v(t0+2)}, {v(t0+2)}, {v(m_+1)}")
                e(f"v_fma_f32 {v(H+el)}, {v(t0+2)}, {v(y)}, {v(t0)}")
            O = H + 8
            for j in range(4):
                e(f"v_cvt_pk_bf16_f32 {v(O+j)}, {v(H+2*j)}, {v(H+2*j+1)}")
            e(f"buffer_store_dwordx4 {v(O,4)}, v5, {s(SRD_WS,4)}, {s(60 if p == 0 else 62)} offen sc1")
            H = 140

    def prefetch_w(self, i):
        e = self.e
        if i == 0:
            e("s_cmp_lt_u32 s2, 128")
            e(f"s_cselect_b32 {s(SRD_C)}, {s(S_W1)}, {s(S_W2)}")
            e(f"s_cselect_b32 {s(SRD_C+1)}, {s(S_W1+1)}, {s(S_W2+1)}")
            e(f"s_mov_b32 {s(SRD_C+2)}, {D_*F_*2}")
            e(f"s_mov_b32 {s(SRD_C+3)}, 0x20000")
            e("s_and_b32 s56, s2, 127")
            e("s_mul_i32 s56, s56, 448*128")
            e("v_min_u32 v247, 55, v0")
            e("v_lshlrev_b32 v247, 7, v247")
            e("v_add_u32 v247, s56, v247")
        else:
            e(f"v_add_u32 v247, {56*128}, v247")
        e(f"buffer_load_dword v246, v247, {s(SRD_C,4)}, 0 offen")

    G1_STG = 45056
    G1_TOK, G1_W = 0, 16384
    G1_AST = 135168
    G1_CS  = 136192
    G1_B1  = 137216
    G1_CNT = 138240

    def g1_ids(self):
        e = self.e
        e(f"s_and_b32 s56, {s(S_XI)}, 1")
        e("s_lshl_b32 s56, s56, 3")
        e(f"s_and_b32 s57, {s(S_J)}, 7")
        e("s_add_u32 s60, s56, s57          ; mb")
        e(f"s_lshr_b32 s56, {s(S_XI)}, 1")
        e("s_lshl_b32 s56, s56, 2")
        e(f"s_lshr_b32 s57, {s(S_J)}, 3")
        e("s_add_u32 s61, s56, s57          ; nb")

    def wg_of(self, dst, vmb, vnb, t):
        e = self.e
        e(f"v_lshrrev_b32 {v(dst)}, 3, {v(vmb)}")
        e(f"v_lshrrev_b32 {v(t)}, 2, {v(vnb)}")
        e(f"v_lshl_add_u32 {v(dst)}, {v(t)}, 1, {v(dst)}      ; x")
        e(f"v_and_b32 {v(t)}, 7, {v(vmb)}")
        e(f"v_lshl_add_u32 {v(dst)}, {v(t)}, 3, {v(dst)}")
        e(f"v_and_b32 {v(t)}, 3, {v(vnb)}")
        e(f"v_lshl_add_u32 {v(dst)}, {v(t)}, 6, {v(dst)}")

    def flag_addr(self, dst, t):
        e = self.e
        e(f"v_and_b32 {v(t)}, 3, {v(dst)}")
        e(f"v_lshrrev_b32 {v(dst)}, 2, {v(dst)}")
        e(f"v_lshlrev_b32 {v(dst)}, 7, {v(dst)}")
        e(f"v_lshl_add_u32 {v(dst)}, {v(t)}, 2, {v(dst)}")

    def poll_addr(self, p, va, vd):
        e = self.e
        L = self.newlabel("pa"); Lx = self.newlabel("pax")
        e(f"s_add_u32 s56, {s(S_EP)}, {p}")
        e("s_mov_b32 s57, 0x100000")
        self.label(L)
        e(f"buffer_load_dword {v(vd)}, {v(va)}, {s(SRD_WS,4)}, 0 offen sc1")
        e("s_sub_u32 s57, s57, 1")
        e("s_cmp_eq_u32 s57, 0")
        e(f"s_cbranch_scc1 {Lx}")
        e("s_waitcnt vmcnt(0)")
        e(f"v_subrev_u32 {v(vd)}, s56, {v(vd)}")
        e(f"v_cmp_le_u32 vcc, 16, {v(vd)}")
        e(f"s_cbranch_vccnz {L}")
        self.label(Lx)
        e("s_waitcnt vmcnt(0)")

    def g1_loader_setup(self):
        e = self.e
        e(f"s_sub_u32 s58, {s(S_WV)}, 4       ; lw")
        e("v_lshrrev_b32 v13, 4, v0          ; g = lane>>4")
        e("v_and_b32 v14, 15, v0             ; p")
        e("v_lshrrev_b32 v15, 1, v14         ; b'")
        e("v_and_b32 v16, 1, v14             ; half")
        e("v_xor_b32 v15, v15, v13           ; b' ^ (row&3)")
        e("s_lshl_b32 s59, s58, 4")
        e("v_add_u32 v17, s59, v13")
        e("v_lshlrev_b32 v17, 8, v17         ; *256")
        e("v_lshl_add_u32 v17, v16, 4, v17")
        e("s_lshl_b32 s59, s60, 18           ; mb*262144")
        e(f"s_add_u32 s59, s59, {WS_HT}")
        e("v_add_u32 v17, s59, v17")
        for ii in range(4):
            x4 = 4 if (ii >> 1) & 1 else 0
            e(f"v_xor_b32 v18, {x4}, v15")
            e("v_lshl_add_u32 v18, v18, 5, v17")
            e(f"v_add_u32 {v(2+ii)}, {ii*4*256}, v18")
        e("s_mov_b32 s59, 0x924924a          ; ceil(2^32/28)")
        for ii in range(7):
            e(f"v_add_u32 v13, {64*ii}, v0")
            e("v_mul_hi_u32 v14, s59, v13        ; row_local")
            e("v_mul_u32_u24 v15, 28, v14")
            e("v_sub_u32 v15, v13, v15           ; p")
            e("v_bfe_u32 v16, v14, 3, 1          ; bit3(row)")
            e("v_lshrrev_b32 v17, 1, v15         ; b'")
            e("v_xor_b32 v17, v17, v16           ; b")
            e("v_and_b32 v15, 1, v15")
            e("v_lshlrev_b32 v15, 4, v15")
            e("v_lshl_add_u32 v15, v17, 5, v15   ; b*32 + half*16")
            e("v_mul_u32_u24 v14, 7168, v14")
            e(f"v_add_u32 {v(6+ii)}, v14, v15")
        e("s_mul_i32 s59, s58, 16*7168")
        e("s_mul_i32 s57, s61, 448")
        e("s_add_u32 s59, s59, s57")
        for ii in range(7):
            e(f"v_add_u32 {v(6+ii)}, s59, {v(6+ii)}")
        e("s_lshl_b32 s62, s58, 12")
        e("s_mul_i32 s63, s58, 7168")
        e(f"s_add_u32 s63, s63, {self.G1_W}")

    def g1_issue_w(self, sbuf, sk):
        e = self.e
        if self.o.get("g1_nodma"): return
        e(f"s_add_u32 m0, {s(sbuf)}, s63")
        for ii in range(7):
            e(f"buffer_load_dwordx4 {v(6+ii)}, {s(SRD_B,4)}, {s(sk)} offen lds")
            if ii < 6: e("s_add_u32 m0, m0, 1024")

    def g1_issue_t(self, sbuf, sk):
        e = self.e
        if self.o.get("g1_nodma"): return
        e(f"s_add_u32 m0, {s(sbuf)}, s62")
        for ii in range(4):
            e(f"buffer_load_dwordx4 {v(2+ii)}, {s(SRD_WS,4)}, {s(sk)} offen sc1 lds")
            if ii < 3: e("s_add_u32 m0, m0, 1024")

    def g1_next_k(self):
        e = self.e
        e("s_add_u32 s68, s68, 1")
        e("s_and_b32 s68, s68, 15")
        e(f"s_mul_i32 s65, s68, {64*7168}")
        e(f"s_lshl_b32 s66, s68, 14")

    def g1_side_partials(self):
        e = self.e
        e("v_lshrrev_b32 v20, 4, v0          ; g")
        e("v_and_b32 v21, 15, v0")
        e("v_lshrrev_b32 v22, 2, v21         ; r")
        e("v_and_b32 v23, 3, v21             ; c")
        e("v_lshl_add_u32 v24, v20, 3, v22   ; row = 8g + r")
        e("v_and_b32 v25, 1, v20             ; g&1")
        e("v_lshl_or_b32 v26, v25, 2, v22    ; f(row)")
        e("v_lshlrev_b32 v27, 8, v24")
        e("v_lshl_add_u32 v27, v23, 3, v27   ; row*256 + c*8")
        for i in range(2):
            e(f"s_lshl_b32 s56, s58, 1")
            e(f"s_add_u32 s56, s56, {i}")
            e("v_xor_b32 v28, s56, v26")
            e(f"v_lshl_add_u32 {v(30+i)}, v28, 5, v27")
        TF = 32
        for i in range(2):
            for u in range(2):
                for h in range(2):
                    e(f"ds_read_b64_tr_b16 {v(TF+8*i+4*u+2*h,2)}, {v(30+i)} offset:{u*8192 + h*1024}")
        e("v_mul_u32_u24 v27, 448, v24")
        e("v_lshl_add_u32 v27, v23, 3, v27")
        e(f"v_add_u32 v27, {self.G1_W}, v27")
        WF = 48
        for i in range(4):
            e(f"s_add_u32 s56, s58, {4*i}")
            e("s_min_u32 s56, s56, 13")
            e(f"s_mov_b32 {s(84+i)}, s56")
            e("v_xor_b32 v28, s56, v25")
            e("v_lshl_add_u32 v28, v28, 5, v27")
            for u in range(2):
                for h in range(2):
                    e(f"ds_read_b64_tr_b16 {v(WF+8*i+4*u+2*h,2)}, v28 offset:{u*32*448 + h*4*448}")
        ONE = 80
        for r in range(4): e(f"v_mov_b32 {v(ONE+r)}, 0x3f803f80")
        D1, D2, DC = 84, 92, 100
        e("s_waitcnt lgkmcnt(0)")
        for i in range(2):
            for u in range(2):
                t = v(TF+8*i+4*u, 4)
                e(f"v_mfma_f32_16x16x32_bf16 {v(D1+4*i,4)}, {v(ONE,4)}, {t}, {'0' if u == 0 else v(D1+4*i,4)}")
                e(f"v_mfma_f32_16x16x32_bf16 {v(D2+4*i,4)}, {t}, {t}, {'0' if u == 0 else v(D2+4*i,4)}")
        for i in range(4):
            for u in range(2):
                e(f"v_mfma_f32_16x16x32_bf16 {v(DC+4*i,4)}, {v(WF+8*i+4*u,4)}, {v(ONE,4)}, {'0' if u == 0 else v(DC+4*i,4)}")
        e("s_lshl_b32 s56, s60, 4")
        e("s_add_u32 s56, s56, s61")
        e("s_lshl_b32 s56, s56, 10")
        e(f"s_add_u32 s56, s56, {WS_TSP}")
        e("s_lshl_b32 s57, s58, 8            ; 2lw*16*8")
        e("s_add_u32 s56, s56, s57")
        e("v_lshl_add_u32 v28, v21, 3, s56")
        e("s_mov_b32 s80, 0x22222222"); e("s_mov_b32 s81, 0x22222222")
        e("s_mov_b32 s82, 0x44444444"); e("s_mov_b32 s83, 0x44444444")
        e("s_mov_b32 vcc_lo, 0x88888888"); e("s_mov_b32 vcc_hi, 0x88888888")
        for i in range(2):
            o = 116 + 2*i
            e(f"v_mov_b32 {v(o)}, {v(D1+4*i)}")
            e(f"v_cndmask_b32 {v(o+1)}, {v(D2+4*i)}, {v(D2+4*i+1)}, s[80:81]")
            e(f"v_cndmask_b32 {v(o+1)}, {v(o+1)}, {v(D2+4*i+2)}, s[82:83]")
            e(f"v_cndmask_b32 {v(o+1)}, {v(o+1)}, {v(D2+4*i+3)}, vcc")
        e("s_mov_b32 exec_lo, 0x00f0000f"); e("s_mov_b32 exec_hi, 0xf0000f00")
        for i in range(2):
            e(f"buffer_store_dwordx2 {v(116+2*i,2)}, v28, {s(SRD_WS,4)}, 0 offen offset:{128*i} sc1")
        e("s_mov_b64 exec, -1")
        e("s_lshl_b32 s56, s61, 4")
        e("s_add_u32 s56, s56, s60")
        e("s_lshl_b32 s56, s56, 10")
        e(f"s_add_u32 s56, s56, {WS_CSP}")
        e("v_lshl_add_u32 v28, v20, 4, s56")
        e("s_mov_b32 exec_lo, 0x00010001"); e("s_mov_b32 exec_hi, 0x00010001")
        for i in range(4):
            e(f"s_lshl_b32 s56, {s(84+i)}, 6")
            e(f"buffer_store_dwordx4 {v(DC+4*i,4)}, v28, {s(SRD_WS,4)}, s56 offen sc1")
        e("s_mov_b64 exec, -1")

    def g1_side_signal(self):
        e = self.e
        L = self.newlabel("g1s")
        e(f"v_mov_b32 v20, {self.G1_CNT}")
        e("v_mov_b32 v21, 1")
        e("s_mov_b64 exec, 1")
        e("ds_add_rtn_u32 v22, v20, v21")
        e("s_waitcnt lgkmcnt(0)")
        e("v_readfirstlane_b32 s56, v22")
        e("s_mov_b64 exec, -1")
        e("s_cmp_eq_u32 s56, 3")
        e(f"s_cbranch_scc0 {L}")
        self.publish(3)
        self.label(L)

    def g1_side_poll_issue(self):
        e = self.e
        e("v_and_b32 v20, 15, v0")
        e("v_bfe_u32 v21, v0, 4, 1")
        e("v_cmp_eq_u32 vcc, 0, v21")
        e("v_mov_b32 v22, s60"); e("v_mov_b32 v23, s61")
        e("v_cndmask_b32 v24, v20, v22, vcc")
        e("v_cndmask_b32 v25, v23, v20, vcc")
        self.wg_of(40, 24, 25, 26)
        self.flag_addr(40, 26)
        e(f"buffer_load_dword v41, v40, {s(SRD_WS,4)}, 0 offen sc1")

    def g1_side_loads(self):
        e = self.e
        L = self.newlabel("g1p")
        e(f"s_add_u32 s56, {s(S_EP)}, 3")
        e("v_subrev_u32 v41, s56, v41")
        e("v_cmp_le_u32 vcc, 16, v41")
        e(f"s_cbranch_vccz {L}")
        if not self.o.get("nosync"): self.poll_addr(3, 40, 41)
        self.label(L)
        e("v_and_b32 v20, 31, v0")
        e("s_lshl_b32 s56, s58, 5")
        e("v_add_u32 v42, s56, v20            ; token")
        e("v_lshrrev_b32 v21, 5, v0")
        e("v_lshlrev_b32 v21, 13, v21         ; hf*8*1024")
        e("v_lshl_add_u32 v21, v42, 3, v21")
        e("s_lshl_b32 s56, s60, 14")
        e(f"s_add_u32 s56, s56, {WS_TSP}")
        e("v_add_u32 v21, s56, v21")
        for jj in range(8):
            if jj == 4: e("v_add_u32 v21, 4096, v21")
            e(f"buffer_load_dwordx2 {v(44+2*jj,2)}, v21, {s(SRD_WS,4)}, 0 offen offset:{1024*(jj&3)} sc1")
        e("v_and_b32 v20, 15, v0")
        e("v_min_u32 v20, 13, v20")
        e("s_mul_i32 s56, s58, 14")
        e("v_add_u32 v43, s56, v20            ; fq")
        e("v_lshrrev_b32 v21, 4, v0")
        e("v_lshlrev_b32 v21, 12, v21")
        e("v_lshl_add_u32 v21, v43, 4, v21")
        e("s_lshl_b32 s56, s61, 14")
        e(f"s_add_u32 s56, s56, {WS_CSP}")
        e("v_add_u32 v21, s56, v21")
        for jj in range(4):
            e(f"buffer_load_dwordx4 {v(60+4*jj,4)}, v21, {s(SRD_WS,4)}, 0 offen offset:{1024*jj} sc1")
        self.srd(SRD_C, S_B1, F_ * 2)
        e("s_mul_i32 s56, s61, 448")
        e("v_lshl_add_u32 v21, v43, 3, s56")
        e(f"buffer_load_dwordx2 v[76:77], v21, {s(SRD_C,4)}, 0 offen")

    def g1_side_final(self):
        e = self.e
        for jj in range(1, 8): e(f"v_pk_add_f32 v[44:45], v[44:45], {v(44+2*jj,2)}")
        e("v_mov_b32 v46, v44"); e("v_mov_b32 v47, v45")
        e("v_permlane32_swap_b32 v46, v44"); e("v_permlane32_swap_b32 v47, v45")
        e("v_add_f32 v44, v44, v46"); e("v_add_f32 v45, v45, v47")
        e("v_mul_f32 v44, 0x3a800000, v44      ; mu")
        e("v_mul_f32 v45, 0x3a800000, v45      ; E[h^2]")
        e("v_fma_f32 v45, -v44, v44, v45       ; var")
        e("v_max_f32 v45, 0, v45")
        self.round_bf16(46, 44)
        self.round_bf16(47, 45)
        e("v_add_f32 v47, 0x3727c5ac, v47")
        self.round_bf16(47, 47)
        e("v_sqrt_f32 v47, v47")
        self.round_bf16(47, 47)
        e("v_rcp_f32 v48, v47                  ; 1/sd1")
        e("v_sub_f32 v49, v44, v46")
        e("v_mul_f32 v49, v49, v48             ; mean(y1)")
        self.round_bf16(49, 49)
        e("v_mul_f32 v50, v45, v48")
        e("v_mul_f32 v50, v50, v48             ; var(y1)")
        self.round_bf16(50, 50)
        e("v_add_f32 v50, 0x3727c5ac, v50")
        self.round_bf16(50, 50)
        e("v_sqrt_f32 v50, v50")
        self.round_bf16(50, 50)
        e("v_rcp_f32 v50, v50")
        e("v_mul_f32 v52, v48, v50")
        e("v_fma_f32 v51, v49, v47, v46        ; M = m1 + m2*sd1")
        e("v_mul_f32 v53, v52, v51             ; am")
        e(f"v_lshlrev_b32 v20, 3, v42")
        e(f"v_add_u32 v20, {self.G1_AST}, v20")
        e("s_mov_b32 exec_hi, 0")
        e("ds_write_b64 v20, v[52:53]")
        e("s_mov_b64 exec, -1")
        for jj in range(1, 4):
            e(f"v_pk_add_f32 v[60:61], v[60:61], {v(60+4*jj,2)}")
            e(f"v_pk_add_f32 v[62:63], v[62:63], {v(62+4*jj,2)}")
        for op in ("v_permlane16_swap_b32", "v_permlane32_swap_b32"):
            for r in range(4): e(f"v_mov_b32 {v(64+r)}, {v(60+r)}")
            for r in range(4): e(f"{op} {v(64+r)}, {v(60+r)}")
            for r in range(4): e(f"v_add_f32 {v(60+r)}, {v(60+r)}, {v(64+r)}")
        self.unpack(68, 76, 0); self.unpack(69, 76, 1); self.unpack(70, 77, 0); self.unpack(71, 77, 1)
        e("v_lshlrev_b32 v20, 4, v43")
        e(f"v_add_u32 v20, {self.G1_CS}, v20")
        e("s_mov_b64 exec, 0x3fff")
        e("ds_write_b128 v20, v[60:63]")
        e(f"ds_write_b128 v20, v[68:71] offset:{self.G1_B1 - self.G1_CS}")
        e("s_mov_b64 exec, -1")
        e("s_waitcnt lgkmcnt(0)")

    def g1_loader(self):
        e = self.e
        STG = self.G1_STG
        self.srd(SRD_B, S_W1, D_ * F_ * 2)
        self.g1_loader_setup()
        e(f"v_mov_b32 v20, {self.G1_CNT}"); e("v_mov_b32 v21, 0")
        e("ds_write_b32 v20, v21")
        e("s_add_u32 s68, s60, s61")
        e("s_sub_u32 s68, s68, 1")
        self.g1_next_k()
        e("s_mov_b32 s88, s66")
        e("s_mov_b32 s64, 0")
        self.g1_issue_w(64, 65)
        self.g1_next_k()
        e(f"s_mov_b32 s64, {STG}")
        self.g1_issue_w(64, 65)
        self.g1_dep_wait()
        e("s_mov_b32 s64, 0")
        self.g1_issue_t(64, 88)
        e(f"s_mov_b32 s64, {STG}")
        self.g1_issue_t(64, 66)
        e("s_waitcnt vmcnt(4) lgkmcnt(0)")
        e("s_barrier                        ; B_0")
        e("s_mov_b32 s67, 0                 ; period i")
        e(f"s_mov_b32 s64, {2*STG}")
        side = not self.o.get("g1_noside")
        L = self.newlabel("g1l"); Lw = self.newlabel("g1lw"); Lb = self.newlabel("g1lb")
        self.label(L)
        if side:
            La = self.newlabel("g1a"); e("s_cmp_eq_u32 s67, 6"); e(f"s_cbranch_scc0 {La}"); self.g1_side_poll_issue(); self.label(La)
            La = self.newlabel("g1a"); e("s_cmp_eq_u32 s67, 7"); e(f"s_cbranch_scc0 {La}"); self.g1_side_loads(); self.label(La)
        e("s_cmp_ge_u32 s67, 14")
        e(f"s_cbranch_scc1 {Lw}")
        self.g1_next_k()
        self.g1_issue_w(64, 65)
        self.g1_issue_t(64, 66)
        e(f"s_add_u32 s64, s64, {STG}")
        e(f"s_cmp_eq_u32 s64, {3*STG}")
        e("s_cselect_b32 s64, 0, s64")
        if side:
            La = self.newlabel("g1a"); Lz = self.newlabel("g1z")
            e("s_cmp_eq_u32 s67, 0"); e(f"s_cbranch_scc0 {La}")
            self.g1_side_partials()
            e("s_waitcnt vmcnt(17)")
            e(f"s_branch {Lb}")
            self.label(La)
        e("s_waitcnt vmcnt(11)")
        if side:
            La = self.newlabel("g1a"); e("s_cmp_eq_u32 s67, 1"); e(f"s_cbranch_scc0 {La}"); self.g1_side_signal(); self.label(La)
            La = self.newlabel("g1a"); e("s_cmp_eq_u32 s67, 7"); e(f"s_cbranch_scc0 {La}"); self.g1_side_final(); self.label(La)
        e(f"s_branch {Lb}")
        self.label(Lw)
        e("s_waitcnt vmcnt(0)")
        self.label(Lb)
        e("s_barrier")
        e("s_add_u32 s67, s67, 1")
        e("s_cmp_lt_u32 s67, 16")
        e(f"s_cbranch_scc1 {L}")

    def g1_dep_wait(self):
        if "c" in self.o["phases"]: self.wait_all(2, wave=4)
        else: self.e("s_barrier")

    G1_X, G1_Y, G1_ACC = 8, 52, 96
    def g1_frag_reads(self, base, u):
        r = []
        def wread(ft):
            areg = 2 if ft % 2 == 0 else 3
            return [f"ds_read_b64_tr_b16 {v(base + 4*ft + 2*h, 2)}, {v(areg)} offset:{32*ft + u*32*448 + h*4*448}" for h in range(2)]
        def tread(tt):
            return [f"ds_read_b64_tr_b16 {v(base + 28 + 4*tt + 2*h, 2)}, {v(4+tt)} offset:{u*8192 + h*1024}" for h in range(2)]
        for tt in range(4): r += tread(tt)
        for ft in range(7): r += wread(ft)
        return r

    def g1_half(self, mf_base, rd_base, rd_u, first=False, mfma=True, reads=True, tail=(), waits=None):
        e = self.e
        rds = self.g1_frag_reads(rd_base, rd_u) if (reads and not self.o.get("g1_noreads")) else []
        if self.o.get("g1_nomfma"): mfma = False
        mf = []
        if mfma:
            for ft in range(7):
                for tt in range(4):
                    a = self.G1_ACC + (ft * 4 + tt) * 4
                    c = "0" if first else v(a, 4)
                    mf.append(f"v_mfma_f32_16x16x32_bf16 {v(a,4)}, {v(mf_base + 4*ft, 4)}, {v(mf_base + 28 + 4*tt, 4)}, {c}")
        fill = list(rds) + list(tail)
        i = 0
        for k, m in enumerate(mf):
            if waits and k in waits: e(waits[k])
            e(m)
            if i < len(fill): e(fill[i]); i += 1
        while i < len(fill): e(fill[i]); i += 1

    def g1_compute_setup(self):
        e = self.e
        e(f"s_lshr_b32 s58, {s(S_WV)}, 1      ; wf")
        e(f"s_and_b32 s59, {s(S_WV)}, 1       ; wt")
        e("v_lshrrev_b32 v13, 4, v0          ; g")
        e("v_and_b32 v14, 15, v0")
        e("v_lshrrev_b32 v15, 2, v14         ; r")
        e("v_and_b32 v16, 3, v14             ; c")
        e("v_lshl_add_u32 v17, v13, 3, v15   ; row = 8g + r")
        e("v_and_b32 v18, 1, v13             ; g&1")
        e("v_mul_u32_u24 v19, 448, v17")
        e("v_lshl_add_u32 v19, v16, 3, v19")
        e("s_mul_i32 s57, s58, 224           ; 32*7*wf")
        e(f"s_add_u32 s57, s57, {self.G1_W}")
        e("v_add_u32 v19, s57, v19")
        e("v_lshlrev_b32 v20, 5, v18         ; 32*(g&1)")
        e("v_add_u32 v21, v19, v20")
        e("v_sub_u32 v22, v19, v20")
        e("s_cmp_eq_u32 s58, 0")
        e("s_cselect_b64 vcc, -1, 0")
        e("v_cndmask_b32 v2, v22, v21, vcc")
        e("v_cndmask_b32 v3, v21, v22, vcc")
        e("v_lshl_or_b32 v20, v18, 2, v15    ; f(row)")
        e("v_lshlrev_b32 v21, 8, v17")
        e("v_lshl_add_u32 v21, v16, 3, v21")
        e("s_lshl_b32 s57, s59, 2            ; 4*wt")
        for tt in range(4):
            e(f"s_add_u32 s56, s57, {tt}")
            e("v_xor_b32 v22, s56, v20")
            e(f"v_lshl_add_u32 {v(4+tt)}, v22, 5, v21")

    def g1_compute(self):
        e = self.e
        X, Y = self.G1_X, self.G1_Y
        STG = self.G1_STG
        self.g1_compute_setup()
        self.g1_dep_wait()
        e("s_barrier                        ; B_0")
        self.stamp("g1_loop")
        def adv(delta):
            return [f"v_add_u32 {v(r)}, {delta & 0xffffffff:#x}, {v(r)}" for r in range(2, 8)]
        W5 = {0: "s_waitcnt lgkmcnt(4)", 20: "s_waitcnt lgkmcnt(15)"}
        for r in self.g1_frag_reads(X, 0): e(r)
        e("s_waitcnt lgkmcnt(0)")
        self.g1_half(X, Y, 1, first=True, tail=adv(STG))
        e("s_waitcnt lgkmcnt(0)")
        e("s_barrier                        ; B_1")
        e("s_mov_b32 s67, 0")
        L = self.newlabel("g1c")
        self.label(L)
        for k in range(3):
            delta = STG if k != 1 else -2 * STG
            self.g1_half(Y, X, 0)
            tail = adv(delta)
            if k == 2: tail = tail[:5] + ["s_add_u32 s67, s67, 1"] + tail[5:]
            self.g1_half(X, Y, 1, tail=tail, waits=(W5 if not self.o.get("g1_noreads") else None))
            if k == 2: e("s_cmp_lt_u32 s67, 5")
            e("s_waitcnt lgkmcnt(0)")
            e("s_barrier")
        e(f"s_cbranch_scc1 {L}")
        self.g1_half(Y, None, 0, reads=False)
        self.stamp("g1_loopend")

    def g1_epilogue(self):
        e = self.e
        ACC = self.G1_ACC
        e("v_and_b32 v2, 15, v0               ; n")
        e("v_lshrrev_b32 v3, 4, v0            ; g / rho")
        e("s_lshl_b32 s56, s59, 9")
        e(f"s_add_u32 s56, s56, {self.G1_AST}")
        e("v_lshl_add_u32 v4, v2, 3, s56")
        AS = 8
        for tt in range(4): e(f"ds_read_b64 {v(AS+2*tt,2)}, v4 offset:{128*tt}")
        e("s_mul_i32 s56, s58, 448")
        e(f"s_add_u32 s56, s56, {self.G1_CS}")
        e("v_lshl_add_u32 v5, v3, 4, s56")
        CB = 16
        for ft in range(7):
            e(f"ds_read_b128 {v(CB+8*ft,4)}, v5 offset:{64*ft}")
            e(f"ds_read_b128 {v(CB+8*ft+4,4)}, v5 offset:{64*ft + self.G1_B1 - self.G1_CS}")
        c2 = -2.0 * 0.7978845608028654 * 1.4426950408889634
        c1 = c2 * 0.044715
        import struct
        fb = lambda x: "0x%08x" % struct.unpack("<I", struct.pack("<f", x))[0]
        C1, C2, ONE = 72, 74, 76
        for r, val in ((C1, c1), (C2, c2), (ONE, 1.0)):
            e(f"v_mov_b32 {v(r)}, {fb(val)}"); e(f"v_mov_b32 {v(r+1)}, {fb(val)}")
        e("v_lshrrev_b32 v6, 2, v2")
        e("v_lshlrev_b32 v6, 2, v6")
        e("s_mov_b32 s56, 0x1450")
        e("v_lshrrev_b32 v6, v6, s56")
        e("v_and_b32 v6, 7, v6                ; sigma")
        e("v_and_b32 v7, 1, v2")
        e("v_lshlrev_b32 v7, 1, v7            ; (n&1)*2")
        e("v_lshrrev_b32 v78, 1, v2")
        e("v_lshlrev_b32 v78, 7, v78          ; (n>>1)*128")
        e("v_and_b32 v79, 1, v3               ; rho&1")
        e("v_add_u32 v79, s58, v79")
        e("v_lshrrev_b32 v80, 1, v79          ; dQ")
        e("v_and_b32 v79, 1, v79              ; half")
        e("v_lshl_add_u32 v79, v79, 2, v7")
        e("v_lshrrev_b32 v81, 1, v3           ; rho>>1")
        e("v_add_u32 v79, v79, v81")
        e("v_xor_b32 v79, v79, v6")
        e("v_lshl_add_u32 v79, v79, 4, v78")
        e("v_lshl_add_u32 v82, v80, 13, v79")
        e("s_lshl_b32 s56, s58, 2")
        e("v_add_u32 v79, s56, v7             ; wf*4 + (n&1)*2")
        e("v_add_u32 v79, v79, v81            ; + (g>>1)")
        e("v_xor_b32 v79, v79, v6")
        e("v_lshl_add_u32 v79, v79, 4, v78")
        e("v_and_b32 v80, 1, v3")
        e("v_lshl_add_u32 v83, v80, 3, v79")
        e("s_mul_i32 s62, s60, 112")
        e("s_mul_i32 s56, s61, 7")
        e("s_add_u32 s62, s62, s56")
        e("s_mul_i32 s56, s58, 3")
        e("s_add_u32 s62, s62, s56")
        e("s_lshl_b32 s62, s62, 13")
        e("s_lshl_b32 s56, s59, 12")
        e("s_add_u32 s62, s62, s56")
        e(f"s_add_u32 s62, s62, {WS_HM}")
        e("s_waitcnt lgkmcnt(0)")
        def gelu_tile(ft, tt, out, T):
            a = ACC + (ft*4 + tt)*4
            cs, b1 = CB + 8*ft, CB + 8*ft + 4
            A = AS + 2*tt
            for h in range(2):
                e(f"v_pk_fma_f32 {v(T+2*h,2)}, {v(A,2)}, {v(cs+2*h,2)}, {v(b1+2*h,2)} op_sel:[1,0,0] op_sel_hi:[1,1,1] neg_lo:[1,0,0] neg_hi:[1,0,0]")
            for h in range(2):
                e(f"v_pk_fma_f32 {v(a+2*h,2)}, {v(A,2)}, {v(a+2*h,2)}, {v(T+2*h,2)} op_sel:[0,0,0] op_sel_hi:[0,1,1]")
            for h in range(2): e(f"v_pk_mul_f32 {v(T+2*h,2)}, {v(a+2*h,2)}, {v(a+2*h,2)}")
            for h in range(2): e(f"v_pk_fma_f32 {v(T+2*h,2)}, {v(T+2*h,2)}, {v(C1,2)}, {v(C2,2)}")
            for h in range(2): e(f"v_pk_mul_f32 {v(T+2*h,2)}, {v(T+2*h,2)}, {v(a+2*h,2)}")
            for r in range(4): e(f"v_exp_f32 {v(T+r)}, {v(T+r)}")
            for h in range(2): e(f"v_pk_add_f32 {v(T+2*h,2)}, {v(T+2*h,2)}, {v(ONE,2)}")
            for r in range(4): e(f"v_rcp_f32 {v(T+r)}, {v(T+r)}")
            for h in range(2): e(f"v_pk_mul_f32 {v(a+2*h,2)}, {v(a+2*h,2)}, {v(T+2*h,2)}")
            for h in range(2): e(f"v_cvt_pk_bf16_f32 {v(out+h)}, {v(a+2*h)}, {v(a+2*h+1)}")
        k = 0
        for fp in range(3):
            for tt in range(4):
                O = 208 + 4 * (k & 1); T = 216 + 4 * (k & 1); k += 1
                gelu_tile(2*fp, tt, O, T)
                gelu_tile(2*fp + 1, tt, O + 2, T)
                e(f"v_permlane16_swap_b32 {v(O)}, {v(O+2)}")
                e(f"v_permlane16_swap_b32 {v(O+1)}, {v(O+3)}")
                e(f"s_add_u32 s56, s62, {fp*8192 + tt*1024}")
                e(f"buffer_store_dwordx4 {v(O,4)}, v82, {s(SRD_WS,4)}, s56 offen sc1")
        for tt in range(4):
            O = 208 + 4 * (k & 1); T = 216 + 4 * (k & 1); k += 1
            gelu_tile(6, tt, O, T)
            e(f"s_add_u32 s56, s62, {3*8192 + tt*1024}")
            e(f"buffer_store_dwordx2 {v(O,2)}, v83, {s(SRD_WS,4)}, s56 offen sc1")

    def g1(self):
        e = self.e
        self.g1_ids()
        Lc = self.newlabel("g1comp"); Le = self.newlabel("g1end")
        e(f"s_cmp_lt_u32 {s(S_WV)}, 4")
        e(f"s_cbranch_scc1 {Lc}")
        self.g1_loader()
        if "g2" in self.o["phases"]: self.g2_loader_pre()
        e(f"s_branch {Le}")
        self.label(Lc)
        self.g1_compute()
        self.g1_epilogue()
        self.stamp("g1_epi")
        e("s_waitcnt vmcnt(0)")
        self.label(Le)
        e("s_barrier")
        L = self.newlabel("g1sig")
        e(f"s_cmp_lg_u32 {s(S_WV)}, 0")
        e(f"s_cbranch_scc1 {L}")
        self.publish(4)
        self.label(L)

    G2_STG = 32768
    G2_NBUF = 4
    G2_RES = 131072

    def g2_ids(self):
        e = self.e
        e(f"s_and_b32 s56, {s(S_XI)}, 1")
        e("s_lshl_b32 s56, s56, 3")
        e(f"s_and_b32 s57, {s(S_J)}, 7")
        e("s_add_u32 s60, s56, s57          ; mb")
        e(f"s_lshr_b32 s56, {s(S_XI)}, 1")
        e("s_lshl_b32 s56, s56, 2")
        e(f"s_lshr_b32 s57, {s(S_J)}, 3")
        e("s_add_u32 s56, s56, s57          ; n'")
        e("s_and_b32 s61, s56, 7            ; db")
        e("s_lshr_b32 s69, s56, 3           ; kh")

    def g2_issue_w(self, sbuf, sk):
        e = self.e
        e(f"s_add_u32 m0, {s(sbuf)}, s63")
        for ii in range(4):
            e(f"buffer_load_dwordx4 {v(6+ii)}, {s(SRD_B,4)}, {s(sk)} offen lds")
            if ii < 3: e("s_add_u32 m0, m0, 1024")

    def g2_issue_t(self, sbuf, sk):
        e = self.e
        e(f"s_add_u32 m0, {s(sbuf)}, s62")
        for ii in range(4):
            e(f"buffer_load_dwordx4 v2, {s(SRD_WS,4)}, {s(sk)} offen sc1 lds")
            if ii < 3:
                e("s_add_u32 m0, m0, 1024"); e(f"s_add_u32 {s(sk)}, {s(sk)}, 1024")
        e(f"s_add_u32 {s(sk)}, {s(sk)}, {16384 - 3*1024}")

    def g2_loader_pre(self):
        e = self.e
        self.g2_ids()
        self.srd(SRD_B, S_W2, F_ * D_ * 2)
        e(f"s_sub_u32 s58, {s(S_WV)}, 4       ; lw")
        e("v_lshrrev_b32 v13, 4, v0")
        e("v_and_b32 v14, 15, v0")
        e("v_lshrrev_b32 v15, 1, v14")
        e("v_and_b32 v16, 1, v14")
        e("v_xor_b32 v15, v15, v13")
        e("s_lshl_b32 s59, s58, 4")
        e("v_add_u32 v17, s59, v13")
        e("v_lshlrev_b32 v17, 11, v17        ; *2048")
        e("v_lshl_add_u32 v17, v16, 4, v17")
        e("s_lshl_b32 s59, s61, 8            ; db*256")
        e("v_add_u32 v17, s59, v17")
        for ii in range(4):
            x4 = 4 if (ii >> 1) & 1 else 0
            e(f"v_xor_b32 v18, {x4}, v15")
            e("v_lshl_add_u32 v18, v18, 5, v17")
            e(f"v_add_u32 {v(6+ii)}, {ii*4*2048}, v18")
        e("v_lshlrev_b32 v2, 4, v0")
        e("s_lshl_b32 s62, s58, 12")
        e(f"s_add_u32 s63, s62, 16384")
        e(f"s_mul_i32 s65, s69, {1792*2048}")
        e("s_mul_i32 s66, s60, 112")
        e("s_mul_i32 s56, s69, 56")
        e("s_add_u32 s66, s66, s56")
        e("s_lshl_b32 s66, s66, 13")
        e("s_add_u32 s66, s66, s62")
        e(f"s_add_u32 s66, s66, {WS_HM}")
        e("s_mov_b32 s64, 0")
        for st in range(3):
            self.g2_issue_w(64, 65)
            e(f"s_add_u32 s65, s65, {64*2048}")
            e(f"s_add_u32 s64, s64, {self.G2_STG}")

    def g2_loader(self):
        e = self.e
        STG = self.G2_STG
        Lq = self.newlabel("g2q")
        e(f"s_cmp_eq_u32 {s(S_WV)}, 4")
        e(f"s_cbranch_scc0 {Lq}")
        e("v_and_b32 v20, 7, v0")
        e("s_lshl_b32 s56, s69, 3")
        e("v_add_u32 v21, s56, v20")
        e("v_mov_b32 v20, s60")
        self.wg_of(40, 20, 21, 26)
        self.flag_addr(40, 26)
        if not self.o.get("nosync"): self.poll_addr(4, 40, 41)
        self.label(Lq)
        e("s_barrier                        ; dep")
        self.stamp("g2_dep")
        e("s_mov_b32 s64, 0")
        for st in range(3):
            self.g2_issue_t(64, 66)
            e(f"s_add_u32 s64, s64, {STG}")
        e("s_waitcnt vmcnt(8)")
        e("s_barrier                        ; B_0")
        e("s_mov_b32 s67, 0")
        e(f"s_mov_b32 s64, {3*STG}")
        L = self.newlabel("g2l"); Lw = self.newlabel("g2lw"); Lb = self.newlabel("g2lb"); Lw1 = self.newlabel("g2lw1"); Lr = self.newlabel("g2r")
        self.label(L)
        e("s_cmp_ge_u32 s67, 25")
        e(f"s_cbranch_scc1 {Lw}")
        self.g2_issue_w(64, 65)
        e(f"s_add_u32 s65, s65, {64*2048}")
        self.g2_issue_t(64, 66)
        e(f"s_add_u32 s64, s64, {STG}")
        e(f"s_and_b32 s64, s64, {4*STG - 1}")
        L0 = self.newlabel("g2l0")
        e("s_cmp_eq_u32 s67, 0")
        e(f"s_cbranch_scc0 {L0}")
        e("s_waitcnt vmcnt(12)")
        e(f"s_branch {Lb}")
        self.label(L0)
        e("s_waitcnt vmcnt(16)")
        e(f"s_branch {Lb}")
        self.label(Lw)
        e("s_cmp_eq_u32 s67, 25")
        e(f"s_cbranch_scc0 {Lw1}")
        e("v_lshrrev_b32 v20, 2, v0")
        e("s_lshl_b32 s56, s58, 5")
        e("v_add_u32 v20, s56, v20")
        e("v_lshlrev_b32 v20, 8, v20          ; row*256")
        e("v_and_b32 v21, 3, v0")
        e("v_lshl_add_u32 v20, v21, 4, v20")
        e("s_lshl_b32 s56, s60, 18")
        e("s_lshl_b32 s57, s61, 15            ; 128db*256")
        e("s_add_u32 s56, s56, s57")
        e("s_lshl_b32 s57, s69, 6             ; 32kh*2")
        e("s_add_u32 s56, s56, s57")
        e(f"s_add_u32 s56, s56, {WS_HT}")
        for ii in range(4):
            wt, hh = ii >> 1, ii & 1
            e(f"s_add_u32 s57, s56, {wt*128 + hh*16*256}")
            e("s_lshl_b32 s59, s58, 11          ; 32lw*64")
            e(f"s_add_u32 m0, s59, {self.G2_RES + wt*8192 + hh*1024}")
            e(f"buffer_load_dwordx4 v20, {s(SRD_WS,4)}, s57 offen sc1 lds")
        e("s_waitcnt vmcnt(12)")
        e(f"s_branch {Lb}")
        self.label(Lw1)
        e("s_cmp_eq_u32 s67, 26")
        e(f"s_cbranch_scc0 {Lr}")
        e("s_waitcnt vmcnt(4)")
        e(f"s_branch {Lb}")
        self.label(Lr)
        e("s_waitcnt vmcnt(0)")
        self.label(Lb)
        e("s_barrier")
        e("s_add_u32 s67, s67, 1")
        e("s_cmp_lt_u32 s67, 28")
        e(f"s_cbranch_scc1 {L}")

    G2_X, G2_Y, G2_ACC = 8, 40, 72
    def g2_frag_reads(self, base, u):
        r = []
        for tt in range(4): r.append(f"ds_read_b128 {v(base + 16 + 4*tt, 4)}, v6 offset:{u*8192 + tt*1024}")
        for dt in range(4):
            for h in range(2):
                r.append(f"ds_read_b64_tr_b16 {v(base + 4*dt + 2*h, 2)}, {v(2+dt)} offset:{u*8192 + h*1024}")
        return r

    def g2_half(self, mf_base, rd_base, rd_u, first=False, reads=True, tail=(), waits=None):
        e = self.e
        rds = self.g2_frag_reads(rd_base, rd_u) if reads else []
        fill = list(rds) + list(tail)
        i = 0; k = 0
        for dt in range(4):
            for tt in range(4):
                a = self.G2_ACC + (dt*4 + tt)*4
                if waits and k in waits: e(waits[k])
                e(f"v_mfma_f32_16x16x32_bf16 {v(a,4)}, {v(mf_base + 4*dt, 4)}, {v(mf_base + 16 + 4*tt, 4)}, {'0' if first else v(a,4)}")
                if i < len(fill): e(fill[i]); i += 1
                k += 1
        while i < len(fill): e(fill[i]); i += 1

    def g2_compute(self):
        e = self.e
        X, Y, STG = self.G2_X, self.G2_Y, self.G2_STG
        self.g2_ids()
        e(f"s_lshr_b32 s58, {s(S_WV)}, 1      ; wd")
        e(f"s_and_b32 s59, {s(S_WV)}, 1       ; wt")
        e("v_lshrrev_b32 v13, 4, v0          ; g")
        e("v_and_b32 v14, 15, v0             ; n")
        e("v_lshrrev_b32 v15, 2, v14         ; r")
        e("v_and_b32 v16, 3, v14             ; c")
        e("v_lshl_add_u32 v17, v13, 3, v15   ; row = 8g + r")
        e("v_and_b32 v18, 1, v13")
        e("v_lshl_or_b32 v20, v18, 2, v15    ; f(row)")
        e("v_lshlrev_b32 v21, 8, v17")
        e("v_lshl_add_u32 v21, v16, 3, v21")
        e("v_add_u32 v21, 16384, v21")
        e("s_lshl_b32 s57, s58, 2            ; 4*wd")
        for dt in range(4):
            e(f"s_add_u32 s56, s57, {dt}")
            e("v_xor_b32 v22, s56, v20")
            e(f"v_lshl_add_u32 {v(2+dt)}, v22, 5, v21")
        e("v_lshlrev_b32 v19, 2, v15         ; 4*(n>>2)")
        e("s_mov_b32 s56, 0x1450")
        e("v_lshrrev_b32 v19, v19, s56")
        e("v_and_b32 v19, 7, v19             ; sigma")
        e("v_lshrrev_b32 v22, 1, v13")
        e("v_lshlrev_b32 v22, 2, v22         ; (g>>1)*4")
        e("v_and_b32 v23, 1, v14")
        e("v_lshl_add_u32 v22, v23, 1, v22")
        e("v_add_u32 v22, v22, v18")
        e("v_xor_b32 v22, v22, v19")
        e("v_lshrrev_b32 v23, 1, v14")
        e("v_lshlrev_b32 v23, 7, v23")
        e("v_lshl_add_u32 v22, v22, 4, v23")
        e("s_lshl_b32 s56, s59, 12           ; 32wt*128")
        e("v_add_u32 v6, s56, v22")
        self.srd(SRD_C, S_B2, D_ * 2)
        e("s_lshl_b32 s56, s61, 8")
        e("s_lshl_b32 s57, s58, 7")
        e("s_add_u32 s56, s56, s57")
        e("v_lshl_add_u32 v7, v13, 3, s56")
        B2 = 200
        for dt in range(4): e(f"buffer_load_dwordx2 {v(B2+2*dt,2)}, v7, {s(SRD_C,4)}, 0 offen offset:{32*dt}")
        e("s_barrier                        ; dep")
        e("s_barrier                        ; B_0")
        self.stamp("g2_loop")
        e("s_mov_b32 s64, 0")
        e(f"s_mov_b32 s62, {STG}")
        e(f"s_mov_b32 s63, {(-3*STG) & 0xffffffff}")
        def adv():
            return ["s_add_u32 s64, s64, 1", "s_cmp_eq_u32 s64, 4"]
        def adv2():
            return [f"v_add_u32 {v(r)}, s65, {v(r)}" for r in range(2, 7)]
        pre = ["s_add_u32 s64, s64, 1", "s_cmp_eq_u32 s64, 4", "s_cselect_b32 s65, s63, s62", "s_cselect_b32 s64, 0, s64"]
        WX = {0: "s_waitcnt lgkmcnt(6)", 4: "s_waitcnt lgkmcnt(8)", 8: "s_waitcnt lgkmcnt(10)", 12: "s_waitcnt lgkmcnt(12)"}
        if self.o.get("g2_fullwait"): WX = {0: "s_waitcnt lgkmcnt(0)"}
        for r in self.g2_frag_reads(X, 0): e(r)
        for p in pre: e(p)
        e("s_waitcnt lgkmcnt(0)")
        self.g2_half(X, Y, 1, first=True, tail=adv2()[:4])
        e(adv2()[4])
        e("s_waitcnt lgkmcnt(0)")
        e("s_barrier                        ; B_1")
        e("s_mov_b32 s67, 0")
        L = self.newlabel("g2c")
        self.label(L)
        for k in range(3):
            self.g2_half(Y, X, 0, tail=pre)
            self.g2_half(X, Y, 1, tail=adv2()[:4], waits=WX)
            e(adv2()[4])
            if k == 2:
                e("s_add_u32 s67, s67, 1"); e("s_cmp_lt_u32 s67, 9")
            e("s_waitcnt lgkmcnt(0)")
            e("s_barrier")
        e(f"s_cbranch_scc1 {L}")
        self.g2_half(Y, None, 0, reads=False)
        self.stamp("g2_loopend")

    def g2_epilogue(self):
        e = self.e
        ACC = self.G2_ACC
        Lk = self.newlabel("g2k")
        e("s_cmp_eq_u32 s69, 0")
        e(f"s_cbranch_scc1 {Lk}")
        for dt in range(4):
            for r in range(8):
                a = ACC + dt*16 + r
                e(f"v_swap_b32 {v(a)}, {v(a+8)}")
        self.label(Lk)
        e("s_xor_b32 s56, s2, 4")
        e("s_lshl_b32 s56, s56, 15")
        e(f"s_lshl_b32 s57, {s(S_WV)}, 13")
        e("s_add_u32 s56, s56, s57")
        e(f"s_add_u32 s62, s56, {WS_EX}")
        e("v_lshlrev_b32 v8, 4, v0")
        for dt in range(4):
            for tk in range(2):
                i = dt*2 + tk
                e(f"s_add_u32 s56, s62, {1024*i}")
                e(f"buffer_store_dwordx4 {v(ACC + dt*16 + 8 + 4*tk, 4)}, v8, {s(SRD_WS,4)}, s56 offen sc1")
        e("v_lshrrev_b32 v13, 4, v0          ; g")
        e("v_and_b32 v14, 15, v0             ; n")
        e("v_lshrrev_b32 v15, 2, v14")
        e("v_and_b32 v16, 3, v14")
        e("v_lshl_add_u32 v17, v13, 2, v15   ; 4g + r")
        e("v_lshlrev_b32 v17, 6, v17")
        e("v_lshl_add_u32 v17, v16, 3, v17")
        e("s_lshl_b32 s56, s59, 13")
        e("s_lshl_b32 s57, s58, 12           ; 64wd*64")
        e("s_add_u32 s56, s56, s57")
        e(f"s_add_u32 s56, s56, {self.G2_RES}")
        e("v_add_u32 v17, s56, v17")
        RS = 168
        for dt in range(4):
            for tk in range(2):
                e(f"ds_read_b64_tr_b16 {v(RS + 2*(2*dt+tk), 2)}, v17 offset:{dt*16*64 + tk*32}")
        e("s_waitcnt vmcnt(0)")
        self.stamp("g2_sent")

    def g2_epilogue2(self):
        e = self.e
        ACC = self.G2_ACC; RS = 168; B2 = 200
        e("s_lshl_b32 s56, s2, 15")
        e(f"s_lshl_b32 s57, {s(S_WV)}, 13")
        e("s_add_u32 s56, s56, s57")
        e(f"s_add_u32 s62, s56, {WS_EX}")
        IN = 136
        for i in range(8):
            e(f"s_add_u32 s56, s62, {1024*i}")
            e(f"buffer_load_dwordx4 {v(IN+4*i,4)}, v8, {s(SRD_WS,4)}, s56 offen sc1")
        self.srd(SRD_A, S_OUT, S_ * D_ * 2)
        e("s_lshl_b32 s56, s60, 7")
        e("s_lshl_b32 s57, s59, 6")
        e("s_add_u32 s56, s56, s57")
        e("s_lshl_b32 s57, s69, 5")
        e("s_add_u32 s56, s56, s57")
        e("v_add_u32 v9, s56, v14")
        e("v_lshlrev_b32 v9, 11, v9")
        e("v_and_b32 v10, 1, v13")
        e("v_lshlrev_b32 v10, 5, v10          ; 16*2 bytes")
        e("v_lshrrev_b32 v11, 1, v13")
        e("v_lshl_add_u32 v10, v11, 4, v10")
        e("v_add_u32 v9, v9, v10")
        e("s_lshl_b32 s56, s61, 8")
        e("s_lshl_b32 s57, s58, 7")
        e("s_add_u32 s63, s56, s57")
        BF = 40
        for dt in range(4):
            self.unpack(BF+4*dt,   B2+2*dt,   0); self.unpack(BF+4*dt+1, B2+2*dt,   1)
            self.unpack(BF+4*dt+2, B2+2*dt+1, 0); self.unpack(BF+4*dt+3, B2+2*dt+1, 1)
        e("s_waitcnt vmcnt(0) lgkmcnt(0)")
        k = 0
        for tk in range(2):
            for dp in range(2):
                O = 56 + 4*(k & 1); k += 1
                for dd in range(2):
                    dt = 2*dp + dd
                    i = dt*2 + tk
                    a = ACC + dt*16 + 4*tk
                    T = 64
                    r0 = RS + 2*i
                    self.unpack(T, r0, 0); self.unpack(T+1, r0, 1); self.unpack(T+2, r0+1, 0); self.unpack(T+3, r0+1, 1)
                    for h in range(2):
                        e(f"v_pk_add_f32 {v(a+2*h,2)}, {v(a+2*h,2)}, {v(IN+4*i+2*h,2)}")
                        e(f"v_pk_add_f32 {v(a+2*h,2)}, {v(a+2*h,2)}, {v(BF+4*dt+2*h,2)}")
                        e(f"v_pk_add_f32 {v(a+2*h,2)}, {v(a+2*h,2)}, {v(T+2*h,2)}")
                        e(f"v_cvt_pk_bf16_f32 {v(O+2*dd+h)}, {v(a+2*h)}, {v(a+2*h+1)}")
                e(f"v_permlane16_swap_b32 {v(O)}, {v(O+2)}")
                e(f"v_permlane16_swap_b32 {v(O+1)}, {v(O+3)}")
                e(f"s_add_u32 s56, s63, {tk*16*2048 + dp*64}")
                e(f"buffer_store_dwordx4 {v(O,4)}, v9, {s(SRD_A,4)}, s56 offen")

    def g2(self):
        e = self.e
        Lc = self.newlabel("g2comp"); Le = self.newlabel("g2end"); Lf = self.newlabel("g2fin")
        e(f"s_cmp_lt_u32 {s(S_WV)}, 4")
        e(f"s_cbranch_scc1 {Lc}")
        self.g2_loader()
        e(f"s_branch {Le}")
        self.label(Lc)
        self.g2_compute()
        self.g2_epilogue()
        self.label(Le)
        e("s_barrier")
        L = self.newlabel("g2sig")
        e(f"s_cmp_lg_u32 {s(S_WV)}, 4")
        e(f"s_cbranch_scc1 {L}")
        self.publish(5)
        L0 = self.newlabel("g2ep")
        e("s_cmp_lg_u32 s2, 0")
        e(f"s_cbranch_scc1 {L0}")
        e(f"v_mov_b32 v254, {s(S_EP)}")
        e(f"v_mov_b32 v255, {WS_EPOCH}")
        e("s_mov_b64 exec, 1")
        e(f"buffer_store_dword v254, v255, {s(SRD_WS,4)}, 0 offen sc1")
        e("s_mov_b64 exec, -1")
        self.label(L0)
        e("s_xor_b32 s56, s2, 4")
        e("v_mov_b32 v40, s56")
        self.flag_addr(40, 26)
        if not self.o.get("nosync"): self.poll_addr(5, 40, 41)
        self.label(L)
        e("s_barrier")
        self.stamp("g2_got")
        e(f"s_cmp_ge_u32 {s(S_WV)}, 4")
        e(f"s_cbranch_scc1 {Lf}")
        self._g2_st = 0
        self.g2_epilogue2()
        self.label(Lf)

    def finish(self):
        self.label("L_end")
        self.e("s_endpgm")

def wrap(body, lds=LDS_BYTES):
    hdr = f"""; Kernarg layout (112 bytes, ptrs only, base s[0:1]): q,k,v,shift_k,ssm_k,ssm_D,B_x,w1,b1,w2,b2,out,debug,ws
; @launch grid=(256,1,1) block=(512,1,1) lds={lds}
.amdgcn_target "amdgcn-amd-amdhsa--gfx950"
.text
.globl {KNAME}
.p2align 8
.type {KNAME},@function
{KNAME}:
"""
    tail = f"""
.section .rodata,"a"
.p2align 6
.amdhsa_kernel {KNAME}
  .amdhsa_next_free_vgpr 256
  .amdhsa_next_free_sgpr 102
  .amdhsa_accum_offset 256
  .amdhsa_group_segment_fixed_size 0
  .amdhsa_kernarg_size 112
  .amdhsa_user_sgpr_count 2
  .amdhsa_user_sgpr_kernarg_segment_ptr 1
  .amdhsa_system_sgpr_workgroup_id_x 1
  .amdhsa_float_denorm_mode_32 3
.end_amdhsa_kernel
"""
    return hdr + body + tail

def build(opts, ret_g=False):
    g = G(opts)
    g.prologue()
    g.stamp("start")
    ph = opts["phases"]
    if "p" in ph:
        g.phase_p()
    else:
        g.epoch_ready()
    if "c" in ph:
        g.phase_c()
        g.stamp("c_end")
        g.signal(2)
        g.stamp("c_sig")
    if "g1" in ph:
        g.g1()
        g.stamp("g1_end")
    if "g2" in ph:
        g.g2()
        g.stamp("g2_end")
    g.stamp_flush()
    g.finish()
    src = wrap(g.finalize())
    return (src, g) if ret_g else src

if __name__ == "__main__":
    out = build(dict(phases=["p", "c", "g1", "g2"]))
    path = sys.argv[1] if len(sys.argv) > 1 else "sequential_preLN__ssm_conv_h3__mixer_channel_mlp__prompt.s"
    open(path, "w").write(out)
    print("wrote", path, len(out))
```

```python
import sys
from asmb import Asm, v, s

KNAME = "sequential_preLN__ssm_conv_h3__mixer_channel_mlp__prompt_kernel"
S_, D_, F_ = 2048, 1024, 3584

WS_FLAGS = 0
WS_EPOCH = 32768
WS_ST    = 65536
WS_TSP   = 131072
WS_CSP   = 393216
WS_STAMP = 786432
WS_XR    = 1 << 20
WS_XT    = 5 << 20
WS_HT    = 9 << 20
WS_HM    = 13 << 20
WS_EX    = 28 << 20
WS_SIZE  = 64 << 20

S_X, S_K, S_V, S_SH, S_SSMK, S_SSMD, S_BX, S_W1 = 8, 10, 12, 14, 16, 18, 20, 22
S_B1, S_W2, S_B2, S_OUT = 24, 26, 28, 30
S_DBG, S_WS = 32, 34
SRD_WS, SRD_A, SRD_B, SRD_C = 36, 40, 44, 48
S_WV, S_XI, S_J, S_EP = 52, 53, 54, 55

LDS_BYTES = 163840

class G(Asm):
    def __init__(self, opts):
        super().__init__()
        self.o = opts
        self.stamp_names = []
        self.nt = " nt" if opts.get("nt", True) else ""

    def srd(self, dst, ptr, nbytes):
        self.e(f"s_mov_b32 {s(dst)}, {s(ptr)}")
        self.e(f"s_mov_b32 {s(dst+1)}, {s(ptr+1)}")
        self.e(f"s_mov_b32 {s(dst+2)}, {nbytes}")
        self.e(f"s_mov_b32 {s(dst+3)}, 0x20000")

    def stamp(self, name):
        if not self.o.get("stamps"): return
        if name in self.stamp_names: i = self.stamp_names.index(name)
        else:
            i = len(self.stamp_names)
            assert i < 32
            self.stamp_names.append(name)
        self.e(f"{'s_memtime' if self.o.get('cyc') else 's_memrealtime'} s[100:101]")
        self.e("s_waitcnt lgkmcnt(0)")
        self.e(f"v_writelane_b32 v253, s100, {i}")
    def tick(self, i): pass
    def tick_flush(self, n): pass

    def stamp_flush(self):
        if not self.o.get("stamps"): return
        L = self.newlabel("tf")
        self.e(f"s_and_b32 s98, {s(S_WV)}, 3")
        self.e("s_cmp_lg_u32 s98, 0")
        self.e(f"s_cbranch_scc1 {L}")
        self.e(f"s_lshl_b32 s98, s2, 8")
        self.e(f"s_lshl_b32 s99, {s(S_WV)}, 5")
        self.e("s_add_u32 s98, s98, s99")
        self.e(f"s_add_u32 s98, s98, {WS_STAMP}")
        self.e("v_lshlrev_b32 v255, 2, v0")
        self.e("v_add_u32 v255, s98, v255")
        self.e("s_mov_b32 exec_hi, 0")
        self.e(f"buffer_store_dword v253, v255, {s(SRD_WS,4)}, 0 offen")
        self.e("s_mov_b64 exec, -1")
        self.label(L)

    def prologue(self):
        e = self.e
        e("s_cmp_ge_u32 s2, 256")
        e("s_cbranch_scc1 L_end")
        e("s_load_dwordx16 s[8:23], s[0:1], 0")
        e("s_load_dwordx8 s[24:31], s[0:1], 64")
        e("s_load_dwordx4 s[32:35], s[0:1], 96")
        if self.o.get("code_pf", True):
            e("s_getpc_b64 s[56:57]")
            self.label("L_pc")
            e(f"s_sub_u32 s56, s56, L_pc-{KNAME}")
            e("s_subb_u32 s57, s57, 0")
            e("v_and_b32 v1, 255, v0")
            e("v_lshlrev_b32 v1, 7, v1")
            e("v_lshrrev_b32 v2, 8, v0")
            e("v_lshl_add_u32 v1, v2, 6, v1")
            e(f"v_min_u32 v1, L_end-{KNAME}, v1")
            e("global_load_dword v245, v1, s[56:57]")
        e("v_lshrrev_b32 v1, 6, v0")
        e(f"v_readfirstlane_b32 {s(S_WV)}, v1")
        e("v_and_b32 v0, 63, v0")
        e(f"s_and_b32 {s(S_XI)}, s2, 7")
        e(f"s_lshr_b32 {s(S_J)}, s2, 3")
        e(f"v_mov_b32 v2, {self.C_CNT}")
        e("v_mov_b32 v3, 0")
        e("v_lshl_add_u32 v2, v0, 2, v2")
        e("ds_write_b32 v2, v3")
        e("s_waitcnt lgkmcnt(0)")
        self.srd(SRD_WS, S_WS, WS_SIZE)
        e(f"s_load_dword {s(S_EP)}, {s(S_WS,2)}, {WS_EPOCH}")

    def lds_count(self, idx, target, then):
        e = self.e
        L = self.newlabel("cnt")
        e(f"v_mov_b32 v250, {self.C_CNT + 4*idx}")
        e("v_mov_b32 v251, 1")
        e("s_mov_b64 exec, 1")
        e("ds_add_rtn_u32 v252, v250, v251")
        e("s_waitcnt lgkmcnt(0)")
        e("v_readfirstlane_b32 s56, v252")
        e("s_mov_b64 exec, -1")
        if then is not None:
            e(f"s_cmp_eq_u32 s56, {target-1}")
            e(f"s_cbranch_scc0 {L}")
            then()
            self.label(L)

    def lds_wait(self, idx, target):
        e = self.e
        L = self.newlabel("lw"); Lx = self.newlabel("lwx")
        e(f"v_mov_b32 v250, {self.C_CNT + 4*idx}")
        e("s_mov_b32 s57, 0x400000")
        self.label(L)
        e("ds_read_b32 v251, v250")
        e("s_sub_u32 s57, s57, 1")
        e("s_cmp_eq_u32 s57, 0")
        e(f"s_cbranch_scc1 {Lx}")
        e("s_waitcnt lgkmcnt(0)")
        e("v_readfirstlane_b32 s56, v251")
        e(f"s_cmp_lt_u32 s56, {target}")
        e(f"s_cbranch_scc1 {L}")
        self.label(Lx)
        e("s_waitcnt lgkmcnt(0)")

    def epoch_ready(self):
        e = self.e
        e("s_waitcnt lgkmcnt(0)")
        e(f"s_and_b32 {s(S_EP)}, {s(S_EP)}, 0xfffffff0")
        e(f"s_add_u32 {s(S_EP)}, {s(S_EP)}, 16")

    def signal(self, p, wave=0, pf_w2=False):
        e = self.e
        e("s_waitcnt vmcnt(0) lgkmcnt(0)")
        e("s_barrier")
        L = self.newlabel("sig")
        e(f"s_cmp_lg_u32 {s(S_WV)}, {wave}")
        e(f"s_cbranch_scc1 {L}")
        self.publish(p)
        self.label(L)
        if pf_w2:
            L = self.newlabel("sgp")
            e(f"s_cmp_ge_u32 {s(S_WV)}, 4")
            e(f"s_cbranch_scc1 {L}")
            self.prefetch_w(2, S_WV)
            self.label(L)

    def poll_all(self, p, t0=248, sleep=0, arr=0):
        e = self.e
        L = self.newlabel("poll"); Lx = self.newlabel("pollx")
        e(f"s_add_u32 s56, {s(S_EP)}, {p}")
        e(f"v_lshlrev_b32 {v(t0+4)}, 7, v0")
        if arr: e(f"v_add_u32 {v(t0+4)}, {8192*arr}, {v(t0+4)}")
        e("s_mov_b32 s57, 0x100000")
        self.label(L)
        if sleep: e(f"s_sleep {sleep}")
        e(f"buffer_load_dwordx4 {v(t0,4)}, {v(t0+4)}, {s(SRD_WS,4)}, 0 offen sc1")
        e("s_sub_u32 s57, s57, 1")
        e("s_cmp_eq_u32 s57, 0")
        e(f"s_cbranch_scc1 {Lx}")
        e("s_waitcnt vmcnt(0)")
        for i in range(4):
            e(f"v_subrev_u32 {v(t0+i)}, s56, {v(t0+i)}")
        e(f"v_max_u32 {v(t0)}, {v(t0)}, {v(t0+1)}")
        e(f"v_max3_u32 {v(t0)}, {v(t0)}, {v(t0+2)}, {v(t0+3)}")
        e(f"v_cmp_le_u32 vcc, 16, {v(t0)}")
        e(f"s_cbranch_vccnz {L}")
        self.label(Lx)
        e("s_waitcnt vmcnt(0)")

    def poll_group(self, p, t0=248, sleep=0):
        e = self.e
        L = self.newlabel("pollg"); Lx = self.newlabel("pollgx")
        e(f"s_add_u32 s56, {s(S_EP)}, {p}")
        e(f"v_and_b32 {v(t0+4)}, 7, v0")
        e(f"v_lshlrev_b32 {v(t0+4)}, 7, {v(t0+4)}")
        e(f"s_lshl_b32 s57, {s(S_XI)}, 10")
        e(f"v_add_u32 {v(t0+4)}, s57, {v(t0+4)}")
        e("s_mov_b32 s57, 0x100000")
        self.label(L)
        if sleep: e(f"s_sleep {sleep}")
        e("s_mov_b64 exec, 0xff")
        e(f"buffer_load_dwordx4 {v(t0,4)}, {v(t0+4)}, {s(SRD_WS,4)}, 0 offen sc1")
        e("s_sub_u32 s57, s57, 1")
        e("s_cmp_eq_u32 s57, 0")
        e(f"s_cbranch_scc1 {Lx}")
        e("s_waitcnt vmcnt(0)")
        for i in range(4):
            e(f"v_subrev_u32 {v(t0+i)}, s56, {v(t0+i)}")
        e(f"v_max_u32 {v(t0)}, {v(t0)}, {v(t0+1)}")
        e(f"v_max3_u32 {v(t0)}, {v(t0)}, {v(t0+2)}, {v(t0+3)}")
        e(f"v_cmp_le_u32 vcc, 16, {v(t0)}")
        e(f"s_cbranch_vccnz {L}")
        self.label(Lx)
        e("s_waitcnt vmcnt(0)")
        e("s_mov_b64 exec, -1")

    def wait_all(self, p, wave=0):
        e = self.e
        if self.o.get("nosync"):
            e("s_barrier"); return
        L = self.newlabel("wa")
        e(f"s_cmp_lg_u32 {s(S_WV)}, {wave}")
        e(f"s_cbranch_scc1 {L}")
        self.poll_all(p)
        self.label(L)
        e("s_barrier")

    def allreduce_add(self, regs, tmp):
        e = self.e
        for mod in ("quad_perm:[1,0,3,2]", "quad_perm:[2,3,0,1]", "row_half_mirror", "row_mirror"):
            for r in regs:
                e(f"v_add_f32_dpp {v(r)}, {v(r)}, {v(r)} {mod} row_mask:0xf bank_mask:0xf")
        for op in ("v_permlane16_swap_b32", "v_permlane32_swap_b32"):
            for r, t in zip(regs, tmp): e(f"v_mov_b32 {v(t)}, {v(r)}")
            for r, t in zip(regs, tmp): e(f"{op} {v(t)}, {v(r)}")
            for r, t in zip(regs, tmp): e(f"v_add_f32 {v(r)}, {v(r)}, {v(t)}")

    def round_bf16(self, dst, src):
        self.e(f"v_cvt_pk_bf16_f32 {v(dst)}, {v(src)}, {v(src)}")
        self.e(f"v_and_b32 {v(dst)}, 0xffff0000, {v(dst)}")

    C_HC, C_HSTR, C_HCH = 0, 4160, 16640
    C_XR, C_XCH = 66560, 4608
    C_ST = 84992
    C_EX = 101376
    C_XT = 134144
    C_CNT = 150528

    def unpack(self, dst, src, hi):
        if hi: self.e(f"v_and_b32 {v(dst)}, 0xffff0000, {v(src)}")
        else:  self.e(f"v_lshlrev_b32 {v(dst)}, 16, {v(src)}")

    def chC(self, dst):
        e = self.e
        e(f"s_and_b32 s58, {s(S_WV)}, 3")
        e(f"s_lshl_b32 s56, {s(S_XI)}, 7")
        e(f"s_lshl_b32 s57, {s(S_J)}, 2")
        e("s_add_u32 s56, s56, s57")
        e(f"s_add_u32 {s(dst)}, s56, s58")

    def lds_transpose_setup(self):
        e = self.e
        e(f"s_lshl_b32 s56, {s(S_WV)}, 12")
        e(f"s_add_u32 s56, s56, {self.C_EX}")
        e("v_xor_b32 v126, v1, v2")
        e("v_lshlrev_b32 v126, 4, v126")
        e("v_lshl_add_u32 v126, v2, 9, v126")
        e("v_add_u32 v126, s56, v126")
        e("v_lshrrev_b32 v127, 5, v0")
        e("v_lshl_add_u32 v128, v1, 7, s56")
        for i in range(4):
            e(f"v_add_u32 v129, {2*i}, v127")
            e("v_xor_b32 v129, v129, v2")
            e(f"v_lshl_add_u32 {v(130+i)}, v129, 4, v128")

    def h_loads(self):
        e = self.e
        e("s_lshl_b32 s56, s63, 12")
        e(f"s_add_u32 {s(SRD_C)}, {s(S_SSMK)}, s56")
        e(f"s_addc_u32 {s(SRD_C+1)}, {s(S_SSMK+1)}, 0")
        e(f"s_mov_b32 {s(SRD_C+2)}, 4096")
        e(f"s_mov_b32 {s(SRD_C+3)}, 0x20000")
        e("v_lshlrev_b32 v8, 4, v0")
        e("v_subrev_u32 v9, 32, v8")
        for it in range(5):
            if it: e(f"v_add_u32 v9, 1024, v9")
            e(f"buffer_load_dwordx4 {v(140+6*it,4)}, v9, {s(SRD_C,4)}, 0 offen{self.nt}")
            e(f"buffer_load_dwordx2 {v(140+6*it+4,2)}, v9, {s(SRD_C,4)}, 0 offen offset:16{self.nt}")

    def h_build(self, younger=0):
        e = self.e
        e(f"s_mul_i32 s56, s58, {self.C_HCH}")
        e("v_add_u32 v8, s56, v8")
        T = 172
        for it in range(5):
            a = 140 + 6*it
            e(f"s_waitcnt vmcnt({2*(4-it) + younger})")
            if it == 4: e("s_mov_b64 exec, 15")
            off = 1024 * it
            e(f"ds_write_b128 v8, {v(a,4)} offset:{self.C_HC + off}")
            for d in range(4): e(f"v_mov_b32 {v(T+d)}, {v(a+1+d)}")
            e(f"ds_write_b128 v8, {v(T,4)} offset:{self.C_HC + 2*self.C_HSTR + off}")
            for d in range(4): e(f"v_alignbit_b32 {v(T+4+d)}, {v(a+d+1)}, {v(a+d)}, 16")
            e(f"ds_write_b128 v8, {v(T+4,4)} offset:{self.C_HC + 1*self.C_HSTR + off}")
            for d in range(4): e(f"v_alignbit_b32 {v(T+8+d)}, {v(a+d+2)}, {v(a+d+1)}, 16")
            e(f"ds_write_b128 v8, {v(T+8,4)} offset:{self.C_HC + 3*self.C_HSTR + off}")
            T = 184 if T == 172 else 172
        e("s_mov_b64 exec, -1")

    def phase_p(self):
        e = self.e
        Lb = self.newlabel("p_b"); Le = self.newlabel("p_e")
        self.chC(63)
        e("v_lshrrev_b32 v1, 3, v0           ; pbk")
        e("v_and_b32 v2, 7, v0               ; cq")
        if self.o.get("p_rot"):
            e(f"s_add_u32 s56, {s(S_XI)}, {s(S_J)}")
            e("s_and_b32 s56, s56, 7")
            e("s_lshl_b32 s56, s56, 7")
        else:
            e(f"s_lshl_b32 s56, {s(S_XI)}, 7")
        e("s_lshl_b32 s57, s58, 5")
        e("s_add_u32 s59, s56, s57            ; 128cb + 32w")
        e("v_lshl_add_u32 v3, v2, 2, s59      ; ch0")
        e(f"s_lshl_b32 s56, {s(S_J)}, 6")
        e("v_lshl_add_u32 v4, v1, 3, s56")
        e("v_lshlrev_b32 v5, 11, v4")
        e("v_lshl_add_u32 v5, v3, 1, v5")
        e(f"s_cmp_ge_u32 {s(S_WV)}, 4")
        e(f"s_cbranch_scc1 {Lb}")
        self.srd(SRD_A, S_K, S_ * D_ * 2)
        self.srd(SRD_B, S_V, S_ * D_ * 2)
        self.srd(SRD_C, S_SH, D_ * 8)
        KD, VD, WD = 10, 32, 48
        e("v_subrev_u32 v120, 6144, v5")
        for i in range(1, 6): e(f"v_add_u32 {v(120+i)}, {4096*i}, v120")
        for i in range(11):
            e(f"buffer_load_dwordx2 {v(KD+2*i,2)}, {v(120+i//2)}, {s(SRD_A,4)}, 0 offen offset:{2048*(i&1)}{self.nt}")
        e("v_lshlrev_b32 v7, 3, v3            ; ch0*8")
        e(f"buffer_load_dwordx4 {v(WD,4)}, v7, {s(SRD_C,4)}, 0 offen")
        e(f"buffer_load_dwordx4 {v(WD+4,4)}, v7, {s(SRD_C,4)}, 0 offen offset:16")
        for p in range(8):
            i = p + 3
            e(f"buffer_load_dwordx2 {v(VD+2*p,2)}, {v(120+i//2)}, {s(SRD_B,4)}, 0 offen offset:{2048*(i&1)}{self.nt}")
        e("s_barrier")
        e("v_mov_b32 v8, 0"); e("v_mov_b32 v9, 0")
        e(f"s_mul_i32 s56, s58, {self.C_XCH}")
        e(f"s_add_u32 s56, s56, {self.C_XR + 4096}")
        e("v_lshl_add_u32 v6, v0, 3, s56")
        e("ds_write_b64 v6, v[8:9]")
        self.lds_transpose_setup()
        e("v_lshlrev_b32 v6, 4, v2")
        e(f"s_lshl_b32 s56, {s(S_J)}, 7")
        e("s_sub_u32 s56, 4080, s56")
        e("v_sub_u32 v6, s56, v6")
        e("v_add_u32 v7, s59, v1")
        e("v_lshl_add_u32 v6, v7, 12, v6")
        e(f"v_add_u32 v6, {WS_XR}, v6")
        for c in range(1, 4): e(f"s_mov_b32 {s(64+c)}, {8*4096*c}")
        e("s_mov_b32 s64, 0")
        WP, KP, R, VP, O = 56, 64, 86, 102, 104
        e("s_waitcnt vmcnt(8)")
        for cp in range(2):
            for j in range(4):
                self.unpack(WP + 2*j,     WD + 2*(2*cp)   + (j >> 1), j & 1)
                self.unpack(WP + 2*j + 1, WD + 2*(2*cp+1) + (j >> 1), j & 1)
            for i in range(11):
                self.unpack(KP + 2*i,     KD + 2*i + cp, 0)
                self.unpack(KP + 2*i + 1, KD + 2*i + cp, 1)
            if cp == 0: e("s_waitcnt vmcnt(0)")
            for p in range(8):
                r = R + 2*p
                e(f"v_pk_mul_f32 {v(r,2)}, {v(KP+2*(p+3),2)}, {v(WP,2)}")
                for j in range(1, 4):
                    e(f"v_pk_fma_f32 {v(r,2)}, {v(KP+2*(p+3-j),2)}, {v(WP+2*j,2)}, {v(r,2)}")
                self.unpack(VP,     VD + 2*p + cp, 0)
                self.unpack(VP + 1, VD + 2*p + cp, 1)
                e(f"v_pk_mul_f32 {v(r,2)}, {v(r,2)}, {v(VP,2)}")
            for cc in range(2):
                c = 2*cp + cc
                for j in range(4):
                    e(f"v_cvt_pk_bf16_f32 {v(O+4*c+j)}, {v(R+2*(7-2*j)+cc)}, {v(R+2*(6-2*j)+cc)}")
                e(f"ds_write_b128 v126, {v(O+4*c,4)} offset:{128*c}")
        e("s_waitcnt lgkmcnt(0)")
        for i in range(4): e(f"ds_read_b128 {v(O+4*i,4)}, {v(130+i)} offset:{1024*i}")
        for i in range(4):
            e(f"s_waitcnt lgkmcnt({3-i})")
            e(f"buffer_store_dwordx4 {v(O+4*i,4)}, v6, {s(SRD_WS,4)}, {s(64+i)} offen sc1")
        self.stamp("p_stored")
        e("s_and_b32 s56, s63, 0xfffffffe")
        e("s_lshl_b32 s56, s56, 1")
        e(f"s_load_dword s69, {s(S_SSMD,2)}, s56")
        self.epoch_ready()
        e("s_waitcnt vmcnt(0)")
        self.lds_count(0, 4, lambda: self.publish(1))
        self.stamp("p_sig")
        e(f"s_branch {Le}")
        self.label(Lb)
        self.h_loads()
        self.srd(SRD_A, S_X, S_ * D_ * 2)
        XD, SD = 10, 26
        e("v_mov_b32 v120, v5")
        for i in range(1, 4): e(f"v_add_u32 {v(120+i)}, {4096*i}, v5")
        for p in range(8):
            e(f"buffer_load_dwordx2 {v(XD+2*p,2)}, {v(120+p//2)}, {s(SRD_A,4)}, 0 offen offset:{2048*(p&1)}{self.nt}")
        e("s_lshl_b32 s56, s2, 3")
        e("s_lshl_b32 s57, s58, 1")
        e("s_add_u32 s62, s56, s57            ; R0 = 8w + 2w'")
        e("s_lshl_b32 s56, s62, 11")
        e("v_lshl_add_u32 v6, v0, 4, s56")
        for i in range(4):
            e(f"buffer_load_dwordx4 {v(SD+4*i,4)}, v6, {s(SRD_A,4)}, 0 offen offset:{1024*i}{self.nt}")
        e("s_barrier")
        e("s_and_b32 s56, s63, 0xfffffffe")
        e("s_lshl_b32 s56, s56, 1")
        e(f"s_load_dword s69, {s(S_SSMD,2)}, s56")
        self.h_build(younger=12)
        e("s_waitcnt lgkmcnt(0)")
        self.lds_count(1, 4, None)
        self.stamp("p_hb")
        self.lds_transpose_setup()
        e("v_lshlrev_b32 v6, 4, v2")
        e(f"s_lshl_b32 s56, {s(S_J)}, 7")
        e("v_add_u32 v6, s56, v6")
        e("v_add_u32 v7, s59, v1")
        e("v_lshl_add_u32 v6, v7, 12, v6")
        e(f"v_add_u32 v6, {WS_XT}, v6")
        for c in range(1, 4): e(f"s_mov_b32 {s(64+c)}, {8*4096*c}")
        e("s_mov_b32 s64, 0")
        e("s_mov_b32 s60, 0x05040100")
        e("s_mov_b32 s61, 0x07060302")
        O = 104
        e("s_waitcnt vmcnt(4)")
        for c in range(4):
            sel = s(61) if c & 1 else s(60)
            for j in range(4):
                e(f"v_perm_b32 {v(O+4*c+j)}, {v(XD+2*(2*j+1)+(c>>1))}, {v(XD+2*(2*j)+(c>>1))}, {sel}")
            e(f"ds_write_b128 v126, {v(O+4*c,4)} offset:{128*c}")
        e("s_waitcnt lgkmcnt(0)")
        for i in range(4): e(f"ds_read_b128 {v(O+4*i,4)}, {v(130+i)} offset:{1024*i}")
        for i in range(4):
            e(f"s_waitcnt lgkmcnt({3-i})")
            e(f"buffer_store_dwordx4 {v(O+4*i,4)}, v6, {s(SRD_WS,4)}, {s(64+i)} offen sc1")
        U = 44
        e("s_waitcnt vmcnt(4)")
        for r in range(2):
            for d in range(8):
                self.unpack(U+16*r+2*d, SD+8*r+d, 0)
                self.unpack(U+16*r+2*d+1, SD+8*r+d, 1)
        SUM = [80, 81]; TMP = [82, 83]; VAR = [86, 87]
        for r in range(2):
            b = U + 16*r
            e(f"v_pk_add_f32 v[84:85], {v(b,2)}, {v(b+2,2)}")
            for d in range(2, 8):
                e(f"v_pk_add_f32 v[84:85], v[84:85], {v(b+2*d,2)}")
            e(f"v_add_f32 {v(SUM[r])}, v84, v85")
        self.allreduce_add(SUM, TMP)
        for r in range(2):
            e(f"v_mul_f32 {v(SUM[r])}, 0x3a800000, {v(SUM[r])}")
        for r in range(2):
            b = U + 16*r
            for d in range(0, 16, 2):
                e(f"v_sub_f32 {v(b+d)}, {v(b+d)}, {v(SUM[r])}")
                e(f"v_sub_f32 {v(b+d+1)}, {v(b+d+1)}, {v(SUM[r])}")
            e(f"v_pk_mul_f32 v[84:85], {v(b,2)}, {v(b,2)}")
            for d in range(1, 8):
                e(f"v_pk_fma_f32 v[84:85], {v(b+2*d,2)}, {v(b+2*d,2)}, v[84:85]")
            e(f"v_add_f32 {v(VAR[r])}, v84, v85")
        self.allreduce_add(VAR, TMP)
        ST = 88
        for r in range(2):
            e(f"v_mul_f32 {v(VAR[r])}, 0x3a800000, {v(VAR[r])}")
            self.round_bf16(VAR[r], VAR[r])
            e(f"v_add_f32 {v(VAR[r])}, 0x3727c5ac, {v(VAR[r])}")
            self.round_bf16(VAR[r], VAR[r])
            e(f"v_sqrt_f32 {v(VAR[r])}, {v(VAR[r])}")
            self.round_bf16(VAR[r], VAR[r])
            e(f"v_rcp_f32 {v(ST+2*r+1)}, {v(VAR[r])}")
            self.round_bf16(ST + 2*r, SUM[r])
        e("s_lshl_b32 s56, s62, 3")
        e(f"s_add_u32 s56, s56, {WS_ST}")
        e("v_mov_b32 v6, s56")
        e("s_mov_b64 exec, 1")
        e(f"buffer_store_dwordx4 {v(ST,4)}, v6, {s(SRD_WS,4)}, 0 offen sc1")
        e("s_mov_b64 exec, -1")
        self.stamp("p_stored")
        self.epoch_ready()
        e("s_waitcnt vmcnt(0)")
        self.lds_count(2, 4, lambda: self.publish(1, arr=1))
        self.stamp("p_sig")
        self.label(Le)

    def publish(self, p, arr=0):
        e = self.e
        e(f"s_add_u32 s56, {s(S_EP)}, {p}")
        e("v_mov_b32 v254, s56")
        e(f"s_lshl_b32 s57, {s(S_XI)}, 10")
        e(f"s_lshr_b32 s56, {s(S_J)}, 2")
        e("s_lshl_b32 s56, s56, 7")
        e("s_add_u32 s57, s57, s56")
        e(f"s_and_b32 s56, {s(S_J)}, 3")
        e("s_lshl_b32 s56, s56, 2")
        e("s_add_u32 s57, s57, s56")
        if arr: e(f"s_add_u32 s57, s57, {8192*arr}")
        e("v_mov_b32 v255, s57")
        e("s_mov_b64 exec, 1")
        e(f"buffer_store_dword v254, v255, {s(SRD_WS,4)}, 0 offen sc1")
        e("s_mov_b64 exec, -1")

    def phase_c(self):
        e = self.e
        Lh = self.newlabel("c_help"); Lj = self.newlabel("c_join"); Lep = self.newlabel("c_epi")
        e(f"s_cmp_ge_u32 {s(S_WV)}, 4")
        e(f"s_cbranch_scc1 {Lh}")
        self.chC(63)
        e("v_lshlrev_b32 v1, 4, v0            ; lane*16")
        Lp = self.newlabel("c_p"); Lp2 = self.newlabel("c_p2")
        e(f"s_cmp_eq_u32 {s(S_WV)}, 0")
        e(f"s_cbranch_scc0 {Lp}")
        if not self.o.get("nosync"): self.poll_group(1, sleep=self.o.get("g_sleep", 2))
        self.lds_count(4, 1, None)
        e(f"s_branch {Lp2}")
        self.label(Lp)
        self.lds_wait(4, 1)
        self.label(Lp2)
        self.stamp("c_start")
        e("s_lshl_b32 s56, s63, 12")
        e(f"s_add_u32 s60, s56, {WS_XR}")
        e(f"s_mul_i32 s56, s58, {self.C_XCH}")
        e(f"s_add_u32 m0, s56, {self.C_XR}")
        for i in range(4):
            e(f"buffer_load_dwordx4 v1, {s(SRD_WS,4)}, s60 offen sc1 lds")
            if i < 3: e("s_add_u32 m0, m0, 1024"); e("s_add_u32 s60, s60, 1024")
        e("v_and_b32 v2, 15, v0               ; n / m")
        e("v_lshrrev_b32 v3, 4, v0            ; g / rho")
        e("v_add_u32 v6, 1, v2")
        e("v_and_b32 v7, 3, v6")
        e(f"v_mul_u32_u24 v7, {self.C_HSTR}, v7")
        e("v_and_b32 v6, 0x1c, v6")
        e("v_lshl_add_u32 v7, v6, 1, v7")
        e("v_lshl_add_u32 v7, v3, 4, v7")
        e(f"s_mul_i32 s56, s58, {self.C_HCH}")
        e(f"s_add_u32 s56, s56, {self.C_HC}")
        e("v_add_u32 v8, s56, v7              ; v8 = A base")
        e("v_lshlrev_b32 v6, 5, v2")
        e("v_lshlrev_b32 v7, 4, v3")
        e("v_sub_u32 v6, v7, v6")
        e(f"s_mul_i32 s56, s58, {self.C_XCH}")
        e(f"s_add_u32 s56, s56, {self.C_XR + 480}")
        e("v_add_u32 v9, s56, v6              ; v9 = B base")
        self.lds_wait(1, 4)
        e("s_waitcnt vmcnt(0)")
        if self.o.get("prefetch_w", True): self.prefetch_w(1, 58)
        self.stamp("c_loop")
        ACC = 10
        FA = [42, 106]; FB = [74, 138]
        def reads(st, tt):
            r = []
            for i in range(8):
                r.append(f"ds_read_b128 {v(FB[st]+4*i,4)}, v9 offset:{512*(7-i) + 64*tt}")
                for hh in range(2):
                    r.append(f"ds_read_b64 {v(FA[st]+4*i+2*hh,2)}, v8 offset:{512*i + 64*tt + 8*hh}")
            return r
        pairs = sorted([(q, cp) for q in range(8) for cp in range(8 - q)], key=lambda t: (max(t), t[0] + t[1]))
        for r in reads(0, 0): e(r)
        for tt in range(8):
            st = tt & 1
            e("s_waitcnt lgkmcnt(0)")
            nxt = reads(st ^ 1, tt + 1) if tt < 7 else []
            seen = set(); i = 0
            for (q, cp) in pairs:
                c = q + cp
                a = ACC + 4*c
                src = "0" if (tt == 0 and c not in seen) else v(a, 4)
                seen.add(c)
                e(f"v_mfma_f32_16x16x32_bf16 {v(a,4)}, {v(FA[st]+4*q,4)}, {v(FB[st]+4*cp,4)}, {src}")
                if i < len(nxt): e(nxt[i]); i += 1
        self.stamp("c_loopend")
        e(f"s_lshl_b32 s56, s58, 12")
        e(f"s_add_u32 s56, s56, {self.C_EX + 16384}")
        e("v_add_u32 v6, s56, v1")
        for i in range(4): e(f"ds_write_b128 v6, {v(ACC+16+4*i,4)} offset:{1024*i}")
        e("s_waitcnt lgkmcnt(0)")
        e("s_barrier")
        e(f"s_branch {Lep}")
        self.label(Lh)
        self.chC(63)
        Lq = self.newlabel("c_q"); Lq2 = self.newlabel("c_q2")
        e(f"s_cmp_eq_u32 {s(S_WV)}, 4")
        e(f"s_cbranch_scc0 {Lq}")
        if not self.o.get("nosync"): self.poll_all(1, sleep=self.o.get('x_sleep', 16), arr=1)
        self.stamp("c_xpoll")
        e("v_lshlrev_b32 v1, 4, v0")
        e(f"s_mov_b32 s60, {WS_ST}")
        e(f"s_mov_b32 m0, {self.C_ST}")
        for i in range(16):
            e(f"buffer_load_dwordx4 v1, {s(SRD_WS,4)}, s60 offen sc1 lds")
            e("s_add_u32 m0, m0, 1024"); e("s_add_u32 s60, s60, 1024")
        e("s_lshl_b32 s56, s63, 12")
        e(f"s_add_u32 s60, s56, {WS_XT}")
        e(f"s_mov_b32 m0, {self.C_XT}")
        for i in range(16):
            e(f"buffer_load_dwordx4 v1, {s(SRD_WS,4)}, s60 offen sc1 lds")
            if i < 15: e("s_add_u32 m0, m0, 1024"); e("s_add_u32 s60, s60, 1024")
        e("s_waitcnt vmcnt(0)")
        self.stamp("c_xjob")
        e(f"s_branch {Lq2}")
        self.label(Lq)
        self.label(Lq2)
        self.stamp("c_loopend")
        e("s_barrier")
        self.chC(63)
        e("v_lshlrev_b32 v1, 4, v0")
        e("v_and_b32 v2, 15, v0")
        e("v_lshrrev_b32 v3, 4, v0")
        e(f"s_lshl_b32 s56, s58, 12")
        e(f"s_add_u32 s56, s56, {self.C_EX + 16384}")
        e("v_add_u32 v6, s56, v1")
        for i in range(4): e(f"ds_read_b128 {v(ACC+4*i,4)}, v6 offset:{1024*i}")
        self.label(Lep)
        self.stamp("c_exch")
        e(f"s_lshr_b32 s59, {s(S_WV)}, 2       ; kh")
        e("v_and_b32 v4, 1, v3")
        e("s_lshl_b32 s56, s59, 2")
        e("v_add_u32 v4, s56, v4")
        e("v_lshlrev_b32 v4, 8, v4")
        e("v_lshl_add_u32 v4, v2, 4, v4")
        e("v_lshrrev_b32 v5, 1, v3")
        e("v_lshl_add_u32 v4, v5, 3, v4       ; v4 = s (pair 0)")
        KV, STT, XE = 42, 50, 82
        e("v_sub_u32 v5, 2040, v4")
        e("v_lshlrev_b32 v5, 1, v5")
        e(f"s_mul_i32 s56, s58, {self.C_XCH}")
        e(f"s_add_u32 s56, s56, {self.C_XR - 1024}")
        e("v_add_u32 v5, s56, v5")
        e(f"ds_read_b128 {v(KV,4)}, v5 offset:1024")
        e(f"ds_read_b128 {v(KV+4,4)}, v5")
        e("s_lshl_b32 s56, s58, 12")
        e(f"s_add_u32 s56, s56, {self.C_XT}")
        e("v_lshl_add_u32 v5, v4, 1, s56")
        e(f"ds_read_b128 {v(XE,4)}, v5")
        e(f"ds_read_b128 {v(XE+4,4)}, v5 offset:1024")
        e("v_lshlrev_b32 v5, 3, v4")
        e(f"v_add_u32 v5, {self.C_ST}, v5")
        for p in range(2):
            for i in range(4):
                e(f"ds_read_b128 {v(STT+16*p+4*i,4)}, v5 offset:{4096*p + 16*i}")
        e("v_lshrrev_b32 v5, 7, v4")
        e("v_lshlrev_b32 v5, 18, v5")
        e("v_and_b32 v6, 127, v4")
        e("v_lshl_add_u32 v5, v6, 1, v5")
        e("s_lshl_b32 s56, s63, 8")
        e(f"s_add_u32 s60, s56, {WS_HT}")
        e(f"s_add_u32 s62, s60, {4 << 18}")
        e("s_and_b32 s56, s63, 1")
        e("s_lshl_b32 s56, s56, 4")
        e("s_lshr_b32 s61, s69, s56")
        e("s_lshl_b32 s61, s61, 16")
        e("s_waitcnt lgkmcnt(0)")
        H = 110
        for p in range(2):
            a = ACC + 8*p; b = a + 4
            for r in range(4):
                e(f"v_permlane16_swap_b32 {v(a+r)}, {v(b+r)}")
            for el in range(8):
                y = a + el
                xr_ = XE + 4*p + (el >> 1)
                kj = KV + 4*p + ((7 - el) >> 1)
                t0 = H + 16 + (el & 1) * 4
                self.unpack(t0, xr_, el & 1)
                self.unpack(t0 + 1, kj, 1 - (el & 1))
                m_ = STT + 16*p + 2*el
                e(f"v_fmac_f32 {v(y)}, s61, {v(t0+1)}")
                e(f"v_sub_f32 {v(t0+2)}, {v(t0)}, {v(m_)}")
                e(f"v_mul_f32 {v(t0+2)}, {v(t0+2)}, {v(m_+1)}")
                e(f"v_fma_f32 {v(H+el)}, {v(t0+2)}, {v(y)}, {v(t0)}")
            O = H + 8
            for j in range(4):
                e(f"v_cvt_pk_bf16_f32 {v(O+j)}, {v(H+2*j)}, {v(H+2*j+1)}")
            e(f"buffer_store_dwordx4 {v(O,4)}, v5, {s(SRD_WS,4)}, {s(60 if p == 0 else 62)} offen sc1")
            H = 140

    def prefetch_w(self, which, swave):
        e = self.e
        ptr = S_W1 if which == 1 else S_W2
        self.srd(SRD_C, ptr, D_ * F_ * 2)
        e("s_lshl_b32 s56, s2, 2")
        e(f"s_add_u32 s56, s56, {s(swave)}")
        e("s_mul_i32 s56, s56, 56*128")
        e("v_min_u32 v247, 55, v0")
        e("v_lshlrev_b32 v247, 7, v247")
        e("v_add_u32 v247, s56, v247")
        e(f"buffer_load_dword v246, v247, {s(SRD_C,4)}, 0 offen")

    G1_STG = 45056
    G1_TOK, G1_W = 0, 16384
    G1_AST = 135168
    G1_CS  = 136192
    G1_B1  = 137216
    G1_CNT = 138240

    def g1_ids(self):
        e = self.e
        e(f"s_and_b32 s56, {s(S_XI)}, 1")
        e("s_lshl_b32 s56, s56, 3")
        e(f"s_and_b32 s57, {s(S_J)}, 7")
        e("s_add_u32 s60, s56, s57          ; mb")
        e(f"s_lshr_b32 s56, {s(S_XI)}, 1")
        e("s_lshl_b32 s56, s56, 2")
        e(f"s_lshr_b32 s57, {s(S_J)}, 3")
        e("s_add_u32 s61, s56, s57          ; nb")

    def wg_of(self, dst, vmb, vnb, t):
        e = self.e
        e(f"v_lshrrev_b32 {v(dst)}, 3, {v(vmb)}")
        e(f"v_lshrrev_b32 {v(t)}, 2, {v(vnb)}")
        e(f"v_lshl_add_u32 {v(dst)}, {v(t)}, 1, {v(dst)}      ; x")
        e(f"v_and_b32 {v(t)}, 7, {v(vmb)}")
        e(f"v_lshl_add_u32 {v(dst)}, {v(t)}, 3, {v(dst)}")
        e(f"v_and_b32 {v(t)}, 3, {v(vnb)}")
        e(f"v_lshl_add_u32 {v(dst)}, {v(t)}, 6, {v(dst)}")

    def flag_addr(self, dst, t):
        e = self.e
        e(f"v_and_b32 {v(t)}, 7, {v(dst)}")
        e(f"v_lshlrev_b32 {v(t)}, 10, {v(t)}")
        e(f"v_lshrrev_b32 {v(t+1)}, 5, {v(dst)}")
        e(f"v_lshl_add_u32 {v(t)}, {v(t+1)}, 7, {v(t)}")
        e(f"v_bfe_u32 {v(dst)}, {v(dst)}, 3, 2")
        e(f"v_lshl_add_u32 {v(dst)}, {v(dst)}, 2, {v(t)}")

    def poll_addr(self, p, va, vd):
        e = self.e
        L = self.newlabel("pa"); Lx = self.newlabel("pax")
        e(f"s_add_u32 s56, {s(S_EP)}, {p}")
        e("s_mov_b32 s57, 0x100000")
        self.label(L)
        e(f"buffer_load_dword {v(vd)}, {v(va)}, {s(SRD_WS,4)}, 0 offen sc1")
        e("s_sub_u32 s57, s57, 1")
        e("s_cmp_eq_u32 s57, 0")
        e(f"s_cbranch_scc1 {Lx}")
        e("s_waitcnt vmcnt(0)")
        e(f"v_subrev_u32 {v(vd)}, s56, {v(vd)}")
        e(f"v_cmp_le_u32 vcc, 16, {v(vd)}")
        e(f"s_cbranch_vccnz {L}")
        self.label(Lx)
        e("s_waitcnt vmcnt(0)")

    def g1_loader_setup(self):
        e = self.e
        e(f"s_sub_u32 s58, {s(S_WV)}, 4       ; lw")
        e("v_lshrrev_b32 v13, 4, v0          ; g = lane>>4")
        e("v_and_b32 v14, 15, v0             ; p")
        e("v_lshrrev_b32 v15, 1, v14         ; b'")
        e("v_and_b32 v16, 1, v14             ; half")
        e("v_xor_b32 v15, v15, v13           ; b' ^ (row&3)")
        e("s_lshl_b32 s59, s58, 4")
        e("v_add_u32 v17, s59, v13")
        e("v_lshlrev_b32 v17, 8, v17         ; *256")
        e("v_lshl_add_u32 v17, v16, 4, v17")
        e("s_lshl_b32 s59, s60, 18           ; mb*262144")
        e(f"s_add_u32 s59, s59, {WS_HT}")
        e("v_add_u32 v17, s59, v17")
        for ii in range(4):
            x4 = 4 if (ii >> 1) & 1 else 0
            e(f"v_xor_b32 v18, {x4}, v15")
            e("v_lshl_add_u32 v18, v18, 5, v17")
            e(f"v_add_u32 {v(2+ii)}, {ii*4*256}, v18")
        e("s_mov_b32 s59, 0x924924a          ; ceil(2^32/28)")
        for ii in range(7):
            e(f"v_add_u32 v13, {64*ii}, v0")
            e("v_mul_hi_u32 v14, s59, v13        ; row_local")
            e("v_mul_u32_u24 v15, 28, v14")
            e("v_sub_u32 v15, v13, v15           ; p")
            e("v_bfe_u32 v16, v14, 3, 1          ; bit3(row)")
            e("v_lshrrev_b32 v17, 1, v15         ; b'")
            e("v_xor_b32 v17, v17, v16           ; b")
            e("v_and_b32 v15, 1, v15")
            e("v_lshlrev_b32 v15, 4, v15")
            e("v_lshl_add_u32 v15, v17, 5, v15   ; b*32 + half*16")
            e("v_mul_u32_u24 v14, 7168, v14")
            e(f"v_add_u32 {v(6+ii)}, v14, v15")
        e("s_mul_i32 s59, s58, 16*7168")
        e("s_mul_i32 s57, s61, 448")
        e("s_add_u32 s59, s59, s57")
        for ii in range(7):
            e(f"v_add_u32 {v(6+ii)}, s59, {v(6+ii)}")
        e("s_lshl_b32 s62, s58, 12")
        e("s_mul_i32 s63, s58, 7168")
        e(f"s_add_u32 s63, s63, {self.G1_W}")

    def g1_issue_w(self, sbuf, sk):
        e = self.e
        if self.o.get("g1_nodma"): return
        e(f"s_add_u32 m0, {s(sbuf)}, s63")
        for ii in range(7):
            e(f"buffer_load_dwordx4 {v(6+ii)}, {s(SRD_B,4)}, {s(sk)} offen lds")
            if ii < 6: e("s_add_u32 m0, m0, 1024")

    def g1_issue_t(self, sbuf, sk):
        e = self.e
        if self.o.get("g1_nodma"): return
        e(f"s_add_u32 m0, {s(sbuf)}, s62")
        for ii in range(4):
            e(f"buffer_load_dwordx4 {v(2+ii)}, {s(SRD_WS,4)}, {s(sk)} offen sc1 lds")
            if ii < 3: e("s_add_u32 m0, m0, 1024")

    def g1_next_k(self):
        e = self.e
        e("s_add_u32 s68, s68, 1")
        e("s_and_b32 s68, s68, 15")
        e(f"s_mul_i32 s65, s68, {64*7168}")
        e(f"s_lshl_b32 s66, s68, 14")

    def g1_side_partials(self):
        e = self.e
        e("v_lshrrev_b32 v20, 4, v0          ; g")
        e("v_and_b32 v21, 15, v0")
        e("v_lshrrev_b32 v22, 2, v21         ; r")
        e("v_and_b32 v23, 3, v21             ; c")
        e("v_lshl_add_u32 v24, v20, 3, v22   ; row = 8g + r")
        e("v_and_b32 v25, 1, v20             ; g&1")
        e("v_lshl_or_b32 v26, v25, 2, v22    ; f(row)")
        e("v_lshlrev_b32 v27, 8, v24")
        e("v_lshl_add_u32 v27, v23, 3, v27   ; row*256 + c*8")
        for i in range(2):
            e(f"s_lshl_b32 s56, s58, 1")
            e(f"s_add_u32 s56, s56, {i}")
            e("v_xor_b32 v28, s56, v26")
            e(f"v_lshl_add_u32 {v(30+i)}, v28, 5, v27")
        TF = 32
        for i in range(2):
            for u in range(2):
                for h in range(2):
                    e(f"ds_read_b64_tr_b16 {v(TF+8*i+4*u+2*h,2)}, {v(30+i)} offset:{u*8192 + h*1024}")
        e("v_mul_u32_u24 v27, 448, v24")
        e("v_lshl_add_u32 v27, v23, 3, v27")
        e(f"v_add_u32 v27, {self.G1_W}, v27")
        WF = 48
        for i in range(4):
            e(f"s_add_u32 s56, s58, {4*i}")
            e("s_min_u32 s56, s56, 13")
            e(f"s_mov_b32 {s(84+i)}, s56")
            e("v_xor_b32 v28, s56, v25")
            e("v_lshl_add_u32 v28, v28, 5, v27")
            for u in range(2):
                for h in range(2):
                    e(f"ds_read_b64_tr_b16 {v(WF+8*i+4*u+2*h,2)}, v28 offset:{u*32*448 + h*4*448}")
        ONE = 80
        for r in range(4): e(f"v_mov_b32 {v(ONE+r)}, 0x3f803f80")
        D1, D2, DC = 84, 92, 100
        e("s_waitcnt lgkmcnt(0)")
        for i in range(2):
            for u in range(2):
                t = v(TF+8*i+4*u, 4)
                e(f"v_mfma_f32_16x16x32_bf16 {v(D1+4*i,4)}, {v(ONE,4)}, {t}, {'0' if u == 0 else v(D1+4*i,4)}")
                e(f"v_mfma_f32_16x16x32_bf16 {v(D2+4*i,4)}, {t}, {t}, {'0' if u == 0 else v(D2+4*i,4)}")
        for i in range(4):
            for u in range(2):
                e(f"v_mfma_f32_16x16x32_bf16 {v(DC+4*i,4)}, {v(WF+8*i+4*u,4)}, {v(ONE,4)}, {'0' if u == 0 else v(DC+4*i,4)}")
        e("s_lshl_b32 s56, s60, 4")
        e("s_add_u32 s56, s56, s61")
        e("s_lshl_b32 s56, s56, 10")
        e(f"s_add_u32 s56, s56, {WS_TSP}")
        e("s_lshl_b32 s57, s58, 8            ; 2lw*16*8")
        e("s_add_u32 s56, s56, s57")
        e("v_lshl_add_u32 v28, v21, 3, s56")
        e("s_mov_b32 s80, 0x22222222"); e("s_mov_b32 s81, 0x22222222")
        e("s_mov_b32 s82, 0x44444444"); e("s_mov_b32 s83, 0x44444444")
        e("s_mov_b32 vcc_lo, 0x88888888"); e("s_mov_b32 vcc_hi, 0x88888888")
        for i in range(2):
            o = 116 + 2*i
            e(f"v_mov_b32 {v(o)}, {v(D1+4*i)}")
            e(f"v_cndmask_b32 {v(o+1)}, {v(D2+4*i)}, {v(D2+4*i+1)}, s[80:81]")
            e(f"v_cndmask_b32 {v(o+1)}, {v(o+1)}, {v(D2+4*i+2)}, s[82:83]")
            e(f"v_cndmask_b32 {v(o+1)}, {v(o+1)}, {v(D2+4*i+3)}, vcc")
        e("s_mov_b32 exec_lo, 0x00f0000f"); e("s_mov_b32 exec_hi, 0xf0000f00")
        for i in range(2):
            e(f"buffer_store_dwordx2 {v(116+2*i,2)}, v28, {s(SRD_WS,4)}, 0 offen offset:{128*i} sc1")
        e("s_mov_b64 exec, -1")
        e("s_lshl_b32 s56, s61, 4")
        e("s_add_u32 s56, s56, s60")
        e("s_lshl_b32 s56, s56, 10")
        e(f"s_add_u32 s56, s56, {WS_CSP}")
        e("v_lshl_add_u32 v28, v20, 4, s56")
        e("s_mov_b32 exec_lo, 0x00010001"); e("s_mov_b32 exec_hi, 0x00010001")
        for i in range(4):
            e(f"s_lshl_b32 s56, {s(84+i)}, 6")
            e(f"buffer_store_dwordx4 {v(DC+4*i,4)}, v28, {s(SRD_WS,4)}, s56 offen sc1")
        e("s_mov_b64 exec, -1")

    def g1_side_signal(self):
        e = self.e
        L = self.newlabel("g1s")
        e(f"v_mov_b32 v20, {self.G1_CNT}")
        e("v_mov_b32 v21, 1")
        e("s_mov_b64 exec, 1")
        e("ds_add_rtn_u32 v22, v20, v21")
        e("s_waitcnt lgkmcnt(0)")
        e("v_readfirstlane_b32 s56, v22")
        e("s_mov_b64 exec, -1")
        e("s_cmp_eq_u32 s56, 3")
        e(f"s_cbranch_scc0 {L}")
        self.publish(4)
        self.label(L)

    def g1_side_poll_issue(self):
        e = self.e
        e("v_and_b32 v20, 15, v0")
        e("v_bfe_u32 v21, v0, 4, 1")
        e("v_cmp_eq_u32 vcc, 0, v21")
        e("v_mov_b32 v22, s60"); e("v_mov_b32 v23, s61")
        e("v_cndmask_b32 v24, v20, v22, vcc")
        e("v_cndmask_b32 v25, v23, v20, vcc")
        self.wg_of(40, 24, 25, 26)
        self.flag_addr(40, 26)
        e(f"buffer_load_dword v41, v40, {s(SRD_WS,4)}, 0 offen sc1")

    def g1_side_loads(self):
        e = self.e
        L = self.newlabel("g1p")
        e(f"s_add_u32 s56, {s(S_EP)}, 4")
        e("v_subrev_u32 v41, s56, v41")
        e("v_cmp_le_u32 vcc, 16, v41")
        e(f"s_cbranch_vccz {L}")
        if not self.o.get("nosync"): self.poll_addr(4, 40, 41)
        self.label(L)
        e("v_and_b32 v20, 31, v0")
        e("s_lshl_b32 s56, s58, 5")
        e("v_add_u32 v42, s56, v20            ; token")
        e("v_lshrrev_b32 v21, 5, v0")
        e("v_lshlrev_b32 v21, 13, v21         ; hf*8*1024")
        e("v_lshl_add_u32 v21, v42, 3, v21")
        e("s_lshl_b32 s56, s60, 14")
        e(f"s_add_u32 s56, s56, {WS_TSP}")
        e("v_add_u32 v21, s56, v21")
        for jj in range(8):
            if jj == 4: e("v_add_u32 v21, 4096, v21")
            e(f"buffer_load_dwordx2 {v(44+2*jj,2)}, v21, {s(SRD_WS,4)}, 0 offen offset:{1024*(jj&3)} sc1")
        e("v_and_b32 v20, 15, v0")
        e("v_min_u32 v20, 13, v20")
        e("s_mul_i32 s56, s58, 14")
        e("v_add_u32 v43, s56, v20            ; fq")
        e("v_lshrrev_b32 v21, 4, v0")
        e("v_lshlrev_b32 v21, 12, v21")
        e("v_lshl_add_u32 v21, v43, 4, v21")
        e("s_lshl_b32 s56, s61, 14")
        e(f"s_add_u32 s56, s56, {WS_CSP}")
        e("v_add_u32 v21, s56, v21")
        for jj in range(4):
            e(f"buffer_load_dwordx4 {v(60+4*jj,4)}, v21, {s(SRD_WS,4)}, 0 offen offset:{1024*jj} sc1")
        self.srd(SRD_C, S_B1, F_ * 2)
        e("s_mul_i32 s56, s61, 448")
        e("v_lshl_add_u32 v21, v43, 3, s56")
        e(f"buffer_load_dwordx2 v[76:77], v21, {s(SRD_C,4)}, 0 offen")

    def g1_side_final(self):
        e = self.e
        for jj in range(1, 8): e(f"v_pk_add_f32 v[44:45], v[44:45], {v(44+2*jj,2)}")
        e("v_mov_b32 v46, v44"); e("v_mov_b32 v47, v45")
        e("v_permlane32_swap_b32 v46, v44"); e("v_permlane32_swap_b32 v47, v45")
        e("v_add_f32 v44, v44, v46"); e("v_add_f32 v45, v45, v47")
        e("v_mul_f32 v44, 0x3a800000, v44      ; mu")
        e("v_mul_f32 v45, 0x3a800000, v45      ; E[h^2]")
        e("v_fma_f32 v45, -v44, v44, v45       ; var")
        e("v_max_f32 v45, 0, v45")
        self.round_bf16(46, 44)
        self.round_bf16(47, 45)
        e("v_add_f32 v47, 0x3727c5ac, v47")
        self.round_bf16(47, 47)
        e("v_sqrt_f32 v47, v47")
        self.round_bf16(47, 47)
        e("v_rcp_f32 v48, v47                  ; 1/sd1")
        e("v_sub_f32 v49, v44, v46")
        e("v_mul_f32 v49, v49, v48             ; mean(y1)")
        self.round_bf16(49, 49)
        e("v_mul_f32 v50, v45, v48")
        e("v_mul_f32 v50, v50, v48             ; var(y1)")
        self.round_bf16(50, 50)
        e("v_add_f32 v50, 0x3727c5ac, v50")
        self.round_bf16(50, 50)
        e("v_sqrt_f32 v50, v50")
        self.round_bf16(50, 50)
        e("v_rcp_f32 v50, v50")
        e("v_mul_f32 v52, v48, v50")
        e("v_fma_f32 v51, v49, v47, v46        ; M = m1 + m2*sd1")
        e("v_mul_f32 v53, v52, v51             ; am")
        e(f"v_lshlrev_b32 v20, 3, v42")
        e(f"v_add_u32 v20, {self.G1_AST}, v20")
        e("s_mov_b32 exec_hi, 0")
        e("ds_write_b64 v20, v[52:53]")
        e("s_mov_b64 exec, -1")
        for jj in range(1, 4):
            e(f"v_pk_add_f32 v[60:61], v[60:61], {v(60+4*jj,2)}")
            e(f"v_pk_add_f32 v[62:63], v[62:63], {v(62+4*jj,2)}")
        for op in ("v_permlane16_swap_b32", "v_permlane32_swap_b32"):
            for r in range(4): e(f"v_mov_b32 {v(64+r)}, {v(60+r)}")
            for r in range(4): e(f"{op} {v(64+r)}, {v(60+r)}")
            for r in range(4): e(f"v_add_f32 {v(60+r)}, {v(60+r)}, {v(64+r)}")
        self.unpack(68, 76, 0); self.unpack(69, 76, 1); self.unpack(70, 77, 0); self.unpack(71, 77, 1)
        e("v_lshlrev_b32 v20, 4, v43")
        e(f"v_add_u32 v20, {self.G1_CS}, v20")
        e("s_mov_b64 exec, 0x3fff")
        e("ds_write_b128 v20, v[60:63]")
        e(f"ds_write_b128 v20, v[68:71] offset:{self.G1_B1 - self.G1_CS}")
        e("s_mov_b64 exec, -1")
        e("s_waitcnt lgkmcnt(0)")

    def g1_loader(self):
        e = self.e
        STG = self.G1_STG
        self.srd(SRD_B, S_W1, D_ * F_ * 2)
        self.g1_loader_setup()
        e(f"v_mov_b32 v20, {self.G1_CNT}"); e("v_mov_b32 v21, 0")
        e("ds_write_b32 v20, v21")
        e("s_add_u32 s68, s60, s61")
        e("s_sub_u32 s68, s68, 1")
        self.g1_next_k()
        e("s_mov_b32 s88, s66")
        e("s_mov_b32 s64, 0")
        self.g1_issue_w(64, 65)
        self.g1_next_k()
        e(f"s_mov_b32 s64, {STG}")
        self.g1_issue_w(64, 65)
        self.g1_dep_wait()
        e("s_mov_b32 s64, 0")
        self.g1_issue_t(64, 88)
        e(f"s_mov_b32 s64, {STG}")
        self.g1_issue_t(64, 66)
        e("s_waitcnt vmcnt(4) lgkmcnt(0)")
        e("s_barrier                        ; B_0")
        e("s_mov_b32 s67, 0                 ; period i")
        e(f"s_mov_b32 s64, {2*STG}")
        side = not self.o.get("g1_noside")
        L = self.newlabel("g1l"); Lw = self.newlabel("g1lw"); Lb = self.newlabel("g1lb")
        self.label(L)
        if side:
            La = self.newlabel("g1a"); e("s_cmp_eq_u32 s67, 6"); e(f"s_cbranch_scc0 {La}"); self.g1_side_poll_issue(); self.label(La)
            La = self.newlabel("g1a"); e("s_cmp_eq_u32 s67, 7"); e(f"s_cbranch_scc0 {La}"); self.g1_side_loads(); self.label(La)
        e("s_cmp_ge_u32 s67, 14")
        e(f"s_cbranch_scc1 {Lw}")
        self.g1_next_k()
        self.g1_issue_w(64, 65)
        self.g1_issue_t(64, 66)
        e(f"s_add_u32 s64, s64, {STG}")
        e(f"s_cmp_eq_u32 s64, {3*STG}")
        e("s_cselect_b32 s64, 0, s64")
        if side:
            La = self.newlabel("g1a"); Lz = self.newlabel("g1z")
            e("s_cmp_eq_u32 s67, 0"); e(f"s_cbranch_scc0 {La}")
            self.g1_side_partials()
            e("s_waitcnt vmcnt(17)")
            e(f"s_branch {Lb}")
            self.label(La)
        e("s_waitcnt vmcnt(11)")
        if side:
            La = self.newlabel("g1a"); e("s_cmp_eq_u32 s67, 1"); e(f"s_cbranch_scc0 {La}"); self.g1_side_signal(); self.label(La)
            La = self.newlabel("g1a"); e("s_cmp_eq_u32 s67, 7"); e(f"s_cbranch_scc0 {La}"); self.g1_side_final(); self.label(La)
        e(f"s_branch {Lb}")
        self.label(Lw)
        e("s_waitcnt vmcnt(0)")
        self.label(Lb)
        e("s_barrier")
        e("s_add_u32 s67, s67, 1")
        e("s_cmp_lt_u32 s67, 16")
        e(f"s_cbranch_scc1 {L}")

    def g1_dep_wait(self):
        if "c" in self.o["phases"]: self.wait_all(3, wave=4)
        else: self.e("s_barrier")

    G1_X, G1_Y, G1_ACC = 8, 52, 96
    def g1_frag_reads(self, base, u):
        r = []
        def wread(ft):
            areg = 2 if ft % 2 == 0 else 3
            return [f"ds_read_b64_tr_b16 {v(base + 4*ft + 2*h, 2)}, {v(areg)} offset:{32*ft + u*32*448 + h*4*448}" for h in range(2)]
        def tread(tt):
            return [f"ds_read_b64_tr_b16 {v(base + 28 + 4*tt + 2*h, 2)}, {v(4+tt)} offset:{u*8192 + h*1024}" for h in range(2)]
        for tt in range(4): r += tread(tt)
        for ft in range(7): r += wread(ft)
        return r

    def g1_half(self, mf_base, rd_base, rd_u, first=False, mfma=True, reads=True, tail=(), waits=None):
        e = self.e
        rds = self.g1_frag_reads(rd_base, rd_u) if (reads and not self.o.get("g1_noreads")) else []
        if self.o.get("g1_nomfma"): mfma = False
        mf = []
        if mfma:
            for ft in range(7):
                for tt in range(4):
                    a = self.G1_ACC + (ft * 4 + tt) * 4
                    c = "0" if first else v(a, 4)
                    mf.append(f"v_mfma_f32_16x16x32_bf16 {v(a,4)}, {v(mf_base + 4*ft, 4)}, {v(mf_base + 28 + 4*tt, 4)}, {c}")
        fill = list(rds) + list(tail)
        i = 0
        for k, m in enumerate(mf):
            if waits and k in waits: e(waits[k])
            e(m)
            if i < len(fill): e(fill[i]); i += 1
        while i < len(fill): e(fill[i]); i += 1

    def g1_compute_setup(self):
        e = self.e
        e(f"s_lshr_b32 s58, {s(S_WV)}, 1      ; wf")
        e(f"s_and_b32 s59, {s(S_WV)}, 1       ; wt")
        e("v_lshrrev_b32 v13, 4, v0          ; g")
        e("v_and_b32 v14, 15, v0")
        e("v_lshrrev_b32 v15, 2, v14         ; r")
        e("v_and_b32 v16, 3, v14             ; c")
        e("v_lshl_add_u32 v17, v13, 3, v15   ; row = 8g + r")
        e("v_and_b32 v18, 1, v13             ; g&1")
        e("v_mul_u32_u24 v19, 448, v17")
        e("v_lshl_add_u32 v19, v16, 3, v19")
        e("s_mul_i32 s57, s58, 224           ; 32*7*wf")
        e(f"s_add_u32 s57, s57, {self.G1_W}")
        e("v_add_u32 v19, s57, v19")
        e("v_lshlrev_b32 v20, 5, v18         ; 32*(g&1)")
        e("v_add_u32 v21, v19, v20")
        e("v_sub_u32 v22, v19, v20")
        e("s_cmp_eq_u32 s58, 0")
        e("s_cselect_b64 vcc, -1, 0")
        e("v_cndmask_b32 v2, v22, v21, vcc")
        e("v_cndmask_b32 v3, v21, v22, vcc")
        e("v_lshl_or_b32 v20, v18, 2, v15    ; f(row)")
        e("v_lshlrev_b32 v21, 8, v17")
        e("v_lshl_add_u32 v21, v16, 3, v21")
        e("s_lshl_b32 s57, s59, 2            ; 4*wt")
        for tt in range(4):
            e(f"s_add_u32 s56, s57, {tt}")
            e("v_xor_b32 v22, s56, v20")
            e(f"v_lshl_add_u32 {v(4+tt)}, v22, 5, v21")

    def g1_compute(self):
        e = self.e
        X, Y = self.G1_X, self.G1_Y
        STG = self.G1_STG
        self.g1_compute_setup()
        self.g1_dep_wait()
        e("s_barrier                        ; B_0")
        self.stamp("g1_loop")
        def adv(delta):
            return [f"v_add_u32 {v(r)}, {delta & 0xffffffff:#x}, {v(r)}" for r in range(2, 8)]
        W5 = {0: "s_waitcnt lgkmcnt(4)", 20: "s_waitcnt lgkmcnt(15)"}
        for r in self.g1_frag_reads(X, 0): e(r)
        e("s_waitcnt lgkmcnt(0)")
        self.g1_half(X, Y, 1, first=True, tail=adv(STG))
        e("s_waitcnt lgkmcnt(0)")
        e("s_barrier                        ; B_1")
        e("s_mov_b32 s67, 0")
        L = self.newlabel("g1c")
        self.label(L)
        for k in range(3):
            delta = STG if k != 1 else -2 * STG
            self.g1_half(Y, X, 0)
            tail = adv(delta)
            if k == 2: tail = tail[:5] + ["s_add_u32 s67, s67, 1"] + tail[5:]
            self.g1_half(X, Y, 1, tail=tail, waits=(W5 if not self.o.get("g1_noreads") else None))
            if k == 2: e("s_cmp_lt_u32 s67, 5")
            e("s_waitcnt lgkmcnt(0)")
            e("s_barrier")
        e(f"s_cbranch_scc1 {L}")
        self.g1_half(Y, None, 0, reads=False)
        self.stamp("g1_loopend")

    def g1_epilogue(self):
        e = self.e
        ACC = self.G1_ACC
        e("v_and_b32 v2, 15, v0               ; n")
        e("v_lshrrev_b32 v3, 4, v0            ; g / rho")
        e("s_lshl_b32 s56, s59, 9")
        e(f"s_add_u32 s56, s56, {self.G1_AST}")
        e("v_lshl_add_u32 v4, v2, 3, s56")
        AS = 8
        for tt in range(4): e(f"ds_read_b64 {v(AS+2*tt,2)}, v4 offset:{128*tt}")
        e("s_mul_i32 s56, s58, 448")
        e(f"s_add_u32 s56, s56, {self.G1_CS}")
        e("v_lshl_add_u32 v5, v3, 4, s56")
        CB = 16
        for ft in range(7):
            e(f"ds_read_b128 {v(CB+8*ft,4)}, v5 offset:{64*ft}")
            e(f"ds_read_b128 {v(CB+8*ft+4,4)}, v5 offset:{64*ft + self.G1_B1 - self.G1_CS}")
        c2 = -2.0 * 0.7978845608028654 * 1.4426950408889634
        c1 = c2 * 0.044715
        import struct
        fb = lambda x: "0x%08x" % struct.unpack("<I", struct.pack("<f", x))[0]
        C1, C2, ONE = 72, 74, 76
        for r, val in ((C1, c1), (C2, c2), (ONE, 1.0)):
            e(f"v_mov_b32 {v(r)}, {fb(val)}"); e(f"v_mov_b32 {v(r+1)}, {fb(val)}")
        e("v_lshrrev_b32 v6, 2, v2")
        e("v_lshlrev_b32 v6, 2, v6")
        e("s_mov_b32 s56, 0x1450")
        e("v_lshrrev_b32 v6, v6, s56")
        e("v_and_b32 v6, 7, v6                ; sigma")
        e("v_and_b32 v7, 1, v2")
        e("v_lshlrev_b32 v7, 1, v7            ; (n&1)*2")
        e("v_lshrrev_b32 v78, 1, v2")
        e("v_lshlrev_b32 v78, 7, v78          ; (n>>1)*128")
        e("v_and_b32 v79, 1, v3               ; rho&1")
        e("v_add_u32 v79, s58, v79")
        e("v_lshrrev_b32 v80, 1, v79          ; dQ")
        e("v_and_b32 v79, 1, v79              ; half")
        e("v_lshl_add_u32 v79, v79, 2, v7")
        e("v_lshrrev_b32 v81, 1, v3           ; rho>>1")
        e("v_add_u32 v79, v79, v81")
        e("v_xor_b32 v79, v79, v6")
        e("v_lshl_add_u32 v79, v79, 4, v78")
        e("v_lshl_add_u32 v82, v80, 13, v79")
        e("s_lshl_b32 s56, s58, 2")
        e("v_add_u32 v79, s56, v7             ; wf*4 + (n&1)*2")
        e("v_add_u32 v79, v79, v81            ; + (g>>1)")
        e("v_xor_b32 v79, v79, v6")
        e("v_lshl_add_u32 v79, v79, 4, v78")
        e("v_and_b32 v80, 1, v3")
        e("v_lshl_add_u32 v83, v80, 3, v79")
        e("s_mul_i32 s62, s60, 112")
        e("s_mul_i32 s56, s61, 7")
        e("s_add_u32 s62, s62, s56")
        e("s_mul_i32 s56, s58, 3")
        e("s_add_u32 s62, s62, s56")
        e("s_lshl_b32 s62, s62, 13")
        e("s_lshl_b32 s56, s59, 12")
        e("s_add_u32 s62, s62, s56")
        e(f"s_add_u32 s62, s62, {WS_HM}")
        e("s_waitcnt lgkmcnt(0)")
        def gelu_tile(ft, tt, out, T):
            a = ACC + (ft*4 + tt)*4
            cs, b1 = CB + 8*ft, CB + 8*ft + 4
            A = AS + 2*tt
            for h in range(2):
                e(f"v_pk_fma_f32 {v(T+2*h,2)}, {v(A,2)}, {v(cs+2*h,2)}, {v(b1+2*h,2)} op_sel:[1,0,0] op_sel_hi:[1,1,1] neg_lo:[1,0,0] neg_hi:[1,0,0]")
            for h in range(2):
                e(f"v_pk_fma_f32 {v(a+2*h,2)}, {v(A,2)}, {v(a+2*h,2)}, {v(T+2*h,2)} op_sel:[0,0,0] op_sel_hi:[0,1,1]")
            for h in range(2): e(f"v_pk_mul_f32 {v(T+2*h,2)}, {v(a+2*h,2)}, {v(a+2*h,2)}")
            for h in range(2): e(f"v_pk_fma_f32 {v(T+2*h,2)}, {v(T+2*h,2)}, {v(C1,2)}, {v(C2,2)}")
            for h in range(2): e(f"v_pk_mul_f32 {v(T+2*h,2)}, {v(T+2*h,2)}, {v(a+2*h,2)}")
            for r in range(4): e(f"v_exp_f32 {v(T+r)}, {v(T+r)}")
            for h in range(2): e(f"v_pk_add_f32 {v(T+2*h,2)}, {v(T+2*h,2)}, {v(ONE,2)}")
            for r in range(4): e(f"v_rcp_f32 {v(T+r)}, {v(T+r)}")
            for h in range(2): e(f"v_pk_mul_f32 {v(a+2*h,2)}, {v(a+2*h,2)}, {v(T+2*h,2)}")
            for h in range(2): e(f"v_cvt_pk_bf16_f32 {v(out+h)}, {v(a+2*h)}, {v(a+2*h+1)}")
        k = 0
        for fp in range(3):
            for tt in range(4):
                O = 208 + 4 * (k & 1); T = 216 + 4 * (k & 1); k += 1
                gelu_tile(2*fp, tt, O, T)
                gelu_tile(2*fp + 1, tt, O + 2, T)
                e(f"v_permlane16_swap_b32 {v(O)}, {v(O+2)}")
                e(f"v_permlane16_swap_b32 {v(O+1)}, {v(O+3)}")
                e(f"s_add_u32 s56, s62, {fp*8192 + tt*1024}")
                e(f"buffer_store_dwordx4 {v(O,4)}, v82, {s(SRD_WS,4)}, s56 offen sc1")
        for tt in range(4):
            O = 208 + 4 * (k & 1); T = 216 + 4 * (k & 1); k += 1
            gelu_tile(6, tt, O, T)
            e(f"s_add_u32 s56, s62, {3*8192 + tt*1024}")
            e(f"buffer_store_dwordx2 {v(O,2)}, v83, {s(SRD_WS,4)}, s56 offen sc1")

    def g1(self):
        e = self.e
        self.g1_ids()
        Lc = self.newlabel("g1comp"); Le = self.newlabel("g1end")
        e(f"s_cmp_lt_u32 {s(S_WV)}, 4")
        e(f"s_cbranch_scc1 {Lc}")
        self.g1_loader()
        if "g2" in self.o["phases"]: self.g2_loader_pre()
        e(f"s_branch {Le}")
        self.label(Lc)
        self.g1_compute()
        self.g1_epilogue()
        self.stamp("g1_epi")
        e("s_waitcnt vmcnt(0)")
        self.label(Le)
        e("s_barrier")
        L = self.newlabel("g1sig")
        e(f"s_cmp_lg_u32 {s(S_WV)}, 0")
        e(f"s_cbranch_scc1 {L}")
        self.publish(5)
        self.label(L)

    G2_STG = 32768
    G2_NBUF = 4
    G2_RES = 131072

    def g2_ids(self):
        e = self.e
        e(f"s_and_b32 s56, {s(S_XI)}, 1")
        e("s_lshl_b32 s56, s56, 3")
        e(f"s_and_b32 s57, {s(S_J)}, 7")
        e("s_add_u32 s60, s56, s57          ; mb")
        e(f"s_lshr_b32 s56, {s(S_XI)}, 1")
        e("s_lshl_b32 s56, s56, 2")
        e(f"s_lshr_b32 s57, {s(S_J)}, 3")
        e("s_add_u32 s56, s56, s57          ; n'")
        e("s_and_b32 s61, s56, 7            ; db")
        e("s_lshr_b32 s69, s56, 3           ; kh")

    def g2_issue_w(self, sbuf, sk):
        e = self.e
        e(f"s_add_u32 m0, {s(sbuf)}, s63")
        for ii in range(4):
            e(f"buffer_load_dwordx4 {v(6+ii)}, {s(SRD_B,4)}, {s(sk)} offen lds")
            if ii < 3: e("s_add_u32 m0, m0, 1024")

    def g2_issue_t(self, sbuf, sk):
        e = self.e
        e(f"s_add_u32 m0, {s(sbuf)}, s62")
        for ii in range(4):
            e(f"buffer_load_dwordx4 v2, {s(SRD_WS,4)}, {s(sk)} offen sc1 lds")
            if ii < 3:
                e("s_add_u32 m0, m0, 1024"); e(f"s_add_u32 {s(sk)}, {s(sk)}, 1024")
        e(f"s_add_u32 {s(sk)}, {s(sk)}, {16384 - 3*1024}")

    def g2_loader_pre(self):
        e = self.e
        self.g2_ids()
        self.srd(SRD_B, S_W2, F_ * D_ * 2)
        e(f"s_sub_u32 s58, {s(S_WV)}, 4       ; lw")
        e("v_lshrrev_b32 v13, 4, v0")
        e("v_and_b32 v14, 15, v0")
        e("v_lshrrev_b32 v15, 1, v14")
        e("v_and_b32 v16, 1, v14")
        e("v_xor_b32 v15, v15, v13")
        e("s_lshl_b32 s59, s58, 4")
        e("v_add_u32 v17, s59, v13")
        e("v_lshlrev_b32 v17, 11, v17        ; *2048")
        e("v_lshl_add_u32 v17, v16, 4, v17")
        e("s_lshl_b32 s59, s61, 8            ; db*256")
        e("v_add_u32 v17, s59, v17")
        for ii in range(4):
            x4 = 4 if (ii >> 1) & 1 else 0
            e(f"v_xor_b32 v18, {x4}, v15")
            e("v_lshl_add_u32 v18, v18, 5, v17")
            e(f"v_add_u32 {v(6+ii)}, {ii*4*2048}, v18")
        e("v_lshlrev_b32 v2, 4, v0")
        e("s_lshl_b32 s62, s58, 12")
        e(f"s_add_u32 s63, s62, 16384")
        e(f"s_mul_i32 s65, s69, {1792*2048}")
        e("s_mul_i32 s66, s60, 112")
        e("s_mul_i32 s56, s69, 56")
        e("s_add_u32 s66, s66, s56")
        e("s_lshl_b32 s66, s66, 13")
        e("s_add_u32 s66, s66, s62")
        e(f"s_add_u32 s66, s66, {WS_HM}")
        e("s_mov_b32 s64, 0")
        for st in range(3):
            self.g2_issue_w(64, 65)
            e(f"s_add_u32 s65, s65, {64*2048}")
            e(f"s_add_u32 s64, s64, {self.G2_STG}")

    def g2_loader(self):
        e = self.e
        STG = self.G2_STG
        Lq = self.newlabel("g2q")
        e(f"s_cmp_eq_u32 {s(S_WV)}, 4")
        e(f"s_cbranch_scc0 {Lq}")
        e("v_and_b32 v20, 7, v0")
        e("s_lshl_b32 s56, s69, 3")
        e("v_add_u32 v21, s56, v20")
        e("v_mov_b32 v20, s60")
        self.wg_of(40, 20, 21, 26)
        self.flag_addr(40, 26)
        if not self.o.get("nosync"): self.poll_addr(5, 40, 41)
        self.label(Lq)
        e("s_barrier                        ; dep")
        self.stamp("g2_dep")
        e("s_mov_b32 s64, 0")
        for st in range(3):
            self.g2_issue_t(64, 66)
            e(f"s_add_u32 s64, s64, {STG}")
        e("s_waitcnt vmcnt(8)")
        e("s_barrier                        ; B_0")
        e("s_mov_b32 s67, 0")
        e(f"s_mov_b32 s64, {3*STG}")
        L = self.newlabel("g2l"); Lw = self.newlabel("g2lw"); Lb = self.newlabel("g2lb"); Lw1 = self.newlabel("g2lw1"); Lr = self.newlabel("g2r")
        self.label(L)
        e("s_cmp_ge_u32 s67, 25")
        e(f"s_cbranch_scc1 {Lw}")
        self.g2_issue_w(64, 65)
        e(f"s_add_u32 s65, s65, {64*2048}")
        self.g2_issue_t(64, 66)
        e(f"s_add_u32 s64, s64, {STG}")
        e(f"s_and_b32 s64, s64, {4*STG - 1}")
        L0 = self.newlabel("g2l0")
        e("s_cmp_eq_u32 s67, 0")
        e(f"s_cbranch_scc0 {L0}")
        e("s_waitcnt vmcnt(12)")
        e(f"s_branch {Lb}")
        self.label(L0)
        e("s_waitcnt vmcnt(16)")
        e(f"s_branch {Lb}")
        self.label(Lw)
        e("s_cmp_eq_u32 s67, 25")
        e(f"s_cbranch_scc0 {Lw1}")
        e("v_lshrrev_b32 v20, 2, v0")
        e("s_lshl_b32 s56, s58, 5")
        e("v_add_u32 v20, s56, v20")
        e("v_lshlrev_b32 v20, 8, v20          ; row*256")
        e("v_and_b32 v21, 3, v0")
        e("v_lshl_add_u32 v20, v21, 4, v20")
        e("s_lshl_b32 s56, s60, 18")
        e("s_lshl_b32 s57, s61, 15            ; 128db*256")
        e("s_add_u32 s56, s56, s57")
        e("s_lshl_b32 s57, s69, 6             ; 32kh*2")
        e("s_add_u32 s56, s56, s57")
        e(f"s_add_u32 s56, s56, {WS_HT}")
        for ii in range(4):
            wt, hh = ii >> 1, ii & 1
            e(f"s_add_u32 s57, s56, {wt*128 + hh*16*256}")
            e("s_lshl_b32 s59, s58, 11          ; 32lw*64")
            e(f"s_add_u32 m0, s59, {self.G2_RES + wt*8192 + hh*1024}")
            e(f"buffer_load_dwordx4 v20, {s(SRD_WS,4)}, s57 offen sc1 lds")
        e("s_waitcnt vmcnt(12)")
        e(f"s_branch {Lb}")
        self.label(Lw1)
        e("s_cmp_eq_u32 s67, 26")
        e(f"s_cbranch_scc0 {Lr}")
        e("s_waitcnt vmcnt(4)")
        e(f"s_branch {Lb}")
        self.label(Lr)
        e("s_waitcnt vmcnt(0)")
        self.label(Lb)
        e("s_barrier")
        e("s_add_u32 s67, s67, 1")
        e("s_cmp_lt_u32 s67, 28")
        e(f"s_cbranch_scc1 {L}")

    G2_X, G2_Y, G2_ACC = 8, 40, 72
    def g2_frag_reads(self, base, u):
        r = []
        for tt in range(4): r.append(f"ds_read_b128 {v(base + 16 + 4*tt, 4)}, v6 offset:{u*8192 + tt*1024}")
        for dt in range(4):
            for h in range(2):
                r.append(f"ds_read_b64_tr_b16 {v(base + 4*dt + 2*h, 2)}, {v(2+dt)} offset:{u*8192 + h*1024}")
        return r

    def g2_half(self, mf_base, rd_base, rd_u, first=False, reads=True, tail=(), waits=None):
        e = self.e
        rds = self.g2_frag_reads(rd_base, rd_u) if reads else []
        fill = list(rds) + list(tail)
        i = 0; k = 0
        for dt in range(4):
            for tt in range(4):
                a = self.G2_ACC + (dt*4 + tt)*4
                if waits and k in waits: e(waits[k])
                e(f"v_mfma_f32_16x16x32_bf16 {v(a,4)}, {v(mf_base + 4*dt, 4)}, {v(mf_base + 16 + 4*tt, 4)}, {'0' if first else v(a,4)}")
                if i < len(fill): e(fill[i]); i += 1
                k += 1
        while i < len(fill): e(fill[i]); i += 1

    def g2_compute(self):
        e = self.e
        X, Y, STG = self.G2_X, self.G2_Y, self.G2_STG
        self.g2_ids()
        e(f"s_lshr_b32 s58, {s(S_WV)}, 1      ; wd")
        e(f"s_and_b32 s59, {s(S_WV)}, 1       ; wt")
        e("v_lshrrev_b32 v13, 4, v0          ; g")
        e("v_and_b32 v14, 15, v0             ; n")
        e("v_lshrrev_b32 v15, 2, v14         ; r")
        e("v_and_b32 v16, 3, v14             ; c")
        e("v_lshl_add_u32 v17, v13, 3, v15   ; row = 8g + r")
        e("v_and_b32 v18, 1, v13")
        e("v_lshl_or_b32 v20, v18, 2, v15    ; f(row)")
        e("v_lshlrev_b32 v21, 8, v17")
        e("v_lshl_add_u32 v21, v16, 3, v21")
        e("v_add_u32 v21, 16384, v21")
        e("s_lshl_b32 s57, s58, 2            ; 4*wd")
        for dt in range(4):
            e(f"s_add_u32 s56, s57, {dt}")
            e("v_xor_b32 v22, s56, v20")
            e(f"v_lshl_add_u32 {v(2+dt)}, v22, 5, v21")
        e("v_lshlrev_b32 v19, 2, v15         ; 4*(n>>2)")
        e("s_mov_b32 s56, 0x1450")
        e("v_lshrrev_b32 v19, v19, s56")
        e("v_and_b32 v19, 7, v19             ; sigma")
        e("v_lshrrev_b32 v22, 1, v13")
        e("v_lshlrev_b32 v22, 2, v22         ; (g>>1)*4")
        e("v_and_b32 v23, 1, v14")
        e("v_lshl_add_u32 v22, v23, 1, v22")
        e("v_add_u32 v22, v22, v18")
        e("v_xor_b32 v22, v22, v19")
        e("v_lshrrev_b32 v23, 1, v14")
        e("v_lshlrev_b32 v23, 7, v23")
        e("v_lshl_add_u32 v22, v22, 4, v23")
        e("s_lshl_b32 s56, s59, 12           ; 32wt*128")
        e("v_add_u32 v6, s56, v22")
        self.srd(SRD_C, S_B2, D_ * 2)
        e("s_lshl_b32 s56, s61, 8")
        e("s_lshl_b32 s57, s58, 7")
        e("s_add_u32 s56, s56, s57")
        e("v_lshl_add_u32 v7, v13, 3, s56")
        B2 = 200
        for dt in range(4): e(f"buffer_load_dwordx2 {v(B2+2*dt,2)}, v7, {s(SRD_C,4)}, 0 offen offset:{32*dt}")
        e("s_barrier                        ; dep")
        e("s_barrier                        ; B_0")
        self.stamp("g2_loop")
        e("s_mov_b32 s64, 0")
        e(f"s_mov_b32 s62, {STG}")
        e(f"s_mov_b32 s63, {(-3*STG) & 0xffffffff}")
        def adv():
            return ["s_add_u32 s64, s64, 1", "s_cmp_eq_u32 s64, 4"]
        def adv2():
            return [f"v_add_u32 {v(r)}, s65, {v(r)}" for r in range(2, 7)]
        pre = ["s_add_u32 s64, s64, 1", "s_cmp_eq_u32 s64, 4", "s_cselect_b32 s65, s63, s62", "s_cselect_b32 s64, 0, s64"]
        WX = {0: "s_waitcnt lgkmcnt(6)", 4: "s_waitcnt lgkmcnt(8)", 8: "s_waitcnt lgkmcnt(10)", 12: "s_waitcnt lgkmcnt(12)"}
        if self.o.get("g2_fullwait"): WX = {0: "s_waitcnt lgkmcnt(0)"}
        for r in self.g2_frag_reads(X, 0): e(r)
        for p in pre: e(p)
        e("s_waitcnt lgkmcnt(0)")
        self.g2_half(X, Y, 1, first=True, tail=adv2()[:4])
        e(adv2()[4])
        e("s_waitcnt lgkmcnt(0)")
        e("s_barrier                        ; B_1")
        e("s_mov_b32 s67, 0")
        L = self.newlabel("g2c")
        self.label(L)
        for k in range(3):
            self.g2_half(Y, X, 0, tail=pre)
            self.g2_half(X, Y, 1, tail=adv2()[:4], waits=WX)
            e(adv2()[4])
            if k == 2:
                e("s_add_u32 s67, s67, 1"); e("s_cmp_lt_u32 s67, 9")
            e("s_waitcnt lgkmcnt(0)")
            e("s_barrier")
        e(f"s_cbranch_scc1 {L}")
        self.g2_half(Y, None, 0, reads=False)
        self.stamp("g2_loopend")

    def g2_epilogue(self):
        e = self.e
        ACC = self.G2_ACC
        Lk = self.newlabel("g2k")
        e("s_cmp_eq_u32 s69, 0")
        e(f"s_cbranch_scc1 {Lk}")
        for dt in range(4):
            for r in range(8):
                a = ACC + dt*16 + r
                e(f"v_swap_b32 {v(a)}, {v(a+8)}")
        self.label(Lk)
        e("s_xor_b32 s56, s2, 4")
        e("s_lshl_b32 s56, s56, 15")
        e(f"s_lshl_b32 s57, {s(S_WV)}, 13")
        e("s_add_u32 s56, s56, s57")
        e(f"s_add_u32 s62, s56, {WS_EX}")
        e("v_lshlrev_b32 v8, 4, v0")
        for dt in range(4):
            for tk in range(2):
                i = dt*2 + tk
                e(f"s_add_u32 s56, s62, {1024*i}")
                e(f"buffer_store_dwordx4 {v(ACC + dt*16 + 8 + 4*tk, 4)}, v8, {s(SRD_WS,4)}, s56 offen sc1")
        e("v_lshrrev_b32 v13, 4, v0          ; g")
        e("v_and_b32 v14, 15, v0             ; n")
        e("v_lshrrev_b32 v15, 2, v14")
        e("v_and_b32 v16, 3, v14")
        e("v_lshl_add_u32 v17, v13, 2, v15   ; 4g + r")
        e("v_lshlrev_b32 v17, 6, v17")
        e("v_lshl_add_u32 v17, v16, 3, v17")
        e("s_lshl_b32 s56, s59, 13")
        e("s_lshl_b32 s57, s58, 12           ; 64wd*64")
        e("s_add_u32 s56, s56, s57")
        e(f"s_add_u32 s56, s56, {self.G2_RES}")
        e("v_add_u32 v17, s56, v17")
        RS = 168
        for dt in range(4):
            for tk in range(2):
                e(f"ds_read_b64_tr_b16 {v(RS + 2*(2*dt+tk), 2)}, v17 offset:{dt*16*64 + tk*32}")
        e("s_waitcnt vmcnt(0)")
        self.stamp("g2_sent")

    def g2_epilogue2(self):
        e = self.e
        ACC = self.G2_ACC; RS = 168; B2 = 200
        e("s_lshl_b32 s56, s2, 15")
        e(f"s_lshl_b32 s57, {s(S_WV)}, 13")
        e("s_add_u32 s56, s56, s57")
        e(f"s_add_u32 s62, s56, {WS_EX}")
        IN = 136
        for i in range(8):
            e(f"s_add_u32 s56, s62, {1024*i}")
            e(f"buffer_load_dwordx4 {v(IN+4*i,4)}, v8, {s(SRD_WS,4)}, s56 offen sc1")
        self.srd(SRD_A, S_OUT, S_ * D_ * 2)
        e("s_lshl_b32 s56, s60, 7")
        e("s_lshl_b32 s57, s59, 6")
        e("s_add_u32 s56, s56, s57")
        e("s_lshl_b32 s57, s69, 5")
        e("s_add_u32 s56, s56, s57")
        e("v_add_u32 v9, s56, v14")
        e("v_lshlrev_b32 v9, 11, v9")
        e("v_and_b32 v10, 1, v13")
        e("v_lshlrev_b32 v10, 5, v10          ; 16*2 bytes")
        e("v_lshrrev_b32 v11, 1, v13")
        e("v_lshl_add_u32 v10, v11, 4, v10")
        e("v_add_u32 v9, v9, v10")
        e("s_lshl_b32 s56, s61, 8")
        e("s_lshl_b32 s57, s58, 7")
        e("s_add_u32 s63, s56, s57")
        BF = 40
        for dt in range(4):
            self.unpack(BF+4*dt,   B2+2*dt,   0); self.unpack(BF+4*dt+1, B2+2*dt,   1)
            self.unpack(BF+4*dt+2, B2+2*dt+1, 0); self.unpack(BF+4*dt+3, B2+2*dt+1, 1)
        e("s_waitcnt vmcnt(0) lgkmcnt(0)")
        k = 0
        for tk in range(2):
            for dp in range(2):
                O = 56 + 4*(k & 1); k += 1
                for dd in range(2):
                    dt = 2*dp + dd
                    i = dt*2 + tk
                    a = ACC + dt*16 + 4*tk
                    T = 64
                    r0 = RS + 2*i
                    self.unpack(T, r0, 0); self.unpack(T+1, r0, 1); self.unpack(T+2, r0+1, 0); self.unpack(T+3, r0+1, 1)
                    for h in range(2):
                        e(f"v_pk_add_f32 {v(a+2*h,2)}, {v(a+2*h,2)}, {v(IN+4*i+2*h,2)}")
                        e(f"v_pk_add_f32 {v(a+2*h,2)}, {v(a+2*h,2)}, {v(BF+4*dt+2*h,2)}")
                        e(f"v_pk_add_f32 {v(a+2*h,2)}, {v(a+2*h,2)}, {v(T+2*h,2)}")
                        e(f"v_cvt_pk_bf16_f32 {v(O+2*dd+h)}, {v(a+2*h)}, {v(a+2*h+1)}")
                e(f"v_permlane16_swap_b32 {v(O)}, {v(O+2)}")
                e(f"v_permlane16_swap_b32 {v(O+1)}, {v(O+3)}")
                e(f"s_add_u32 s56, s63, {tk*16*2048 + dp*64}")
                e(f"buffer_store_dwordx4 {v(O,4)}, v9, {s(SRD_A,4)}, s56 offen")

    def g2(self):
        e = self.e
        Lc = self.newlabel("g2comp"); Le = self.newlabel("g2end"); Lf = self.newlabel("g2fin")
        e(f"s_cmp_lt_u32 {s(S_WV)}, 4")
        e(f"s_cbranch_scc1 {Lc}")
        self.g2_loader()
        e(f"s_branch {Le}")
        self.label(Lc)
        self.g2_compute()
        self.g2_epilogue()
        self.label(Le)
        e("s_barrier")
        L = self.newlabel("g2sig")
        e(f"s_cmp_lg_u32 {s(S_WV)}, 4")
        e(f"s_cbranch_scc1 {L}")
        self.publish(6)
        L0 = self.newlabel("g2ep")
        e("s_cmp_lg_u32 s2, 0")
        e(f"s_cbranch_scc1 {L0}")
        e(f"v_mov_b32 v254, {s(S_EP)}")
        e(f"v_mov_b32 v255, {WS_EPOCH}")
        e("s_mov_b64 exec, 1")
        e(f"buffer_store_dword v254, v255, {s(SRD_WS,4)}, 0 offen sc1")
        e("s_mov_b64 exec, -1")
        self.label(L0)
        e("s_xor_b32 s56, s2, 4")
        e("v_mov_b32 v40, s56")
        self.flag_addr(40, 26)
        if not self.o.get("nosync"): self.poll_addr(6, 40, 41)
        self.label(L)
        e("s_barrier")
        self.stamp("g2_got")
        e(f"s_cmp_ge_u32 {s(S_WV)}, 4")
        e(f"s_cbranch_scc1 {Lf}")
        self._g2_st = 0
        self.g2_epilogue2()
        self.label(Lf)

    def finish(self):
        self.label("L_end")
        self.e("s_endpgm")

def wrap(body, lds=LDS_BYTES):
    hdr = f"""; Kernarg layout (112 bytes, ptrs only, base s[0:1]): q,k,v,shift_k,ssm_k,ssm_D,B_x,w1,b1,w2,b2,out,debug,ws
; @launch grid=(256,1,1) block=(512,1,1) lds={lds}
.amdgcn_target "amdgcn-amd-amdhsa--gfx950"
.text
.globl {KNAME}
.p2align 8
.type {KNAME},@function
{KNAME}:
"""
    tail = f"""
.section .rodata,"a"
.p2align 6
.amdhsa_kernel {KNAME}
  .amdhsa_next_free_vgpr 256
  .amdhsa_next_free_sgpr 102
  .amdhsa_accum_offset 256
  .amdhsa_group_segment_fixed_size 0
  .amdhsa_kernarg_size 112
  .amdhsa_user_sgpr_count 2
  .amdhsa_user_sgpr_kernarg_segment_ptr 1
  .amdhsa_system_sgpr_workgroup_id_x 1
  .amdhsa_float_denorm_mode_32 3
.end_amdhsa_kernel
"""
    return hdr + body + tail

def build(opts, ret_g=False):
    g = G(opts)
    g.prologue()
    g.stamp("start")
    ph = opts["phases"]
    if "p" in ph:
        g.phase_p()
    else:
        g.epoch_ready()
    if "c" in ph:
        g.phase_c()
        g.stamp("c_end")
        g.signal(3, pf_w2=opts.get("prefetch_w", True))
        g.stamp("c_sig")
    if "g1" in ph:
        g.g1()
        g.stamp("g1_end")
    if "g2" in ph:
        g.g2()
        g.stamp("g2_end")
    g.stamp_flush()
    g.finish()
    src = wrap(g.finalize())
    return (src, g) if ret_g else src

if __name__ == "__main__":
    out = build(dict(phases=["p", "c", "g1", "g2"]))
    path = sys.argv[1] if len(sys.argv) > 1 else "sequential_preLN__ssm_conv_h3__mixer_channel_mlp__prompt.s"
    open(path, "w").write(out)
    print("wrote", path, len(out))
```

```python
import sys
from asmb import Asm, v, s

KNAME = "sequential_preLN__ssm_conv_h3__mixer_channel_mlp__prompt_kernel"
S_, D_, F_ = 2048, 1024, 3584

WS_FLAGS = 0
WS_EPOCH = 32768
WS_ST    = 65536
WS_TSP   = 131072
WS_CSP   = 393216
WS_STAMP = 786432
WS_XR    = 1 << 20
WS_XT    = 5 << 20
WS_HT    = 9 << 20
WS_HM    = 13 << 20
WS_EX    = 28 << 20
WS_SIZE  = 64 << 20

S_X, S_K, S_V, S_SH, S_SSMK, S_SSMD, S_BX, S_W1 = 8, 10, 12, 14, 16, 18, 20, 22
S_B1, S_W2, S_B2, S_OUT = 24, 26, 28, 30
S_DBG, S_WS = 32, 34
SRD_WS, SRD_A, SRD_B, SRD_C = 36, 40, 44, 48
S_WV, S_XI, S_J, S_EP = 52, 53, 54, 55

LDS_BYTES = 163840

class G(Asm):
    def __init__(self, opts):
        super().__init__()
        self.o = opts
        self.stamp_names = []
        self.nt = " nt" if opts.get("nt", True) else ""

    def srd(self, dst, ptr, nbytes):
        self.e(f"s_mov_b32 {s(dst)}, {s(ptr)}")
        self.e(f"s_mov_b32 {s(dst+1)}, {s(ptr+1)}")
        self.e(f"s_mov_b32 {s(dst+2)}, {nbytes}")
        self.e(f"s_mov_b32 {s(dst+3)}, 0x20000")

    def stamp(self, name):
        if not self.o.get("stamps"): return
        if name in self.stamp_names: i = self.stamp_names.index(name)
        else:
            i = len(self.stamp_names)
            assert i < 32
            self.stamp_names.append(name)
        self.e(f"{'s_memtime' if self.o.get('cyc') else 's_memrealtime'} s[100:101]")
        self.e("s_waitcnt lgkmcnt(0)")
        self.e(f"v_writelane_b32 v253, s100, {i}")
    def tick(self, i): pass
    def tick_flush(self, n): pass

    def stamp_flush_debug(self):
        e = self.e
        sel = self.o["dbg_sel"]
        self.srd(SRD_A, S_DBG, 256)
        for wave in (0, 4):
            L = self.newlabel("dbgf")
            e(f"s_cmp_lg_u32 {s(S_WV)}, {wave}")
            e(f"s_cbranch_scc1 {L}")
            for i, (nm, w) in enumerate(sel):
                if w != wave: continue
                idx = self.stamp_names.index(nm)
                e(f"v_readlane_b32 s98, v253, {idx}")
                if nm == "start": e("s_not_b32 s98, s98")
                e("v_mov_b32 v254, s98")
                e(f"v_mov_b32 v255, {4*i}")
                e("s_mov_b64 exec, 1")
                e(f"buffer_atomic_umax v254, v255, {s(SRD_A,4)}, 0 offen")
                e("s_mov_b64 exec, -1")
            self.label(L)

    def stamp_flush(self):
        if not self.o.get("stamps"): return
        if self.o.get("dbg_sel"): return self.stamp_flush_debug()
        L = self.newlabel("tf")
        self.e(f"s_and_b32 s98, {s(S_WV)}, 3")
        self.e("s_cmp_lg_u32 s98, 0")
        self.e(f"s_cbranch_scc1 {L}")
        self.e(f"s_lshl_b32 s98, s2, 8")
        self.e(f"s_lshl_b32 s99, {s(S_WV)}, 5")
        self.e("s_add_u32 s98, s98, s99")
        self.e(f"s_add_u32 s98, s98, {WS_STAMP}")
        self.e("v_lshlrev_b32 v255, 2, v0")
        self.e("v_add_u32 v255, s98, v255")
        self.e("s_mov_b32 exec_hi, 0")
        self.e(f"buffer_store_dword v253, v255, {s(SRD_WS,4)}, 0 offen")
        self.e("s_mov_b64 exec, -1")
        self.label(L)

    def prologue(self):
        e = self.e
        e("s_cmp_ge_u32 s2, 256")
        e("s_cbranch_scc1 L_end")
        e("s_load_dwordx16 s[8:23], s[0:1], 0")
        e("s_load_dwordx8 s[24:31], s[0:1], 64")
        e("s_load_dwordx4 s[32:35], s[0:1], 96")
        if self.o.get("code_pf", True):
            e("s_getpc_b64 s[56:57]")
            self.label("L_pc")
            e(f"s_sub_u32 s56, s56, L_pc-{KNAME}")
            e("s_subb_u32 s57, s57, 0")
            e("v_and_b32 v1, 255, v0")
            e("v_lshlrev_b32 v1, 7, v1")
            e("v_lshrrev_b32 v2, 8, v0")
            e("v_lshl_add_u32 v1, v2, 6, v1")
            e(f"v_min_u32 v1, L_end-{KNAME}, v1")
            e("global_load_dword v245, v1, s[56:57]")
        e("v_lshrrev_b32 v1, 6, v0")
        e(f"v_readfirstlane_b32 {s(S_WV)}, v1")
        e("v_and_b32 v0, 63, v0")
        e(f"s_and_b32 {s(S_XI)}, s2, 7")
        e(f"s_lshr_b32 {s(S_J)}, s2, 3")
        e(f"v_mov_b32 v2, {self.C_CNT}")
        e("v_mov_b32 v3, 0")
        e("v_lshl_add_u32 v2, v0, 2, v2")
        e("ds_write_b32 v2, v3")
        e("s_waitcnt lgkmcnt(0)")
        self.srd(SRD_WS, S_WS, WS_SIZE)
        e(f"s_load_dword {s(S_EP)}, {s(S_WS,2)}, {WS_EPOCH}")

    def lds_count(self, idx, target, then):
        e = self.e
        L = self.newlabel("cnt")
        e(f"v_mov_b32 v250, {self.C_CNT + 4*idx}")
        e("v_mov_b32 v251, 1")
        e("s_mov_b64 exec, 1")
        e("ds_add_rtn_u32 v252, v250, v251")
        e("s_waitcnt lgkmcnt(0)")
        e("v_readfirstlane_b32 s56, v252")
        e("s_mov_b64 exec, -1")
        if then is not None:
            e(f"s_cmp_eq_u32 s56, {target-1}")
            e(f"s_cbranch_scc0 {L}")
            then()
            self.label(L)

    def lds_wait(self, idx, target):
        e = self.e
        L = self.newlabel("lw"); Lx = self.newlabel("lwx")
        e(f"v_mov_b32 v250, {self.C_CNT + 4*idx}")
        e("s_mov_b32 s57, 0x400000")
        self.label(L)
        e("ds_read_b32 v251, v250")
        e("s_sub_u32 s57, s57, 1")
        e("s_cmp_eq_u32 s57, 0")
        e(f"s_cbranch_scc1 {Lx}")
        e("s_waitcnt lgkmcnt(0)")
        e("v_readfirstlane_b32 s56, v251")
        e(f"s_cmp_lt_u32 s56, {target}")
        e(f"s_cbranch_scc1 {L}")
        self.label(Lx)
        e("s_waitcnt lgkmcnt(0)")

    def epoch_ready(self):
        e = self.e
        e("s_waitcnt lgkmcnt(0)")
        e(f"s_and_b32 {s(S_EP)}, {s(S_EP)}, 0xfffffff0")
        e(f"s_add_u32 {s(S_EP)}, {s(S_EP)}, 16")

    def signal(self, p, wave=0, pf_w2=False):
        e = self.e
        e("s_waitcnt vmcnt(0) lgkmcnt(0)")
        e("s_barrier")
        L = self.newlabel("sig")
        e(f"s_cmp_lg_u32 {s(S_WV)}, {wave}")
        e(f"s_cbranch_scc1 {L}")
        self.publish(p)
        self.label(L)
        if pf_w2:
            L = self.newlabel("sgp")
            e(f"s_cmp_ge_u32 {s(S_WV)}, 4")
            e(f"s_cbranch_scc1 {L}")
            self.prefetch_w(2, S_WV)
            self.label(L)

    def poll_all(self, p, t0=248, sleep=0, arr=0):
        e = self.e
        L = self.newlabel("poll"); Lx = self.newlabel("pollx")
        e(f"s_add_u32 s56, {s(S_EP)}, {p}")
        e(f"v_lshlrev_b32 {v(t0+4)}, 7, v0")
        if arr: e(f"v_add_u32 {v(t0+4)}, {8192*arr}, {v(t0+4)}")
        e("s_mov_b32 s57, 0x100000")
        self.label(L)
        if sleep: e(f"s_sleep {sleep}")
        e(f"buffer_load_dwordx4 {v(t0,4)}, {v(t0+4)}, {s(SRD_WS,4)}, 0 offen sc1")
        e("s_sub_u32 s57, s57, 1")
        e("s_cmp_eq_u32 s57, 0")
        e(f"s_cbranch_scc1 {Lx}")
        e("s_waitcnt vmcnt(0)")
        for i in range(4):
            e(f"v_subrev_u32 {v(t0+i)}, s56, {v(t0+i)}")
        e(f"v_max_u32 {v(t0)}, {v(t0)}, {v(t0+1)}")
        e(f"v_max3_u32 {v(t0)}, {v(t0)}, {v(t0+2)}, {v(t0+3)}")
        e(f"v_cmp_le_u32 vcc, 16, {v(t0)}")
        e(f"s_cbranch_vccnz {L}")
        self.label(Lx)
        e("s_waitcnt vmcnt(0)")

    def poll_group(self, p, t0=248, sleep=0):
        e = self.e
        L = self.newlabel("pollg"); Lx = self.newlabel("pollgx")
        e(f"s_add_u32 s56, {s(S_EP)}, {p}")
        e(f"v_and_b32 {v(t0+4)}, 7, v0")
        e(f"v_lshlrev_b32 {v(t0+4)}, 7, {v(t0+4)}")
        e(f"s_lshl_b32 s57, {s(S_XI)}, 10")
        e(f"v_add_u32 {v(t0+4)}, s57, {v(t0+4)}")
        e("s_mov_b32 s57, 0x100000")
        self.label(L)
        if sleep: e(f"s_sleep {sleep}")
        e("s_mov_b64 exec, 0xff")
        e(f"buffer_load_dwordx4 {v(t0,4)}, {v(t0+4)}, {s(SRD_WS,4)}, 0 offen sc1")
        e("s_sub_u32 s57, s57, 1")
        e("s_cmp_eq_u32 s57, 0")
        e(f"s_cbranch_scc1 {Lx}")
        e("s_waitcnt vmcnt(0)")
        for i in range(4):
            e(f"v_subrev_u32 {v(t0+i)}, s56, {v(t0+i)}")
        e(f"v_max_u32 {v(t0)}, {v(t0)}, {v(t0+1)}")
        e(f"v_max3_u32 {v(t0)}, {v(t0)}, {v(t0+2)}, {v(t0+3)}")
        e(f"v_cmp_le_u32 vcc, 16, {v(t0)}")
        e(f"s_cbranch_vccnz {L}")
        self.label(Lx)
        e("s_waitcnt vmcnt(0)")
        e("s_mov_b64 exec, -1")

    def wait_all(self, p, wave=0):
        e = self.e
        if self.o.get("nosync"):
            e("s_barrier"); return
        L = self.newlabel("wa")
        e(f"s_cmp_lg_u32 {s(S_WV)}, {wave}")
        e(f"s_cbranch_scc1 {L}")
        self.poll_all(p)
        self.label(L)
        e("s_barrier")

    def allreduce_add(self, regs, tmp):
        e = self.e
        for mod in ("quad_perm:[1,0,3,2]", "quad_perm:[2,3,0,1]", "row_half_mirror", "row_mirror"):
            for r in regs:
                e(f"v_add_f32_dpp {v(r)}, {v(r)}, {v(r)} {mod} row_mask:0xf bank_mask:0xf")
        for op in ("v_permlane16_swap_b32", "v_permlane32_swap_b32"):
            for r, t in zip(regs, tmp): e(f"v_mov_b32 {v(t)}, {v(r)}")
            for r, t in zip(regs, tmp): e(f"{op} {v(t)}, {v(r)}")
            for r, t in zip(regs, tmp): e(f"v_add_f32 {v(r)}, {v(r)}, {v(t)}")

    def round_bf16(self, dst, src):
        self.e(f"v_cvt_pk_bf16_f32 {v(dst)}, {v(src)}, {v(src)}")
        self.e(f"v_and_b32 {v(dst)}, 0xffff0000, {v(dst)}")

    C_HC, C_HSTR, C_HCH = 0, 4160, 16640
    C_XR, C_XCH = 66560, 4608
    C_ST = 84992
    C_EX = 101376
    C_XT = 134144
    C_CNT = 150528

    def unpack(self, dst, src, hi):
        if hi: self.e(f"v_and_b32 {v(dst)}, 0xffff0000, {v(src)}")
        else:  self.e(f"v_lshlrev_b32 {v(dst)}, 16, {v(src)}")

    def chC(self, dst):
        e = self.e
        e(f"s_and_b32 s58, {s(S_WV)}, 3")
        e(f"s_lshl_b32 s56, {s(S_XI)}, 7")
        e(f"s_lshl_b32 s57, {s(S_J)}, 2")
        e("s_add_u32 s56, s56, s57")
        e(f"s_add_u32 {s(dst)}, s56, s58")

    def lds_transpose_setup(self):
        e = self.e
        e(f"s_lshl_b32 s56, {s(S_WV)}, 12")
        e(f"s_add_u32 s56, s56, {self.C_EX}")
        e("v_xor_b32 v126, v1, v2")
        e("v_lshlrev_b32 v126, 4, v126")
        e("v_lshl_add_u32 v126, v2, 9, v126")
        e("v_add_u32 v126, s56, v126")
        e("v_lshrrev_b32 v127, 5, v0")
        e("v_lshl_add_u32 v128, v1, 7, s56")
        for i in range(4):
            e(f"v_add_u32 v129, {2*i}, v127")
            e("v_xor_b32 v129, v129, v2")
            e(f"v_lshl_add_u32 {v(130+i)}, v129, 4, v128")

    def h_loads(self):
        e = self.e
        e("s_lshl_b32 s56, s63, 12")
        e(f"s_add_u32 {s(SRD_C)}, {s(S_SSMK)}, s56")
        e(f"s_addc_u32 {s(SRD_C+1)}, {s(S_SSMK+1)}, 0")
        e(f"s_mov_b32 {s(SRD_C+2)}, 4096")
        e(f"s_mov_b32 {s(SRD_C+3)}, 0x20000")
        e("v_lshlrev_b32 v8, 4, v0")
        e("v_subrev_u32 v9, 32, v8")
        for it in range(5):
            if it: e(f"v_add_u32 v9, 1024, v9")
            e(f"buffer_load_dwordx4 {v(140+6*it,4)}, v9, {s(SRD_C,4)}, 0 offen{self.nt}")
            e(f"buffer_load_dwordx2 {v(140+6*it+4,2)}, v9, {s(SRD_C,4)}, 0 offen offset:16{self.nt}")

    def h_build(self, younger=0):
        e = self.e
        e(f"s_mul_i32 s56, s58, {self.C_HCH}")
        e("v_add_u32 v8, s56, v8")
        T = 172
        for it in range(5):
            a = 140 + 6*it
            e(f"s_waitcnt vmcnt({2*(4-it) + younger})")
            if it == 4: e("s_mov_b64 exec, 15")
            off = 1024 * it
            e(f"ds_write_b128 v8, {v(a,4)} offset:{self.C_HC + off}")
            for d in range(4): e(f"v_mov_b32 {v(T+d)}, {v(a+1+d)}")
            e(f"ds_write_b128 v8, {v(T,4)} offset:{self.C_HC + 2*self.C_HSTR + off}")
            for d in range(4): e(f"v_alignbit_b32 {v(T+4+d)}, {v(a+d+1)}, {v(a+d)}, 16")
            e(f"ds_write_b128 v8, {v(T+4,4)} offset:{self.C_HC + 1*self.C_HSTR + off}")
            for d in range(4): e(f"v_alignbit_b32 {v(T+8+d)}, {v(a+d+2)}, {v(a+d+1)}, 16")
            e(f"ds_write_b128 v8, {v(T+8,4)} offset:{self.C_HC + 3*self.C_HSTR + off}")
            T = 184 if T == 172 else 172
        e("s_mov_b64 exec, -1")

    def phase_p(self):
        e = self.e
        Lb = self.newlabel("p_b"); Le = self.newlabel("p_e")
        self.chC(63)
        e("v_lshrrev_b32 v1, 3, v0           ; pbk")
        e("v_and_b32 v2, 7, v0               ; cq")
        if self.o.get("p_rot"):
            e(f"s_add_u32 s56, {s(S_XI)}, {s(S_J)}")
            e("s_and_b32 s56, s56, 7")
            e("s_lshl_b32 s56, s56, 7")
        else:
            e(f"s_lshl_b32 s56, {s(S_XI)}, 7")
        e("s_lshl_b32 s57, s58, 5")
        e("s_add_u32 s59, s56, s57            ; 128cb + 32w")
        e("v_lshl_add_u32 v3, v2, 2, s59      ; ch0")
        e(f"s_lshl_b32 s56, {s(S_J)}, 6")
        e("v_lshl_add_u32 v4, v1, 3, s56")
        e("v_lshlrev_b32 v5, 11, v4")
        e("v_lshl_add_u32 v5, v3, 1, v5")
        e(f"s_cmp_ge_u32 {s(S_WV)}, 4")
        e(f"s_cbranch_scc1 {Lb}")
        self.srd(SRD_A, S_K, S_ * D_ * 2)
        self.srd(SRD_B, S_V, S_ * D_ * 2)
        self.srd(SRD_C, S_SH, D_ * 8)
        KD, VD, WD = 10, 32, 48
        e("v_subrev_u32 v120, 6144, v5")
        for i in range(1, 6): e(f"v_add_u32 {v(120+i)}, {4096*i}, v120")
        for i in range(11):
            e(f"buffer_load_dwordx2 {v(KD+2*i,2)}, {v(120+i//2)}, {s(SRD_A,4)}, 0 offen offset:{2048*(i&1)}{self.nt}")
        e("v_lshlrev_b32 v7, 3, v3            ; ch0*8")
        e(f"buffer_load_dwordx4 {v(WD,4)}, v7, {s(SRD_C,4)}, 0 offen")
        e(f"buffer_load_dwordx4 {v(WD+4,4)}, v7, {s(SRD_C,4)}, 0 offen offset:16")
        for p in range(8):
            i = p + 3
            e(f"buffer_load_dwordx2 {v(VD+2*p,2)}, {v(120+i//2)}, {s(SRD_B,4)}, 0 offen offset:{2048*(i&1)}{self.nt}")
        e("s_barrier")
        e("v_mov_b32 v8, 0"); e("v_mov_b32 v9, 0")
        e(f"s_mul_i32 s56, s58, {self.C_XCH}")
        e(f"s_add_u32 s56, s56, {self.C_XR + 4096}")
        e("v_lshl_add_u32 v6, v0, 3, s56")
        e("ds_write_b64 v6, v[8:9]")
        self.lds_transpose_setup()
        e("v_lshlrev_b32 v6, 4, v2")
        e(f"s_lshl_b32 s56, {s(S_J)}, 7")
        e("s_sub_u32 s56, 4080, s56")
        e("v_sub_u32 v6, s56, v6")
        e("v_add_u32 v7, s59, v1")
        e("v_lshl_add_u32 v6, v7, 12, v6")
        e(f"v_add_u32 v6, {WS_XR}, v6")
        for c in range(1, 4): e(f"s_mov_b32 {s(64+c)}, {8*4096*c}")
        e("s_mov_b32 s64, 0")
        WP, KP, R, VP, O = 56, 64, 86, 102, 104
        e("s_waitcnt vmcnt(8)")
        for cp in range(2):
            for j in range(4):
                self.unpack(WP + 2*j,     WD + 2*(2*cp)   + (j >> 1), j & 1)
                self.unpack(WP + 2*j + 1, WD + 2*(2*cp+1) + (j >> 1), j & 1)
            for i in range(11):
                self.unpack(KP + 2*i,     KD + 2*i + cp, 0)
                self.unpack(KP + 2*i + 1, KD + 2*i + cp, 1)
            if cp == 0: e("s_waitcnt vmcnt(0)")
            for p in range(8):
                r = R + 2*p
                e(f"v_pk_mul_f32 {v(r,2)}, {v(KP+2*(p+3),2)}, {v(WP,2)}")
                for j in range(1, 4):
                    e(f"v_pk_fma_f32 {v(r,2)}, {v(KP+2*(p+3-j),2)}, {v(WP+2*j,2)}, {v(r,2)}")
                self.unpack(VP,     VD + 2*p + cp, 0)
                self.unpack(VP + 1, VD + 2*p + cp, 1)
                e(f"v_pk_mul_f32 {v(r,2)}, {v(r,2)}, {v(VP,2)}")
            for cc in range(2):
                c = 2*cp + cc
                for j in range(4):
                    e(f"v_cvt_pk_bf16_f32 {v(O+4*c+j)}, {v(R+2*(7-2*j)+cc)}, {v(R+2*(6-2*j)+cc)}")
                e(f"ds_write_b128 v126, {v(O+4*c,4)} offset:{128*c}")
        e("s_waitcnt lgkmcnt(0)")
        for i in range(4): e(f"ds_read_b128 {v(O+4*i,4)}, {v(130+i)} offset:{1024*i}")
        for i in range(4):
            e(f"s_waitcnt lgkmcnt({3-i})")
            e(f"buffer_store_dwordx4 {v(O+4*i,4)}, v6, {s(SRD_WS,4)}, {s(64+i)} offen sc1")
        self.stamp("p_stored")
        e("s_and_b32 s56, s63, 0xfffffffe")
        e("s_lshl_b32 s56, s56, 1")
        e(f"s_load_dword s69, {s(S_SSMD,2)}, s56")
        self.epoch_ready()
        e("s_waitcnt vmcnt(0)")
        self.lds_count(0, 4, lambda: self.publish(1))
        self.stamp("p_sig")
        e(f"s_branch {Le}")
        self.label(Lb)
        self.h_loads()
        self.srd(SRD_A, S_X, S_ * D_ * 2)
        XD, SD = 10, 26
        e("v_mov_b32 v120, v5")
        for i in range(1, 4): e(f"v_add_u32 {v(120+i)}, {4096*i}, v5")
        for p in range(8):
            e(f"buffer_load_dwordx2 {v(XD+2*p,2)}, {v(120+p//2)}, {s(SRD_A,4)}, 0 offen offset:{2048*(p&1)}{self.nt}")
        e("s_lshl_b32 s56, s2, 3")
        e("s_lshl_b32 s57, s58, 1")
        e("s_add_u32 s62, s56, s57            ; R0 = 8w + 2w'")
        e("s_lshl_b32 s56, s62, 11")
        e("v_lshl_add_u32 v6, v0, 4, s56")
        for i in range(4):
            e(f"buffer_load_dwordx4 {v(SD+4*i,4)}, v6, {s(SRD_A,4)}, 0 offen offset:{1024*i}{self.nt}")
        e("s_barrier")
        e("s_and_b32 s56, s63, 0xfffffffe")
        e("s_lshl_b32 s56, s56, 1")
        e(f"s_load_dword s69, {s(S_SSMD,2)}, s56")
        self.h_build(younger=12)
        e("s_waitcnt lgkmcnt(0)")
        self.lds_count(1, 4, None)
        self.stamp("p_hb")
        self.lds_transpose_setup()
        e("v_lshlrev_b32 v6, 4, v2")
        e(f"s_lshl_b32 s56, {s(S_J)}, 7")
        e("v_add_u32 v6, s56, v6")
        e("v_add_u32 v7, s59, v1")
        e("v_lshl_add_u32 v6, v7, 12, v6")
        e(f"v_add_u32 v6, {WS_XT}, v6")
        for c in range(1, 4): e(f"s_mov_b32 {s(64+c)}, {8*4096*c}")
        e("s_mov_b32 s64, 0")
        e("s_mov_b32 s60, 0x05040100")
        e("s_mov_b32 s61, 0x07060302")
        O = 104
        e("s_waitcnt vmcnt(4)")
        for c in range(4):
            sel = s(61) if c & 1 else s(60)
            for j in range(4):
                e(f"v_perm_b32 {v(O+4*c+j)}, {v(XD+2*(2*j+1)+(c>>1))}, {v(XD+2*(2*j)+(c>>1))}, {sel}")
            e(f"ds_write_b128 v126, {v(O+4*c,4)} offset:{128*c}")
        e("s_waitcnt lgkmcnt(0)")
        for i in range(4): e(f"ds_read_b128 {v(O+4*i,4)}, {v(130+i)} offset:{1024*i}")
        for i in range(4):
            e(f"s_waitcnt lgkmcnt({3-i})")
            e(f"buffer_store_dwordx4 {v(O+4*i,4)}, v6, {s(SRD_WS,4)}, {s(64+i)} offen sc1")
        U = 44
        e("s_waitcnt vmcnt(4)")
        for r in range(2):
            for d in range(8):
                self.unpack(U+16*r+2*d, SD+8*r+d, 0)
                self.unpack(U+16*r+2*d+1, SD+8*r+d, 1)
        SUM = [80, 81]; TMP = [82, 83]; VAR = [86, 87]
        for r in range(2):
            b = U + 16*r
            e(f"v_pk_add_f32 v[84:85], {v(b,2)}, {v(b+2,2)}")
            for d in range(2, 8):
                e(f"v_pk_add_f32 v[84:85], v[84:85], {v(b+2*d,2)}")
            e(f"v_add_f32 {v(SUM[r])}, v84, v85")
        self.allreduce_add(SUM, TMP)
        for r in range(2):
            e(f"v_mul_f32 {v(SUM[r])}, 0x3a800000, {v(SUM[r])}")
        for r in range(2):
            b = U + 16*r
            for d in range(0, 16, 2):
                e(f"v_sub_f32 {v(b+d)}, {v(b+d)}, {v(SUM[r])}")
                e(f"v_sub_f32 {v(b+d+1)}, {v(b+d+1)}, {v(SUM[r])}")
            e(f"v_pk_mul_f32 v[84:85], {v(b,2)}, {v(b,2)}")
            for d in range(1, 8):
                e(f"v_pk_fma_f32 v[84:85], {v(b+2*d,2)}, {v(b+2*d,2)}, v[84:85]")
            e(f"v_add_f32 {v(VAR[r])}, v84, v85")
        self.allreduce_add(VAR, TMP)
        ST = 88
        for r in range(2):
            e(f"v_mul_f32 {v(VAR[r])}, 0x3a800000, {v(VAR[r])}")
            self.round_bf16(VAR[r], VAR[r])
            e(f"v_add_f32 {v(VAR[r])}, 0x3727c5ac, {v(VAR[r])}")
            self.round_bf16(VAR[r], VAR[r])
            e(f"v_sqrt_f32 {v(VAR[r])}, {v(VAR[r])}")
            self.round_bf16(VAR[r], VAR[r])
            e(f"v_rcp_f32 {v(ST+2*r+1)}, {v(VAR[r])}")
            self.round_bf16(ST + 2*r, SUM[r])
        e("s_lshl_b32 s56, s62, 3")
        e(f"s_add_u32 s56, s56, {WS_ST}")
        e("v_mov_b32 v6, s56")
        e("s_mov_b64 exec, 1")
        e(f"buffer_store_dwordx4 {v(ST,4)}, v6, {s(SRD_WS,4)}, 0 offen sc1")
        e("s_mov_b64 exec, -1")
        self.stamp("p_stored")
        self.epoch_ready()
        e("s_waitcnt vmcnt(0)")
        self.lds_count(2, 4, lambda: self.publish(1, arr=1))
        self.stamp("p_sig")
        self.label(Le)

    def publish(self, p, arr=0):
        e = self.e
        e(f"s_add_u32 s56, {s(S_EP)}, {p}")
        e("v_mov_b32 v254, s56")
        e(f"s_lshl_b32 s57, {s(S_XI)}, 10")
        e(f"s_lshr_b32 s56, {s(S_J)}, 2")
        e("s_lshl_b32 s56, s56, 7")
        e("s_add_u32 s57, s57, s56")
        e(f"s_and_b32 s56, {s(S_J)}, 3")
        e("s_lshl_b32 s56, s56, 2")
        e("s_add_u32 s57, s57, s56")
        if arr: e(f"s_add_u32 s57, s57, {8192*arr}")
        e("v_mov_b32 v255, s57")
        e("s_mov_b64 exec, 1")
        e(f"buffer_store_dword v254, v255, {s(SRD_WS,4)}, 0 offen sc1")
        e("s_mov_b64 exec, -1")

    def phase_c(self):
        e = self.e
        Lh = self.newlabel("c_help"); Lj = self.newlabel("c_join"); Lep = self.newlabel("c_epi")
        e(f"s_cmp_ge_u32 {s(S_WV)}, 4")
        e(f"s_cbranch_scc1 {Lh}")
        self.chC(63)
        e("v_lshlrev_b32 v1, 4, v0            ; lane*16")
        Lp = self.newlabel("c_p"); Lp2 = self.newlabel("c_p2")
        e(f"s_cmp_eq_u32 {s(S_WV)}, 0")
        e(f"s_cbranch_scc0 {Lp}")
        if not self.o.get("nosync"): self.poll_group(1, sleep=self.o.get("g_sleep", 2))
        self.lds_count(4, 1, None)
        e(f"s_branch {Lp2}")
        self.label(Lp)
        self.lds_wait(4, 1)
        self.label(Lp2)
        self.stamp("c_start")
        e("s_lshl_b32 s56, s63, 12")
        e(f"s_add_u32 s60, s56, {WS_XR}")
        e(f"s_mul_i32 s56, s58, {self.C_XCH}")
        e(f"s_add_u32 m0, s56, {self.C_XR}")
        for i in range(4):
            e(f"buffer_load_dwordx4 v1, {s(SRD_WS,4)}, s60 offen sc1 lds")
            if i < 3: e("s_add_u32 m0, m0, 1024"); e("s_add_u32 s60, s60, 1024")
        e("v_and_b32 v2, 15, v0               ; n / m")
        e("v_lshrrev_b32 v3, 4, v0            ; g / rho")
        e("v_add_u32 v6, 1, v2")
        e("v_and_b32 v7, 3, v6")
        e(f"v_mul_u32_u24 v7, {self.C_HSTR}, v7")
        e("v_and_b32 v6, 0x1c, v6")
        e("v_lshl_add_u32 v7, v6, 1, v7")
        e("v_lshl_add_u32 v7, v3, 4, v7")
        e(f"s_mul_i32 s56, s58, {self.C_HCH}")
        e(f"s_add_u32 s56, s56, {self.C_HC}")
        e("v_add_u32 v8, s56, v7              ; v8 = A base")
        e("v_lshlrev_b32 v6, 5, v2")
        e("v_lshlrev_b32 v7, 4, v3")
        e("v_sub_u32 v6, v7, v6")
        e(f"s_mul_i32 s56, s58, {self.C_XCH}")
        e(f"s_add_u32 s56, s56, {self.C_XR + 480}")
        e("v_add_u32 v9, s56, v6              ; v9 = B base")
        self.lds_wait(1, 4)
        e("s_waitcnt vmcnt(0)")
        if self.o.get("prefetch_w", True): self.prefetch_w(1, 58)
        self.stamp("c_loop")
        ACC = 10
        FA = [42, 106]; FB = [74, 138]
        def reads(st, tt):
            r = []
            for i in range(8):
                r.append(f"ds_read_b128 {v(FB[st]+4*i,4)}, v9 offset:{512*(7-i) + 64*tt}")
                for hh in range(2):
                    r.append(f"ds_read_b64 {v(FA[st]+4*i+2*hh,2)}, v8 offset:{512*i + 64*tt + 8*hh}")
            return r
        pairs = sorted([(q, cp) for q in range(8) for cp in range(8 - q)], key=lambda t: (max(t), t[0] + t[1]))
        for r in reads(0, 0): e(r)
        for tt in range(8):
            st = tt & 1
            e("s_waitcnt lgkmcnt(0)")
            nxt = reads(st ^ 1, tt + 1) if tt < 7 else []
            seen = set(); i = 0
            for (q, cp) in pairs:
                c = q + cp
                a = ACC + 4*c
                src = "0" if (tt == 0 and c not in seen) else v(a, 4)
                seen.add(c)
                e(f"v_mfma_f32_16x16x32_bf16 {v(a,4)}, {v(FA[st]+4*q,4)}, {v(FB[st]+4*cp,4)}, {src}")
                if i < len(nxt): e(nxt[i]); i += 1
        self.stamp("c_loopend")
        e(f"s_lshl_b32 s56, s58, 12")
        e(f"s_add_u32 s56, s56, {self.C_EX + 16384}")
        e("v_add_u32 v6, s56, v1")
        for i in range(4): e(f"ds_write_b128 v6, {v(ACC+16+4*i,4)} offset:{1024*i}")
        e("s_waitcnt lgkmcnt(0)")
        e("s_barrier")
        e(f"s_branch {Lep}")
        self.label(Lh)
        self.chC(63)
        Lq = self.newlabel("c_q"); Lq2 = self.newlabel("c_q2")
        e(f"s_cmp_eq_u32 {s(S_WV)}, 4")
        e(f"s_cbranch_scc0 {Lq}")
        if not self.o.get("nosync"): self.poll_all(1, sleep=self.o.get('x_sleep', 16), arr=1)
        self.stamp("c_xpoll")
        e("v_lshlrev_b32 v1, 4, v0")
        e(f"s_mov_b32 s60, {WS_ST}")
        e(f"s_mov_b32 m0, {self.C_ST}")
        for i in range(16):
            e(f"buffer_load_dwordx4 v1, {s(SRD_WS,4)}, s60 offen sc1 lds")
            e("s_add_u32 m0, m0, 1024"); e("s_add_u32 s60, s60, 1024")
        e("s_lshl_b32 s56, s63, 12")
        e(f"s_add_u32 s60, s56, {WS_XT}")
        e(f"s_mov_b32 m0, {self.C_XT}")
        for i in range(16):
            e(f"buffer_load_dwordx4 v1, {s(SRD_WS,4)}, s60 offen sc1 lds")
            if i < 15: e("s_add_u32 m0, m0, 1024"); e("s_add_u32 s60, s60, 1024")
        e("s_waitcnt vmcnt(0)")
        self.stamp("c_xjob")
        e(f"s_branch {Lq2}")
        self.label(Lq)
        self.label(Lq2)
        self.stamp("c_loopend")
        e("s_barrier")
        self.chC(63)
        e("v_lshlrev_b32 v1, 4, v0")
        e("v_and_b32 v2, 15, v0")
        e("v_lshrrev_b32 v3, 4, v0")
        e(f"s_lshl_b32 s56, s58, 12")
        e(f"s_add_u32 s56, s56, {self.C_EX + 16384}")
        e("v_add_u32 v6, s56, v1")
        for i in range(4): e(f"ds_read_b128 {v(ACC+4*i,4)}, v6 offset:{1024*i}")
        self.label(Lep)
        self.stamp("c_exch")
        e(f"s_lshr_b32 s59, {s(S_WV)}, 2       ; kh")
        e("v_and_b32 v4, 1, v3")
        e("s_lshl_b32 s56, s59, 2")
        e("v_add_u32 v4, s56, v4")
        e("v_lshlrev_b32 v4, 8, v4")
        e("v_lshl_add_u32 v4, v2, 4, v4")
        e("v_lshrrev_b32 v5, 1, v3")
        e("v_lshl_add_u32 v4, v5, 3, v4       ; v4 = s (pair 0)")
        KV, STT, XE = 42, 50, 82
        e("v_sub_u32 v5, 2040, v4")
        e("v_lshlrev_b32 v5, 1, v5")
        e(f"s_mul_i32 s56, s58, {self.C_XCH}")
        e(f"s_add_u32 s56, s56, {self.C_XR - 1024}")
        e("v_add_u32 v5, s56, v5")
        e(f"ds_read_b128 {v(KV,4)}, v5 offset:1024")
        e(f"ds_read_b128 {v(KV+4,4)}, v5")
        e("s_lshl_b32 s56, s58, 12")
        e(f"s_add_u32 s56, s56, {self.C_XT}")
        e("v_lshl_add_u32 v5, v4, 1, s56")
        e(f"ds_read_b128 {v(XE,4)}, v5")
        e(f"ds_read_b128 {v(XE+4,4)}, v5 offset:1024")
        e("v_lshlrev_b32 v5, 3, v4")
        e(f"v_add_u32 v5, {self.C_ST}, v5")
        for p in range(2):
            for i in range(4):
                e(f"ds_read_b128 {v(STT+16*p+4*i,4)}, v5 offset:{4096*p + 16*i}")
        e("v_lshrrev_b32 v5, 7, v4")
        e("v_lshlrev_b32 v5, 18, v5")
        e("v_and_b32 v6, 127, v4")
        e("v_lshl_add_u32 v5, v6, 1, v5")
        e("s_lshl_b32 s56, s63, 8")
        e(f"s_add_u32 s60, s56, {WS_HT}")
        e(f"s_add_u32 s62, s60, {4 << 18}")
        e("s_and_b32 s56, s63, 1")
        e("s_lshl_b32 s56, s56, 4")
        e("s_lshr_b32 s61, s69, s56")
        e("s_lshl_b32 s61, s61, 16")
        e("s_waitcnt lgkmcnt(0)")
        H = 110
        for p in range(2):
            a = ACC + 8*p; b = a + 4
            for r in range(4):
                e(f"v_permlane16_swap_b32 {v(a+r)}, {v(b+r)}")
            for el in range(8):
                y = a + el
                xr_ = XE + 4*p + (el >> 1)
                kj = KV + 4*p + ((7 - el) >> 1)
                t0 = H + 16 + (el & 1) * 4
                self.unpack(t0, xr_, el & 1)
                self.unpack(t0 + 1, kj, 1 - (el & 1))
                m_ = STT + 16*p + 2*el
                e(f"v_fmac_f32 {v(y)}, s61, {v(t0+1)}")
                e(f"v_sub_f32 {v(t0+2)}, {v(t0)}, {v(m_)}")
                e(f"v_mul_f32 {v(t0+2)}, {v(t0+2)}, {v(m_+1)}")
                e(f"v_fma_f32 {v(H+el)}, {v(t0+2)}, {v(y)}, {v(t0)}")
            O = H + 8
            for j in range(4):
                e(f"v_cvt_pk_bf16_f32 {v(O+j)}, {v(H+2*j)}, {v(H+2*j+1)}")
            e(f"buffer_store_dwordx4 {v(O,4)}, v5, {s(SRD_WS,4)}, {s(60 if p == 0 else 62)} offen sc1")
            H = 140

    def prefetch_w(self, which, swave):
        e = self.e
        ptr = S_W1 if which == 1 else S_W2
        self.srd(SRD_C, ptr, D_ * F_ * 2)
        e("s_lshl_b32 s56, s2, 2")
        e(f"s_add_u32 s56, s56, {s(swave)}")
        e("s_mul_i32 s56, s56, 56*128")
        e("v_min_u32 v247, 55, v0")
        e("v_lshlrev_b32 v247, 7, v247")
        e("v_add_u32 v247, s56, v247")
        e(f"buffer_load_dword v246, v247, {s(SRD_C,4)}, 0 offen")

    G1_STG = 45056
    G1_TOK, G1_W = 0, 16384
    G1_AST = 135168
    G1_CS  = 136192
    G1_B1  = 137216
    G1_CNT = 138240

    def g1_ids(self):
        e = self.e
        e(f"s_and_b32 s56, {s(S_XI)}, 1")
        e("s_lshl_b32 s56, s56, 3")
        e(f"s_and_b32 s57, {s(S_J)}, 7")
        e("s_add_u32 s60, s56, s57          ; mb")
        e(f"s_lshr_b32 s56, {s(S_XI)}, 1")
        e("s_lshl_b32 s56, s56, 2")
        e(f"s_lshr_b32 s57, {s(S_J)}, 3")
        e("s_add_u32 s61, s56, s57          ; nb")

    def wg_of(self, dst, vmb, vnb, t):
        e = self.e
        e(f"v_lshrrev_b32 {v(dst)}, 3, {v(vmb)}")
        e(f"v_lshrrev_b32 {v(t)}, 2, {v(vnb)}")
        e(f"v_lshl_add_u32 {v(dst)}, {v(t)}, 1, {v(dst)}      ; x")
        e(f"v_and_b32 {v(t)}, 7, {v(vmb)}")
        e(f"v_lshl_add_u32 {v(dst)}, {v(t)}, 3, {v(dst)}")
        e(f"v_and_b32 {v(t)}, 3, {v(vnb)}")
        e(f"v_lshl_add_u32 {v(dst)}, {v(t)}, 6, {v(dst)}")

    def flag_addr(self, dst, t):
        e = self.e
        e(f"v_and_b32 {v(t)}, 7, {v(dst)}")
        e(f"v_lshlrev_b32 {v(t)}, 10, {v(t)}")
        e(f"v_lshrrev_b32 {v(t+1)}, 5, {v(dst)}")
        e(f"v_lshl_add_u32 {v(t)}, {v(t+1)}, 7, {v(t)}")
        e(f"v_bfe_u32 {v(dst)}, {v(dst)}, 3, 2")
        e(f"v_lshl_add_u32 {v(dst)}, {v(dst)}, 2, {v(t)}")

    def poll_addr(self, p, va, vd):
        e = self.e
        L = self.newlabel("pa"); Lx = self.newlabel("pax")
        e(f"s_add_u32 s56, {s(S_EP)}, {p}")
        e("s_mov_b32 s57, 0x100000")
        self.label(L)
        e(f"buffer_load_dword {v(vd)}, {v(va)}, {s(SRD_WS,4)}, 0 offen sc1")
        e("s_sub_u32 s57, s57, 1")
        e("s_cmp_eq_u32 s57, 0")
        e(f"s_cbranch_scc1 {Lx}")
        e("s_waitcnt vmcnt(0)")
        e(f"v_subrev_u32 {v(vd)}, s56, {v(vd)}")
        e(f"v_cmp_le_u32 vcc, 16, {v(vd)}")
        e(f"s_cbranch_vccnz {L}")
        self.label(Lx)
        e("s_waitcnt vmcnt(0)")

    def g1_loader_setup(self):
        e = self.e
        e(f"s_sub_u32 s58, {s(S_WV)}, 4       ; lw")
        e("v_lshrrev_b32 v13, 4, v0          ; g = lane>>4")
        e("v_and_b32 v14, 15, v0             ; p")
        e("v_lshrrev_b32 v15, 1, v14         ; b'")
        e("v_and_b32 v16, 1, v14             ; half")
        e("v_xor_b32 v15, v15, v13           ; b' ^ (row&3)")
        e("s_lshl_b32 s59, s58, 4")
        e("v_add_u32 v17, s59, v13")
        e("v_lshlrev_b32 v17, 8, v17         ; *256")
        e("v_lshl_add_u32 v17, v16, 4, v17")
        e("s_lshl_b32 s59, s60, 18           ; mb*262144")
        e(f"s_add_u32 s59, s59, {WS_HT}")
        e("v_add_u32 v17, s59, v17")
        for ii in range(4):
            x4 = 4 if (ii >> 1) & 1 else 0
            e(f"v_xor_b32 v18, {x4}, v15")
            e("v_lshl_add_u32 v18, v18, 5, v17")
            e(f"v_add_u32 {v(2+ii)}, {ii*4*256}, v18")
        e("s_mov_b32 s59, 0x924924a          ; ceil(2^32/28)")
        for ii in range(7):
            e(f"v_add_u32 v13, {64*ii}, v0")
            e("v_mul_hi_u32 v14, s59, v13        ; row_local")
            e("v_mul_u32_u24 v15, 28, v14")
            e("v_sub_u32 v15, v13, v15           ; p")
            e("v_bfe_u32 v16, v14, 3, 1          ; bit3(row)")
            e("v_lshrrev_b32 v17, 1, v15         ; b'")
            e("v_xor_b32 v17, v17, v16           ; b")
            e("v_and_b32 v15, 1, v15")
            e("v_lshlrev_b32 v15, 4, v15")
            e("v_lshl_add_u32 v15, v17, 5, v15   ; b*32 + half*16")
            e("v_mul_u32_u24 v14, 7168, v14")
            e(f"v_add_u32 {v(6+ii)}, v14, v15")
        e("s_mul_i32 s59, s58, 16*7168")
        e("s_mul_i32 s57, s61, 448")
        e("s_add_u32 s59, s59, s57")
        for ii in range(7):
            e(f"v_add_u32 {v(6+ii)}, s59, {v(6+ii)}")
        e("s_lshl_b32 s62, s58, 12")
        e("s_mul_i32 s63, s58, 7168")
        e(f"s_add_u32 s63, s63, {self.G1_W}")

    def g1_issue_w(self, sbuf, sk):
        e = self.e
        if self.o.get("g1_nodma"): return
        e(f"s_add_u32 m0, {s(sbuf)}, s63")
        for ii in range(7):
            e(f"buffer_load_dwordx4 {v(6+ii)}, {s(SRD_B,4)}, {s(sk)} offen lds")
            if ii < 6: e("s_add_u32 m0, m0, 1024")

    def g1_issue_t(self, sbuf, sk):
        e = self.e
        if self.o.get("g1_nodma"): return
        e(f"s_add_u32 m0, {s(sbuf)}, s62")
        for ii in range(4):
            e(f"buffer_load_dwordx4 {v(2+ii)}, {s(SRD_WS,4)}, {s(sk)} offen sc1 lds")
            if ii < 3: e("s_add_u32 m0, m0, 1024")

    def g1_next_k(self):
        e = self.e
        e("s_add_u32 s68, s68, 1")
        e("s_and_b32 s68, s68, 15")
        e(f"s_mul_i32 s65, s68, {64*7168}")
        e(f"s_lshl_b32 s66, s68, 14")

    def g1_side_partials(self):
        e = self.e
        e("v_lshrrev_b32 v20, 4, v0          ; g")
        e("v_and_b32 v21, 15, v0")
        e("v_lshrrev_b32 v22, 2, v21         ; r")
        e("v_and_b32 v23, 3, v21             ; c")
        e("v_lshl_add_u32 v24, v20, 3, v22   ; row = 8g + r")
        e("v_and_b32 v25, 1, v20             ; g&1")
        e("v_lshl_or_b32 v26, v25, 2, v22    ; f(row)")
        e("v_lshlrev_b32 v27, 8, v24")
        e("v_lshl_add_u32 v27, v23, 3, v27   ; row*256 + c*8")
        for i in range(2):
            e(f"s_lshl_b32 s56, s58, 1")
            e(f"s_add_u32 s56, s56, {i}")
            e("v_xor_b32 v28, s56, v26")
            e(f"v_lshl_add_u32 {v(30+i)}, v28, 5, v27")
        TF = 32
        for i in range(2):
            for u in range(2):
                for h in range(2):
                    e(f"ds_read_b64_tr_b16 {v(TF+8*i+4*u+2*h,2)}, {v(30+i)} offset:{u*8192 + h*1024}")
        e("v_mul_u32_u24 v27, 448, v24")
        e("v_lshl_add_u32 v27, v23, 3, v27")
        e(f"v_add_u32 v27, {self.G1_W}, v27")
        WF = 48
        for i in range(4):
            e(f"s_add_u32 s56, s58, {4*i}")
            e("s_min_u32 s56, s56, 13")
            e(f"s_mov_b32 {s(84+i)}, s56")
            e("v_xor_b32 v28, s56, v25")
            e("v_lshl_add_u32 v28, v28, 5, v27")
            for u in range(2):
                for h in range(2):
                    e(f"ds_read_b64_tr_b16 {v(WF+8*i+4*u+2*h,2)}, v28 offset:{u*32*448 + h*4*448}")
        ONE = 80
        for r in range(4): e(f"v_mov_b32 {v(ONE+r)}, 0x3f803f80")
        D1, D2, DC = 84, 92, 100
        e("s_waitcnt lgkmcnt(0)")
        for i in range(2):
            for u in range(2):
                t = v(TF+8*i+4*u, 4)
                e(f"v_mfma_f32_16x16x32_bf16 {v(D1+4*i,4)}, {v(ONE,4)}, {t}, {'0' if u == 0 else v(D1+4*i,4)}")
                e(f"v_mfma_f32_16x16x32_bf16 {v(D2+4*i,4)}, {t}, {t}, {'0' if u == 0 else v(D2+4*i,4)}")
        for i in range(4):
            for u in range(2):
                e(f"v_mfma_f32_16x16x32_bf16 {v(DC+4*i,4)}, {v(WF+8*i+4*u,4)}, {v(ONE,4)}, {'0' if u == 0 else v(DC+4*i,4)}")
        e("s_lshl_b32 s56, s60, 4")
        e("s_add_u32 s56, s56, s61")
        e("s_lshl_b32 s56, s56, 10")
        e(f"s_add_u32 s56, s56, {WS_TSP}")
        e("s_lshl_b32 s57, s58, 8            ; 2lw*16*8")
        e("s_add_u32 s56, s56, s57")
        e("v_lshl_add_u32 v28, v21, 3, s56")
        e("s_mov_b32 s80, 0x22222222"); e("s_mov_b32 s81, 0x22222222")
        e("s_mov_b32 s82, 0x44444444"); e("s_mov_b32 s83, 0x44444444")
        e("s_mov_b32 vcc_lo, 0x88888888"); e("s_mov_b32 vcc_hi, 0x88888888")
        for i in range(2):
            o = 116 + 2*i
            e(f"v_mov_b32 {v(o)}, {v(D1+4*i)}")
            e(f"v_cndmask_b32 {v(o+1)}, {v(D2+4*i)}, {v(D2+4*i+1)}, s[80:81]")
            e(f"v_cndmask_b32 {v(o+1)}, {v(o+1)}, {v(D2+4*i+2)}, s[82:83]")
            e(f"v_cndmask_b32 {v(o+1)}, {v(o+1)}, {v(D2+4*i+3)}, vcc")
        e("s_mov_b32 exec_lo, 0x00f0000f"); e("s_mov_b32 exec_hi, 0xf0000f00")
        for i in range(2):
            e(f"buffer_store_dwordx2 {v(116+2*i,2)}, v28, {s(SRD_WS,4)}, 0 offen offset:{128*i} sc1")
        e("s_mov_b64 exec, -1")
        e("s_lshl_b32 s56, s61, 4")
        e("s_add_u32 s56, s56, s60")
        e("s_lshl_b32 s56, s56, 10")
        e(f"s_add_u32 s56, s56, {WS_CSP}")
        e("v_lshl_add_u32 v28, v20, 4, s56")
        e("s_mov_b32 exec_lo, 0x00010001"); e("s_mov_b32 exec_hi, 0x00010001")
        for i in range(4):
            e(f"s_lshl_b32 s56, {s(84+i)}, 6")
            e(f"buffer_store_dwordx4 {v(DC+4*i,4)}, v28, {s(SRD_WS,4)}, s56 offen sc1")
        e("s_mov_b64 exec, -1")

    def g1_side_signal(self):
        e = self.e
        L = self.newlabel("g1s")
        e(f"v_mov_b32 v20, {self.G1_CNT}")
        e("v_mov_b32 v21, 1")
        e("s_mov_b64 exec, 1")
        e("ds_add_rtn_u32 v22, v20, v21")
        e("s_waitcnt lgkmcnt(0)")
        e("v_readfirstlane_b32 s56, v22")
        e("s_mov_b64 exec, -1")
        e("s_cmp_eq_u32 s56, 3")
        e(f"s_cbranch_scc0 {L}")
        self.publish(4)
        self.label(L)

    def g1_side_poll_issue(self):
        e = self.e
        e("v_and_b32 v20, 15, v0")
        e("v_bfe_u32 v21, v0, 4, 1")
        e("v_cmp_eq_u32 vcc, 0, v21")
        e("v_mov_b32 v22, s60"); e("v_mov_b32 v23, s61")
        e("v_cndmask_b32 v24, v20, v22, vcc")
        e("v_cndmask_b32 v25, v23, v20, vcc")
        self.wg_of(40, 24, 25, 26)
        self.flag_addr(40, 26)
        e(f"buffer_load_dword v41, v40, {s(SRD_WS,4)}, 0 offen sc1")

    def g1_side_loads(self):
        e = self.e
        L = self.newlabel("g1p")
        e(f"s_add_u32 s56, {s(S_EP)}, 4")
        e("v_subrev_u32 v41, s56, v41")
        e("v_cmp_le_u32 vcc, 16, v41")
        e(f"s_cbranch_vccz {L}")
        if not self.o.get("nosync"): self.poll_addr(4, 40, 41)
        self.label(L)
        e("v_and_b32 v20, 31, v0")
        e("s_lshl_b32 s56, s58, 5")
        e("v_add_u32 v42, s56, v20            ; token")
        e("v_lshrrev_b32 v21, 5, v0")
        e("v_lshlrev_b32 v21, 13, v21         ; hf*8*1024")
        e("v_lshl_add_u32 v21, v42, 3, v21")
        e("s_lshl_b32 s56, s60, 14")
        e(f"s_add_u32 s56, s56, {WS_TSP}")
        e("v_add_u32 v21, s56, v21")
        for jj in range(8):
            if jj == 4: e("v_add_u32 v21, 4096, v21")
            e(f"buffer_load_dwordx2 {v(44+2*jj,2)}, v21, {s(SRD_WS,4)}, 0 offen offset:{1024*(jj&3)} sc1")
        e("v_and_b32 v20, 15, v0")
        e("v_min_u32 v20, 13, v20")
        e("s_mul_i32 s56, s58, 14")
        e("v_add_u32 v43, s56, v20            ; fq")
        e("v_lshrrev_b32 v21, 4, v0")
        e("v_lshlrev_b32 v21, 12, v21")
        e("v_lshl_add_u32 v21, v43, 4, v21")
        e("s_lshl_b32 s56, s61, 14")
        e(f"s_add_u32 s56, s56, {WS_CSP}")
        e("v_add_u32 v21, s56, v21")
        for jj in range(4):
            e(f"buffer_load_dwordx4 {v(60+4*jj,4)}, v21, {s(SRD_WS,4)}, 0 offen offset:{1024*jj} sc1")
        self.srd(SRD_C, S_B1, F_ * 2)
        e("s_mul_i32 s56, s61, 448")
        e("v_lshl_add_u32 v21, v43, 3, s56")
        e(f"buffer_load_dwordx2 v[76:77], v21, {s(SRD_C,4)}, 0 offen")

    def g1_side_final(self):
        e = self.e
        for jj in range(1, 8): e(f"v_pk_add_f32 v[44:45], v[44:45], {v(44+2*jj,2)}")
        e("v_mov_b32 v46, v44"); e("v_mov_b32 v47, v45")
        e("v_permlane32_swap_b32 v46, v44"); e("v_permlane32_swap_b32 v47, v45")
        e("v_add_f32 v44, v44, v46"); e("v_add_f32 v45, v45, v47")
        e("v_mul_f32 v44, 0x3a800000, v44      ; mu")
        e("v_mul_f32 v45, 0x3a800000, v45      ; E[h^2]")
        e("v_fma_f32 v45, -v44, v44, v45       ; var")
        e("v_max_f32 v45, 0, v45")
        self.round_bf16(46, 44)
        self.round_bf16(47, 45)
        e("v_add_f32 v47, 0x3727c5ac, v47")
        self.round_bf16(47, 47)
        e("v_sqrt_f32 v47, v47")
        self.round_bf16(47, 47)
        e("v_rcp_f32 v48, v47                  ; 1/sd1")
        e("v_sub_f32 v49, v44, v46")
        e("v_mul_f32 v49, v49, v48             ; mean(y1)")
        self.round_bf16(49, 49)
        e("v_mul_f32 v50, v45, v48")
        e("v_mul_f32 v50, v50, v48             ; var(y1)")
        self.round_bf16(50, 50)
        e("v_add_f32 v50, 0x3727c5ac, v50")
        self.round_bf16(50, 50)
        e("v_sqrt_f32 v50, v50")
        self.round_bf16(50, 50)
        e("v_rcp_f32 v50, v50")
        e("v_mul_f32 v52, v48, v50")
        e("v_fma_f32 v51, v49, v47, v46        ; M = m1 + m2*sd1")
        e("v_mul_f32 v53, v52, v51             ; am")
        e(f"v_lshlrev_b32 v20, 3, v42")
        e(f"v_add_u32 v20, {self.G1_AST}, v20")
        e("s_mov_b32 exec_hi, 0")
        e("ds_write_b64 v20, v[52:53]")
        e("s_mov_b64 exec, -1")
        for jj in range(1, 4):
            e(f"v_pk_add_f32 v[60:61], v[60:61], {v(60+4*jj,2)}")
            e(f"v_pk_add_f32 v[62:63], v[62:63], {v(62+4*jj,2)}")
        for op in ("v_permlane16_swap_b32", "v_permlane32_swap_b32"):
            for r in range(4): e(f"v_mov_b32 {v(64+r)}, {v(60+r)}")
            for r in range(4): e(f"{op} {v(64+r)}, {v(60+r)}")
            for r in range(4): e(f"v_add_f32 {v(60+r)}, {v(60+r)}, {v(64+r)}")
        self.unpack(68, 76, 0); self.unpack(69, 76, 1); self.unpack(70, 77, 0); self.unpack(71, 77, 1)
        e("v_lshlrev_b32 v20, 4, v43")
        e(f"v_add_u32 v20, {self.G1_CS}, v20")
        e("s_mov_b64 exec, 0x3fff")
        e("ds_write_b128 v20, v[60:63]")
        e(f"ds_write_b128 v20, v[68:71] offset:{self.G1_B1 - self.G1_CS}")
        e("s_mov_b64 exec, -1")
        e("s_waitcnt lgkmcnt(0)")

    def g1_loader(self):
        e = self.e
        STG = self.G1_STG
        self.srd(SRD_B, S_W1, D_ * F_ * 2)
        self.g1_loader_setup()
        e(f"v_mov_b32 v20, {self.G1_CNT}"); e("v_mov_b32 v21, 0")
        e("ds_write_b32 v20, v21")
        e("s_add_u32 s68, s60, s61")
        e("s_sub_u32 s68, s68, 1")
        self.g1_next_k()
        e("s_mov_b32 s88, s66")
        e("s_mov_b32 s64, 0")
        self.g1_issue_w(64, 65)
        self.g1_next_k()
        e(f"s_mov_b32 s64, {STG}")
        self.g1_issue_w(64, 65)
        self.g1_dep_wait()
        e("s_mov_b32 s64, 0")
        self.g1_issue_t(64, 88)
        e(f"s_mov_b32 s64, {STG}")
        self.g1_issue_t(64, 66)
        e("s_waitcnt vmcnt(4) lgkmcnt(0)")
        e("s_barrier                        ; B_0")
        e("s_mov_b32 s67, 0                 ; period i")
        e(f"s_mov_b32 s64, {2*STG}")
        side = not self.o.get("g1_noside")
        L = self.newlabel("g1l"); Lw = self.newlabel("g1lw"); Lb = self.newlabel("g1lb")
        self.label(L)
        if side:
            La = self.newlabel("g1a"); e("s_cmp_eq_u32 s67, 6"); e(f"s_cbranch_scc0 {La}"); self.g1_side_poll_issue(); self.label(La)
            La = self.newlabel("g1a"); e("s_cmp_eq_u32 s67, 7"); e(f"s_cbranch_scc0 {La}"); self.g1_side_loads(); self.label(La)
        e("s_cmp_ge_u32 s67, 14")
        e(f"s_cbranch_scc1 {Lw}")
        self.g1_next_k()
        self.g1_issue_w(64, 65)
        self.g1_issue_t(64, 66)
        e(f"s_add_u32 s64, s64, {STG}")
        e(f"s_cmp_eq_u32 s64, {3*STG}")
        e("s_cselect_b32 s64, 0, s64")
        if side:
            La = self.newlabel("g1a"); Lz = self.newlabel("g1z")
            e("s_cmp_eq_u32 s67, 0"); e(f"s_cbranch_scc0 {La}")
            self.g1_side_partials()
            e("s_waitcnt vmcnt(17)")
            e(f"s_branch {Lb}")
            self.label(La)
        e("s_waitcnt vmcnt(11)")
        if side:
            La = self.newlabel("g1a"); e("s_cmp_eq_u32 s67, 1"); e(f"s_cbranch_scc0 {La}"); self.g1_side_signal(); self.label(La)
            La = self.newlabel("g1a"); e("s_cmp_eq_u32 s67, 7"); e(f"s_cbranch_scc0 {La}"); self.g1_side_final(); self.label(La)
        e(f"s_branch {Lb}")
        self.label(Lw)
        e("s_waitcnt vmcnt(0)")
        self.label(Lb)
        e("s_barrier")
        e("s_add_u32 s67, s67, 1")
        e("s_cmp_lt_u32 s67, 16")
        e(f"s_cbranch_scc1 {L}")

    def g1_dep_wait(self):
        if "c" in self.o["phases"]: self.wait_all(3, wave=4)
        else: self.e("s_barrier")

    G1_X, G1_Y, G1_ACC = 8, 52, 96
    def g1_frag_reads(self, base, u):
        r = []
        def wread(ft):
            areg = 2 if ft % 2 == 0 else 3
            return [f"ds_read_b64_tr_b16 {v(base + 4*ft + 2*h, 2)}, {v(areg)} offset:{32*ft + u*32*448 + h*4*448}" for h in range(2)]
        def tread(tt):
            return [f"ds_read_b64_tr_b16 {v(base + 28 + 4*tt + 2*h, 2)}, {v(4+tt)} offset:{u*8192 + h*1024}" for h in range(2)]
        for tt in range(4): r += tread(tt)
        for ft in range(7): r += wread(ft)
        return r

    def g1_half(self, mf_base, rd_base, rd_u, first=False, mfma=True, reads=True, tail=(), waits=None):
        e = self.e
        rds = self.g1_frag_reads(rd_base, rd_u) if (reads and not self.o.get("g1_noreads")) else []
        if self.o.get("g1_nomfma"): mfma = False
        mf = []
        if mfma:
            for ft in range(7):
                for tt in range(4):
                    a = self.G1_ACC + (ft * 4 + tt) * 4
                    c = "0" if first else v(a, 4)
                    mf.append(f"v_mfma_f32_16x16x32_bf16 {v(a,4)}, {v(mf_base + 4*ft, 4)}, {v(mf_base + 28 + 4*tt, 4)}, {c}")
        fill = list(rds) + list(tail)
        i = 0
        for k, m in enumerate(mf):
            if waits and k in waits: e(waits[k])
            e(m)
            if i < len(fill): e(fill[i]); i += 1
        while i < len(fill): e(fill[i]); i += 1

    def g1_compute_setup(self):
        e = self.e
        e(f"s_lshr_b32 s58, {s(S_WV)}, 1      ; wf")
        e(f"s_and_b32 s59, {s(S_WV)}, 1       ; wt")
        e("v_lshrrev_b32 v13, 4, v0          ; g")
        e("v_and_b32 v14, 15, v0")
        e("v_lshrrev_b32 v15, 2, v14         ; r")
        e("v_and_b32 v16, 3, v14             ; c")
        e("v_lshl_add_u32 v17, v13, 3, v15   ; row = 8g + r")
        e("v_and_b32 v18, 1, v13             ; g&1")
        e("v_mul_u32_u24 v19, 448, v17")
        e("v_lshl_add_u32 v19, v16, 3, v19")
        e("s_mul_i32 s57, s58, 224           ; 32*7*wf")
        e(f"s_add_u32 s57, s57, {self.G1_W}")
        e("v_add_u32 v19, s57, v19")
        e("v_lshlrev_b32 v20, 5, v18         ; 32*(g&1)")
        e("v_add_u32 v21, v19, v20")
        e("v_sub_u32 v22, v19, v20")
        e("s_cmp_eq_u32 s58, 0")
        e("s_cselect_b64 vcc, -1, 0")
        e("v_cndmask_b32 v2, v22, v21, vcc")
        e("v_cndmask_b32 v3, v21, v22, vcc")
        e("v_lshl_or_b32 v20, v18, 2, v15    ; f(row)")
        e("v_lshlrev_b32 v21, 8, v17")
        e("v_lshl_add_u32 v21, v16, 3, v21")
        e("s_lshl_b32 s57, s59, 2            ; 4*wt")
        for tt in range(4):
            e(f"s_add_u32 s56, s57, {tt}")
            e("v_xor_b32 v22, s56, v20")
            e(f"v_lshl_add_u32 {v(4+tt)}, v22, 5, v21")

    def g1_compute(self):
        e = self.e
        X, Y = self.G1_X, self.G1_Y
        STG = self.G1_STG
        self.g1_compute_setup()
        self.g1_dep_wait()
        e("s_barrier                        ; B_0")
        self.stamp("g1_loop")
        def adv(delta):
            return [f"v_add_u32 {v(r)}, {delta & 0xffffffff:#x}, {v(r)}" for r in range(2, 8)]
        W5 = {0: "s_waitcnt lgkmcnt(4)", 20: "s_waitcnt lgkmcnt(15)"}
        for r in self.g1_frag_reads(X, 0): e(r)
        e("s_waitcnt lgkmcnt(0)")
        self.g1_half(X, Y, 1, first=True, tail=adv(STG))
        e("s_waitcnt lgkmcnt(0)")
        e("s_barrier                        ; B_1")
        e("s_mov_b32 s67, 0")
        L = self.newlabel("g1c")
        self.label(L)
        for k in range(3):
            delta = STG if k != 1 else -2 * STG
            self.g1_half(Y, X, 0)
            tail = adv(delta)
            if k == 2: tail = tail[:5] + ["s_add_u32 s67, s67, 1"] + tail[5:]
            self.g1_half(X, Y, 1, tail=tail, waits=(W5 if not self.o.get("g1_noreads") else None))
            if k == 2: e("s_cmp_lt_u32 s67, 5")
            e("s_waitcnt lgkmcnt(0)")
            e("s_barrier")
        e(f"s_cbranch_scc1 {L}")
        self.g1_half(Y, None, 0, reads=False)
        self.stamp("g1_loopend")

    def g1_epilogue(self):
        e = self.e
        ACC = self.G1_ACC
        e("v_and_b32 v2, 15, v0               ; n")
        e("v_lshrrev_b32 v3, 4, v0            ; g / rho")
        e("s_lshl_b32 s56, s59, 9")
        e(f"s_add_u32 s56, s56, {self.G1_AST}")
        e("v_lshl_add_u32 v4, v2, 3, s56")
        AS = 8
        for tt in range(4): e(f"ds_read_b64 {v(AS+2*tt,2)}, v4 offset:{128*tt}")
        e("s_mul_i32 s56, s58, 448")
        e(f"s_add_u32 s56, s56, {self.G1_CS}")
        e("v_lshl_add_u32 v5, v3, 4, s56")
        CB = 16
        for ft in range(7):
            e(f"ds_read_b128 {v(CB+8*ft,4)}, v5 offset:{64*ft}")
            e(f"ds_read_b128 {v(CB+8*ft+4,4)}, v5 offset:{64*ft + self.G1_B1 - self.G1_CS}")
        c2 = -2.0 * 0.7978845608028654 * 1.4426950408889634
        c1 = c2 * 0.044715
        import struct
        fb = lambda x: "0x%08x" % struct.unpack("<I", struct.pack("<f", x))[0]
        C1, C2, ONE = 72, 74, 76
        for r, val in ((C1, c1), (C2, c2), (ONE, 1.0)):
            e(f"v_mov_b32 {v(r)}, {fb(val)}"); e(f"v_mov_b32 {v(r+1)}, {fb(val)}")
        e("v_lshrrev_b32 v6, 2, v2")
        e("v_lshlrev_b32 v6, 2, v6")
        e("s_mov_b32 s56, 0x1450")
        e("v_lshrrev_b32 v6, v6, s56")
        e("v_and_b32 v6, 7, v6                ; sigma")
        e("v_and_b32 v7, 1, v2")
        e("v_lshlrev_b32 v7, 1, v7            ; (n&1)*2")
        e("v_lshrrev_b32 v78, 1, v2")
        e("v_lshlrev_b32 v78, 7, v78          ; (n>>1)*128")
        e("v_and_b32 v79, 1, v3               ; rho&1")
        e("v_add_u32 v79, s58, v79")
        e("v_lshrrev_b32 v80, 1, v79          ; dQ")
        e("v_and_b32 v79, 1, v79              ; half")
        e("v_lshl_add_u32 v79, v79, 2, v7")
        e("v_lshrrev_b32 v81, 1, v3           ; rho>>1")
        e("v_add_u32 v79, v79, v81")
        e("v_xor_b32 v79, v79, v6")
        e("v_lshl_add_u32 v79, v79, 4, v78")
        e("v_lshl_add_u32 v82, v80, 13, v79")
        e("s_lshl_b32 s56, s58, 2")
        e("v_add_u32 v79, s56, v7             ; wf*4 + (n&1)*2")
        e("v_add_u32 v79, v79, v81            ; + (g>>1)")
        e("v_xor_b32 v79, v79, v6")
        e("v_lshl_add_u32 v79, v79, 4, v78")
        e("v_and_b32 v80, 1, v3")
        e("v_lshl_add_u32 v83, v80, 3, v79")
        e("s_mul_i32 s62, s60, 112")
        e("s_mul_i32 s56, s61, 7")
        e("s_add_u32 s62, s62, s56")
        e("s_mul_i32 s56, s58, 3")
        e("s_add_u32 s62, s62, s56")
        e("s_lshl_b32 s62, s62, 13")
        e("s_lshl_b32 s56, s59, 12")
        e("s_add_u32 s62, s62, s56")
        e(f"s_add_u32 s62, s62, {WS_HM}")
        e("s_waitcnt lgkmcnt(0)")
        def gelu_tile(ft, tt, out, T):
            a = ACC + (ft*4 + tt)*4
            cs, b1 = CB + 8*ft, CB + 8*ft + 4
            A = AS + 2*tt
            for h in range(2):
                e(f"v_pk_fma_f32 {v(T+2*h,2)}, {v(A,2)}, {v(cs+2*h,2)}, {v(b1+2*h,2)} op_sel:[1,0,0] op_sel_hi:[1,1,1] neg_lo:[1,0,0] neg_hi:[1,0,0]")
            for h in range(2):
                e(f"v_pk_fma_f32 {v(a+2*h,2)}, {v(A,2)}, {v(a+2*h,2)}, {v(T+2*h,2)} op_sel:[0,0,0] op_sel_hi:[0,1,1]")
            for h in range(2): e(f"v_pk_mul_f32 {v(T+2*h,2)}, {v(a+2*h,2)}, {v(a+2*h,2)}")
            for h in range(2): e(f"v_pk_fma_f32 {v(T+2*h,2)}, {v(T+2*h,2)}, {v(C1,2)}, {v(C2,2)}")
            for h in range(2): e(f"v_pk_mul_f32 {v(T+2*h,2)}, {v(T+2*h,2)}, {v(a+2*h,2)}")
            for r in range(4): e(f"v_exp_f32 {v(T+r)}, {v(T+r)}")
            for h in range(2): e(f"v_pk_add_f32 {v(T+2*h,2)}, {v(T+2*h,2)}, {v(ONE,2)}")
            for r in range(4): e(f"v_rcp_f32 {v(T+r)}, {v(T+r)}")
            for h in range(2): e(f"v_pk_mul_f32 {v(a+2*h,2)}, {v(a+2*h,2)}, {v(T+2*h,2)}")
            for h in range(2): e(f"v_cvt_pk_bf16_f32 {v(out+h)}, {v(a+2*h)}, {v(a+2*h+1)}")
        k = 0
        for fp in range(3):
            for tt in range(4):
                O = 208 + 4 * (k & 1); T = 216 + 4 * (k & 1); k += 1
                gelu_tile(2*fp, tt, O, T)
                gelu_tile(2*fp + 1, tt, O + 2, T)
                e(f"v_permlane16_swap_b32 {v(O)}, {v(O+2)}")
                e(f"v_permlane16_swap_b32 {v(O+1)}, {v(O+3)}")
                e(f"s_add_u32 s56, s62, {fp*8192 + tt*1024}")
                e(f"buffer_store_dwordx4 {v(O,4)}, v82, {s(SRD_WS,4)}, s56 offen sc1")
        for tt in range(4):
            O = 208 + 4 * (k & 1); T = 216 + 4 * (k & 1); k += 1
            gelu_tile(6, tt, O, T)
            e(f"s_add_u32 s56, s62, {3*8192 + tt*1024}")
            e(f"buffer_store_dwordx2 {v(O,2)}, v83, {s(SRD_WS,4)}, s56 offen sc1")

    def g1(self):
        e = self.e
        self.g1_ids()
        Lc = self.newlabel("g1comp"); Le = self.newlabel("g1end")
        e(f"s_cmp_lt_u32 {s(S_WV)}, 4")
        e(f"s_cbranch_scc1 {Lc}")
        self.g1_loader()
        if "g2" in self.o["phases"]: self.g2_loader_pre()
        e(f"s_branch {Le}")
        self.label(Lc)
        self.g1_compute()
        self.g1_epilogue()
        self.stamp("g1_epi")
        e("s_waitcnt vmcnt(0)")
        self.label(Le)
        e("s_barrier")
        L = self.newlabel("g1sig")
        e(f"s_cmp_lg_u32 {s(S_WV)}, 0")
        e(f"s_cbranch_scc1 {L}")
        self.publish(5)
        self.label(L)

    G2_STG = 32768
    G2_NBUF = 4
    G2_RES = 131072

    def g2_ids(self):
        e = self.e
        e(f"s_and_b32 s56, {s(S_XI)}, 1")
        e("s_lshl_b32 s56, s56, 3")
        e(f"s_and_b32 s57, {s(S_J)}, 7")
        e("s_add_u32 s60, s56, s57          ; mb")
        e(f"s_lshr_b32 s56, {s(S_XI)}, 1")
        e("s_lshl_b32 s56, s56, 2")
        e(f"s_lshr_b32 s57, {s(S_J)}, 3")
        e("s_add_u32 s56, s56, s57          ; n'")
        e("s_and_b32 s61, s56, 7            ; db")
        e("s_lshr_b32 s69, s56, 3           ; kh")

    def g2_issue_w(self, sbuf, sk):
        e = self.e
        e(f"s_add_u32 m0, {s(sbuf)}, s63")
        for ii in range(4):
            e(f"buffer_load_dwordx4 {v(6+ii)}, {s(SRD_B,4)}, {s(sk)} offen lds")
            if ii < 3: e("s_add_u32 m0, m0, 1024")

    def g2_issue_t(self, sbuf, sk):
        e = self.e
        e(f"s_add_u32 m0, {s(sbuf)}, s62")
        for ii in range(4):
            e(f"buffer_load_dwordx4 v2, {s(SRD_WS,4)}, {s(sk)} offen sc1 lds")
            if ii < 3:
                e("s_add_u32 m0, m0, 1024"); e(f"s_add_u32 {s(sk)}, {s(sk)}, 1024")
        e(f"s_add_u32 {s(sk)}, {s(sk)}, {16384 - 3*1024}")

    def g2_loader_pre(self):
        e = self.e
        self.g2_ids()
        self.srd(SRD_B, S_W2, F_ * D_ * 2)
        e(f"s_sub_u32 s58, {s(S_WV)}, 4       ; lw")
        e("v_lshrrev_b32 v13, 4, v0")
        e("v_and_b32 v14, 15, v0")
        e("v_lshrrev_b32 v15, 1, v14")
        e("v_and_b32 v16, 1, v14")
        e("v_xor_b32 v15, v15, v13")
        e("s_lshl_b32 s59, s58, 4")
        e("v_add_u32 v17, s59, v13")
        e("v_lshlrev_b32 v17, 11, v17        ; *2048")
        e("v_lshl_add_u32 v17, v16, 4, v17")
        e("s_lshl_b32 s59, s61, 8            ; db*256")
        e("v_add_u32 v17, s59, v17")
        for ii in range(4):
            x4 = 4 if (ii >> 1) & 1 else 0
            e(f"v_xor_b32 v18, {x4}, v15")
            e("v_lshl_add_u32 v18, v18, 5, v17")
            e(f"v_add_u32 {v(6+ii)}, {ii*4*2048}, v18")
        e("v_lshlrev_b32 v2, 4, v0")
        e("s_lshl_b32 s62, s58, 12")
        e(f"s_add_u32 s63, s62, 16384")
        e(f"s_mul_i32 s65, s69, {1792*2048}")
        e("s_mul_i32 s66, s60, 112")
        e("s_mul_i32 s56, s69, 56")
        e("s_add_u32 s66, s66, s56")
        e("s_lshl_b32 s66, s66, 13")
        e("s_add_u32 s66, s66, s62")
        e(f"s_add_u32 s66, s66, {WS_HM}")
        e("s_mov_b32 s64, 0")
        for st in range(3):
            self.g2_issue_w(64, 65)
            e(f"s_add_u32 s65, s65, {64*2048}")
            e(f"s_add_u32 s64, s64, {self.G2_STG}")

    def g2_loader(self):
        e = self.e
        STG = self.G2_STG
        Lq = self.newlabel("g2q")
        e(f"s_cmp_eq_u32 {s(S_WV)}, 4")
        e(f"s_cbranch_scc0 {Lq}")
        e("v_and_b32 v20, 7, v0")
        e("s_lshl_b32 s56, s69, 3")
        e("v_add_u32 v21, s56, v20")
        e("v_mov_b32 v20, s60")
        self.wg_of(40, 20, 21, 26)
        self.flag_addr(40, 26)
        if not self.o.get("nosync"): self.poll_addr(5, 40, 41)
        self.label(Lq)
        e("s_barrier                        ; dep")
        self.stamp("g2_dep")
        e("s_mov_b32 s64, 0")
        for st in range(3):
            self.g2_issue_t(64, 66)
            e(f"s_add_u32 s64, s64, {STG}")
        e("s_waitcnt vmcnt(8)")
        e("s_barrier                        ; B_0")
        e("s_mov_b32 s67, 0")
        e(f"s_mov_b32 s64, {3*STG}")
        L = self.newlabel("g2l"); Lw = self.newlabel("g2lw"); Lb = self.newlabel("g2lb"); Lw1 = self.newlabel("g2lw1"); Lr = self.newlabel("g2r")
        self.label(L)
        e("s_cmp_ge_u32 s67, 25")
        e(f"s_cbranch_scc1 {Lw}")
        self.g2_issue_w(64, 65)
        e(f"s_add_u32 s65, s65, {64*2048}")
        self.g2_issue_t(64, 66)
        e(f"s_add_u32 s64, s64, {STG}")
        e(f"s_and_b32 s64, s64, {4*STG - 1}")
        L0 = self.newlabel("g2l0")
        e("s_cmp_eq_u32 s67, 0")
        e(f"s_cbranch_scc0 {L0}")
        e("s_waitcnt vmcnt(12)")
        e(f"s_branch {Lb}")
        self.label(L0)
        e("s_waitcnt vmcnt(16)")
        e(f"s_branch {Lb}")
        self.label(Lw)
        e("s_cmp_eq_u32 s67, 25")
        e(f"s_cbranch_scc0 {Lw1}")
        e("v_lshrrev_b32 v20, 2, v0")
        e("s_lshl_b32 s56, s58, 5")
        e("v_add_u32 v20, s56, v20")
        e("v_lshlrev_b32 v20, 8, v20          ; row*256")
        e("v_and_b32 v21, 3, v0")
        e("v_lshl_add_u32 v20, v21, 4, v20")
        e("s_lshl_b32 s56, s60, 18")
        e("s_lshl_b32 s57, s61, 15            ; 128db*256")
        e("s_add_u32 s56, s56, s57")
        e("s_lshl_b32 s57, s69, 6             ; 32kh*2")
        e("s_add_u32 s56, s56, s57")
        e(f"s_add_u32 s56, s56, {WS_HT}")
        for ii in range(4):
            wt, hh = ii >> 1, ii & 1
            e(f"s_add_u32 s57, s56, {wt*128 + hh*16*256}")
            e("s_lshl_b32 s59, s58, 11          ; 32lw*64")
            e(f"s_add_u32 m0, s59, {self.G2_RES + wt*8192 + hh*1024}")
            e(f"buffer_load_dwordx4 v20, {s(SRD_WS,4)}, s57 offen sc1 lds")
        e("s_waitcnt vmcnt(12)")
        e(f"s_branch {Lb}")
        self.label(Lw1)
        e("s_cmp_eq_u32 s67, 26")
        e(f"s_cbranch_scc0 {Lr}")
        e("s_waitcnt vmcnt(4)")
        e(f"s_branch {Lb}")
        self.label(Lr)
        e("s_waitcnt vmcnt(0)")
        self.label(Lb)
        e("s_barrier")
        e("s_add_u32 s67, s67, 1")
        e("s_cmp_lt_u32 s67, 28")
        e(f"s_cbranch_scc1 {L}")

    G2_X, G2_Y, G2_ACC = 8, 40, 72
    def g2_frag_reads(self, base, u):
        r = []
        for tt in range(4): r.append(f"ds_read_b128 {v(base + 16 + 4*tt, 4)}, v6 offset:{u*8192 + tt*1024}")
        for dt in range(4):
            for h in range(2):
                r.append(f"ds_read_b64_tr_b16 {v(base + 4*dt + 2*h, 2)}, {v(2+dt)} offset:{u*8192 + h*1024}")
        return r

    def g2_half(self, mf_base, rd_base, rd_u, first=False, reads=True, tail=(), waits=None):
        e = self.e
        rds = self.g2_frag_reads(rd_base, rd_u) if reads else []
        fill = list(rds) + list(tail)
        i = 0; k = 0
        for dt in range(4):
            for tt in range(4):
                a = self.G2_ACC + (dt*4 + tt)*4
                if waits and k in waits: e(waits[k])
                e(f"v_mfma_f32_16x16x32_bf16 {v(a,4)}, {v(mf_base + 4*dt, 4)}, {v(mf_base + 16 + 4*tt, 4)}, {'0' if first else v(a,4)}")
                if i < len(fill): e(fill[i]); i += 1
                k += 1
        while i < len(fill): e(fill[i]); i += 1

    def g2_compute(self):
        e = self.e
        X, Y, STG = self.G2_X, self.G2_Y, self.G2_STG
        self.g2_ids()
        e(f"s_lshr_b32 s58, {s(S_WV)}, 1      ; wd")
        e(f"s_and_b32 s59, {s(S_WV)}, 1       ; wt")
        e("v_lshrrev_b32 v13, 4, v0          ; g")
        e("v_and_b32 v14, 15, v0             ; n")
        e("v_lshrrev_b32 v15, 2, v14         ; r")
        e("v_and_b32 v16, 3, v14             ; c")
        e("v_lshl_add_u32 v17, v13, 3, v15   ; row = 8g + r")
        e("v_and_b32 v18, 1, v13")
        e("v_lshl_or_b32 v20, v18, 2, v15    ; f(row)")
        e("v_lshlrev_b32 v21, 8, v17")
        e("v_lshl_add_u32 v21, v16, 3, v21")
        e("v_add_u32 v21, 16384, v21")
        e("s_lshl_b32 s57, s58, 2            ; 4*wd")
        for dt in range(4):
            e(f"s_add_u32 s56, s57, {dt}")
            e("v_xor_b32 v22, s56, v20")
            e(f"v_lshl_add_u32 {v(2+dt)}, v22, 5, v21")
        e("v_lshlrev_b32 v19, 2, v15         ; 4*(n>>2)")
        e("s_mov_b32 s56, 0x1450")
        e("v_lshrrev_b32 v19, v19, s56")
        e("v_and_b32 v19, 7, v19             ; sigma")
        e("v_lshrrev_b32 v22, 1, v13")
        e("v_lshlrev_b32 v22, 2, v22         ; (g>>1)*4")
        e("v_and_b32 v23, 1, v14")
        e("v_lshl_add_u32 v22, v23, 1, v22")
        e("v_add_u32 v22, v22, v18")
        e("v_xor_b32 v22, v22, v19")
        e("v_lshrrev_b32 v23, 1, v14")
        e("v_lshlrev_b32 v23, 7, v23")
        e("v_lshl_add_u32 v22, v22, 4, v23")
        e("s_lshl_b32 s56, s59, 12           ; 32wt*128")
        e("v_add_u32 v6, s56, v22")
        self.srd(SRD_C, S_B2, D_ * 2)
        e("s_lshl_b32 s56, s61, 8")
        e("s_lshl_b32 s57, s58, 7")
        e("s_add_u32 s56, s56, s57")
        e("v_lshl_add_u32 v7, v13, 3, s56")
        B2 = 200
        for dt in range(4): e(f"buffer_load_dwordx2 {v(B2+2*dt,2)}, v7, {s(SRD_C,4)}, 0 offen offset:{32*dt}")
        e("s_barrier                        ; dep")
        e("s_barrier                        ; B_0")
        self.stamp("g2_loop")
        e("s_mov_b32 s64, 0")
        e(f"s_mov_b32 s62, {STG}")
        e(f"s_mov_b32 s63, {(-3*STG) & 0xffffffff}")
        def adv():
            return ["s_add_u32 s64, s64, 1", "s_cmp_eq_u32 s64, 4"]
        def adv2():
            return [f"v_add_u32 {v(r)}, s65, {v(r)}" for r in range(2, 7)]
        pre = ["s_add_u32 s64, s64, 1", "s_cmp_eq_u32 s64, 4", "s_cselect_b32 s65, s63, s62", "s_cselect_b32 s64, 0, s64"]
        WX = {0: "s_waitcnt lgkmcnt(6)", 4: "s_waitcnt lgkmcnt(8)", 8: "s_waitcnt lgkmcnt(10)", 12: "s_waitcnt lgkmcnt(12)"}
        if self.o.get("g2_fullwait"): WX = {0: "s_waitcnt lgkmcnt(0)"}
        for r in self.g2_frag_reads(X, 0): e(r)
        for p in pre: e(p)
        e("s_waitcnt lgkmcnt(0)")
        self.g2_half(X, Y, 1, first=True, tail=adv2()[:4])
        e(adv2()[4])
        e("s_waitcnt lgkmcnt(0)")
        e("s_barrier                        ; B_1")
        e("s_mov_b32 s67, 0")
        L = self.newlabel("g2c")
        self.label(L)
        for k in range(3):
            self.g2_half(Y, X, 0, tail=pre)
            self.g2_half(X, Y, 1, tail=adv2()[:4], waits=WX)
            e(adv2()[4])
            if k == 2:
                e("s_add_u32 s67, s67, 1"); e("s_cmp_lt_u32 s67, 9")
            e("s_waitcnt lgkmcnt(0)")
            e("s_barrier")
        e(f"s_cbranch_scc1 {L}")
        self.g2_half(Y, None, 0, reads=False)
        self.stamp("g2_loopend")

    def g2_epilogue(self):
        e = self.e
        ACC = self.G2_ACC
        Lk = self.newlabel("g2k")
        e("s_cmp_eq_u32 s69, 0")
        e(f"s_cbranch_scc1 {Lk}")
        for dt in range(4):
            for r in range(8):
                a = ACC + dt*16 + r
                e(f"v_swap_b32 {v(a)}, {v(a+8)}")
        self.label(Lk)
        e("s_xor_b32 s56, s2, 4")
        e("s_lshl_b32 s56, s56, 15")
        e(f"s_lshl_b32 s57, {s(S_WV)}, 13")
        e("s_add_u32 s56, s56, s57")
        e(f"s_add_u32 s62, s56, {WS_EX}")
        e("v_lshlrev_b32 v8, 4, v0")
        for dt in range(4):
            for tk in range(2):
                i = dt*2 + tk
                e(f"s_add_u32 s56, s62, {1024*i}")
                e(f"buffer_store_dwordx4 {v(ACC + dt*16 + 8 + 4*tk, 4)}, v8, {s(SRD_WS,4)}, s56 offen sc1")
        e("v_lshrrev_b32 v13, 4, v0          ; g")
        e("v_and_b32 v14, 15, v0             ; n")
        e("v_lshrrev_b32 v15, 2, v14")
        e("v_and_b32 v16, 3, v14")
        e("v_lshl_add_u32 v17, v13, 2, v15   ; 4g + r")
        e("v_lshlrev_b32 v17, 6, v17")
        e("v_lshl_add_u32 v17, v16, 3, v17")
        e("s_lshl_b32 s56, s59, 13")
        e("s_lshl_b32 s57, s58, 12           ; 64wd*64")
        e("s_add_u32 s56, s56, s57")
        e(f"s_add_u32 s56, s56, {self.G2_RES}")
        e("v_add_u32 v17, s56, v17")
        RS = 168
        for dt in range(4):
            for tk in range(2):
                e(f"ds_read_b64_tr_b16 {v(RS + 2*(2*dt+tk), 2)}, v17 offset:{dt*16*64 + tk*32}")
        e("s_waitcnt vmcnt(0)")
        self.stamp("g2_sent")

    def g2_epilogue2(self):
        e = self.e
        ACC = self.G2_ACC; RS = 168; B2 = 200
        e("s_lshl_b32 s56, s2, 15")
        e(f"s_lshl_b32 s57, {s(S_WV)}, 13")
        e("s_add_u32 s56, s56, s57")
        e(f"s_add_u32 s62, s56, {WS_EX}")
        IN = 136
        for i in range(8):
            e(f"s_add_u32 s56, s62, {1024*i}")
            e(f"buffer_load_dwordx4 {v(IN+4*i,4)}, v8, {s(SRD_WS,4)}, s56 offen sc1")
        self.srd(SRD_A, S_OUT, S_ * D_ * 2)
        e("s_lshl_b32 s56, s60, 7")
        e("s_lshl_b32 s57, s59, 6")
        e("s_add_u32 s56, s56, s57")
        e("s_lshl_b32 s57, s69, 5")
        e("s_add_u32 s56, s56, s57")
        e("v_add_u32 v9, s56, v14")
        e("v_lshlrev_b32 v9, 11, v9")
        e("v_and_b32 v10, 1, v13")
        e("v_lshlrev_b32 v10, 5, v10          ; 16*2 bytes")
        e("v_lshrrev_b32 v11, 1, v13")
        e("v_lshl_add_u32 v10, v11, 4, v10")
        e("v_add_u32 v9, v9, v10")
        e("s_lshl_b32 s56, s61, 8")
        e("s_lshl_b32 s57, s58, 7")
        e("s_add_u32 s63, s56, s57")
        BF = 40
        for dt in range(4):
            self.unpack(BF+4*dt,   B2+2*dt,   0); self.unpack(BF+4*dt+1, B2+2*dt,   1)
            self.unpack(BF+4*dt+2, B2+2*dt+1, 0); self.unpack(BF+4*dt+3, B2+2*dt+1, 1)
        e("s_waitcnt vmcnt(0) lgkmcnt(0)")
        k = 0
        for tk in range(2):
            for dp in range(2):
                O = 56 + 4*(k & 1); k += 1
                for dd in range(2):
                    dt = 2*dp + dd
                    i = dt*2 + tk
                    a = ACC + dt*16 + 4*tk
                    T = 64
                    r0 = RS + 2*i
                    self.unpack(T, r0, 0); self.unpack(T+1, r0, 1); self.unpack(T+2, r0+1, 0); self.unpack(T+3, r0+1, 1)
                    for h in range(2):
                        e(f"v_pk_add_f32 {v(a+2*h,2)}, {v(a+2*h,2)}, {v(IN+4*i+2*h,2)}")
                        e(f"v_pk_add_f32 {v(a+2*h,2)}, {v(a+2*h,2)}, {v(BF+4*dt+2*h,2)}")
                        e(f"v_pk_add_f32 {v(a+2*h,2)}, {v(a+2*h,2)}, {v(T+2*h,2)}")
                        e(f"v_cvt_pk_bf16_f32 {v(O+2*dd+h)}, {v(a+2*h)}, {v(a+2*h+1)}")
                e(f"v_permlane16_swap_b32 {v(O)}, {v(O+2)}")
                e(f"v_permlane16_swap_b32 {v(O+1)}, {v(O+3)}")
                e(f"s_add_u32 s56, s63, {tk*16*2048 + dp*64}")
                e(f"buffer_store_dwordx4 {v(O,4)}, v9, {s(SRD_A,4)}, s56 offen")

    def g2(self):
        e = self.e
        Lc = self.newlabel("g2comp"); Le = self.newlabel("g2end"); Lf = self.newlabel("g2fin")
        e(f"s_cmp_lt_u32 {s(S_WV)}, 4")
        e(f"s_cbranch_scc1 {Lc}")
        self.g2_loader()
        e(f"s_branch {Le}")
        self.label(Lc)
        self.g2_compute()
        self.g2_epilogue()
        self.label(Le)
        e("s_barrier")
        L = self.newlabel("g2sig")
        e(f"s_cmp_lg_u32 {s(S_WV)}, 4")
        e(f"s_cbranch_scc1 {L}")
        self.publish(6)
        L0 = self.newlabel("g2ep")
        e("s_cmp_lg_u32 s2, 0")
        e(f"s_cbranch_scc1 {L0}")
        e(f"v_mov_b32 v254, {s(S_EP)}")
        e(f"v_mov_b32 v255, {WS_EPOCH}")
        e("s_mov_b64 exec, 1")
        e(f"buffer_store_dword v254, v255, {s(SRD_WS,4)}, 0 offen sc1")
        e("s_mov_b64 exec, -1")
        self.label(L0)
        e("s_xor_b32 s56, s2, 4")
        e("v_mov_b32 v40, s56")
        self.flag_addr(40, 26)
        if not self.o.get("nosync"): self.poll_addr(6, 40, 41)
        self.label(L)
        e("s_barrier")
        self.stamp("g2_got")
        e(f"s_cmp_ge_u32 {s(S_WV)}, 4")
        e(f"s_cbranch_scc1 {Lf}")
        self._g2_st = 0
        self.g2_epilogue2()
        self.label(Lf)

    def finish(self):
        self.label("L_end")
        self.e("s_endpgm")

def wrap(body, lds=LDS_BYTES):
    hdr = f"""; Kernarg layout (112 bytes, ptrs only, base s[0:1]): q,k,v,shift_k,ssm_k,ssm_D,B_x,w1,b1,w2,b2,out,debug,ws
; @launch grid=(256,1,1) block=(512,1,1) lds={lds}
.amdgcn_target "amdgcn-amd-amdhsa--gfx950"
.text
.globl {KNAME}
.p2align 8
.type {KNAME},@function
{KNAME}:
"""
    tail = f"""
.section .rodata,"a"
.p2align 6
.amdhsa_kernel {KNAME}
  .amdhsa_next_free_vgpr 256
  .amdhsa_next_free_sgpr 102
  .amdhsa_accum_offset 256
  .amdhsa_group_segment_fixed_size 0
  .amdhsa_kernarg_size 112
  .amdhsa_user_sgpr_count 2
  .amdhsa_user_sgpr_kernarg_segment_ptr 1
  .amdhsa_system_sgpr_workgroup_id_x 1
  .amdhsa_float_denorm_mode_32 3
.end_amdhsa_kernel
"""
    return hdr + body + tail

def build(opts, ret_g=False):
    g = G(opts)
    g.prologue()
    g.stamp("start")
    ph = opts["phases"]
    if "p" in ph:
        g.phase_p()
    else:
        g.epoch_ready()
    if "c" in ph:
        g.phase_c()
        g.stamp("c_end")
        g.signal(3, pf_w2=opts.get("prefetch_w", True))
        g.stamp("c_sig")
    if "g1" in ph:
        g.g1()
        g.stamp("g1_end")
    if "g2" in ph:
        g.g2()
        g.stamp("g2_end")
    g.stamp_flush()
    g.finish()
    src = wrap(g.finalize())
    return (src, g) if ret_g else src

if __name__ == "__main__":
    out = build(dict(phases=["p", "c", "g1", "g2"]))
    path = sys.argv[1] if len(sys.argv) > 1 else "sequential_preLN__ssm_conv_h3__mixer_channel_mlp__prompt.s"
    open(path, "w").write(out)
    print("wrote", path, len(out))
```

```python
import gen, sys
sel = [("start",0),("p_sig",0),("p_stsig",4),("c_start",0),("c_loop",0),("c_loopend",0),("c_xjob",4),("c_sig",0),("g1_loop",0),("g1_loopend",0),("g1_epi",0),("g2_b3",4),("g2_loopend",0),("g2_got",0),("g2_end",0)]
opts = dict(phases=["p","c","g1","g2"], stamps=True, dbg_sel=sel)
if len(sys.argv) > 2: opts.update(eval(sys.argv[2]))
open(sys.argv[1], "w").write(gen.build(opts))
print([n for n,_ in sel])
```

```python
import sys
from asmb import Asm, v, s

KNAME = "sequential_preLN__ssm_conv_h3__mixer_channel_mlp__prompt_kernel"
S_, D_, F_ = 2048, 1024, 3584

WS_FLAGS = 0
WS_EPOCH = 32768
WS_ST    = 65536
WS_TSP   = 131072
WS_CSP   = 393216
WS_STAMP = 786432
WS_XR    = 1 << 20
WS_XT    = 5 << 20
WS_HT    = 9 << 20
WS_HM    = 13 << 20
WS_EX    = 28 << 20
WS_SIZE  = 64 << 20

S_X, S_K, S_V, S_SH, S_SSMK, S_SSMD, S_BX, S_W1 = 8, 10, 12, 14, 16, 18, 20, 22
S_B1, S_W2, S_B2, S_OUT = 24, 26, 28, 30
S_DBG, S_WS = 32, 34
SRD_WS, SRD_A, SRD_B, SRD_C = 36, 40, 44, 48
S_WV, S_XI, S_J, S_EP = 52, 53, 54, 55

LDS_BYTES = 163840

class G(Asm):
    def __init__(self, opts):
        super().__init__()
        self.o = opts
        self.stamp_names = []
        self.nt = " nt" if opts.get("nt", True) else ""

    def srd(self, dst, ptr, nbytes):
        self.e(f"s_mov_b32 {s(dst)}, {s(ptr)}")
        self.e(f"s_mov_b32 {s(dst+1)}, {s(ptr+1)}")
        self.e(f"s_mov_b32 {s(dst+2)}, {nbytes}")
        self.e(f"s_mov_b32 {s(dst+3)}, 0x20000")

    def stamp(self, name):
        if not self.o.get("stamps"): return
        if name in self.stamp_names: i = self.stamp_names.index(name)
        else:
            i = len(self.stamp_names)
            assert i < 32
            self.stamp_names.append(name)
        self.e(f"{'s_memtime' if self.o.get('cyc') else 's_memrealtime'} s[100:101]")
        self.e("s_waitcnt lgkmcnt(0)")
        self.e(f"v_writelane_b32 v253, s100, {i}")
    def tick(self, i): pass
    def tick_flush(self, n): pass

    def stamp_flush_debug(self):
        e = self.e
        sel = self.o["dbg_sel"]
        self.srd(SRD_A, S_DBG, 256)
        for wave in (0, 4):
            L = self.newlabel("dbgf")
            e(f"s_cmp_lg_u32 {s(S_WV)}, {wave}")
            e(f"s_cbranch_scc1 {L}")
            for i, (nm, w) in enumerate(sel):
                if w != wave: continue
                idx = self.stamp_names.index(nm)
                e(f"v_readlane_b32 s98, v253, {idx}")
                if nm == "start": e("s_not_b32 s98, s98")
                e("v_mov_b32 v254, s98")
                e(f"v_mov_b32 v255, {4*i}")
                e("s_mov_b64 exec, 1")
                e(f"buffer_atomic_umax v254, v255, {s(SRD_A,4)}, 0 offen")
                e("s_mov_b64 exec, -1")
            self.label(L)

    def stamp_flush(self):
        if not self.o.get("stamps"): return
        if self.o.get("dbg_sel"): return self.stamp_flush_debug()
        L = self.newlabel("tf")
        self.e(f"s_and_b32 s98, {s(S_WV)}, 3")
        self.e("s_cmp_lg_u32 s98, 0")
        self.e(f"s_cbranch_scc1 {L}")
        self.e(f"s_lshl_b32 s98, s2, 8")
        self.e(f"s_lshl_b32 s99, {s(S_WV)}, 5")
        self.e("s_add_u32 s98, s98, s99")
        self.e(f"s_add_u32 s98, s98, {WS_STAMP}")
        self.e("v_lshlrev_b32 v255, 2, v0")
        self.e("v_add_u32 v255, s98, v255")
        self.e("s_mov_b32 exec_hi, 0")
        self.e(f"buffer_store_dword v253, v255, {s(SRD_WS,4)}, 0 offen")
        self.e("s_mov_b64 exec, -1")
        self.label(L)

    def prologue(self):
        e = self.e
        e("s_cmp_ge_u32 s2, 256")
        e("s_cbranch_scc1 L_end")
        e("s_load_dwordx16 s[8:23], s[0:1], 0")
        e("s_load_dwordx8 s[24:31], s[0:1], 64")
        e("s_load_dwordx4 s[32:35], s[0:1], 96")
        if self.o.get("code_pf", True):
            e("s_getpc_b64 s[56:57]")
            self.label("L_pc")
            e(f"s_sub_u32 s56, s56, L_pc-{KNAME}")
            e("s_subb_u32 s57, s57, 0")
            e("v_and_b32 v1, 255, v0")
            e("v_lshlrev_b32 v1, 7, v1")
            e("v_lshrrev_b32 v2, 8, v0")
            e("v_lshl_add_u32 v1, v2, 6, v1")
            e(f"v_min_u32 v1, L_end-{KNAME}, v1")
            e("global_load_dword v245, v1, s[56:57]")
        e("v_lshrrev_b32 v1, 6, v0")
        e(f"v_readfirstlane_b32 {s(S_WV)}, v1")
        e("v_and_b32 v0, 63, v0")
        e(f"s_and_b32 {s(S_XI)}, s2, 7")
        e(f"s_lshr_b32 {s(S_J)}, s2, 3")
        e(f"v_mov_b32 v2, {self.C_CNT}")
        e("v_mov_b32 v3, 0")
        e("v_lshl_add_u32 v2, v0, 2, v2")
        e("ds_write_b32 v2, v3")
        e("s_waitcnt lgkmcnt(0)")
        self.srd(SRD_WS, S_WS, WS_SIZE)
        e(f"s_load_dword {s(S_EP)}, {s(S_WS,2)}, {WS_EPOCH}")

    def lds_count(self, idx, target, then):
        e = self.e
        L = self.newlabel("cnt")
        e(f"v_mov_b32 v250, {self.C_CNT + 4*idx}")
        e("v_mov_b32 v251, 1")
        e("s_mov_b64 exec, 1")
        e("ds_add_rtn_u32 v252, v250, v251")
        e("s_waitcnt lgkmcnt(0)")
        e("v_readfirstlane_b32 s56, v252")
        e("s_mov_b64 exec, -1")
        if then is not None:
            e(f"s_cmp_eq_u32 s56, {target-1}")
            e(f"s_cbranch_scc0 {L}")
            then()
            self.label(L)

    def lds_wait(self, idx, target):
        e = self.e
        L = self.newlabel("lw"); Lx = self.newlabel("lwx")
        e(f"v_mov_b32 v250, {self.C_CNT + 4*idx}")
        e("s_mov_b32 s57, 0x400000")
        self.label(L)
        e("ds_read_b32 v251, v250")
        e("s_sub_u32 s57, s57, 1")
        e("s_cmp_eq_u32 s57, 0")
        e(f"s_cbranch_scc1 {Lx}")
        e("s_waitcnt lgkmcnt(0)")
        e("v_readfirstlane_b32 s56, v251")
        e(f"s_cmp_lt_u32 s56, {target}")
        e(f"s_cbranch_scc1 {L}")
        self.label(Lx)
        e("s_waitcnt lgkmcnt(0)")

    def epoch_ready(self):
        e = self.e
        e("s_waitcnt lgkmcnt(0)")
        e(f"s_and_b32 {s(S_EP)}, {s(S_EP)}, 0xfffffff0")
        e(f"s_add_u32 {s(S_EP)}, {s(S_EP)}, 16")

    def signal(self, p, wave=0, pf_w2=False):
        e = self.e
        e("s_waitcnt vmcnt(0) lgkmcnt(0)")
        e("s_barrier")
        L = self.newlabel("sig")
        e(f"s_cmp_lg_u32 {s(S_WV)}, {wave}")
        e(f"s_cbranch_scc1 {L}")
        self.publish(p)
        self.label(L)
        if pf_w2:
            L = self.newlabel("sgp")
            e(f"s_cmp_ge_u32 {s(S_WV)}, 4")
            e(f"s_cbranch_scc1 {L}")
            self.prefetch_w(2, S_WV)
            self.label(L)

    def poll_all(self, p, t0=248, sleep=0, arr=0):
        e = self.e
        L = self.newlabel("poll"); Lx = self.newlabel("pollx")
        e(f"s_add_u32 s56, {s(S_EP)}, {p}")
        e(f"v_lshlrev_b32 {v(t0+4)}, 7, v0")
        if arr: e(f"v_add_u32 {v(t0+4)}, {8192*arr}, {v(t0+4)}")
        e("s_mov_b32 s57, 0x100000")
        self.label(L)
        if sleep: e(f"s_sleep {sleep}")
        e(f"buffer_load_dwordx4 {v(t0,4)}, {v(t0+4)}, {s(SRD_WS,4)}, 0 offen sc1")
        e("s_sub_u32 s57, s57, 1")
        e("s_cmp_eq_u32 s57, 0")
        e(f"s_cbranch_scc1 {Lx}")
        e("s_waitcnt vmcnt(0)")
        for i in range(4):
            e(f"v_subrev_u32 {v(t0+i)}, s56, {v(t0+i)}")
        e(f"v_max_u32 {v(t0)}, {v(t0)}, {v(t0+1)}")
        e(f"v_max3_u32 {v(t0)}, {v(t0)}, {v(t0+2)}, {v(t0+3)}")
        e(f"v_cmp_le_u32 vcc, 16, {v(t0)}")
        e(f"s_cbranch_vccnz {L}")
        self.label(Lx)
        e("s_waitcnt vmcnt(0)")

    def poll_group(self, p, t0=248, sleep=0):
        e = self.e
        L = self.newlabel("pollg"); Lx = self.newlabel("pollgx")
        e(f"s_add_u32 s56, {s(S_EP)}, {p}")
        e(f"v_and_b32 {v(t0+4)}, 7, v0")
        e(f"v_lshlrev_b32 {v(t0+4)}, 7, {v(t0+4)}")
        e(f"s_lshl_b32 s57, {s(S_XI)}, 10")
        e(f"v_add_u32 {v(t0+4)}, s57, {v(t0+4)}")
        e("s_mov_b32 s57, 0x100000")
        self.label(L)
        if sleep: e(f"s_sleep {sleep}")
        e("s_mov_b64 exec, 0xff")
        e(f"buffer_load_dwordx4 {v(t0,4)}, {v(t0+4)}, {s(SRD_WS,4)}, 0 offen sc1")
        e("s_sub_u32 s57, s57, 1")
        e("s_cmp_eq_u32 s57, 0")
        e(f"s_cbranch_scc1 {Lx}")
        e("s_waitcnt vmcnt(0)")
        for i in range(4):
            e(f"v_subrev_u32 {v(t0+i)}, s56, {v(t0+i)}")
        e(f"v_max_u32 {v(t0)}, {v(t0)}, {v(t0+1)}")
        e(f"v_max3_u32 {v(t0)}, {v(t0)}, {v(t0+2)}, {v(t0+3)}")
        e(f"v_cmp_le_u32 vcc, 16, {v(t0)}")
        e(f"s_cbranch_vccnz {L}")
        self.label(Lx)
        e("s_waitcnt vmcnt(0)")
        e("s_mov_b64 exec, -1")

    def wait_all(self, p, wave=0):
        e = self.e
        if self.o.get("nosync"):
            e("s_barrier"); return
        L = self.newlabel("wa")
        e(f"s_cmp_lg_u32 {s(S_WV)}, {wave}")
        e(f"s_cbranch_scc1 {L}")
        self.poll_all(p)
        self.label(L)
        e("s_barrier")

    def allreduce_add(self, regs, tmp):
        e = self.e
        for mod in ("quad_perm:[1,0,3,2]", "quad_perm:[2,3,0,1]", "row_half_mirror", "row_mirror"):
            for r in regs:
                e(f"v_add_f32_dpp {v(r)}, {v(r)}, {v(r)} {mod} row_mask:0xf bank_mask:0xf")
        for op in ("v_permlane16_swap_b32", "v_permlane32_swap_b32"):
            for r, t in zip(regs, tmp): e(f"v_mov_b32 {v(t)}, {v(r)}")
            for r, t in zip(regs, tmp): e(f"{op} {v(t)}, {v(r)}")
            for r, t in zip(regs, tmp): e(f"v_add_f32 {v(r)}, {v(r)}, {v(t)}")

    def round_bf16(self, dst, src):
        self.e(f"v_cvt_pk_bf16_f32 {v(dst)}, {v(src)}, {v(src)}")
        self.e(f"v_and_b32 {v(dst)}, 0xffff0000, {v(dst)}")

    C_HC, C_HSTR, C_HCH = 0, 4160, 16640
    C_XR, C_XCH = 66560, 4608
    C_ST = 84992
    C_EX = 101376
    C_XT = 134144
    C_CNT = 150528

    def unpack(self, dst, src, hi):
        if hi: self.e(f"v_and_b32 {v(dst)}, 0xffff0000, {v(src)}")
        else:  self.e(f"v_lshlrev_b32 {v(dst)}, 16, {v(src)}")

    def chC(self, dst):
        e = self.e
        e(f"s_and_b32 s58, {s(S_WV)}, 3")
        e(f"s_lshl_b32 s56, {s(S_XI)}, 7")
        e(f"s_lshl_b32 s57, {s(S_J)}, 2")
        e("s_add_u32 s56, s56, s57")
        e(f"s_add_u32 {s(dst)}, s56, s58")

    def lds_transpose_setup(self):
        e = self.e
        e(f"s_lshl_b32 s56, {s(S_WV)}, 12")
        e(f"s_add_u32 s56, s56, {self.C_EX}")
        e("v_xor_b32 v126, v1, v2")
        e("v_lshlrev_b32 v126, 4, v126")
        e("v_lshl_add_u32 v126, v2, 9, v126")
        e("v_add_u32 v126, s56, v126")
        e("v_lshrrev_b32 v127, 5, v0")
        e("v_lshl_add_u32 v128, v1, 7, s56")
        for i in range(4):
            e(f"v_add_u32 v129, {2*i}, v127")
            e("v_xor_b32 v129, v129, v2")
            e(f"v_lshl_add_u32 {v(130+i)}, v129, 4, v128")

    def h_loads(self):
        e = self.e
        e("s_lshl_b32 s56, s63, 12")
        e(f"s_add_u32 {s(SRD_C)}, {s(S_SSMK)}, s56")
        e(f"s_addc_u32 {s(SRD_C+1)}, {s(S_SSMK+1)}, 0")
        e(f"s_mov_b32 {s(SRD_C+2)}, 4096")
        e(f"s_mov_b32 {s(SRD_C+3)}, 0x20000")
        e("v_lshlrev_b32 v8, 4, v0")
        e("v_subrev_u32 v9, 32, v8")
        for it in range(5):
            if it: e(f"v_add_u32 v9, 1024, v9")
            e(f"buffer_load_dwordx4 {v(140+6*it,4)}, v9, {s(SRD_C,4)}, 0 offen{self.nt}")
            e(f"buffer_load_dwordx2 {v(140+6*it+4,2)}, v9, {s(SRD_C,4)}, 0 offen offset:16{self.nt}")

    def h_build(self, younger=0):
        e = self.e
        e(f"s_mul_i32 s56, s58, {self.C_HCH}")
        e("v_add_u32 v8, s56, v8")
        T = 172
        for it in range(5):
            a = 140 + 6*it
            e(f"s_waitcnt vmcnt({2*(4-it) + younger})")
            if it == 4: e("s_mov_b64 exec, 15")
            off = 1024 * it
            e(f"ds_write_b128 v8, {v(a,4)} offset:{self.C_HC + off}")
            for d in range(4): e(f"v_mov_b32 {v(T+d)}, {v(a+1+d)}")
            e(f"ds_write_b128 v8, {v(T,4)} offset:{self.C_HC + 2*self.C_HSTR + off}")
            for d in range(4): e(f"v_alignbit_b32 {v(T+4+d)}, {v(a+d+1)}, {v(a+d)}, 16")
            e(f"ds_write_b128 v8, {v(T+4,4)} offset:{self.C_HC + 1*self.C_HSTR + off}")
            for d in range(4): e(f"v_alignbit_b32 {v(T+8+d)}, {v(a+d+2)}, {v(a+d+1)}, 16")
            e(f"ds_write_b128 v8, {v(T+8,4)} offset:{self.C_HC + 3*self.C_HSTR + off}")
            T = 184 if T == 172 else 172
        e("s_mov_b64 exec, -1")

    def phase_p(self):
        e = self.e
        Lb = self.newlabel("p_b"); Le = self.newlabel("p_e")
        self.chC(63)
        e("v_lshrrev_b32 v1, 3, v0           ; pbk")
        e("v_and_b32 v2, 7, v0               ; cq")
        if self.o.get("p_rot"):
            e(f"s_add_u32 s56, {s(S_XI)}, {s(S_J)}")
            e("s_and_b32 s56, s56, 7")
            e("s_lshl_b32 s56, s56, 7")
        else:
            e(f"s_lshl_b32 s56, {s(S_XI)}, 7")
        e("s_lshl_b32 s57, s58, 5")
        e("s_add_u32 s59, s56, s57            ; 128cb + 32w")
        e("v_lshl_add_u32 v3, v2, 2, s59      ; ch0")
        e(f"s_lshl_b32 s56, {s(S_J)}, 6")
        e("v_lshl_add_u32 v4, v1, 3, s56")
        e("v_lshlrev_b32 v5, 11, v4")
        e("v_lshl_add_u32 v5, v3, 1, v5")
        e(f"s_cmp_ge_u32 {s(S_WV)}, 4")
        e(f"s_cbranch_scc1 {Lb}")
        self.srd(SRD_A, S_K, S_ * D_ * 2)
        self.srd(SRD_B, S_V, S_ * D_ * 2)
        self.srd(SRD_C, S_SH, D_ * 8)
        KD, VD, WD = 10, 32, 48
        e("v_subrev_u32 v120, 6144, v5")
        for i in range(1, 6): e(f"v_add_u32 {v(120+i)}, {4096*i}, v120")
        for i in range(11):
            e(f"buffer_load_dwordx2 {v(KD+2*i,2)}, {v(120+i//2)}, {s(SRD_A,4)}, 0 offen offset:{2048*(i&1)}{self.nt}")
        e("v_lshlrev_b32 v7, 3, v3            ; ch0*8")
        e(f"buffer_load_dwordx4 {v(WD,4)}, v7, {s(SRD_C,4)}, 0 offen")
        e(f"buffer_load_dwordx4 {v(WD+4,4)}, v7, {s(SRD_C,4)}, 0 offen offset:16")
        for p in range(8):
            i = p + 3
            e(f"buffer_load_dwordx2 {v(VD+2*p,2)}, {v(120+i//2)}, {s(SRD_B,4)}, 0 offen offset:{2048*(i&1)}{self.nt}")
        e("s_barrier")
        e("v_mov_b32 v8, 0"); e("v_mov_b32 v9, 0")
        e(f"s_mul_i32 s56, s58, {self.C_XCH}")
        e(f"s_add_u32 s56, s56, {self.C_XR + 4096}")
        e("v_lshl_add_u32 v6, v0, 3, s56")
        e("ds_write_b64 v6, v[8:9]")
        self.lds_transpose_setup()
        e("v_lshlrev_b32 v6, 4, v2")
        e(f"s_lshl_b32 s56, {s(S_J)}, 7")
        e("s_sub_u32 s56, 4080, s56")
        e("v_sub_u32 v6, s56, v6")
        e("v_add_u32 v7, s59, v1")
        e("v_lshl_add_u32 v6, v7, 12, v6")
        e(f"v_add_u32 v6, {WS_XR}, v6")
        for c in range(1, 4): e(f"s_mov_b32 {s(64+c)}, {8*4096*c}")
        e("s_mov_b32 s64, 0")
        WP, KP, R, VP, O = 56, 64, 86, 102, 104
        e("s_waitcnt vmcnt(8)")
        for cp in range(2):
            for j in range(4):
                self.unpack(WP + 2*j,     WD + 2*(2*cp)   + (j >> 1), j & 1)
                self.unpack(WP + 2*j + 1, WD + 2*(2*cp+1) + (j >> 1), j & 1)
            for i in range(11):
                self.unpack(KP + 2*i,     KD + 2*i + cp, 0)
                self.unpack(KP + 2*i + 1, KD + 2*i + cp, 1)
            if cp == 0: e("s_waitcnt vmcnt(0)")
            for p in range(8):
                r = R + 2*p
                e(f"v_pk_mul_f32 {v(r,2)}, {v(KP+2*(p+3),2)}, {v(WP,2)}")
                for j in range(1, 4):
                    e(f"v_pk_fma_f32 {v(r,2)}, {v(KP+2*(p+3-j),2)}, {v(WP+2*j,2)}, {v(r,2)}")
                self.unpack(VP,     VD + 2*p + cp, 0)
                self.unpack(VP + 1, VD + 2*p + cp, 1)
                e(f"v_pk_mul_f32 {v(r,2)}, {v(r,2)}, {v(VP,2)}")
            for cc in range(2):
                c = 2*cp + cc
                for j in range(4):
                    e(f"v_cvt_pk_bf16_f32 {v(O+4*c+j)}, {v(R+2*(7-2*j)+cc)}, {v(R+2*(6-2*j)+cc)}")
                e(f"ds_write_b128 v126, {v(O+4*c,4)} offset:{128*c}")
        e("s_waitcnt lgkmcnt(0)")
        for i in range(4): e(f"ds_read_b128 {v(O+4*i,4)}, {v(130+i)} offset:{1024*i}")
        for i in range(4):
            e(f"s_waitcnt lgkmcnt({3-i})")
            e(f"buffer_store_dwordx4 {v(O+4*i,4)}, v6, {s(SRD_WS,4)}, {s(64+i)} offen sc1")
        self.stamp("p_stored")
        e("s_and_b32 s56, s63, 0xfffffffe")
        e("s_lshl_b32 s56, s56, 1")
        e(f"s_load_dword s69, {s(S_SSMD,2)}, s56")
        self.epoch_ready()
        e("s_waitcnt vmcnt(0)")
        self.lds_count(0, 4, lambda: self.publish(1))
        self.stamp("p_sig")
        e(f"s_branch {Le}")
        self.label(Lb)
        self.h_loads()
        self.srd(SRD_A, S_X, S_ * D_ * 2)
        XD, SD = 10, 26
        e("v_mov_b32 v120, v5")
        for i in range(1, 4): e(f"v_add_u32 {v(120+i)}, {4096*i}, v5")
        for p in range(8):
            e(f"buffer_load_dwordx2 {v(XD+2*p,2)}, {v(120+p//2)}, {s(SRD_A,4)}, 0 offen offset:{2048*(p&1)}{self.nt}")
        e("s_lshl_b32 s56, s2, 3")
        e("s_lshl_b32 s57, s58, 1")
        e("s_add_u32 s62, s56, s57            ; R0 = 8w + 2w'")
        e("s_lshl_b32 s56, s62, 11")
        e("v_lshl_add_u32 v6, v0, 4, s56")
        for i in range(4):
            e(f"buffer_load_dwordx4 {v(SD+4*i,4)}, v6, {s(SRD_A,4)}, 0 offen offset:{1024*i}{self.nt}")
        e("s_barrier")
        e("s_and_b32 s56, s63, 0xfffffffe")
        e("s_lshl_b32 s56, s56, 1")
        e(f"s_load_dword s69, {s(S_SSMD,2)}, s56")
        self.h_build(younger=12)
        e("s_waitcnt lgkmcnt(0)")
        self.lds_count(1, 4, None)
        self.stamp("p_hb")
        self.lds_transpose_setup()
        e("v_lshlrev_b32 v6, 4, v2")
        e(f"s_lshl_b32 s56, {s(S_J)}, 7")
        e("v_add_u32 v6, s56, v6")
        e("v_add_u32 v7, s59, v1")
        e("v_lshl_add_u32 v6, v7, 12, v6")
        e(f"v_add_u32 v6, {WS_XT}, v6")
        for c in range(1, 4): e(f"s_mov_b32 {s(64+c)}, {8*4096*c}")
        e("s_mov_b32 s64, 0")
        e("s_mov_b32 s60, 0x05040100")
        e("s_mov_b32 s61, 0x07060302")
        O = 104
        e("s_waitcnt vmcnt(4)")
        for c in range(4):
            sel = s(61) if c & 1 else s(60)
            for j in range(4):
                e(f"v_perm_b32 {v(O+4*c+j)}, {v(XD+2*(2*j+1)+(c>>1))}, {v(XD+2*(2*j)+(c>>1))}, {sel}")
            e(f"ds_write_b128 v126, {v(O+4*c,4)} offset:{128*c}")
        e("s_waitcnt lgkmcnt(0)")
        for i in range(4): e(f"ds_read_b128 {v(O+4*i,4)}, {v(130+i)} offset:{1024*i}")
        for i in range(4):
            e(f"s_waitcnt lgkmcnt({3-i})")
            e(f"buffer_store_dwordx4 {v(O+4*i,4)}, v6, {s(SRD_WS,4)}, {s(64+i)} offen sc1")
        U = 44
        e("s_waitcnt vmcnt(4)")
        for r in range(2):
            for d in range(8):
                self.unpack(U+16*r+2*d, SD+8*r+d, 0)
                self.unpack(U+16*r+2*d+1, SD+8*r+d, 1)
        SUM = [80, 81]; TMP = [82, 83]; VAR = [86, 87]
        for r in range(2):
            b = U + 16*r
            e(f"v_pk_add_f32 v[84:85], {v(b,2)}, {v(b+2,2)}")
            for d in range(2, 8):
                e(f"v_pk_add_f32 v[84:85], v[84:85], {v(b+2*d,2)}")
            e(f"v_add_f32 {v(SUM[r])}, v84, v85")
        self.allreduce_add(SUM, TMP)
        for r in range(2):
            e(f"v_mul_f32 {v(SUM[r])}, 0x3a800000, {v(SUM[r])}")
        for r in range(2):
            b = U + 16*r
            for d in range(0, 16, 2):
                e(f"v_sub_f32 {v(b+d)}, {v(b+d)}, {v(SUM[r])}")
                e(f"v_sub_f32 {v(b+d+1)}, {v(b+d+1)}, {v(SUM[r])}")
            e(f"v_pk_mul_f32 v[84:85], {v(b,2)}, {v(b,2)}")
            for d in range(1, 8):
                e(f"v_pk_fma_f32 v[84:85], {v(b+2*d,2)}, {v(b+2*d,2)}, v[84:85]")
            e(f"v_add_f32 {v(VAR[r])}, v84, v85")
        self.allreduce_add(VAR, TMP)
        ST = 88
        for r in range(2):
            e(f"v_mul_f32 {v(VAR[r])}, 0x3a800000, {v(VAR[r])}")
            self.round_bf16(VAR[r], VAR[r])
            e(f"v_add_f32 {v(VAR[r])}, 0x3727c5ac, {v(VAR[r])}")
            self.round_bf16(VAR[r], VAR[r])
            e(f"v_sqrt_f32 {v(VAR[r])}, {v(VAR[r])}")
            self.round_bf16(VAR[r], VAR[r])
            e(f"v_rcp_f32 {v(ST+2*r+1)}, {v(VAR[r])}")
            self.round_bf16(ST + 2*r, SUM[r])
        e("s_lshl_b32 s56, s62, 3")
        e(f"s_add_u32 s56, s56, {WS_ST}")
        e("v_mov_b32 v6, s56")
        e("s_mov_b64 exec, 1")
        e(f"buffer_store_dwordx4 {v(ST,4)}, v6, {s(SRD_WS,4)}, 0 offen sc1")
        e("s_mov_b64 exec, -1")
        self.stamp("p_stored")
        self.epoch_ready()
        e("s_waitcnt vmcnt(0)")
        self.lds_count(2, 4, lambda: self.publish(1, arr=1))
        self.stamp("p_sig")
        self.label(Le)

    def publish(self, p, arr=0):
        e = self.e
        e(f"s_add_u32 s56, {s(S_EP)}, {p}")
        e("v_mov_b32 v254, s56")
        e(f"s_lshl_b32 s57, {s(S_XI)}, 10")
        e(f"s_lshr_b32 s56, {s(S_J)}, 2")
        e("s_lshl_b32 s56, s56, 7")
        e("s_add_u32 s57, s57, s56")
        e(f"s_and_b32 s56, {s(S_J)}, 3")
        e("s_lshl_b32 s56, s56, 2")
        e("s_add_u32 s57, s57, s56")
        if arr: e(f"s_add_u32 s57, s57, {8192*arr}")
        e("v_mov_b32 v255, s57")
        e("s_mov_b64 exec, 1")
        e(f"buffer_store_dword v254, v255, {s(SRD_WS,4)}, 0 offen sc1")
        e("s_mov_b64 exec, -1")

    def phase_c(self):
        e = self.e
        Lh = self.newlabel("c_help"); Lj = self.newlabel("c_join"); Lep = self.newlabel("c_epi")
        e(f"s_cmp_ge_u32 {s(S_WV)}, 4")
        e(f"s_cbranch_scc1 {Lh}")
        self.chC(63)
        e("v_lshlrev_b32 v1, 4, v0            ; lane*16")
        Lp = self.newlabel("c_p"); Lp2 = self.newlabel("c_p2")
        e(f"s_cmp_eq_u32 {s(S_WV)}, 0")
        e(f"s_cbranch_scc0 {Lp}")
        if not self.o.get("nosync"): self.poll_group(1, sleep=self.o.get("g_sleep", 2))
        self.lds_count(4, 1, None)
        e(f"s_branch {Lp2}")
        self.label(Lp)
        self.lds_wait(4, 1)
        self.label(Lp2)
        self.stamp("c_start")
        e("s_lshl_b32 s56, s63, 12")
        e(f"s_add_u32 s60, s56, {WS_XR}")
        e(f"s_mul_i32 s56, s58, {self.C_XCH}")
        e(f"s_add_u32 m0, s56, {self.C_XR}")
        for i in range(4):
            e(f"buffer_load_dwordx4 v1, {s(SRD_WS,4)}, s60 offen sc1 lds")
            if i < 3: e("s_add_u32 m0, m0, 1024"); e("s_add_u32 s60, s60, 1024")
        e("v_and_b32 v2, 15, v0               ; n / m")
        e("v_lshrrev_b32 v3, 4, v0            ; g / rho")
        e("v_add_u32 v6, 1, v2")
        e("v_and_b32 v7, 3, v6")
        e(f"v_mul_u32_u24 v7, {self.C_HSTR}, v7")
        e("v_and_b32 v6, 0x1c, v6")
        e("v_lshl_add_u32 v7, v6, 1, v7")
        e("v_lshl_add_u32 v7, v3, 4, v7")
        e(f"s_mul_i32 s56, s58, {self.C_HCH}")
        e(f"s_add_u32 s56, s56, {self.C_HC}")
        e("v_add_u32 v8, s56, v7              ; v8 = A base")
        e("v_lshlrev_b32 v6, 5, v2")
        e("v_lshlrev_b32 v7, 4, v3")
        e("v_sub_u32 v6, v7, v6")
        e(f"s_mul_i32 s56, s58, {self.C_XCH}")
        e(f"s_add_u32 s56, s56, {self.C_XR + 480}")
        e("v_add_u32 v9, s56, v6              ; v9 = B base")
        self.lds_wait(1, 4)
        e("s_waitcnt vmcnt(0)")
        if self.o.get("tlb_touch", False): self.tlb_touch()
        if self.o.get("prefetch_w", True): self.prefetch_w(1, 58)
        self.stamp("c_loop")
        ACC = 10
        FA = [42, 106]; FB = [74, 138]
        def reads(st, tt):
            r = []
            for i in range(8):
                r.append(f"ds_read_b128 {v(FB[st]+4*i,4)}, v9 offset:{512*(7-i) + 64*tt}")
                for hh in range(2):
                    r.append(f"ds_read_b64 {v(FA[st]+4*i+2*hh,2)}, v8 offset:{512*i + 64*tt + 8*hh}")
            return r
        pairs = sorted([(q, cp) for q in range(8) for cp in range(8 - q)], key=lambda t: (max(t), t[0] + t[1]))
        for r in reads(0, 0): e(r)
        for tt in range(8):
            st = tt & 1
            e("s_waitcnt lgkmcnt(0)")
            nxt = reads(st ^ 1, tt + 1) if tt < 7 else []
            seen = set(); i = 0
            for (q, cp) in pairs:
                c = q + cp
                a = ACC + 4*c
                src = "0" if (tt == 0 and c not in seen) else v(a, 4)
                seen.add(c)
                e(f"v_mfma_f32_16x16x32_bf16 {v(a,4)}, {v(FA[st]+4*q,4)}, {v(FB[st]+4*cp,4)}, {src}")
                if i < len(nxt): e(nxt[i]); i += 1
        self.stamp("c_loopend")
        e(f"s_lshl_b32 s56, s58, 12")
        e(f"s_add_u32 s56, s56, {self.C_EX + 16384}")
        e("v_add_u32 v6, s56, v1")
        for i in range(4): e(f"ds_write_b128 v6, {v(ACC+16+4*i,4)} offset:{1024*i}")
        e("s_waitcnt lgkmcnt(0)")
        e("s_barrier")
        e(f"s_branch {Lep}")
        self.label(Lh)
        self.chC(63)
        Lq = self.newlabel("c_q"); Lq2 = self.newlabel("c_q2")
        e(f"s_cmp_eq_u32 {s(S_WV)}, 4")
        e(f"s_cbranch_scc0 {Lq}")
        if not self.o.get("nosync"): self.poll_all(1, sleep=self.o.get('x_sleep', 16), arr=1)
        self.stamp("c_xpoll")
        e("v_lshlrev_b32 v1, 4, v0")
        e(f"s_mov_b32 s60, {WS_ST}")
        e(f"s_mov_b32 m0, {self.C_ST}")
        for i in range(16):
            e(f"buffer_load_dwordx4 v1, {s(SRD_WS,4)}, s60 offen sc1 lds")
            e("s_add_u32 m0, m0, 1024"); e("s_add_u32 s60, s60, 1024")
        e("s_lshl_b32 s56, s63, 12")
        e(f"s_add_u32 s60, s56, {WS_XT}")
        e(f"s_mov_b32 m0, {self.C_XT}")
        for i in range(16):
            e(f"buffer_load_dwordx4 v1, {s(SRD_WS,4)}, s60 offen sc1 lds")
            if i < 15: e("s_add_u32 m0, m0, 1024"); e("s_add_u32 s60, s60, 1024")
        e("s_waitcnt vmcnt(0)")
        self.stamp("c_xjob")
        e(f"s_branch {Lq2}")
        self.label(Lq)
        if "g2" in self.o["phases"]:
            e(f"s_cmp_lt_u32 {s(S_WV)}, 6")
            e(f"s_cbranch_scc1 {Lq2}")
            e("s_lshl_b32 s56, s2, 15")
            e(f"s_sub_u32 s57, {s(S_WV)}, 6")
            e("s_lshl_b32 s57, s57, 14")
            e("s_add_u32 s56, s56, s57")
            e(f"s_add_u32 s60, s56, {WS_EX}")
            e("v_lshlrev_b32 v1, 4, v0")
            for r in range(4): e(f"v_mov_b32 {v(12+r)}, -1")
            for i in range(16):
                e(f"buffer_store_dwordx4 v[12:15], v1, {s(SRD_WS,4)}, s60 offen sc1")
                if i < 15: e("s_add_u32 s60, s60, 1024")
        self.label(Lq2)
        self.stamp("c_loopend")
        e("s_barrier")
        self.chC(63)
        e("v_lshlrev_b32 v1, 4, v0")
        e("v_and_b32 v2, 15, v0")
        e("v_lshrrev_b32 v3, 4, v0")
        e(f"s_lshl_b32 s56, s58, 12")
        e(f"s_add_u32 s56, s56, {self.C_EX + 16384}")
        e("v_add_u32 v6, s56, v1")
        for i in range(4): e(f"ds_read_b128 {v(ACC+4*i,4)}, v6 offset:{1024*i}")
        self.label(Lep)
        self.stamp("c_exch")
        e(f"s_lshr_b32 s59, {s(S_WV)}, 2       ; kh")
        e("v_and_b32 v4, 1, v3")
        e("s_lshl_b32 s56, s59, 2")
        e("v_add_u32 v4, s56, v4")
        e("v_lshlrev_b32 v4, 8, v4")
        e("v_lshl_add_u32 v4, v2, 4, v4")
        e("v_lshrrev_b32 v5, 1, v3")
        e("v_lshl_add_u32 v4, v5, 3, v4       ; v4 = s (pair 0)")
        KV, STT, XE = 42, 50, 82
        e("v_sub_u32 v5, 2040, v4")
        e("v_lshlrev_b32 v5, 1, v5")
        e(f"s_mul_i32 s56, s58, {self.C_XCH}")
        e(f"s_add_u32 s56, s56, {self.C_XR - 1024}")
        e("v_add_u32 v5, s56, v5")
        e(f"ds_read_b128 {v(KV,4)}, v5 offset:1024")
        e(f"ds_read_b128 {v(KV+4,4)}, v5")
        e("s_lshl_b32 s56, s58, 12")
        e(f"s_add_u32 s56, s56, {self.C_XT}")
        e("v_lshl_add_u32 v5, v4, 1, s56")
        e(f"ds_read_b128 {v(XE,4)}, v5")
        e(f"ds_read_b128 {v(XE+4,4)}, v5 offset:1024")
        e("v_lshlrev_b32 v5, 3, v4")
        e(f"v_add_u32 v5, {self.C_ST}, v5")
        for p in range(2):
            for i in range(4):
                e(f"ds_read_b128 {v(STT+16*p+4*i,4)}, v5 offset:{4096*p + 16*i}")
        e("v_lshrrev_b32 v5, 7, v4")
        e("v_lshlrev_b32 v5, 18, v5")
        e("v_and_b32 v6, 127, v4")
        e("v_lshl_add_u32 v5, v6, 1, v5")
        e("s_lshl_b32 s56, s63, 8")
        e(f"s_add_u32 s60, s56, {WS_HT}")
        e(f"s_add_u32 s62, s60, {4 << 18}")
        e("s_and_b32 s56, s63, 1")
        e("s_lshl_b32 s56, s56, 4")
        e("s_lshr_b32 s61, s69, s56")
        e("s_lshl_b32 s61, s61, 16")
        e("s_waitcnt lgkmcnt(0)")
        H = 110
        for p in range(2):
            a = ACC + 8*p; b = a + 4
            for r in range(4):
                e(f"v_permlane16_swap_b32 {v(a+r)}, {v(b+r)}")
            for el in range(8):
                y = a + el
                xr_ = XE + 4*p + (el >> 1)
                kj = KV + 4*p + ((7 - el) >> 1)
                t0 = H + 16 + (el & 1) * 4
                self.unpack(t0, xr_, el & 1)
                self.unpack(t0 + 1, kj, 1 - (el & 1))
                m_ = STT + 16*p + 2*el
                e(f"v_fmac_f32 {v(y)}, s61, {v(t0+1)}")
                e(f"v_sub_f32 {v(t0+2)}, {v(t0)}, {v(m_)}")
                e(f"v_mul_f32 {v(t0+2)}, {v(t0+2)}, {v(m_+1)}")
                e(f"v_fma_f32 {v(H+el)}, {v(t0+2)}, {v(y)}, {v(t0)}")
            O = H + 8
            for j in range(4):
                e(f"v_cvt_pk_bf16_f32 {v(O+j)}, {v(H+2*j)}, {v(H+2*j+1)}")
            e(f"buffer_store_dwordx4 {v(O,4)}, v5, {s(SRD_WS,4)}, {s(60 if p == 0 else 62)} offen sc1")
            H = 140

    def tlb_touch(self):
        e = self.e
        L = self.newlabel("tlb")
        e(f"s_cmp_lg_u32 {s(S_WV)}, 0")
        e(f"s_cbranch_scc1 {L}")
        e("v_min_u32 v244, 23, v0")
        e("v_lshlrev_b32 v244, 20, v244")
        e(f"v_add_u32 v244, {WS_HM + 4096}, v244")
        e(f"buffer_load_dword v243, v244, {s(SRD_WS,4)}, 0 offen")
        self.srd(SRD_A, S_OUT, S_ * D_ * 2)
        e("v_min_u32 v244, 3, v0")
        e("v_lshlrev_b32 v244, 20, v244")
        e(f"buffer_load_dword v242, v244, {s(SRD_A,4)}, 0 offen")
        self.label(L)

    def prefetch_w(self, which, swave):
        e = self.e
        ptr = S_W1 if which == 1 else S_W2
        gran = self.o.get("pf_gran", 64)
        self.srd(SRD_C, ptr, D_ * F_ * 2)
        e("s_lshl_b32 s56, s2, 2")
        e(f"s_add_u32 s56, s56, {s(swave)}")
        e("s_mul_i32 s56, s56, 56*128")
        e("v_min_u32 v247, 55, v0")
        e("v_lshlrev_b32 v247, 7, v247")
        e("v_add_u32 v247, s56, v247")
        e(f"buffer_load_dword v246, v247, {s(SRD_C,4)}, 0 offen")
        if gran == 64: e(f"buffer_load_dword v245, v247, {s(SRD_C,4)}, 0 offen offset:64")

    G1_STG = 45056
    G1_TOK, G1_W = 0, 16384
    G1_AST = 135168
    G1_CS  = 136192
    G1_B1  = 137216
    G1_CNT = 138240

    def g1_ids(self):
        e = self.e
        e(f"s_and_b32 s56, {s(S_XI)}, 1")
        e("s_lshl_b32 s56, s56, 3")
        e(f"s_and_b32 s57, {s(S_J)}, 7")
        e("s_add_u32 s60, s56, s57          ; mb")
        e(f"s_lshr_b32 s56, {s(S_XI)}, 1")
        e("s_lshl_b32 s56, s56, 2")
        e(f"s_lshr_b32 s57, {s(S_J)}, 3")
        e("s_add_u32 s61, s56, s57          ; nb")

    def wg_of(self, dst, vmb, vnb, t):
        e = self.e
        e(f"v_lshrrev_b32 {v(dst)}, 3, {v(vmb)}")
        e(f"v_lshrrev_b32 {v(t)}, 2, {v(vnb)}")
        e(f"v_lshl_add_u32 {v(dst)}, {v(t)}, 1, {v(dst)}      ; x")
        e(f"v_and_b32 {v(t)}, 7, {v(vmb)}")
        e(f"v_lshl_add_u32 {v(dst)}, {v(t)}, 3, {v(dst)}")
        e(f"v_and_b32 {v(t)}, 3, {v(vnb)}")
        e(f"v_lshl_add_u32 {v(dst)}, {v(t)}, 6, {v(dst)}")

    def flag_addr(self, dst, t):
        e = self.e
        e(f"v_and_b32 {v(t)}, 7, {v(dst)}")
        e(f"v_lshlrev_b32 {v(t)}, 10, {v(t)}")
        e(f"v_lshrrev_b32 {v(t+1)}, 5, {v(dst)}")
        e(f"v_lshl_add_u32 {v(t)}, {v(t+1)}, 7, {v(t)}")
        e(f"v_bfe_u32 {v(dst)}, {v(dst)}, 3, 2")
        e(f"v_lshl_add_u32 {v(dst)}, {v(dst)}, 2, {v(t)}")

    def poll_addr(self, p, va, vd):
        e = self.e
        L = self.newlabel("pa"); Lx = self.newlabel("pax")
        e(f"s_add_u32 s56, {s(S_EP)}, {p}")
        e("s_mov_b32 s57, 0x100000")
        self.label(L)
        e(f"buffer_load_dword {v(vd)}, {v(va)}, {s(SRD_WS,4)}, 0 offen sc1")
        e("s_sub_u32 s57, s57, 1")
        e("s_cmp_eq_u32 s57, 0")
        e(f"s_cbranch_scc1 {Lx}")
        e("s_waitcnt vmcnt(0)")
        e(f"v_subrev_u32 {v(vd)}, s56, {v(vd)}")
        e(f"v_cmp_le_u32 vcc, 16, {v(vd)}")
        e(f"s_cbranch_vccnz {L}")
        self.label(Lx)
        e("s_waitcnt vmcnt(0)")

    def g1_loader_setup(self):
        e = self.e
        e(f"s_sub_u32 s58, {s(S_WV)}, 4       ; lw")
        e("v_lshrrev_b32 v13, 4, v0          ; g = lane>>4")
        e("v_and_b32 v14, 15, v0             ; p")
        e("v_lshrrev_b32 v15, 1, v14         ; b'")
        e("v_and_b32 v16, 1, v14             ; half")
        e("v_xor_b32 v15, v15, v13           ; b' ^ (row&3)")
        e("s_lshl_b32 s59, s58, 4")
        e("v_add_u32 v17, s59, v13")
        e("v_lshlrev_b32 v17, 8, v17         ; *256")
        e("v_lshl_add_u32 v17, v16, 4, v17")
        e("s_lshl_b32 s59, s60, 18           ; mb*262144")
        e(f"s_add_u32 s59, s59, {WS_HT}")
        e("v_add_u32 v17, s59, v17")
        for ii in range(4):
            x4 = 4 if (ii >> 1) & 1 else 0
            e(f"v_xor_b32 v18, {x4}, v15")
            e("v_lshl_add_u32 v18, v18, 5, v17")
            e(f"v_add_u32 {v(2+ii)}, {ii*4*256}, v18")
        e("s_mov_b32 s59, 0x924924a          ; ceil(2^32/28)")
        for ii in range(7):
            e(f"v_add_u32 v13, {64*ii}, v0")
            e("v_mul_hi_u32 v14, s59, v13        ; row_local")
            e("v_mul_u32_u24 v15, 28, v14")
            e("v_sub_u32 v15, v13, v15           ; p")
            e("v_bfe_u32 v16, v14, 3, 1          ; bit3(row)")
            e("v_lshrrev_b32 v17, 1, v15         ; b'")
            e("v_xor_b32 v17, v17, v16           ; b")
            e("v_and_b32 v15, 1, v15")
            e("v_lshlrev_b32 v15, 4, v15")
            e("v_lshl_add_u32 v15, v17, 5, v15   ; b*32 + half*16")
            e("v_mul_u32_u24 v14, 7168, v14")
            e(f"v_add_u32 {v(6+ii)}, v14, v15")
        e("s_mul_i32 s59, s58, 16*7168")
        e("s_mul_i32 s57, s61, 448")
        e("s_add_u32 s59, s59, s57")
        for ii in range(7):
            e(f"v_add_u32 {v(6+ii)}, s59, {v(6+ii)}")
        e("s_lshl_b32 s62, s58, 12")
        e("s_mul_i32 s63, s58, 7168")
        e(f"s_add_u32 s63, s63, {self.G1_W}")

    def g1_issue_w(self, sbuf, sk):
        e = self.e
        if self.o.get("g1_nodma"): return
        e(f"s_add_u32 m0, {s(sbuf)}, s63")
        for ii in range(7):
            e(f"buffer_load_dwordx4 {v(6+ii)}, {s(SRD_B,4)}, {s(sk)} offen lds")
            if ii < 6: e("s_add_u32 m0, m0, 1024")

    def g1_issue_t(self, sbuf, sk):
        e = self.e
        if self.o.get("g1_nodma"): return
        e(f"s_add_u32 m0, {s(sbuf)}, s62")
        for ii in range(4):
            e(f"buffer_load_dwordx4 {v(2+ii)}, {s(SRD_WS,4)}, {s(sk)} offen {self.o.get('t_aux', 'sc1')} lds")
            if ii < 3: e("s_add_u32 m0, m0, 1024")

    def g1_next_k(self):
        e = self.e
        e("s_add_u32 s68, s68, 1")
        e("s_and_b32 s68, s68, 15")
        e(f"s_mul_i32 s65, s68, {64*7168}")
        e(f"s_lshl_b32 s66, s68, 14")

    def g1_side_col(self):
        e = self.e
        e("v_lshrrev_b32 v20, 4, v0          ; g")
        e("v_and_b32 v21, 15, v0")
        e("v_lshrrev_b32 v22, 2, v21         ; r")
        e("v_and_b32 v23, 3, v21             ; c")
        e("v_lshl_add_u32 v24, v20, 3, v22   ; row = 8g + r")
        e("v_and_b32 v25, 1, v20             ; g&1")
        e("v_mul_u32_u24 v27, 448, v24")
        e("v_lshl_add_u32 v27, v23, 3, v27")
        e(f"v_add_u32 v27, {self.G1_W}, v27")
        WF, ONE, DC = 48, 80, 100
        for i in range(4):
            e(f"s_add_u32 s56, s58, {4*i}")
            e("s_min_u32 s56, s56, 13")
            e(f"s_mov_b32 {s(84+i)}, s56")
            e("v_xor_b32 v28, s56, v25")
            e(f"v_lshl_add_u32 {v(116+i)}, v28, 5, v27")
        for i in range(4):
            for u in range(2):
                for h in range(2):
                    e(f"ds_read_b64_tr_b16 {v(WF+8*i+4*u+2*h,2)}, {v(116+i)} offset:{u*32*448 + h*4*448}")
        for r in range(4): e(f"v_mov_b32 {v(ONE+r)}, 0x3f803f80")
        e("s_waitcnt lgkmcnt(0)")
        for u in range(2):
            for i in range(4):
                e(f"v_mfma_f32_16x16x32_bf16 {v(DC+4*i,4)}, {v(WF+8*i+4*u,4)}, {v(ONE,4)}, {'0' if u == 0 else v(DC+4*i,4)}")
        e("s_lshl_b32 s56, s61, 4")
        e("s_add_u32 s56, s56, s60")
        e("s_lshl_b32 s56, s56, 10")
        e(f"s_add_u32 s56, s56, {WS_CSP}")
        e("v_lshl_add_u32 v28, v20, 4, s56")
        e("s_mov_b32 exec_lo, 0x00010001"); e("s_mov_b32 exec_hi, 0x00010001")
        for i in range(4):
            e(f"s_lshl_b32 s56, {s(84+i)}, 6")
            e(f"buffer_store_dwordx4 {v(DC+4*i,4)}, v28, {s(SRD_WS,4)}, s56 offen sc1")
        e("s_mov_b64 exec, -1")

    def g1_tok_mfma(self, base, first):
        e = self.e
        ONE, D1, D2 = 224, 208, 216
        La = self.newlabel("g1t"); Lb = self.newlabel("g1t2")
        e("s_cmp_eq_u32 s58, 0")
        e(f"s_cbranch_scc0 {La}")
        for pas in range(2):
            if pas == 1: self.label(La)
            for i in range(2):
                t = v(base + 28 + 4*(2*pas + i), 4)
                e(f"v_mfma_f32_16x16x32_bf16 {v(D1+4*i,4)}, {v(ONE,4)}, {t}, {'0' if first else v(D1+4*i,4)}")
                e(f"v_mfma_f32_16x16x32_bf16 {v(D2+4*i,4)}, {t}, {t}, {'0' if first else v(D2+4*i,4)}")
            if pas == 0: e(f"s_branch {Lb}")
        self.label(Lb)

    def g1_tok_store(self):
        e = self.e
        D1, D2 = 208, 216
        e("s_lshl_b32 s56, s60, 4")
        e("s_add_u32 s56, s56, s61")
        e("s_lshl_b32 s56, s56, 10")
        e(f"s_add_u32 s56, s56, {WS_TSP}")
        e("s_lshl_b32 s57, s59, 9            ; 4wt*16*8")
        e("s_add_u32 s56, s56, s57")
        e("s_lshl_b32 s57, s58, 8            ; 2wf*16*8")
        e("s_add_u32 s56, s56, s57")
        e("v_and_b32 v228, 15, v0")
        e("v_lshl_add_u32 v228, v228, 3, s56")
        e("s_mov_b32 s80, 0x22222222"); e("s_mov_b32 s81, 0x22222222")
        e("s_mov_b32 s82, 0x44444444"); e("s_mov_b32 s83, 0x44444444")
        e("s_mov_b32 vcc_lo, 0x88888888"); e("s_mov_b32 vcc_hi, 0x88888888")
        for i in range(2):
            o = 230 + 2*i
            e(f"v_mov_b32 {v(o)}, {v(D1+4*i)}")
            e(f"v_cndmask_b32 {v(o+1)}, {v(D2+4*i)}, {v(D2+4*i+1)}, s[80:81]")
            e(f"v_cndmask_b32 {v(o+1)}, {v(o+1)}, {v(D2+4*i+2)}, s[82:83]")
            e(f"v_cndmask_b32 {v(o+1)}, {v(o+1)}, {v(D2+4*i+3)}, vcc")
        e("s_mov_b32 exec_lo, 0x00f0000f"); e("s_mov_b32 exec_hi, 0xf0000f00")
        for i in range(2):
            e(f"buffer_store_dwordx2 {v(230+2*i,2)}, v228, {s(SRD_WS,4)}, 0 offen offset:{128*i} sc1")
        e("s_mov_b64 exec, -1")

    def g1_side_signal(self):
        e = self.e
        L = self.newlabel("g1s")
        e(f"v_mov_b32 v20, {self.G1_CNT}")
        e("v_mov_b32 v21, 1")
        e("s_mov_b64 exec, 1")
        e("ds_add_rtn_u32 v22, v20, v21")
        e("s_waitcnt lgkmcnt(0)")
        e("v_readfirstlane_b32 s56, v22")
        e("s_mov_b64 exec, -1")
        e("s_cmp_eq_u32 s56, 3")
        e(f"s_cbranch_scc0 {L}")
        self.publish(4)
        self.label(L)

    def g1_side_poll_issue(self):
        e = self.e
        e("v_and_b32 v20, 15, v0")
        e("v_bfe_u32 v21, v0, 4, 1")
        e("v_cmp_eq_u32 vcc, 0, v21")
        e("v_mov_b32 v22, s60"); e("v_mov_b32 v23, s61")
        e("v_cndmask_b32 v24, v20, v22, vcc")
        e("v_cndmask_b32 v25, v23, v20, vcc")
        self.wg_of(40, 24, 25, 26)
        self.flag_addr(40, 26)
        e(f"buffer_load_dword v41, v40, {s(SRD_WS,4)}, 0 offen sc1")

    def g1_side_loads(self):
        e = self.e
        L = self.newlabel("g1p")
        e(f"s_add_u32 s56, {s(S_EP)}, 4")
        e("v_subrev_u32 v41, s56, v41")
        e("v_cmp_le_u32 vcc, 16, v41")
        e(f"s_cbranch_vccz {L}")
        if not self.o.get("nosync"): self.poll_addr(4, 40, 41)
        self.label(L)
        e("v_and_b32 v20, 31, v0")
        e("s_lshl_b32 s56, s58, 5")
        e("v_add_u32 v42, s56, v20            ; token")
        e("v_lshrrev_b32 v21, 5, v0")
        e("v_lshlrev_b32 v21, 13, v21         ; hf*8*1024")
        e("v_lshl_add_u32 v21, v42, 3, v21")
        e("s_lshl_b32 s56, s60, 14")
        e(f"s_add_u32 s56, s56, {WS_TSP}")
        e("v_add_u32 v21, s56, v21")
        for jj in range(8):
            if jj == 4: e("v_add_u32 v21, 4096, v21")
            e(f"buffer_load_dwordx2 {v(44+2*jj,2)}, v21, {s(SRD_WS,4)}, 0 offen offset:{1024*(jj&3)} sc1")
        e("v_and_b32 v20, 15, v0")
        e("v_min_u32 v20, 13, v20")
        e("s_mul_i32 s56, s58, 14")
        e("v_add_u32 v43, s56, v20            ; fq")
        e("v_lshrrev_b32 v21, 4, v0")
        e("v_lshlrev_b32 v21, 12, v21")
        e("v_lshl_add_u32 v21, v43, 4, v21")
        e("s_lshl_b32 s56, s61, 14")
        e(f"s_add_u32 s56, s56, {WS_CSP}")
        e("v_add_u32 v21, s56, v21")
        for jj in range(4):
            e(f"buffer_load_dwordx4 {v(60+4*jj,4)}, v21, {s(SRD_WS,4)}, 0 offen offset:{1024*jj} sc1")

    def g1_b1_load(self):
        e = self.e
        self.srd(SRD_C, S_B1, F_ * 2)
        e("v_and_b32 v20, 15, v0")
        e("v_min_u32 v20, 13, v20")
        e("s_mul_i32 s56, s58, 14")
        e("v_add_u32 v20, s56, v20")
        e("s_mul_i32 s56, s61, 448")
        e("v_lshl_add_u32 v21, v20, 3, s56")
        e(f"buffer_load_dwordx2 v[126:127], v21, {s(SRD_C,4)}, 0 offen")

    def g1_side_final_tok(self):
        e = self.e
        for jj in range(1, 8): e(f"v_pk_add_f32 v[44:45], v[44:45], {v(44+2*jj,2)}")
        e("v_mov_b32 v46, v44"); e("v_mov_b32 v47, v45")
        e("v_permlane32_swap_b32 v46, v44"); e("v_permlane32_swap_b32 v47, v45")
        e("v_add_f32 v44, v44, v46"); e("v_add_f32 v45, v45, v47")
        e("v_mul_f32 v44, 0x3a800000, v44      ; mu")
        e("v_mul_f32 v45, 0x3a800000, v45      ; E[h^2]")
        e("v_fma_f32 v45, -v44, v44, v45       ; var")
        e("v_max_f32 v45, 0, v45")
        self.round_bf16(46, 44)
        self.round_bf16(47, 45)
        e("v_add_f32 v47, 0x3727c5ac, v47")
        self.round_bf16(47, 47)
        e("v_sqrt_f32 v47, v47")
        self.round_bf16(47, 47)
        e("v_rcp_f32 v48, v47                  ; 1/sd1")
        e("v_sub_f32 v49, v44, v46")
        e("v_mul_f32 v49, v49, v48             ; mean(y1)")
        self.round_bf16(49, 49)
        e("v_mul_f32 v50, v45, v48")
        e("v_mul_f32 v50, v50, v48             ; var(y1)")
        self.round_bf16(50, 50)
        e("v_add_f32 v50, 0x3727c5ac, v50")
        self.round_bf16(50, 50)
        e("v_sqrt_f32 v50, v50")
        self.round_bf16(50, 50)
        e("v_rcp_f32 v50, v50")
        e("v_mul_f32 v52, v48, v50")
        e("v_fma_f32 v51, v49, v47, v46        ; M = m1 + m2*sd1")
        e("v_mul_f32 v53, v52, v51             ; am")
        e(f"v_lshlrev_b32 v20, 3, v42")
        e(f"v_add_u32 v20, {self.G1_AST}, v20")
        e("s_mov_b32 exec_hi, 0")
        e("ds_write_b64 v20, v[52:53]")
        e("s_mov_b64 exec, -1")
        e("s_waitcnt lgkmcnt(0)")

    def g1_side_final_col(self):
        e = self.e
        for jj in range(1, 4):
            e(f"v_pk_add_f32 v[60:61], v[60:61], {v(60+4*jj,2)}")
            e(f"v_pk_add_f32 v[62:63], v[62:63], {v(62+4*jj,2)}")
        for op in ("v_permlane16_swap_b32", "v_permlane32_swap_b32"):
            for r in range(4): e(f"v_mov_b32 {v(64+r)}, {v(60+r)}")
            for r in range(4): e(f"{op} {v(64+r)}, {v(60+r)}")
            for r in range(4): e(f"v_add_f32 {v(60+r)}, {v(60+r)}, {v(64+r)}")
        self.unpack(68, 126, 0); self.unpack(69, 126, 1); self.unpack(70, 127, 0); self.unpack(71, 127, 1)
        e("v_lshlrev_b32 v20, 4, v43")
        e(f"v_add_u32 v20, {self.G1_CS}, v20")
        e("s_mov_b64 exec, 0x3fff")
        e("ds_write_b128 v20, v[60:63]")
        e(f"ds_write_b128 v20, v[68:71] offset:{self.G1_B1 - self.G1_CS}")
        e("s_mov_b64 exec, -1")
        e("s_waitcnt lgkmcnt(0)")

    def g1_loader(self):
        e = self.e
        STG = self.G1_STG
        self.srd(SRD_B, S_W1, D_ * F_ * 2)
        self.g1_loader_setup()
        e(f"v_mov_b32 v20, {self.G1_CNT}"); e("v_mov_b32 v21, 0")
        e("ds_write_b32 v20, v21")
        if self.o.get("g1_norot"): e("s_mov_b32 s68, 0")
        else: e("s_add_u32 s68, s60, s61")
        e("s_sub_u32 s68, s68, 1")
        self.g1_next_k()
        e("s_mov_b32 s88, s66")
        e("s_mov_b32 s64, 0")
        self.g1_issue_w(64, 65)
        self.g1_next_k()
        e(f"s_mov_b32 s64, {STG}")
        self.g1_issue_w(64, 65)
        self.g1_b1_load()
        side = not self.o.get("g1_noside")
        e("s_waitcnt vmcnt(8)")
        e("s_barrier                        ; W(r) resident")
        if side: self.g1_side_col()
        self.g1_dep_wait()
        e("s_mov_b32 s64, 0")
        self.g1_issue_t(64, 88)
        e(f"s_mov_b32 s64, {STG}")
        self.g1_issue_t(64, 66)
        e("s_waitcnt vmcnt(4) lgkmcnt(0)")
        e("s_barrier                        ; B_0")
        e("s_mov_b32 s67, 0                 ; period i")
        e(f"s_mov_b32 s64, {2*STG}")
        L = self.newlabel("g1l"); Lw = self.newlabel("g1lw"); Lb = self.newlabel("g1lb")
        def hook(per, fn):
            La = self.newlabel("g1a"); e(f"s_cmp_eq_u32 s67, {per}"); e(f"s_cbranch_scc0 {La}"); fn(); self.label(La)
        self.label(L)
        if side: hook(13, self.g1_side_poll_issue)
        e("s_cmp_ge_u32 s67, 14")
        e(f"s_cbranch_scc1 {Lw}")
        self.g1_next_k()
        self.g1_issue_w(64, 65)
        self.g1_issue_t(64, 66)
        e(f"s_add_u32 s64, s64, {STG}")
        e(f"s_cmp_eq_u32 s64, {3*STG}")
        e("s_cselect_b32 s64, 0, s64")
        e("s_waitcnt vmcnt(11)")
        if side:
            def pub():
                Lp = self.newlabel("g1pub")
                e(f"s_cmp_eq_u32 {s(S_WV)}, 4"); e(f"s_cbranch_scc0 {Lp}"); self.publish(4); self.label(Lp)
            hook(3, pub)
        e(f"s_branch {Lb}")
        self.label(Lw)
        L15 = self.newlabel("g1l15")
        e("s_cmp_eq_u32 s67, 14")
        e(f"s_cbranch_scc0 {L15}")
        if side:
            self.g1_side_loads()
            e("s_waitcnt vmcnt(12)")
        else:
            e("s_waitcnt vmcnt(0)")
        e(f"s_branch {Lb}")
        self.label(L15)
        e("s_waitcnt vmcnt(0)")
        if side:
            self.g1_side_final_tok()
            self.g1_side_final_col()
        self.label(Lb)
        e("s_barrier")
        e("s_add_u32 s67, s67, 1")
        e("s_cmp_lt_u32 s67, 16")
        e(f"s_cbranch_scc1 {L}")

    def g1_dep_wait(self):
        if "c" in self.o["phases"]: self.wait_all(3, wave=4)
        else: self.e("s_barrier")

    G1_X, G1_Y, G1_ACC = 8, 52, 96
    def g1_frag_reads(self, base, u):
        r = []
        def wread(ft):
            areg = 2 if ft % 2 == 0 else 3
            return [f"ds_read_b64_tr_b16 {v(base + 4*ft + 2*h, 2)}, {v(areg)} offset:{32*ft + u*32*448 + h*4*448}" for h in range(2)]
        def tread(tt):
            return [f"ds_read_b64_tr_b16 {v(base + 28 + 4*tt + 2*h, 2)}, {v(4+tt)} offset:{u*8192 + h*1024}" for h in range(2)]
        for tt in range(4): r += tread(tt)
        for ft in range(7): r += wread(ft)
        return r

    def g1_half(self, mf_base, rd_base, rd_u, first=False, mfma=True, reads=True, tail=(), waits=None):
        e = self.e
        rds = self.g1_frag_reads(rd_base, rd_u) if (reads and not self.o.get("g1_noreads")) else []
        if self.o.get("g1_nomfma"): mfma = False
        mf = []
        if mfma:
            for ft in range(7):
                for tt in range(4):
                    a = self.G1_ACC + (ft * 4 + tt) * 4
                    c = "0" if first else v(a, 4)
                    mf.append(f"v_mfma_f32_16x16x32_bf16 {v(a,4)}, {v(mf_base + 4*ft, 4)}, {v(mf_base + 28 + 4*tt, 4)}, {c}")
        fill = list(rds) + list(tail)
        i = 0
        for k, m in enumerate(mf):
            if waits and k in waits: e(waits[k])
            e(m)
            if i < len(fill): e(fill[i]); i += 1
        while i < len(fill): e(fill[i]); i += 1

    def g1_compute_setup(self):
        e = self.e
        e(f"s_lshr_b32 s58, {s(S_WV)}, 1      ; wf")
        e(f"s_and_b32 s59, {s(S_WV)}, 1       ; wt")
        e("v_lshrrev_b32 v13, 4, v0          ; g")
        e("v_and_b32 v14, 15, v0")
        e("v_lshrrev_b32 v15, 2, v14         ; r")
        e("v_and_b32 v16, 3, v14             ; c")
        e("v_lshl_add_u32 v17, v13, 3, v15   ; row = 8g + r")
        e("v_and_b32 v18, 1, v13             ; g&1")
        e("v_mul_u32_u24 v19, 448, v17")
        e("v_lshl_add_u32 v19, v16, 3, v19")
        e("s_mul_i32 s57, s58, 224           ; 32*7*wf")
        e(f"s_add_u32 s57, s57, {self.G1_W}")
        e("v_add_u32 v19, s57, v19")
        e("v_lshlrev_b32 v20, 5, v18         ; 32*(g&1)")
        e("v_add_u32 v21, v19, v20")
        e("v_sub_u32 v22, v19, v20")
        e("s_cmp_eq_u32 s58, 0")
        e("s_cselect_b64 vcc, -1, 0")
        e("v_cndmask_b32 v2, v22, v21, vcc")
        e("v_cndmask_b32 v3, v21, v22, vcc")
        e("v_lshl_or_b32 v20, v18, 2, v15    ; f(row)")
        e("v_lshlrev_b32 v21, 8, v17")
        e("v_lshl_add_u32 v21, v16, 3, v21")
        e("s_lshl_b32 s57, s59, 2            ; 4*wt")
        for tt in range(4):
            e(f"s_add_u32 s56, s57, {tt}")
            e("v_xor_b32 v22, s56, v20")
            e(f"v_lshl_add_u32 {v(4+tt)}, v22, 5, v21")

    def g1_compute(self):
        e = self.e
        X, Y = self.G1_X, self.G1_Y
        STG = self.G1_STG
        self.g1_compute_setup()
        side = not self.o.get("g1_noside")
        for r in range(4): e(f"v_mov_b32 {v(224+r)}, 0x3f803f80")
        e("s_barrier                        ; W(r) resident")
        self.g1_dep_wait()
        e("s_barrier                        ; B_0")
        self.stamp("g1_loop")
        def adv(delta):
            return [f"v_add_u32 {v(r)}, {delta & 0xffffffff:#x}, {v(r)}" for r in range(2, 8)]
        W5 = {0: "s_waitcnt lgkmcnt(4)", 20: "s_waitcnt lgkmcnt(15)"}
        for r in self.g1_frag_reads(X, 0): e(r)
        e("s_waitcnt lgkmcnt(0)")
        self.g1_half(X, Y, 1, first=True, tail=adv(STG))
        if side: self.g1_tok_mfma(X, True)
        e("s_waitcnt lgkmcnt(0)")
        if side:
            self.g1_tok_mfma(Y, False)
            self.g1_tok_store()
        e("s_barrier                        ; B_1")
        e("s_mov_b32 s67, 0")
        L = self.newlabel("g1c")
        self.label(L)
        for k in range(3):
            delta = STG if k != 1 else -2 * STG
            self.g1_half(Y, X, 0)
            tail = adv(delta)
            if k == 2: tail = tail[:5] + ["s_add_u32 s67, s67, 1"] + tail[5:]
            self.g1_half(X, Y, 1, tail=tail, waits=(W5 if not self.o.get("g1_noreads") else None))
            if k == 2: e("s_cmp_lt_u32 s67, 5")
            e("s_waitcnt vmcnt(0) lgkmcnt(0)" if k == 1 else "s_waitcnt lgkmcnt(0)")
            e("s_barrier")
        e(f"s_cbranch_scc1 {L}")
        self.g1_half(Y, None, 0, reads=False)
        self.stamp("g1_loopend")

    def g1_epilogue(self):
        e = self.e
        ACC = self.G1_ACC
        e("v_and_b32 v2, 15, v0               ; n")
        e("v_lshrrev_b32 v3, 4, v0            ; g / rho")
        e("s_lshl_b32 s56, s59, 9")
        e(f"s_add_u32 s56, s56, {self.G1_AST}")
        e("v_lshl_add_u32 v4, v2, 3, s56")
        AS = 8
        for tt in range(4): e(f"ds_read_b64 {v(AS+2*tt,2)}, v4 offset:{128*tt}")
        e("s_mul_i32 s56, s58, 448")
        e(f"s_add_u32 s56, s56, {self.G1_CS}")
        e("v_lshl_add_u32 v5, v3, 4, s56")
        CB = 16
        for ft in range(7):
            e(f"ds_read_b128 {v(CB+8*ft,4)}, v5 offset:{64*ft}")
            e(f"ds_read_b128 {v(CB+8*ft+4,4)}, v5 offset:{64*ft + self.G1_B1 - self.G1_CS}")
        c2 = -2.0 * 0.7978845608028654 * 1.4426950408889634
        c1 = c2 * 0.044715
        import struct
        fb = lambda x: "0x%08x" % struct.unpack("<I", struct.pack("<f", x))[0]
        C1, C2, ONE = 72, 74, 76
        for r, val in ((C1, c1), (C2, c2), (ONE, 1.0)):
            e(f"v_mov_b32 {v(r)}, {fb(val)}"); e(f"v_mov_b32 {v(r+1)}, {fb(val)}")
        e("v_and_b32 v79, 1, v3               ; rho&1")
        e("v_lshrrev_b32 v81, 1, v3           ; rho>>1")
        e("v_lshl_add_u32 v80, v79, 1, v81")
        e("v_lshlrev_b32 v80, 11, v80")
        e("v_lshl_add_u32 v82, v2, 4, v80")
        e("s_lshl_b32 s56, s58, 1")
        e("v_add_u32 v80, s56, v81")
        e("v_lshlrev_b32 v80, 11, v80")
        e("v_lshl_add_u32 v80, v79, 8, v80")
        e("v_lshl_add_u32 v83, v2, 4, v80")
        e("s_mul_i32 s62, s60, 112")
        e("s_mul_i32 s56, s61, 7")
        e("s_add_u32 s62, s62, s56")
        e("s_lshl_b32 s62, s62, 13")
        e("s_lshl_b32 s56, s59, 10")
        e("s_add_u32 s62, s62, s56")
        e(f"s_add_u32 s62, s62, {WS_HM}")
        e("s_mul_i32 s56, s58, 3*8192")
        e("s_add_u32 s63, s62, s56")
        e("s_waitcnt lgkmcnt(0)")
        def gelu_tile(ft, tt, out, T):
            a = ACC + (ft*4 + tt)*4
            cs, b1 = CB + 8*ft, CB + 8*ft + 4
            A = AS + 2*tt
            for h in range(2):
                e(f"v_pk_fma_f32 {v(T+2*h,2)}, {v(A,2)}, {v(cs+2*h,2)}, {v(b1+2*h,2)} op_sel:[1,0,0] op_sel_hi:[1,1,1] neg_lo:[1,0,0] neg_hi:[1,0,0]")
            for h in range(2):
                e(f"v_pk_fma_f32 {v(a+2*h,2)}, {v(A,2)}, {v(a+2*h,2)}, {v(T+2*h,2)} op_sel:[0,0,0] op_sel_hi:[0,1,1]")
            for h in range(2): e(f"v_pk_mul_f32 {v(T+2*h,2)}, {v(a+2*h,2)}, {v(a+2*h,2)}")
            for h in range(2): e(f"v_pk_fma_f32 {v(T+2*h,2)}, {v(T+2*h,2)}, {v(C1,2)}, {v(C2,2)}")
            for h in range(2): e(f"v_pk_mul_f32 {v(T+2*h,2)}, {v(T+2*h,2)}, {v(a+2*h,2)}")
            for r in range(4): e(f"v_exp_f32 {v(T+r)}, {v(T+r)}")
            for h in range(2): e(f"v_pk_add_f32 {v(T+2*h,2)}, {v(T+2*h,2)}, {v(ONE,2)}")
            for r in range(4): e(f"v_rcp_f32 {v(T+r)}, {v(T+r)}")
            for h in range(2): e(f"v_pk_mul_f32 {v(a+2*h,2)}, {v(a+2*h,2)}, {v(T+2*h,2)}")
            for h in range(2): e(f"v_cvt_pk_bf16_f32 {v(out+h)}, {v(a+2*h)}, {v(a+2*h+1)}")
        k = 0
        for fp in range(3):
            for tt in range(4):
                O = 208 + 4 * (k & 1); T = 216 + 4 * (k & 1); k += 1
                gelu_tile(2*fp, tt, O, T)
                gelu_tile(2*fp + 1, tt, O + 2, T)
                e(f"v_permlane16_swap_b32 {v(O)}, {v(O+2)}")
                e(f"v_permlane16_swap_b32 {v(O+1)}, {v(O+3)}")
                e(f"s_add_u32 s56, s63, {fp*8192 + tt*256}")
                e(f"buffer_store_dwordx4 {v(O,4)}, v82, {s(SRD_WS,4)}, s56 offen {self.o.get('hm_aux', 'sc1')}")
        for tp in range(2):
            O = 208 + 4 * (k & 1); T = 216 + 4 * (k & 1); k += 1
            gelu_tile(6, 2*tp, O, T)
            gelu_tile(6, 2*tp + 1, O + 2, T)
            e(f"v_permlane16_swap_b32 {v(O)}, {v(O+2)}")
            e(f"v_permlane16_swap_b32 {v(O+1)}, {v(O+3)}")
            e(f"s_add_u32 s56, s62, {6*8192 + 2*tp*256}")
            e(f"buffer_store_dwordx4 {v(O,4)}, v83, {s(SRD_WS,4)}, s56 offen {self.o.get('hm_aux', 'sc1')}")

    def g1(self):
        e = self.e
        self.g1_ids()
        Lc = self.newlabel("g1comp"); Le = self.newlabel("g1end")
        e(f"s_cmp_lt_u32 {s(S_WV)}, 4")
        e(f"s_cbranch_scc1 {Lc}")
        self.g1_loader()
        if "g2" in self.o["phases"]: self.g2_loader_pre()
        e(f"s_branch {Le}")
        self.label(Lc)
        self.g1_compute()
        self.g1_epilogue()
        self.stamp("g1_epi")
        e("s_waitcnt vmcnt(0)")
        self.label(Le)
        e("s_barrier")
        L = self.newlabel("g1sig")
        e(f"s_cmp_lg_u32 {s(S_WV)}, 0")
        e(f"s_cbranch_scc1 {L}")
        self.publish(5)
        self.label(L)

    G2_STG = 32768
    G2_NBUF = 5
    G2_RES = 98304

    def g2_ids(self):
        e = self.e
        e(f"s_and_b32 s56, {s(S_XI)}, 1")
        e("s_lshl_b32 s56, s56, 3")
        e(f"s_and_b32 s57, {s(S_J)}, 7")
        e("s_add_u32 s60, s56, s57          ; mb")
        e(f"s_lshr_b32 s56, {s(S_XI)}, 1")
        e("s_lshl_b32 s56, s56, 2")
        e(f"s_lshr_b32 s57, {s(S_J)}, 3")
        e("s_add_u32 s56, s56, s57          ; n'")
        e("s_and_b32 s61, s56, 7            ; db")
        e("s_lshr_b32 s69, s56, 3           ; kh")

    def g2_issue_w(self, sbuf, sk):
        e = self.e
        e(f"s_add_u32 m0, {s(sbuf)}, s63")
        for ii in range(4):
            e(f"buffer_load_dwordx4 {v(6+ii)}, {s(SRD_B,4)}, {s(sk)} offen lds")
            if ii < 3: e("s_add_u32 m0, m0, 1024")

    def g2_issue_t(self, sbuf, sk):
        e = self.e
        e(f"s_add_u32 m0, {s(sbuf)}, s62")
        for ii in range(4):
            e(f"buffer_load_dwordx4 v2, {s(SRD_WS,4)}, {s(sk)} offen sc1 lds")
            if ii < 3:
                e("s_add_u32 m0, m0, 1024"); e(f"s_add_u32 {s(sk)}, {s(sk)}, 1024")
        e(f"s_add_u32 {s(sk)}, {s(sk)}, {16384 - 3*1024}")

    def g2_w_off(self):
        e = self.e
        e("s_lshl_b32 s56, s84, 1")
        e("s_add_u32 s56, s56, s87          ; 2q + half")
        e("s_cmp_ge_u32 s84, 3")
        e("s_addc_u32 s56, s56, 0")
        e("s_mul_i32 s57, s87, 7")
        e("s_add_u32 s57, s57, 6            ; half ? 13 : 6")
        e("s_cmp_eq_u32 s84, 6")
        e("s_cselect_b32 s56, s57, s56")
        e("s_lshl_b32 s56, s56, 4")
        e("s_add_u32 s56, s56, s86")
        e("s_lshl_b32 s65, s56, 11")

    def g2_adv_w(self):
        e = self.e
        e("s_add_u32 s84, s84, 2")
        e("s_cmp_ge_u32 s84, 7")
        e("s_cselect_b32 s56, 7, 0")
        e("s_cselect_b32 s57, 224, 0")
        e("s_sub_u32 s84, s84, s56")
        e("s_add_u32 s86, s86, s57")
        self.g2_w_off()

    def g2_loader_pre(self):
        e = self.e
        self.g2_ids()
        self.srd(SRD_B, S_W2, F_ * D_ * 2)
        e(f"s_sub_u32 s58, {s(S_WV)}, 4       ; lw")
        e("v_lshrrev_b32 v13, 4, v0")
        e("v_and_b32 v14, 15, v0")
        e("v_lshrrev_b32 v15, 1, v14")
        e("v_and_b32 v16, 1, v14")
        e("v_xor_b32 v15, v15, v13")
        e("v_lshlrev_b32 v17, 11, v13")
        e("v_lshl_add_u32 v17, v16, 4, v17")
        e("s_lshl_b32 s59, s61, 8            ; db*256")
        e("v_add_u32 v17, s59, v17")
        for ii in range(4):
            x4 = 4 if (ii >> 1) & 1 else 0
            e(f"v_xor_b32 v18, {x4}, v15")
            e("v_lshl_add_u32 v18, v18, 5, v17")
            e(f"v_add_u32 {v(6+ii)}, {ii*4*2048}, v18")
        e("v_lshlrev_b32 v2, 4, v0")
        e("s_lshl_b32 s62, s58, 12")
        e(f"s_add_u32 s63, s62, 16384")
        e("s_lshl_b32 s86, s69, 3")
        e("s_mul_i32 s86, s86, 224          ; 224 * 8kh")
        e("s_lshr_b32 s84, s58, 1           ; q = lw>>1")
        e("s_and_b32 s87, s58, 1            ; half")
        self.g2_w_off()
        e("s_mul_i32 s66, s60, 112")
        e("s_mul_i32 s56, s69, 56")
        e("s_add_u32 s66, s66, s56")
        e("s_lshl_b32 s66, s66, 13")
        e("s_add_u32 s66, s66, s62")
        e(f"s_add_u32 s66, s66, {WS_HM}")

    def g2_loader(self):
        e = self.e
        STG = self.G2_STG
        e("s_mov_b32 s64, 0")
        self.g2_issue_w(64, 65)
        self.g2_adv_w()
        Lq = self.newlabel("g2q")
        e(f"s_cmp_eq_u32 {s(S_WV)}, 4")
        e(f"s_cbranch_scc0 {Lq}")
        e("v_and_b32 v20, 7, v0")
        e("s_lshl_b32 s56, s69, 3")
        e("v_add_u32 v21, s56, v20")
        e("v_mov_b32 v20, s60")
        self.wg_of(40, 20, 21, 26)
        self.flag_addr(40, 26)
        if not self.o.get("nosync"): self.poll_addr(5, 40, 41)
        self.label(Lq)
        e("s_barrier                        ; dep")
        self.stamp("g2_dep")
        self.g2_issue_t(64, 66)
        for st in range(1, 4):
            e(f"s_add_u32 s64, s64, {STG}")
            self.g2_issue_w(64, 65)
            self.g2_adv_w()
            self.g2_issue_t(64, 66)
        e("s_waitcnt vmcnt(24)")
        e("s_barrier                        ; B_0")
        e("s_mov_b32 s67, 0")
        e(f"s_mov_b32 s64, {4*STG}")
        L = self.newlabel("g2l"); Lw = self.newlabel("g2lw"); Lb = self.newlabel("g2lb")
        def waits(cases):
            for per, cnt in cases:
                Ln = self.newlabel("g2w")
                e(f"s_cmp_eq_u32 s67, {per}")
                e(f"s_cbranch_scc0 {Ln}")
                e(f"s_waitcnt vmcnt({cnt})")
                e(f"s_branch {Lb}")
                self.label(Ln)
        self.label(L)
        e("s_cmp_ge_u32 s67, 24")
        e(f"s_cbranch_scc1 {Lw}")
        self.g2_issue_w(64, 65)
        self.g2_adv_w()
        self.g2_issue_t(64, 66)
        e(f"s_add_u32 s64, s64, {STG}")
        e(f"s_cmp_eq_u32 s64, {5*STG}")
        e("s_cselect_b32 s64, 0, s64")
        e("s_waitcnt vmcnt(24)")
        e(f"s_branch {Lb}")
        self.label(Lw)
        Lw1 = self.newlabel("g2lw1")
        e("s_cmp_eq_u32 s67, 24")
        e(f"s_cbranch_scc0 {Lw1}")
        e("v_lshrrev_b32 v20, 2, v0")
        e("s_lshl_b32 s56, s58, 5")
        e("v_add_u32 v20, s56, v20")
        e("v_lshlrev_b32 v20, 8, v20          ; row*256")
        e("v_and_b32 v21, 3, v0")
        e("v_lshl_add_u32 v20, v21, 4, v20")
        e("s_lshl_b32 s56, s60, 18")
        e("s_lshl_b32 s57, s61, 15            ; 128db*256")
        e("s_add_u32 s56, s56, s57")
        e("s_lshl_b32 s57, s69, 6             ; 32kh*2")
        e("s_add_u32 s56, s56, s57")
        e(f"s_add_u32 s56, s56, {WS_HT}")
        for ii in range(4):
            wt, hh = ii >> 1, ii & 1
            e(f"s_add_u32 s57, s56, {wt*128 + hh*16*256}")
            e("s_lshl_b32 s59, s58, 11          ; 32lw*64")
            e(f"s_add_u32 m0, s59, {self.G2_RES + wt*8192 + hh*1024}")
            e(f"buffer_load_dwordx4 v20, {s(SRD_WS,4)}, s57 offen sc1 lds")
        e("s_waitcnt vmcnt(20)")
        e(f"s_branch {Lb}")
        self.label(Lw1)
        waits([(25, 12), (26, 4)])
        e("s_waitcnt vmcnt(0)")
        self.label(Lb)
        e("s_barrier")
        e("s_add_u32 s67, s67, 1")
        e("s_cmp_lt_u32 s67, 28")
        e(f"s_cbranch_scc1 {L}")

    G2_X, G2_Y, G2_ACC = 8, 40, 72
    def g2_frag_reads(self, base, u):
        r = []
        for tt in range(4): r.append(f"ds_read_b128 {v(base + 16 + 4*tt, 4)}, v6 offset:{u*8192 + tt*256}")
        for dt in range(4):
            for h in range(2):
                r.append(f"ds_read_b64_tr_b16 {v(base + 4*dt + 2*h, 2)}, {v(2+dt)} offset:{u*8192 + h*1024}")
        return r

    def g2_half(self, mf_base, rd_base, rd_u, first=False, reads=True, tail=(), waits=None):
        e = self.e
        rds = self.g2_frag_reads(rd_base, rd_u) if reads else []
        fill = list(rds) + list(tail)
        i = 0; k = 0
        for dt in range(4):
            for tt in range(4):
                a = self.G2_ACC + (dt*4 + tt)*4
                if waits and k in waits: e(waits[k])
                e(f"v_mfma_f32_16x16x32_bf16 {v(a,4)}, {v(mf_base + 4*dt, 4)}, {v(mf_base + 16 + 4*tt, 4)}, {'0' if first else v(a,4)}")
                if i < len(fill): e(fill[i]); i += 1
                k += 1
        while i < len(fill): e(fill[i]); i += 1

    def g2_compute(self):
        e = self.e
        X, Y, STG = self.G2_X, self.G2_Y, self.G2_STG
        self.g2_ids()
        e(f"s_lshr_b32 s58, {s(S_WV)}, 1      ; wd")
        e(f"s_and_b32 s59, {s(S_WV)}, 1       ; wt")
        e("v_lshrrev_b32 v13, 4, v0          ; g")
        e("v_and_b32 v14, 15, v0             ; n")
        e("v_lshrrev_b32 v15, 2, v14         ; r")
        e("v_and_b32 v16, 3, v14             ; c")
        e("v_lshl_add_u32 v17, v13, 3, v15   ; row = 8g + r")
        e("v_and_b32 v18, 1, v13")
        e("v_lshl_or_b32 v20, v18, 2, v15    ; f(row)")
        e("v_lshlrev_b32 v21, 8, v17")
        e("v_lshl_add_u32 v21, v16, 3, v21")
        e("v_add_u32 v21, 16384, v21")
        e("s_lshl_b32 s57, s58, 2            ; 4*wd")
        for dt in range(4):
            e(f"s_add_u32 s56, s57, {dt}")
            e("v_xor_b32 v22, s56, v20")
            e(f"v_lshl_add_u32 {v(2+dt)}, v22, 5, v21")
        e("v_lshlrev_b32 v22, 11, v13")
        e("v_lshl_add_u32 v22, v14, 4, v22")
        e("s_lshl_b32 s56, s59, 10")
        e("v_add_u32 v6, s56, v22")
        self.srd(SRD_C, S_B2, D_ * 2)
        e("s_lshl_b32 s56, s61, 8")
        e("s_lshl_b32 s57, s58, 7")
        e("s_add_u32 s56, s56, s57")
        e("v_lshl_add_u32 v7, v13, 3, s56")
        B2 = 200
        for dt in range(4): e(f"buffer_load_dwordx2 {v(B2+2*dt,2)}, v7, {s(SRD_C,4)}, 0 offen offset:{32*dt}")
        e("s_barrier                        ; dep")
        e("s_barrier                        ; B_0")
        self.stamp("g2_loop")
        e("s_mov_b32 s64, 0")
        e(f"s_mov_b32 s62, {STG}")
        e(f"s_mov_b32 s63, {(-4*STG) & 0xffffffff}")
        def adv():
            return ["s_add_u32 s64, s64, 1", "s_cmp_eq_u32 s64, 4"]
        def adv2():
            return [f"v_add_u32 {v(r)}, s65, {v(r)}" for r in range(2, 7)]
        pre = ["s_add_u32 s64, s64, 1", "s_cmp_eq_u32 s64, 5", "s_cselect_b32 s65, s63, s62", "s_cselect_b32 s64, 0, s64"]
        WX = {0: "s_waitcnt lgkmcnt(6)", 4: "s_waitcnt lgkmcnt(8)", 8: "s_waitcnt lgkmcnt(10)", 12: "s_waitcnt lgkmcnt(12)"}
        if self.o.get("g2_fullwait"): WX = {0: "s_waitcnt lgkmcnt(0)"}
        for r in self.g2_frag_reads(X, 0): e(r)
        for p in pre: e(p)
        e("s_waitcnt lgkmcnt(0)")
        self.g2_half(X, Y, 1, first=True, tail=adv2()[:4])
        e(adv2()[4])
        e("s_waitcnt lgkmcnt(0)")
        e("s_barrier                        ; B_1")
        e("s_mov_b32 s67, 0")
        L = self.newlabel("g2c")
        self.label(L)
        for k in range(3):
            self.g2_half(Y, X, 0, tail=pre)
            self.g2_half(X, Y, 1, tail=adv2()[:4], waits=WX)
            e(adv2()[4])
            if k == 2:
                e("s_add_u32 s67, s67, 1"); e("s_cmp_lt_u32 s67, 9")
            e("s_waitcnt lgkmcnt(0)")
            e("s_barrier")
        e(f"s_cbranch_scc1 {L}")
        self.g2_half(Y, None, 0, reads=False)
        self.stamp("g2_loopend")

    def g2_epilogue(self):
        e = self.e
        ACC = self.G2_ACC
        Lk = self.newlabel("g2k")
        e("s_cmp_eq_u32 s69, 0")
        e(f"s_cbranch_scc1 {Lk}")
        for dt in range(4):
            for r in range(8):
                a = ACC + dt*16 + r
                e(f"v_swap_b32 {v(a)}, {v(a+8)}")
        self.label(Lk)
        e("s_xor_b32 s56, s2, 4")
        e("s_lshl_b32 s56, s56, 15")
        e(f"s_lshl_b32 s57, {s(S_WV)}, 13")
        e("s_add_u32 s56, s56, s57")
        e(f"s_add_u32 s62, s56, {WS_EX}")
        e("v_lshlrev_b32 v8, 4, v0")
        for dt in range(4):
            for tk in range(2):
                i = dt*2 + tk
                e(f"s_add_u32 s56, s62, {1024*i}")
                e(f"buffer_store_dwordx4 {v(ACC + dt*16 + 8 + 4*tk, 4)}, v8, {s(SRD_WS,4)}, s56 offen sc1")
        e("v_lshrrev_b32 v13, 4, v0          ; g")
        e("v_and_b32 v14, 15, v0             ; n")
        e("v_lshrrev_b32 v15, 2, v14")
        e("v_and_b32 v16, 3, v14")
        e("v_lshl_add_u32 v17, v13, 2, v15   ; 4g + r")
        e("v_lshlrev_b32 v17, 6, v17")
        e("v_lshl_add_u32 v17, v16, 3, v17")
        e("s_lshl_b32 s56, s59, 13")
        e("s_lshl_b32 s57, s58, 12           ; 64wd*64")
        e("s_add_u32 s56, s56, s57")
        e(f"s_add_u32 s56, s56, {self.G2_RES}")
        e("v_add_u32 v17, s56, v17")
        RS = 168
        for dt in range(4):
            for tk in range(2):
                e(f"ds_read_b64_tr_b16 {v(RS + 2*(2*dt+tk), 2)}, v17 offset:{dt*16*64 + tk*32}")
        self.stamp("g2_sent")

    def g2_epilogue2(self):
        e = self.e
        ACC = self.G2_ACC; RS = 168; B2 = 200
        e("s_lshl_b32 s56, s2, 15")
        e(f"s_lshl_b32 s57, {s(S_WV)}, 13")
        e("s_add_u32 s56, s56, s57")
        e(f"s_add_u32 s62, s56, {WS_EX}")
        IN = 136
        for i in range(1, 8): e(f"s_add_u32 {s(80+i)}, s62, {1024*i}")
        e("s_mov_b32 s80, s62")
        self.srd(SRD_A, S_OUT, S_ * D_ * 2)
        e(f"s_lshl_b32 s56, {s(S_WV)}, 12")
        e("v_and_b32 v10, 1, v13")
        e("v_lshlrev_b32 v10, 1, v10")
        e("v_lshrrev_b32 v11, 1, v13")
        e("v_add_u32 v10, v10, v11")
        e("v_and_b32 v11, 7, v14")
        for dp in range(2):
            e(f"v_add_u32 v12, {4*dp}, v10")
            e("v_xor_b32 v12, v12, v11")
            e("v_lshlrev_b32 v12, 4, v12")
            e("v_lshl_add_u32 v12, v14, 7, v12")
            e(f"v_add_u32 {v(32+dp)}, s56, v12")
        e("v_lshrrev_b32 v11, 3, v0           ; l>>3")
        e("v_and_b32 v12, 7, v0")
        e("v_xor_b32 v10, v12, v11")
        e("v_lshlrev_b32 v10, 4, v10")
        e("v_lshl_add_u32 v10, v11, 7, v10")
        e("v_add_u32 v34, s56, v10")
        e("s_lshl_b32 s56, s60, 7")
        e("s_lshl_b32 s57, s59, 6")
        e("s_add_u32 s56, s56, s57")
        e("s_lshl_b32 s57, s69, 5")
        e("s_add_u32 s56, s56, s57")
        e("v_add_u32 v9, s56, v11")
        e("v_lshlrev_b32 v9, 11, v9")
        e("v_lshl_add_u32 v9, v12, 4, v9")
        e("s_lshl_b32 s56, s61, 8")
        e("s_lshl_b32 s57, s58, 7")
        e("s_add_u32 s63, s56, s57")
        BF = 40
        for dt in range(4):
            self.unpack(BF+4*dt,   B2+2*dt,   0); self.unpack(BF+4*dt+1, B2+2*dt,   1)
            self.unpack(BF+4*dt+2, B2+2*dt+1, 0); self.unpack(BF+4*dt+3, B2+2*dt+1, 1)
        L = self.newlabel("g2in"); Lx = self.newlabel("g2inx")
        L1 = self.newlabel("g2w1"); L1x = self.newlabel("g2w1x")
        e("s_mov_b32 s57, 0x40000")
        e("s_mov_b32 exec_lo, 0"); e("s_mov_b32 exec_hi, 0x80000000")
        self.label(L1)
        e(f"buffer_load_dword v35, v8, {s(SRD_WS,4)}, s87 offen offset:12 sc1")
        e("s_sub_u32 s57, s57, 1")
        e("s_cmp_eq_u32 s57, 0")
        e(f"s_cbranch_scc1 {L1x}")
        e("s_waitcnt vmcnt(0)")
        e("v_cmp_eq_u32 vcc, -1, v35")
        e(f"s_cbranch_vccnz {L1}")
        self.label(L1x)
        e("s_waitcnt vmcnt(0)")
        e("s_mov_b64 exec, -1")
        e("s_mov_b32 s57, 0x40000")
        self.label(L)
        for i in range(8):
            e(f"buffer_load_dwordx4 {v(IN+4*i,4)}, v8, {s(SRD_WS,4)}, {s(80+i)} offen sc1")
        e("s_sub_u32 s57, s57, 1")
        e("s_cmp_eq_u32 s57, 0")
        e(f"s_cbranch_scc1 {Lx}")
        e("s_waitcnt vmcnt(0)")
        e(f"v_max_u32 v35, {v(IN)}, {v(IN+3)}")
        for i in range(1, 8):
            e(f"v_max3_u32 v35, v35, {v(IN+4*i)}, {v(IN+4*i+3)}")
        e("v_cmp_eq_u32 vcc, -1, v35")
        e(f"s_cbranch_vccnz {L}")
        self.label(Lx)
        e("s_waitcnt vmcnt(0) lgkmcnt(0)")
        self.stamp("g2_got")
        k = 0
        for tk in range(2):
            for dp in range(2):
                O = 56 + 4*(k & 1); k += 1
                for dd in range(2):
                    dt = 2*dp + dd
                    i = dt*2 + tk
                    a = ACC + dt*16 + 4*tk
                    T = 64
                    r0 = RS + 2*i
                    self.unpack(T, r0, 0); self.unpack(T+1, r0, 1); self.unpack(T+2, r0+1, 0); self.unpack(T+3, r0+1, 1)
                    for h in range(2):
                        e(f"v_pk_add_f32 {v(a+2*h,2)}, {v(a+2*h,2)}, {v(IN+4*i+2*h,2)}")
                        e(f"v_pk_add_f32 {v(T+2*h,2)}, {v(T+2*h,2)}, {v(BF+4*dt+2*h,2)}")
                        e(f"v_pk_add_f32 {v(a+2*h,2)}, {v(a+2*h,2)}, {v(T+2*h,2)}")
                        e(f"v_cvt_pk_bf16_f32 {v(O+2*dd+h)}, {v(a+2*h)}, {v(a+2*h+1)}")
                e(f"v_permlane16_swap_b32 {v(O)}, {v(O+2)}")
                e(f"v_permlane16_swap_b32 {v(O+1)}, {v(O+3)}")
                e(f"ds_write_b128 {v(32+dp)}, {v(O,4)} offset:{tk*2048}")
        e("s_waitcnt lgkmcnt(0)")
        for i in range(4): e(f"ds_read_b128 {v(72+4*i,4)}, v34 offset:{1024*i}")
        for i in range(4):
            e(f"s_add_u32 s56, s63, {i*8*2048}")
            e(f"s_waitcnt lgkmcnt({3-i})")
            e(f"buffer_store_dwordx4 {v(72+4*i,4)}, v9, {s(SRD_A,4)}, s56 offen")

    def g2(self):
        e = self.e
        Lc = self.newlabel("g2comp"); Le = self.newlabel("g2end")
        e(f"s_cmp_lt_u32 {s(S_WV)}, 4")
        e(f"s_cbranch_scc1 {Lc}")
        self.g2_loader()
        L0 = self.newlabel("g2ep")
        e(f"s_cmp_lg_u32 {s(S_WV)}, 4")
        e(f"s_cbranch_scc1 {L0}")
        e("s_cmp_lg_u32 s2, 0")
        e(f"s_cbranch_scc1 {L0}")
        e(f"v_mov_b32 v254, {s(S_EP)}")
        e(f"v_mov_b32 v255, {WS_EPOCH}")
        e("s_mov_b64 exec, 1")
        e(f"buffer_store_dword v254, v255, {s(SRD_WS,4)}, 0 offen sc1")
        e("s_mov_b64 exec, -1")
        self.label(L0)
        e(f"s_branch {Le}")
        self.label(Lc)
        self.g2_compute()
        self.g2_epilogue()
        self.g2_epilogue2()
        self.label(Le)

    def finish(self):
        self.label("L_end")
        self.e("s_endpgm")

def wrap(body, lds=LDS_BYTES):
    hdr = f"""; Kernarg layout (112 bytes, ptrs only, base s[0:1]): q,k,v,shift_k,ssm_k,ssm_D,B_x,w1,b1,w2,b2,out,debug,ws
; @launch grid=(256,1,1) block=(512,1,1) lds={lds}
.amdgcn_target "amdgcn-amd-amdhsa--gfx950"
.text
.globl {KNAME}
.p2align 8
.type {KNAME},@function
{KNAME}:
"""
    tail = f"""
.section .rodata,"a"
.p2align 6
.amdhsa_kernel {KNAME}
  .amdhsa_next_free_vgpr 256
  .amdhsa_next_free_sgpr 102
  .amdhsa_accum_offset 256
  .amdhsa_group_segment_fixed_size 0
  .amdhsa_kernarg_size 112
  .amdhsa_user_sgpr_count 2
  .amdhsa_user_sgpr_kernarg_segment_ptr 1
  .amdhsa_system_sgpr_workgroup_id_x 1
  .amdhsa_float_denorm_mode_32 3
.end_amdhsa_kernel
"""
    return hdr + body + tail

def build(opts, ret_g=False):
    g = G(opts)
    g.prologue()
    g.stamp("start")
    ph = opts["phases"]
    if "p" in ph:
        g.phase_p()
    else:
        g.epoch_ready()
    if "c" in ph:
        g.phase_c()
        g.stamp("c_end")
        g.signal(3, pf_w2=opts.get("prefetch_w", True))
        g.stamp("c_sig")
    if "g1" in ph:
        g.g1()
        g.stamp("g1_end")
    if "g2" in ph:
        g.g2()
        g.stamp("g2_end")
    g.stamp_flush()
    g.finish()
    src = wrap(g.finalize())
    return (src, g) if ret_g else src

if __name__ == "__main__":
    out = build(dict(phases=["p", "c", "g1", "g2"]))
    path = sys.argv[1] if len(sys.argv) > 1 else "sequential_preLN__ssm_conv_h3__mixer_channel_mlp__prompt.s"
    open(path, "w").write(out)
    print("wrote", path, len(out))
```

```python
import sys
from asmb import Asm, v, s

KNAME = "sequential_preLN__ssm_conv_h3__mixer_channel_mlp__prompt_kernel"
S_, D_, F_ = 2048, 1024, 3584

WS_FLAGS = 0
WS_EPOCH = 32768
WS_ST    = 65536
WS_TSP   = 131072
WS_CSP   = 393216
WS_STAMP = 786432
WS_XR    = 1 << 20
WS_XT    = 5 << 20
WS_HT    = 9 << 20
WS_HM    = 13 << 20
WS_EX    = 28 << 20
WS_SIZE  = 64 << 20

S_X, S_K, S_V, S_SH, S_SSMK, S_SSMD, S_BX, S_W1 = 8, 10, 12, 14, 16, 18, 20, 22
S_B1, S_W2, S_B2, S_OUT = 24, 26, 28, 30
S_DBG, S_WS = 32, 34
SRD_WS, SRD_A, SRD_B, SRD_C = 36, 40, 44, 48
S_WV, S_XI, S_J, S_EP = 52, 53, 54, 55

LDS_BYTES = 163840

class G(Asm):
    def __init__(self, opts):
        super().__init__()
        self.o = opts
        self.stamp_names = []
        self.deferred = []
        self.nt = " nt" if opts.get("nt", True) else ""

    def srd(self, dst, ptr, nbytes):
        self.e(f"s_mov_b32 {s(dst)}, {s(ptr)}")
        self.e(f"s_mov_b32 {s(dst+1)}, {s(ptr+1)}")
        self.e(f"s_mov_b32 {s(dst+2)}, {nbytes}")
        self.e(f"s_mov_b32 {s(dst+3)}, 0x20000")

    def stamp(self, name, defer=False):
        if not self.o.get("stamps"): return
        if name in self.stamp_names: i = self.stamp_names.index(name)
        else:
            i = len(self.stamp_names)
            assert i < 32
            self.stamp_names.append(name)
        op = 's_memtime' if self.o.get('cyc') else 's_memrealtime'
        if defer:
            k = len(self.deferred)
            assert k < 5
            self.deferred.append((i, 70 + 2*k))
            self.e(f"{op} s[{70+2*k}:{71+2*k}]")
            return
        self.e(f"{op} s[100:101]")
        self.e("s_waitcnt lgkmcnt(0)")
        self.e(f"v_writelane_b32 v253, s100, {i}")

    def stamp_commit(self):
        if not self.o.get("stamps"): return
        self.e("s_waitcnt lgkmcnt(0)")
        for i, r in self.deferred: self.e(f"v_writelane_b32 v253, s{r}, {i}")
        self.deferred = []

    def tick(self, i): pass
    def tick_flush(self, n): pass

    def stamp_flush_debug(self):
        e = self.e
        sel = self.o["dbg_sel"]
        self.srd(SRD_A, S_DBG, 256)
        for wave in (0, 4):
            L = self.newlabel("dbgf")
            e(f"s_cmp_lg_u32 {s(S_WV)}, {wave}")
            e(f"s_cbranch_scc1 {L}")
            for i, (nm, w) in enumerate(sel):
                if w != wave: continue
                idx = self.stamp_names.index(nm)
                e(f"v_readlane_b32 s98, v253, {idx}")
                if nm == "start": e("s_not_b32 s98, s98")
                e("v_mov_b32 v254, s98")
                e(f"v_mov_b32 v255, {4*i}")
                e("s_mov_b64 exec, 1")
                e(f"buffer_atomic_umax v254, v255, {s(SRD_A,4)}, 0 offen")
                e("s_mov_b64 exec, -1")
            self.label(L)

    def stamp_flush(self):
        if not self.o.get("stamps"): return
        if self.o.get("dbg_sel"): return self.stamp_flush_debug()
        L = self.newlabel("tf")
        self.e(f"s_and_b32 s98, {s(S_WV)}, 3")
        self.e("s_cmp_lg_u32 s98, 0")
        self.e(f"s_cbranch_scc1 {L}")
        self.e(f"s_lshl_b32 s98, s2, 8")
        self.e(f"s_lshl_b32 s99, {s(S_WV)}, 5")
        self.e("s_add_u32 s98, s98, s99")
        self.e(f"s_add_u32 s98, s98, {WS_STAMP}")
        self.e("v_lshlrev_b32 v255, 2, v0")
        self.e("v_add_u32 v255, s98, v255")
        self.e("s_mov_b32 exec_hi, 0")
        self.e(f"buffer_store_dword v253, v255, {s(SRD_WS,4)}, 0 offen")
        self.e("s_mov_b64 exec, -1")
        self.label(L)

    def prologue(self):
        e = self.e
        e("s_cmp_ge_u32 s2, 256")
        e("s_cbranch_scc1 L_end")
        e("s_load_dwordx16 s[8:23], s[0:1], 0")
        e("s_load_dwordx8 s[24:31], s[0:1], 64")
        e("s_load_dwordx4 s[32:35], s[0:1], 96")
        if self.o.get("code_pf", True):
            e("s_getpc_b64 s[56:57]")
            self.label("L_pc")
            e(f"s_sub_u32 s56, s56, L_pc-{KNAME}")
            e("s_subb_u32 s57, s57, 0")
            e("v_and_b32 v1, 255, v0")
            e("v_lshlrev_b32 v1, 7, v1")
            e("v_lshrrev_b32 v2, 8, v0")
            e("v_lshl_add_u32 v1, v2, 6, v1")
            e(f"v_min_u32 v1, L_end-{KNAME}, v1")
            e("global_load_dword v245, v1, s[56:57]")
        e("v_lshrrev_b32 v1, 6, v0")
        e(f"v_readfirstlane_b32 {s(S_WV)}, v1")
        e("v_and_b32 v0, 63, v0")
        e(f"s_and_b32 {s(S_XI)}, s2, 7")
        e(f"s_lshr_b32 {s(S_J)}, s2, 3")
        e(f"v_mov_b32 v2, {self.C_CNT}")
        e("v_mov_b32 v3, 0")
        e("v_lshl_add_u32 v2, v0, 2, v2")
        e("ds_write_b32 v2, v3")
        e("s_waitcnt lgkmcnt(0)")
        e("s_barrier")
        self.srd(SRD_WS, S_WS, WS_SIZE)
        e(f"s_load_dword {s(S_EP)}, {s(S_WS,2)}, {WS_EPOCH}")

    def lds_count(self, idx, target, then):
        e = self.e
        L = self.newlabel("cnt")
        e(f"v_mov_b32 v250, {self.C_CNT + 4*idx}")
        e("v_mov_b32 v251, 1")
        e("s_mov_b64 exec, 1")
        e("ds_add_rtn_u32 v252, v250, v251")
        e("s_waitcnt lgkmcnt(0)")
        e("v_readfirstlane_b32 s56, v252")
        e("s_mov_b64 exec, -1")
        if then is not None:
            e(f"s_cmp_eq_u32 s56, {target-1}")
            e(f"s_cbranch_scc0 {L}")
            then()
            self.label(L)

    def lds_wait(self, idx, target):
        e = self.e
        L = self.newlabel("lw"); Lx = self.newlabel("lwx")
        e(f"v_mov_b32 v250, {self.C_CNT + 4*idx}")
        e("s_mov_b32 s57, 0x400000")
        self.label(L)
        e("ds_read_b32 v251, v250")
        e("s_sub_u32 s57, s57, 1")
        e("s_cmp_eq_u32 s57, 0")
        e(f"s_cbranch_scc1 {Lx}")
        e("s_waitcnt lgkmcnt(0)")
        e("v_readfirstlane_b32 s56, v251")
        e(f"s_cmp_lt_u32 s56, {target}")
        e(f"s_cbranch_scc1 {L}")
        self.label(Lx)
        e("s_waitcnt lgkmcnt(0)")

    def epoch_ready(self):
        e = self.e
        e("s_waitcnt lgkmcnt(0)")
        e(f"s_and_b32 {s(S_EP)}, {s(S_EP)}, 0xfffffff0")
        e(f"s_add_u32 {s(S_EP)}, {s(S_EP)}, 16")

    def signal(self, p, wave=0, pf_w2=False):
        e = self.e
        e("s_waitcnt vmcnt(0) lgkmcnt(0)")
        e("s_barrier")
        L = self.newlabel("sig")
        e(f"s_cmp_lg_u32 {s(S_WV)}, {wave}")
        e(f"s_cbranch_scc1 {L}")
        self.publish(p)
        self.label(L)
        if pf_w2:
            L = self.newlabel("sgp")
            e(f"s_cmp_ge_u32 {s(S_WV)}, 4")
            e(f"s_cbranch_scc1 {L}")
            self.prefetch_w(2, S_WV)
            self.label(L)

    def poll_all(self, p, t0=248, sleep=0, arr=0):
        e = self.e
        L = self.newlabel("poll"); Lx = self.newlabel("pollx")
        e(f"s_add_u32 s56, {s(S_EP)}, {p}")
        e(f"v_lshlrev_b32 {v(t0+4)}, 7, v0")
        if arr: e(f"v_add_u32 {v(t0+4)}, {8192*arr}, {v(t0+4)}")
        e("s_mov_b32 s57, 0x100000")
        self.label(L)
        if sleep: e(f"s_sleep {sleep}")
        e(f"buffer_load_dwordx4 {v(t0,4)}, {v(t0+4)}, {s(SRD_WS,4)}, 0 offen sc1")
        e("s_sub_u32 s57, s57, 1")
        e("s_cmp_eq_u32 s57, 0")
        e(f"s_cbranch_scc1 {Lx}")
        e("s_waitcnt vmcnt(0)")
        for i in range(4):
            e(f"v_subrev_u32 {v(t0+i)}, s56, {v(t0+i)}")
        e(f"v_max_u32 {v(t0)}, {v(t0)}, {v(t0+1)}")
        e(f"v_max3_u32 {v(t0)}, {v(t0)}, {v(t0+2)}, {v(t0+3)}")
        e(f"v_cmp_le_u32 vcc, 16, {v(t0)}")
        e(f"s_cbranch_vccnz {L}")
        self.label(Lx)
        e("s_waitcnt vmcnt(0)")

    def poll_group(self, p, t0=248, sleep=0):
        e = self.e
        L = self.newlabel("pollg"); Lx = self.newlabel("pollgx")
        e(f"s_add_u32 s56, {s(S_EP)}, {p}")
        e(f"v_and_b32 {v(t0+4)}, 7, v0")
        e(f"v_lshlrev_b32 {v(t0+4)}, 7, {v(t0+4)}")
        e(f"s_lshl_b32 s57, {s(S_XI)}, 10")
        e(f"v_add_u32 {v(t0+4)}, s57, {v(t0+4)}")
        e("s_mov_b32 s57, 0x100000")
        self.label(L)
        if sleep: e(f"s_sleep {sleep}")
        e("s_mov_b64 exec, 0xff")
        e(f"buffer_load_dwordx4 {v(t0,4)}, {v(t0+4)}, {s(SRD_WS,4)}, 0 offen sc1")
        e("s_sub_u32 s57, s57, 1")
        e("s_cmp_eq_u32 s57, 0")
        e(f"s_cbranch_scc1 {Lx}")
        e("s_waitcnt vmcnt(0)")
        for i in range(4):
            e(f"v_subrev_u32 {v(t0+i)}, s56, {v(t0+i)}")
        e(f"v_max_u32 {v(t0)}, {v(t0)}, {v(t0+1)}")
        e(f"v_max3_u32 {v(t0)}, {v(t0)}, {v(t0+2)}, {v(t0+3)}")
        e(f"v_cmp_le_u32 vcc, 16, {v(t0)}")
        e(f"s_cbranch_vccnz {L}")
        self.label(Lx)
        e("s_waitcnt vmcnt(0)")
        e("s_mov_b64 exec, -1")

    def wait_all(self, p, wave=0):
        e = self.e
        if self.o.get("nosync"):
            e("s_barrier"); return
        L = self.newlabel("wa")
        e(f"s_cmp_lg_u32 {s(S_WV)}, {wave}")
        e(f"s_cbranch_scc1 {L}")
        self.poll_all(p)
        self.label(L)
        e("s_barrier")

    def allreduce_add(self, regs, tmp):
        e = self.e
        for mod in ("quad_perm:[1,0,3,2]", "quad_perm:[2,3,0,1]", "row_half_mirror", "row_mirror"):
            for r in regs:
                e(f"v_add_f32_dpp {v(r)}, {v(r)}, {v(r)} {mod} row_mask:0xf bank_mask:0xf")
        for op in ("v_permlane16_swap_b32", "v_permlane32_swap_b32"):
            for r, t in zip(regs, tmp): e(f"v_mov_b32 {v(t)}, {v(r)}")
            for r, t in zip(regs, tmp): e(f"{op} {v(t)}, {v(r)}")
            for r, t in zip(regs, tmp): e(f"v_add_f32 {v(r)}, {v(r)}, {v(t)}")

    def round_bf16(self, dst, src):
        self.e(f"v_cvt_pk_bf16_f32 {v(dst)}, {v(src)}, {v(src)}")
        self.e(f"v_and_b32 {v(dst)}, 0xffff0000, {v(dst)}")

    C_HC, C_HSTR, C_HCH = 0, 4160, 16640
    C_XR, C_XCH = 66560, 4608
    C_ST = 84992
    C_EX = 101376
    C_XT = 134144
    C_CNT = 150528

    def unpack(self, dst, src, hi):
        if hi: self.e(f"v_and_b32 {v(dst)}, 0xffff0000, {v(src)}")
        else:  self.e(f"v_lshlrev_b32 {v(dst)}, 16, {v(src)}")

    def chC(self, dst):
        e = self.e
        e(f"s_and_b32 s58, {s(S_WV)}, 3")
        e(f"s_lshl_b32 s56, {s(S_XI)}, 7")
        e(f"s_lshl_b32 s57, {s(S_J)}, 2")
        e("s_add_u32 s56, s56, s57")
        e(f"s_add_u32 {s(dst)}, s56, s58")

    def lds_transpose_setup(self):
        e = self.e
        e(f"s_lshl_b32 s56, {s(S_WV)}, 12")
        e(f"s_add_u32 s56, s56, {self.C_EX}")
        e("v_xor_b32 v126, v1, v2")
        e("v_lshlrev_b32 v126, 4, v126")
        e("v_lshl_add_u32 v126, v2, 9, v126")
        e("v_add_u32 v126, s56, v126")
        e("v_lshrrev_b32 v127, 5, v0")
        e("v_lshl_add_u32 v128, v1, 7, s56")
        for i in range(4):
            e(f"v_add_u32 v129, {2*i}, v127")
            e("v_xor_b32 v129, v129, v2")
            e(f"v_lshl_add_u32 {v(130+i)}, v129, 4, v128")

    def h_loads(self):
        e = self.e
        e("s_lshl_b32 s56, s63, 12")
        e(f"s_add_u32 {s(SRD_C)}, {s(S_SSMK)}, s56")
        e(f"s_addc_u32 {s(SRD_C+1)}, {s(S_SSMK+1)}, 0")
        e(f"s_mov_b32 {s(SRD_C+2)}, 4096")
        e(f"s_mov_b32 {s(SRD_C+3)}, 0x20000")
        e("v_lshlrev_b32 v8, 4, v0")
        e("v_subrev_u32 v9, 32, v8")
        for it in range(5):
            if it: e(f"v_add_u32 v9, 1024, v9")
            e(f"buffer_load_dwordx4 {v(140+6*it,4)}, v9, {s(SRD_C,4)}, 0 offen{self.nt}")
            e(f"buffer_load_dwordx2 {v(140+6*it+4,2)}, v9, {s(SRD_C,4)}, 0 offen offset:16{self.nt}")

    def h_build(self, younger=0):
        e = self.e
        e(f"s_mul_i32 s56, s58, {self.C_HCH}")
        e("v_add_u32 v8, s56, v8")
        T = 172
        for it in range(5):
            a = 140 + 6*it
            e(f"s_waitcnt vmcnt({2*(4-it) + younger})")
            if it == 4: e("s_mov_b64 exec, 15")
            off = 1024 * it
            e(f"ds_write_b128 v8, {v(a,4)} offset:{self.C_HC + off}")
            for d in range(4): e(f"v_mov_b32 {v(T+d)}, {v(a+1+d)}")
            e(f"ds_write_b128 v8, {v(T,4)} offset:{self.C_HC + 2*self.C_HSTR + off}")
            for d in range(4): e(f"v_alignbit_b32 {v(T+4+d)}, {v(a+d+1)}, {v(a+d)}, 16")
            e(f"ds_write_b128 v8, {v(T+4,4)} offset:{self.C_HC + 1*self.C_HSTR + off}")
            for d in range(4): e(f"v_alignbit_b32 {v(T+8+d)}, {v(a+d+2)}, {v(a+d+1)}, 16")
            e(f"ds_write_b128 v8, {v(T+8,4)} offset:{self.C_HC + 3*self.C_HSTR + off}")
            T = 184 if T == 172 else 172
        e("s_mov_b64 exec, -1")

    def phase_p(self):
        e = self.e
        Lb = self.newlabel("p_b"); Le = self.newlabel("p_e")
        self.chC(63)
        e("v_lshrrev_b32 v1, 3, v0           ; pbk")
        e("v_and_b32 v2, 7, v0               ; cq")
        if self.o.get("p_rot"):
            e(f"s_add_u32 s56, {s(S_XI)}, {s(S_J)}")
            e("s_and_b32 s56, s56, 7")
            e("s_lshl_b32 s56, s56, 7")
        else:
            e(f"s_lshl_b32 s56, {s(S_XI)}, 7")
        e("s_lshl_b32 s57, s58, 5")
        e("s_add_u32 s59, s56, s57            ; 128cb + 32w")
        e("v_lshl_add_u32 v3, v2, 2, s59      ; ch0")
        e(f"s_lshl_b32 s56, {s(S_J)}, 6")
        e("v_lshl_add_u32 v4, v1, 3, s56")
        e("v_lshlrev_b32 v5, 11, v4")
        e("v_lshl_add_u32 v5, v3, 1, v5")
        e(f"s_cmp_ge_u32 {s(S_WV)}, 4")
        e(f"s_cbranch_scc1 {Lb}")
        self.srd(SRD_A, S_K, S_ * D_ * 2)
        self.srd(SRD_B, S_V, S_ * D_ * 2)
        self.srd(SRD_C, S_SH, D_ * 8)
        KD, VD, WD = 10, 32, 48
        e("v_subrev_u32 v120, 6144, v5")
        for i in range(1, 6): e(f"v_add_u32 {v(120+i)}, {4096*i}, v120")
        for i in range(11):
            e(f"buffer_load_dwordx2 {v(KD+2*i,2)}, {v(120+i//2)}, {s(SRD_A,4)}, 0 offen offset:{2048*(i&1)}{self.nt}")
        e("v_lshlrev_b32 v7, 3, v3            ; ch0*8")
        e(f"buffer_load_dwordx4 {v(WD,4)}, v7, {s(SRD_C,4)}, 0 offen")
        e(f"buffer_load_dwordx4 {v(WD+4,4)}, v7, {s(SRD_C,4)}, 0 offen offset:16")
        for p in range(8):
            i = p + 3
            e(f"buffer_load_dwordx2 {v(VD+2*p,2)}, {v(120+i//2)}, {s(SRD_B,4)}, 0 offen offset:{2048*(i&1)}{self.nt}")
        e("v_mov_b32 v8, 0"); e("v_mov_b32 v9, 0")
        e(f"s_mul_i32 s56, s58, {self.C_XCH}")
        e(f"s_add_u32 s56, s56, {self.C_XR + 4096}")
        e("v_lshl_add_u32 v6, v0, 3, s56")
        e("ds_write_b64 v6, v[8:9]")
        self.lds_transpose_setup()
        e("v_lshlrev_b32 v6, 4, v2")
        e(f"s_lshl_b32 s56, {s(S_J)}, 7")
        e("s_sub_u32 s56, 4080, s56")
        e("v_sub_u32 v6, s56, v6")
        e("v_add_u32 v7, s59, v1")
        e("v_lshl_add_u32 v6, v7, 12, v6")
        e(f"v_add_u32 v6, {WS_XR}, v6")
        for c in range(1, 4): e(f"s_mov_b32 {s(64+c)}, {8*4096*c}")
        e("s_mov_b32 s64, 0")
        WP, KP, R, VP, O = 56, 64, 86, 102, 104
        self.stamp("p_issue", defer=True)
        e("s_waitcnt vmcnt(8)")
        self.stamp("p_kdata", defer=True)
        for cp in range(2):
            for j in range(4):
                self.unpack(WP + 2*j,     WD + 2*(2*cp)   + (j >> 1), j & 1)
                self.unpack(WP + 2*j + 1, WD + 2*(2*cp+1) + (j >> 1), j & 1)
            for i in range(11):
                self.unpack(KP + 2*i,     KD + 2*i + cp, 0)
                self.unpack(KP + 2*i + 1, KD + 2*i + cp, 1)
            if cp == 0:
                e("s_waitcnt vmcnt(0)")
                self.stamp("p_vdata", defer=True)
            for p in range(8):
                r = R + 2*p
                e(f"v_pk_mul_f32 {v(r,2)}, {v(KP+2*(p+3),2)}, {v(WP,2)}")
                for j in range(1, 4):
                    e(f"v_pk_fma_f32 {v(r,2)}, {v(KP+2*(p+3-j),2)}, {v(WP+2*j,2)}, {v(r,2)}")
                self.unpack(VP,     VD + 2*p + cp, 0)
                self.unpack(VP + 1, VD + 2*p + cp, 1)
                e(f"v_pk_mul_f32 {v(r,2)}, {v(r,2)}, {v(VP,2)}")
            for cc in range(2):
                c = 2*cp + cc
                for j in range(4):
                    e(f"v_cvt_pk_bf16_f32 {v(O+4*c+j)}, {v(R+2*(7-2*j)+cc)}, {v(R+2*(6-2*j)+cc)}")
                e(f"ds_write_b128 v126, {v(O+4*c,4)} offset:{128*c}")
        e("s_waitcnt lgkmcnt(0)")
        for i in range(4): e(f"ds_read_b128 {v(O+4*i,4)}, {v(130+i)} offset:{1024*i}")
        for i in range(4):
            e(f"s_waitcnt lgkmcnt({3-i})")
            e(f"buffer_store_dwordx4 {v(O+4*i,4)}, v6, {s(SRD_WS,4)}, {s(64+i)} offen sc1")
        self.stamp("p_stored", defer=True)
        if self.o.get("x_late", False):
            e(f"v_mov_b32 v250, {self.C_CNT + 4*5}")
            e("v_mov_b32 v251, 1")
            e("s_mov_b64 exec, 1")
            e("ds_add_u32 v250, v251")
            e("s_mov_b64 exec, -1")
        e("s_and_b32 s56, s63, 0xfffffffe")
        e("s_lshl_b32 s56, s56, 1")
        e(f"s_load_dword s69, {s(S_SSMD,2)}, s56")
        self.epoch_ready()
        self.stamp_commit()
        e("s_waitcnt vmcnt(0)")
        self.lds_count(0, 4, lambda: self.publish(1))
        self.stamp("p_sig")
        e(f"s_branch {Le}")
        self.label(Lb)
        if self.o.get("stamps"): self.deferred = [(self.stamp_names.index("start"), 70)]
        self.h_loads()
        self.srd(SRD_A, S_X, S_ * D_ * 2)
        XD, SD = 10, 26
        late = self.o.get("x_late", False)
        def x_loads():
            e("v_mov_b32 v120, v5")
            for i in range(1, 4): e(f"v_add_u32 {v(120+i)}, {4096*i}, v5")
            for p in range(8):
                e(f"buffer_load_dwordx2 {v(XD+2*p,2)}, {v(120+p//2)}, {s(SRD_A,4)}, 0 offen offset:{2048*(p&1)}{self.nt}")
            e("s_lshl_b32 s56, s2, 3")
            e("s_lshl_b32 s57, s58, 1")
            e("s_add_u32 s62, s56, s57            ; R0 = 8w + 2w'")
            e("s_lshl_b32 s56, s62, 11")
            e("v_lshl_add_u32 v6, v0, 4, s56")
            for i in range(4):
                e(f"buffer_load_dwordx4 {v(SD+4*i,4)}, v6, {s(SRD_A,4)}, 0 offen offset:{1024*i}{self.nt}")
        if not late: x_loads()
        e("s_and_b32 s56, s63, 0xfffffffe")
        e("s_lshl_b32 s56, s56, 1")
        e(f"s_load_dword s69, {s(S_SSMD,2)}, s56")
        self.h_build(younger=0 if late else 12)
        e("s_waitcnt lgkmcnt(0)")
        self.lds_count(1, 4, None)
        self.stamp_commit()
        self.stamp("p_hb")
        if late:
            self.lds_wait(5, 4)
            x_loads()
        self.lds_transpose_setup()
        e("v_lshlrev_b32 v6, 4, v2")
        e(f"s_lshl_b32 s56, {s(S_J)}, 7")
        e("v_add_u32 v6, s56, v6")
        e("v_add_u32 v7, s59, v1")
        e("v_lshl_add_u32 v6, v7, 12, v6")
        e(f"v_add_u32 v6, {WS_XT}, v6")
        for c in range(1, 4): e(f"s_mov_b32 {s(64+c)}, {8*4096*c}")
        e("s_mov_b32 s64, 0")
        e("s_mov_b32 s60, 0x05040100")
        e("s_mov_b32 s61, 0x07060302")
        O = 104
        e("s_waitcnt vmcnt(4)")
        for c in range(4):
            sel = s(61) if c & 1 else s(60)
            for j in range(4):
                e(f"v_perm_b32 {v(O+4*c+j)}, {v(XD+2*(2*j+1)+(c>>1))}, {v(XD+2*(2*j)+(c>>1))}, {sel}")
            e(f"ds_write_b128 v126, {v(O+4*c,4)} offset:{128*c}")
        e("s_waitcnt lgkmcnt(0)")
        for i in range(4): e(f"ds_read_b128 {v(O+4*i,4)}, {v(130+i)} offset:{1024*i}")
        for i in range(4):
            e(f"s_waitcnt lgkmcnt({3-i})")
            e(f"buffer_store_dwordx4 {v(O+4*i,4)}, v6, {s(SRD_WS,4)}, {s(64+i)} offen sc1")
        U = 44
        e("s_waitcnt vmcnt(4)")
        for r in range(2):
            for d in range(8):
                self.unpack(U+16*r+2*d, SD+8*r+d, 0)
                self.unpack(U+16*r+2*d+1, SD+8*r+d, 1)
        SUM = [80, 81]; TMP = [82, 83]; VAR = [86, 87]
        for r in range(2):
            b = U + 16*r
            e(f"v_pk_add_f32 v[84:85], {v(b,2)}, {v(b+2,2)}")
            for d in range(2, 8):
                e(f"v_pk_add_f32 v[84:85], v[84:85], {v(b+2*d,2)}")
            e(f"v_add_f32 {v(SUM[r])}, v84, v85")
        self.allreduce_add(SUM, TMP)
        for r in range(2):
            e(f"v_mul_f32 {v(SUM[r])}, 0x3a800000, {v(SUM[r])}")
        for r in range(2):
            b = U + 16*r
            for d in range(0, 16, 2):
                e(f"v_sub_f32 {v(b+d)}, {v(b+d)}, {v(SUM[r])}")
                e(f"v_sub_f32 {v(b+d+1)}, {v(b+d+1)}, {v(SUM[r])}")
            e(f"v_pk_mul_f32 v[84:85], {v(b,2)}, {v(b,2)}")
            for d in range(1, 8):
                e(f"v_pk_fma_f32 v[84:85], {v(b+2*d,2)}, {v(b+2*d,2)}, v[84:85]")
            e(f"v_add_f32 {v(VAR[r])}, v84, v85")
        self.allreduce_add(VAR, TMP)
        ST = 88
        for r in range(2):
            e(f"v_mul_f32 {v(VAR[r])}, 0x3a800000, {v(VAR[r])}")
            self.round_bf16(VAR[r], VAR[r])
            e(f"v_add_f32 {v(VAR[r])}, 0x3727c5ac, {v(VAR[r])}")
            self.round_bf16(VAR[r], VAR[r])
            e(f"v_sqrt_f32 {v(VAR[r])}, {v(VAR[r])}")
            self.round_bf16(VAR[r], VAR[r])
            e(f"v_rcp_f32 {v(ST+2*r+1)}, {v(VAR[r])}")
            self.round_bf16(ST + 2*r, SUM[r])
        e("s_lshl_b32 s56, s62, 3")
        e(f"s_add_u32 s56, s56, {WS_ST}")
        e("v_mov_b32 v6, s56")
        e("s_mov_b64 exec, 1")
        e(f"buffer_store_dwordx4 {v(ST,4)}, v6, {s(SRD_WS,4)}, 0 offen sc1")
        e("s_mov_b64 exec, -1")
        self.stamp("p_stored")
        self.epoch_ready()
        e("s_waitcnt vmcnt(0)")
        self.lds_count(2, 4, lambda: self.publish(1, arr=1))
        self.stamp("p_sig")
        self.label(Le)

    def publish(self, p, arr=0):
        e = self.e
        e(f"s_add_u32 s56, {s(S_EP)}, {p}")
        e("v_mov_b32 v254, s56")
        e(f"s_lshl_b32 s57, {s(S_XI)}, 10")
        e(f"s_lshr_b32 s56, {s(S_J)}, 2")
        e("s_lshl_b32 s56, s56, 7")
        e("s_add_u32 s57, s57, s56")
        e(f"s_and_b32 s56, {s(S_J)}, 3")
        e("s_lshl_b32 s56, s56, 2")
        e("s_add_u32 s57, s57, s56")
        if arr: e(f"s_add_u32 s57, s57, {8192*arr}")
        e("v_mov_b32 v255, s57")
        e("s_mov_b64 exec, 1")
        e(f"buffer_store_dword v254, v255, {s(SRD_WS,4)}, 0 offen sc1")
        e("s_mov_b64 exec, -1")

    def phase_c(self):
        e = self.e
        Lh = self.newlabel("c_help"); Lj = self.newlabel("c_join"); Lep = self.newlabel("c_epi")
        e(f"s_cmp_ge_u32 {s(S_WV)}, 4")
        e(f"s_cbranch_scc1 {Lh}")
        self.chC(63)
        e("v_lshlrev_b32 v1, 4, v0            ; lane*16")
        Lp = self.newlabel("c_p"); Lp2 = self.newlabel("c_p2")
        e(f"s_cmp_eq_u32 {s(S_WV)}, 0")
        e(f"s_cbranch_scc0 {Lp}")
        if not self.o.get("nosync"): self.poll_group(1, sleep=self.o.get("g_sleep", 4))
        self.lds_count(4, 1, None)
        e(f"s_branch {Lp2}")
        self.label(Lp)
        self.lds_wait(4, 1)
        self.label(Lp2)
        self.stamp("c_start")
        e("s_lshl_b32 s56, s63, 12")
        e(f"s_add_u32 s60, s56, {WS_XR}")
        e(f"s_mul_i32 s56, s58, {self.C_XCH}")
        e(f"s_add_u32 m0, s56, {self.C_XR}")
        for i in range(4):
            e(f"buffer_load_dwordx4 v1, {s(SRD_WS,4)}, s60 offen sc1 lds")
            if i < 3: e("s_add_u32 m0, m0, 1024"); e("s_add_u32 s60, s60, 1024")
        e("v_and_b32 v2, 15, v0               ; n / m")
        e("v_lshrrev_b32 v3, 4, v0            ; g / rho")
        e("v_add_u32 v6, 1, v2")
        e("v_and_b32 v7, 3, v6")
        e(f"v_mul_u32_u24 v7, {self.C_HSTR}, v7")
        e("v_and_b32 v6, 0x1c, v6")
        e("v_lshl_add_u32 v7, v6, 1, v7")
        e("v_lshl_add_u32 v7, v3, 4, v7")
        e(f"s_mul_i32 s56, s58, {self.C_HCH}")
        e(f"s_add_u32 s56, s56, {self.C_HC}")
        e("v_add_u32 v8, s56, v7              ; v8 = A base")
        e("v_lshlrev_b32 v6, 5, v2")
        e("v_lshlrev_b32 v7, 4, v3")
        e("v_sub_u32 v6, v7, v6")
        e(f"s_mul_i32 s56, s58, {self.C_XCH}")
        e(f"s_add_u32 s56, s56, {self.C_XR + 480}")
        e("v_add_u32 v9, s56, v6              ; v9 = B base")
        self.lds_wait(1, 4)
        e("s_waitcnt vmcnt(0)")
        if self.o.get("tlb_touch", False): self.tlb_touch()
        if self.o.get("prefetch_w1", True): self.prefetch_w(1, 58)
        self.stamp("c_loop")
        ACC = 10
        FA = [42, 106]; FB = [74, 138]
        def reads(st, tt):
            r = []
            for i in range(8):
                r.append(f"ds_read_b128 {v(FB[st]+4*i,4)}, v9 offset:{512*(7-i) + 64*tt}")
                for hh in range(2):
                    r.append(f"ds_read_b64 {v(FA[st]+4*i+2*hh,2)}, v8 offset:{512*i + 64*tt + 8*hh}")
            return r
        pairs = sorted([(q, cp) for q in range(8) for cp in range(8 - q)], key=lambda t: (max(t), t[0] + t[1]))
        for r in reads(0, 0): e(r)
        for tt in range(8):
            st = tt & 1
            e("s_waitcnt lgkmcnt(0)")
            nxt = reads(st ^ 1, tt + 1) if tt < 7 else []
            seen = set(); i = 0
            for (q, cp) in pairs:
                c = q + cp
                a = ACC + 4*c
                src = "0" if (tt == 0 and c not in seen) else v(a, 4)
                seen.add(c)
                e(f"v_mfma_f32_16x16x32_bf16 {v(a,4)}, {v(FA[st]+4*q,4)}, {v(FB[st]+4*cp,4)}, {src}")
                if i < len(nxt): e(nxt[i]); i += 1
        self.stamp("c_loopend")
        e(f"s_lshl_b32 s56, s58, 12")
        e(f"s_add_u32 s56, s56, {self.C_EX + 16384}")
        e("v_add_u32 v6, s56, v1")
        for i in range(4): e(f"ds_write_b128 v6, {v(ACC+16+4*i,4)} offset:{1024*i}")
        e("s_waitcnt lgkmcnt(0)")
        e("s_barrier")
        e(f"s_branch {Lep}")
        self.label(Lh)
        self.chC(63)
        Lq = self.newlabel("c_q"); Lq2 = self.newlabel("c_q2")
        e(f"s_cmp_eq_u32 {s(S_WV)}, 4")
        e(f"s_cbranch_scc0 {Lq}")
        if not self.o.get("nosync"): self.poll_all(1, sleep=self.o.get('x_sleep', 16), arr=1)
        self.stamp("c_xpoll")
        e("v_lshlrev_b32 v1, 4, v0")
        e(f"s_mov_b32 s60, {WS_ST}")
        e(f"s_mov_b32 m0, {self.C_ST}")
        for i in range(16):
            e(f"buffer_load_dwordx4 v1, {s(SRD_WS,4)}, s60 offen sc1 lds")
            e("s_add_u32 m0, m0, 1024"); e("s_add_u32 s60, s60, 1024")
        e("s_lshl_b32 s56, s63, 12")
        e(f"s_add_u32 s60, s56, {WS_XT}")
        e(f"s_mov_b32 m0, {self.C_XT}")
        for i in range(16):
            e(f"buffer_load_dwordx4 v1, {s(SRD_WS,4)}, s60 offen sc1 lds")
            if i < 15: e("s_add_u32 m0, m0, 1024"); e("s_add_u32 s60, s60, 1024")
        e("s_waitcnt vmcnt(0)")
        self.stamp("c_xjob")
        e(f"s_branch {Lq2}")
        self.label(Lq)
        if self.o.get("prealloc", False):
            L5 = self.newlabel("c_5")
            e(f"s_cmp_eq_u32 {s(S_WV)}, 5")
            e(f"s_cbranch_scc0 {L5}")
            e("v_lshrrev_b32 v1, 4, v0")
            e("v_lshlrev_b32 v1, 18, v1")
            e("v_and_b32 v2, 15, v0")
            e("v_lshl_add_u32 v1, v2, 4, v1")
            e("s_and_b32 s56, s63, 0xfffffffc")
            e("s_lshl_b32 s56, s56, 8")
            e(f"s_add_u32 s60, s56, {WS_HT}")
            for c in range(4):
                for mq in range(4):
                    e(f"s_add_u32 s56, s60, {c*256 + mq*4*262144}")
                    e(f"buffer_store_dwordx4 v[12:15], v1, {s(SRD_WS,4)}, s56 offen sc1")
            e("s_waitcnt vmcnt(0)")
            self.label(L5)
        if "g2" in self.o["phases"] and self.o.get("sent_c"):
            e(f"s_cmp_lt_u32 {s(S_WV)}, 6")
            e(f"s_cbranch_scc1 {Lq2}")
            e("s_lshl_b32 s56, s2, 15")
            e(f"s_sub_u32 s57, {s(S_WV)}, 6")
            e("s_lshl_b32 s57, s57, 14")
            e("s_add_u32 s56, s56, s57")
            e(f"s_add_u32 s60, s56, {WS_EX}")
            e("v_lshlrev_b32 v1, 4, v0")
            for r in range(4): e(f"v_mov_b32 {v(12+r)}, -1")
            for i in range(16):
                e(f"buffer_store_dwordx4 v[12:15], v1, {s(SRD_WS,4)}, s60 offen sc1")
                if i < 15: e("s_add_u32 s60, s60, 1024")
        self.label(Lq2)
        self.stamp("c_loopend")
        e("s_barrier")
        self.chC(63)
        e("v_lshlrev_b32 v1, 4, v0")
        e("v_and_b32 v2, 15, v0")
        e("v_lshrrev_b32 v3, 4, v0")
        e(f"s_lshl_b32 s56, s58, 12")
        e(f"s_add_u32 s56, s56, {self.C_EX + 16384}")
        e("v_add_u32 v6, s56, v1")
        for i in range(4): e(f"ds_read_b128 {v(ACC+4*i,4)}, v6 offset:{1024*i}")
        self.label(Lep)
        self.stamp("c_exch")
        e(f"s_lshr_b32 s59, {s(S_WV)}, 2       ; kh")
        e("v_and_b32 v4, 1, v3")
        e("s_lshl_b32 s56, s59, 2")
        e("v_add_u32 v4, s56, v4")
        e("v_lshlrev_b32 v4, 8, v4")
        e("v_lshl_add_u32 v4, v2, 4, v4")
        e("v_lshrrev_b32 v5, 1, v3")
        e("v_lshl_add_u32 v4, v5, 3, v4       ; v4 = s (pair 0)")
        KV, STT, XE = 42, 50, 82
        e("v_sub_u32 v5, 2040, v4")
        e("v_lshlrev_b32 v5, 1, v5")
        e(f"s_mul_i32 s56, s58, {self.C_XCH}")
        e(f"s_add_u32 s56, s56, {self.C_XR - 1024}")
        e("v_add_u32 v5, s56, v5")
        e(f"ds_read_b128 {v(KV,4)}, v5 offset:1024")
        e(f"ds_read_b128 {v(KV+4,4)}, v5")
        e("s_lshl_b32 s56, s58, 12")
        e(f"s_add_u32 s56, s56, {self.C_XT}")
        e("v_lshl_add_u32 v5, v4, 1, s56")
        e(f"ds_read_b128 {v(XE,4)}, v5")
        e(f"ds_read_b128 {v(XE+4,4)}, v5 offset:1024")
        e("v_lshlrev_b32 v5, 3, v4")
        e(f"v_add_u32 v5, {self.C_ST}, v5")
        for p in range(2):
            for i in range(4):
                e(f"ds_read_b128 {v(STT+16*p+4*i,4)}, v5 offset:{4096*p + 16*i}")
        e("v_lshrrev_b32 v5, 7, v4")
        e("v_lshlrev_b32 v5, 18, v5")
        e("v_and_b32 v6, 127, v4")
        e("v_lshl_add_u32 v5, v6, 1, v5")
        e("s_lshl_b32 s56, s63, 8")
        e(f"s_add_u32 s60, s56, {WS_HT}")
        e(f"s_add_u32 s62, s60, {4 << 18}")
        e("s_and_b32 s56, s63, 1")
        e("s_lshl_b32 s56, s56, 4")
        e("s_lshr_b32 s61, s69, s56")
        e("s_lshl_b32 s61, s61, 16")
        e("s_waitcnt lgkmcnt(0)")
        H = 110
        for p in range(2):
            a = ACC + 8*p; b = a + 4
            for r in range(4):
                e(f"v_permlane16_swap_b32 {v(a+r)}, {v(b+r)}")
            for el in range(8):
                y = a + el
                xr_ = XE + 4*p + (el >> 1)
                kj = KV + 4*p + ((7 - el) >> 1)
                t0 = H + 16 + (el & 1) * 4
                self.unpack(t0, xr_, el & 1)
                self.unpack(t0 + 1, kj, 1 - (el & 1))
                m_ = STT + 16*p + 2*el
                e(f"v_fmac_f32 {v(y)}, s61, {v(t0+1)}")
                e(f"v_sub_f32 {v(t0+2)}, {v(t0)}, {v(m_)}")
                e(f"v_mul_f32 {v(t0+2)}, {v(t0+2)}, {v(m_+1)}")
                e(f"v_fma_f32 {v(H+el)}, {v(t0+2)}, {v(y)}, {v(t0)}")
            O = H + 8
            for j in range(4):
                e(f"v_cvt_pk_bf16_f32 {v(O+j)}, {v(H+2*j)}, {v(H+2*j+1)}")
            e(f"buffer_store_dwordx4 {v(O,4)}, v5, {s(SRD_WS,4)}, {s(60 if p == 0 else 62)} offen sc1")
            H = 140

    def tlb_touch(self):
        e = self.e
        L = self.newlabel("tlb")
        e(f"s_cmp_lg_u32 {s(S_WV)}, 0")
        e(f"s_cbranch_scc1 {L}")
        e("v_min_u32 v244, 23, v0")
        e("v_lshlrev_b32 v244, 20, v244")
        e(f"v_add_u32 v244, {WS_HM + 4096}, v244")
        e(f"buffer_load_dword v243, v244, {s(SRD_WS,4)}, 0 offen")
        self.srd(SRD_A, S_OUT, S_ * D_ * 2)
        e("v_min_u32 v244, 3, v0")
        e("v_lshlrev_b32 v244, 20, v244")
        e(f"buffer_load_dword v242, v244, {s(SRD_A,4)}, 0 offen")
        self.label(L)

    def prefetch_w(self, which, swave):
        e = self.e
        ptr = S_W1 if which == 1 else S_W2
        gran = self.o.get("pf_gran", 64)
        self.srd(SRD_C, ptr, D_ * F_ * 2)
        e("s_lshl_b32 s56, s2, 2")
        e(f"s_add_u32 s56, s56, {s(swave)}")
        e("s_mul_i32 s56, s56, 56*128")
        e("v_min_u32 v247, 55, v0")
        e("v_lshlrev_b32 v247, 7, v247")
        e("v_add_u32 v247, s56, v247")
        e(f"buffer_load_dword v246, v247, {s(SRD_C,4)}, 0 offen")
        if gran == 64: e(f"buffer_load_dword v245, v247, {s(SRD_C,4)}, 0 offen offset:64")

    G1_STG = 45056
    G1_TOK, G1_W = 0, 16384
    G1_AST = 135168
    G1_CS  = 136192
    G1_B1  = 137216
    G1_CNT = 138240

    def g1_ids(self):
        e = self.e
        e(f"s_and_b32 s56, {s(S_XI)}, 1")
        e("s_lshl_b32 s56, s56, 3")
        e(f"s_and_b32 s57, {s(S_J)}, 7")
        e("s_add_u32 s60, s56, s57          ; mb")
        e(f"s_lshr_b32 s56, {s(S_XI)}, 1")
        e("s_lshl_b32 s56, s56, 2")
        e(f"s_lshr_b32 s57, {s(S_J)}, 3")
        e("s_add_u32 s61, s56, s57          ; nb")

    def wg_of(self, dst, vmb, vnb, t):
        e = self.e
        e(f"v_lshrrev_b32 {v(dst)}, 3, {v(vmb)}")
        e(f"v_lshrrev_b32 {v(t)}, 2, {v(vnb)}")
        e(f"v_lshl_add_u32 {v(dst)}, {v(t)}, 1, {v(dst)}      ; x")
        e(f"v_and_b32 {v(t)}, 7, {v(vmb)}")
        e(f"v_lshl_add_u32 {v(dst)}, {v(t)}, 3, {v(dst)}")
        e(f"v_and_b32 {v(t)}, 3, {v(vnb)}")
        e(f"v_lshl_add_u32 {v(dst)}, {v(t)}, 6, {v(dst)}")

    def flag_addr(self, dst, t):
        e = self.e
        e(f"v_and_b32 {v(t)}, 7, {v(dst)}")
        e(f"v_lshlrev_b32 {v(t)}, 10, {v(t)}")
        e(f"v_lshrrev_b32 {v(t+1)}, 5, {v(dst)}")
        e(f"v_lshl_add_u32 {v(t)}, {v(t+1)}, 7, {v(t)}")
        e(f"v_bfe_u32 {v(dst)}, {v(dst)}, 3, 2")
        e(f"v_lshl_add_u32 {v(dst)}, {v(dst)}, 2, {v(t)}")

    def poll_addr(self, p, va, vd):
        e = self.e
        L = self.newlabel("pa"); Lx = self.newlabel("pax")
        e(f"s_add_u32 s56, {s(S_EP)}, {p}")
        e("s_mov_b32 s57, 0x100000")
        self.label(L)
        e(f"buffer_load_dword {v(vd)}, {v(va)}, {s(SRD_WS,4)}, 0 offen sc1")
        e("s_sub_u32 s57, s57, 1")
        e("s_cmp_eq_u32 s57, 0")
        e(f"s_cbranch_scc1 {Lx}")
        e("s_waitcnt vmcnt(0)")
        e(f"v_subrev_u32 {v(vd)}, s56, {v(vd)}")
        e(f"v_cmp_le_u32 vcc, 16, {v(vd)}")
        e(f"s_cbranch_vccnz {L}")
        self.label(Lx)
        e("s_waitcnt vmcnt(0)")

    def g1_loader_setup(self):
        e = self.e
        e(f"s_sub_u32 s58, {s(S_WV)}, 4       ; lw")
        e("v_lshrrev_b32 v13, 4, v0          ; g = lane>>4")
        e("v_and_b32 v14, 15, v0             ; p")
        e("v_lshrrev_b32 v15, 1, v14         ; b'")
        e("v_and_b32 v16, 1, v14             ; half")
        e("v_xor_b32 v15, v15, v13           ; b' ^ (row&3)")
        e("s_lshl_b32 s59, s58, 4")
        e("v_add_u32 v17, s59, v13")
        e("v_lshlrev_b32 v17, 8, v17         ; *256")
        e("v_lshl_add_u32 v17, v16, 4, v17")
        e("s_lshl_b32 s59, s60, 18           ; mb*262144")
        e(f"s_add_u32 s59, s59, {WS_HT}")
        e("v_add_u32 v17, s59, v17")
        for ii in range(4):
            x4 = 4 if (ii >> 1) & 1 else 0
            e(f"v_xor_b32 v18, {x4}, v15")
            e("v_lshl_add_u32 v18, v18, 5, v17")
            e(f"v_add_u32 {v(2+ii)}, {ii*4*256}, v18")
        e("s_mov_b32 s59, 0x924924a          ; ceil(2^32/28)")
        for ii in range(7):
            e(f"v_add_u32 v13, {64*ii}, v0")
            e("v_mul_hi_u32 v14, s59, v13        ; row_local")
            e("v_mul_u32_u24 v15, 28, v14")
            e("v_sub_u32 v15, v13, v15           ; p")
            e("v_bfe_u32 v16, v14, 3, 1          ; bit3(row)")
            e("v_lshrrev_b32 v17, 1, v15         ; b'")
            e("v_xor_b32 v17, v17, v16           ; b")
            e("v_and_b32 v15, 1, v15")
            e("v_lshlrev_b32 v15, 4, v15")
            e("v_lshl_add_u32 v15, v17, 5, v15   ; b*32 + half*16")
            e("v_mul_u32_u24 v14, 7168, v14")
            e(f"v_add_u32 {v(6+ii)}, v14, v15")
        e("s_mul_i32 s59, s58, 16*7168")
        e("s_mul_i32 s57, s61, 448")
        e("s_add_u32 s59, s59, s57")
        for ii in range(7):
            e(f"v_add_u32 {v(6+ii)}, s59, {v(6+ii)}")
        e("s_lshl_b32 s62, s58, 12")
        e("s_mul_i32 s63, s58, 7168")
        e(f"s_add_u32 s63, s63, {self.G1_W}")

    def g1_issue_w(self, sbuf, sk):
        e = self.e
        if self.o.get("g1_nodma"): return
        e(f"s_add_u32 m0, {s(sbuf)}, s63")
        for ii in range(7):
            e(f"buffer_load_dwordx4 {v(6+ii)}, {s(SRD_B,4)}, {s(sk)} offen lds")
            if ii < 6: e("s_add_u32 m0, m0, 1024")

    def g1_issue_t(self, sbuf, sk):
        e = self.e
        if self.o.get("g1_nodma"): return
        e(f"s_add_u32 m0, {s(sbuf)}, s62")
        for ii in range(4):
            e(f"buffer_load_dwordx4 {v(2+ii)}, {s(SRD_WS,4)}, {s(sk)} offen {self.o.get('t_aux', 'sc1')} lds")
            if ii < 3: e("s_add_u32 m0, m0, 1024")

    def g1_next_k(self):
        e = self.e
        e("s_add_u32 s68, s68, 1")
        e("s_and_b32 s68, s68, 15")
        e(f"s_mul_i32 s65, s68, {64*7168}")
        e(f"s_lshl_b32 s66, s68, 14")

    def g1_side_col(self):
        e = self.e
        e("v_lshrrev_b32 v20, 4, v0          ; g")
        e("v_and_b32 v21, 15, v0")
        e("v_lshrrev_b32 v22, 2, v21         ; r")
        e("v_and_b32 v23, 3, v21             ; c")
        e("v_lshl_add_u32 v24, v20, 3, v22   ; row = 8g + r")
        e("v_and_b32 v25, 1, v20             ; g&1")
        e("v_mul_u32_u24 v27, 448, v24")
        e("v_lshl_add_u32 v27, v23, 3, v27")
        e(f"v_add_u32 v27, {self.G1_W}, v27")
        WF, ONE, DC = 48, 80, 100
        for i in range(4):
            e(f"s_add_u32 s56, s58, {4*i}")
            e("s_min_u32 s56, s56, 13")
            e(f"s_mov_b32 {s(84+i)}, s56")
            e("v_xor_b32 v28, s56, v25")
            e(f"v_lshl_add_u32 {v(116+i)}, v28, 5, v27")
        for i in range(4):
            for u in range(2):
                for h in range(2):
                    e(f"ds_read_b64_tr_b16 {v(WF+8*i+4*u+2*h,2)}, {v(116+i)} offset:{u*32*448 + h*4*448}")
        for r in range(4): e(f"v_mov_b32 {v(ONE+r)}, 0x3f803f80")
        e("s_waitcnt lgkmcnt(0)")
        for u in range(2):
            for i in range(4):
                e(f"v_mfma_f32_16x16x32_bf16 {v(DC+4*i,4)}, {v(WF+8*i+4*u,4)}, {v(ONE,4)}, {'0' if u == 0 else v(DC+4*i,4)}")
        e("s_lshl_b32 s56, s61, 4")
        e("s_add_u32 s56, s56, s60")
        e("s_lshl_b32 s56, s56, 10")
        e(f"s_add_u32 s56, s56, {WS_CSP}")
        e("v_lshl_add_u32 v28, v20, 4, s56")
        e("s_mov_b32 exec_lo, 0x00010001"); e("s_mov_b32 exec_hi, 0x00010001")
        for i in range(4):
            e(f"s_lshl_b32 s56, {s(84+i)}, 6")
            e(f"buffer_store_dwordx4 {v(DC+4*i,4)}, v28, {s(SRD_WS,4)}, s56 offen sc1")
        e("s_mov_b64 exec, -1")

    def g1_tok_mfma(self, base, first):
        e = self.e
        ONE, D1, D2 = 224, 208, 216
        La = self.newlabel("g1t"); Lb = self.newlabel("g1t2")
        e("s_cmp_eq_u32 s58, 0")
        e(f"s_cbranch_scc0 {La}")
        for pas in range(2):
            if pas == 1: self.label(La)
            for i in range(2):
                t = v(base + 28 + 4*(2*pas + i), 4)
                e(f"v_mfma_f32_16x16x32_bf16 {v(D1+4*i,4)}, {v(ONE,4)}, {t}, {'0' if first else v(D1+4*i,4)}")
                e(f"v_mfma_f32_16x16x32_bf16 {v(D2+4*i,4)}, {t}, {t}, {'0' if first else v(D2+4*i,4)}")
            if pas == 0: e(f"s_branch {Lb}")
        self.label(Lb)

    def g1_tok_store(self):
        e = self.e
        D1, D2 = 208, 216
        e("s_lshl_b32 s56, s60, 4")
        e("s_add_u32 s56, s56, s61")
        e("s_lshl_b32 s56, s56, 10")
        e(f"s_add_u32 s56, s56, {WS_TSP}")
        e("s_lshl_b32 s57, s59, 9            ; 4wt*16*8")
        e("s_add_u32 s56, s56, s57")
        e("s_lshl_b32 s57, s58, 8            ; 2wf*16*8")
        e("s_add_u32 s56, s56, s57")
        e("v_and_b32 v228, 15, v0")
        e("v_lshl_add_u32 v228, v228, 3, s56")
        e("s_mov_b32 s80, 0x22222222"); e("s_mov_b32 s81, 0x22222222")
        e("s_mov_b32 s82, 0x44444444"); e("s_mov_b32 s83, 0x44444444")
        e("s_mov_b32 vcc_lo, 0x88888888"); e("s_mov_b32 vcc_hi, 0x88888888")
        for i in range(2):
            o = 230 + 2*i
            e(f"v_mov_b32 {v(o)}, {v(D1+4*i)}")
            e(f"v_cndmask_b32 {v(o+1)}, {v(D2+4*i)}, {v(D2+4*i+1)}, s[80:81]")
            e(f"v_cndmask_b32 {v(o+1)}, {v(o+1)}, {v(D2+4*i+2)}, s[82:83]")
            e(f"v_cndmask_b32 {v(o+1)}, {v(o+1)}, {v(D2+4*i+3)}, vcc")
        e("s_mov_b32 exec_lo, 0x00f0000f"); e("s_mov_b32 exec_hi, 0xf0000f00")
        for i in range(2):
            e(f"buffer_store_dwordx2 {v(230+2*i,2)}, v228, {s(SRD_WS,4)}, 0 offen offset:{128*i} sc1")
        e("s_mov_b64 exec, -1")

    def g1_side_signal(self):
        e = self.e
        L = self.newlabel("g1s")
        e(f"v_mov_b32 v20, {self.G1_CNT}")
        e("v_mov_b32 v21, 1")
        e("s_mov_b64 exec, 1")
        e("ds_add_rtn_u32 v22, v20, v21")
        e("s_waitcnt lgkmcnt(0)")
        e("v_readfirstlane_b32 s56, v22")
        e("s_mov_b64 exec, -1")
        e("s_cmp_eq_u32 s56, 3")
        e(f"s_cbranch_scc0 {L}")
        self.publish(4)
        self.label(L)

    def g1_side_poll_issue(self):
        e = self.e
        e("v_and_b32 v20, 15, v0")
        e("v_bfe_u32 v21, v0, 4, 1")
        e("v_cmp_eq_u32 vcc, 0, v21")
        e("v_mov_b32 v22, s60"); e("v_mov_b32 v23, s61")
        e("v_cndmask_b32 v24, v20, v22, vcc")
        e("v_cndmask_b32 v25, v23, v20, vcc")
        self.wg_of(40, 24, 25, 26)
        self.flag_addr(40, 26)
        e(f"buffer_load_dword v41, v40, {s(SRD_WS,4)}, 0 offen sc1")

    def g1_side_loads(self):
        e = self.e
        L = self.newlabel("g1p")
        e(f"s_add_u32 s56, {s(S_EP)}, 4")
        e("v_subrev_u32 v41, s56, v41")
        e("v_cmp_le_u32 vcc, 16, v41")
        e(f"s_cbranch_vccz {L}")
        if not self.o.get("nosync"): self.poll_addr(4, 40, 41)
        self.label(L)
        e("v_and_b32 v20, 31, v0")
        e("s_lshl_b32 s56, s58, 5")
        e("v_add_u32 v42, s56, v20            ; token")
        e("v_lshrrev_b32 v21, 5, v0")
        e("v_lshlrev_b32 v21, 13, v21         ; hf*8*1024")
        e("v_lshl_add_u32 v21, v42, 3, v21")
        e("s_lshl_b32 s56, s60, 14")
        e(f"s_add_u32 s56, s56, {WS_TSP}")
        e("v_add_u32 v21, s56, v21")
        for jj in range(8):
            if jj == 4: e("v_add_u32 v21, 4096, v21")
            e(f"buffer_load_dwordx2 {v(44+2*jj,2)}, v21, {s(SRD_WS,4)}, 0 offen offset:{1024*(jj&3)} sc1")
        e("v_and_b32 v20, 15, v0")
        e("v_min_u32 v20, 13, v20")
        e("s_mul_i32 s56, s58, 14")
        e("v_add_u32 v43, s56, v20            ; fq")
        e("v_lshrrev_b32 v21, 4, v0")
        e("v_lshlrev_b32 v21, 12, v21")
        e("v_lshl_add_u32 v21, v43, 4, v21")
        e("s_lshl_b32 s56, s61, 14")
        e(f"s_add_u32 s56, s56, {WS_CSP}")
        e("v_add_u32 v21, s56, v21")
        for jj in range(4):
            e(f"buffer_load_dwordx4 {v(60+4*jj,4)}, v21, {s(SRD_WS,4)}, 0 offen offset:{1024*jj} sc1")

    def g1_b1_load(self):
        e = self.e
        self.srd(SRD_C, S_B1, F_ * 2)
        e("v_and_b32 v20, 15, v0")
        e("v_min_u32 v20, 13, v20")
        e("s_mul_i32 s56, s58, 14")
        e("v_add_u32 v20, s56, v20")
        e("s_mul_i32 s56, s61, 448")
        e("v_lshl_add_u32 v21, v20, 3, s56")
        e(f"buffer_load_dwordx2 v[126:127], v21, {s(SRD_C,4)}, 0 offen")

    def g1_side_final_tok(self):
        e = self.e
        for jj in range(1, 8): e(f"v_pk_add_f32 v[44:45], v[44:45], {v(44+2*jj,2)}")
        e("v_mov_b32 v46, v44"); e("v_mov_b32 v47, v45")
        e("v_permlane32_swap_b32 v46, v44"); e("v_permlane32_swap_b32 v47, v45")
        e("v_add_f32 v44, v44, v46"); e("v_add_f32 v45, v45, v47")
        e("v_mul_f32 v44, 0x3a800000, v44      ; mu")
        e("v_mul_f32 v45, 0x3a800000, v45      ; E[h^2]")
        e("v_fma_f32 v45, -v44, v44, v45       ; var")
        e("v_max_f32 v45, 0, v45")
        self.round_bf16(46, 44)
        self.round_bf16(47, 45)
        e("v_add_f32 v47, 0x3727c5ac, v47")
        self.round_bf16(47, 47)
        e("v_sqrt_f32 v47, v47")
        self.round_bf16(47, 47)
        e("v_rcp_f32 v48, v47                  ; 1/sd1")
        e("v_sub_f32 v49, v44, v46")
        e("v_mul_f32 v49, v49, v48             ; mean(y1)")
        self.round_bf16(49, 49)
        e("v_mul_f32 v50, v45, v48")
        e("v_mul_f32 v50, v50, v48             ; var(y1)")
        self.round_bf16(50, 50)
        e("v_add_f32 v50, 0x3727c5ac, v50")
        self.round_bf16(50, 50)
        e("v_sqrt_f32 v50, v50")
        self.round_bf16(50, 50)
        e("v_rcp_f32 v50, v50")
        e("v_mul_f32 v52, v48, v50")
        e("v_fma_f32 v51, v49, v47, v46        ; M = m1 + m2*sd1")
        e("v_mul_f32 v53, v52, v51             ; am")
        e(f"v_lshlrev_b32 v20, 3, v42")
        e(f"v_add_u32 v20, {self.G1_AST}, v20")
        e("s_mov_b32 exec_hi, 0")
        e("ds_write_b64 v20, v[52:53]")
        e("s_mov_b64 exec, -1")
        e("s_waitcnt lgkmcnt(0)")

    def g1_side_final_col(self):
        e = self.e
        for jj in range(1, 4):
            e(f"v_pk_add_f32 v[60:61], v[60:61], {v(60+4*jj,2)}")
            e(f"v_pk_add_f32 v[62:63], v[62:63], {v(62+4*jj,2)}")
        for op in ("v_permlane16_swap_b32", "v_permlane32_swap_b32"):
            for r in range(4): e(f"v_mov_b32 {v(64+r)}, {v(60+r)}")
            for r in range(4): e(f"{op} {v(64+r)}, {v(60+r)}")
            for r in range(4): e(f"v_add_f32 {v(60+r)}, {v(60+r)}, {v(64+r)}")
        self.unpack(68, 126, 0); self.unpack(69, 126, 1); self.unpack(70, 127, 0); self.unpack(71, 127, 1)
        e("v_lshlrev_b32 v20, 4, v43")
        e(f"v_add_u32 v20, {self.G1_CS}, v20")
        e("s_mov_b64 exec, 0x3fff")
        e("ds_write_b128 v20, v[60:63]")
        e(f"ds_write_b128 v20, v[68:71] offset:{self.G1_B1 - self.G1_CS}")
        e("s_mov_b64 exec, -1")
        e("s_waitcnt lgkmcnt(0)")

    def g1_loader(self):
        e = self.e
        STG = self.G1_STG
        self.srd(SRD_B, S_W1, D_ * F_ * 2)
        self.g1_loader_setup()
        e(f"v_mov_b32 v20, {self.G1_CNT}"); e("v_mov_b32 v21, 0")
        e("ds_write_b32 v20, v21")
        if self.o.get("g1_norot"): e("s_mov_b32 s68, 0")
        else: e("s_add_u32 s68, s60, s61")
        e("s_sub_u32 s68, s68, 1")
        self.g1_next_k()
        e("s_mov_b32 s88, s66")
        e("s_mov_b32 s64, 0")
        self.g1_issue_w(64, 65)
        self.g1_next_k()
        e(f"s_mov_b32 s64, {STG}")
        self.g1_issue_w(64, 65)
        self.g1_b1_load()
        side = not self.o.get("g1_noside")
        e("s_waitcnt vmcnt(8)")
        e("s_barrier                        ; W(r) resident")
        if side: self.g1_side_col()
        self.g1_dep_wait()
        e("s_mov_b32 s64, 0")
        self.g1_issue_t(64, 88)
        e(f"s_mov_b32 s64, {STG}")
        self.g1_issue_t(64, 66)
        e("s_waitcnt vmcnt(4) lgkmcnt(0)")
        e("s_barrier                        ; B_0")
        e("s_mov_b32 s67, 0                 ; period i")
        e(f"s_mov_b32 s64, {2*STG}")
        sent = "g2" in self.o["phases"] and not self.o.get("sent_c")
        if sent:
            e("s_lshl_b32 s89, s2, 15")
            e("s_lshl_b32 s56, s58, 13")
            e("s_add_u32 s89, s89, s56")
            e(f"s_add_u32 s89, s89, {WS_EX}")
            e("v_lshlrev_b32 v128, 4, v0")
            for r in range(4): e(f"v_mov_b32 {v(132+r)}, -1")
        pre = self.o.get("prealloc", False)
        if pre:
            e("s_mul_i32 s89, s60, 112")
            e("s_mul_i32 s56, s61, 7")
            e("s_add_u32 s89, s89, s56")
            e("s_lshl_b32 s89, s89, 13")
            e("s_mul_i32 s56, s58, 14336")
            e("s_add_u32 s89, s89, s56")
            e(f"s_add_u32 s89, s89, {WS_HM}")
            e("v_lshlrev_b32 v128, 4, v0")
        L = self.newlabel("g1l"); Lw = self.newlabel("g1lw"); Lb = self.newlabel("g1lb")
        def hook(per, fn):
            La = self.newlabel("g1a"); e(f"s_cmp_eq_u32 s67, {per}"); e(f"s_cbranch_scc0 {La}"); fn(); self.label(La)
        self.label(L)
        if side: hook(13, self.g1_side_poll_issue)
        e("s_cmp_ge_u32 s67, 14")
        e(f"s_cbranch_scc1 {Lw}")
        self.g1_next_k()
        self.g1_issue_w(64, 65)
        self.g1_issue_t(64, 66)
        e(f"s_add_u32 s64, s64, {STG}")
        e(f"s_cmp_eq_u32 s64, {3*STG}")
        e("s_cselect_b32 s64, 0, s64")
        if sent:
            La = self.newlabel("g1s8")
            e("s_cmp_lt_u32 s67, 8"); e(f"s_cbranch_scc0 {La}")
            e(f"buffer_store_dwordx4 v[132:135], v128, {s(SRD_WS,4)}, s89 offen sc1")
            e("s_add_u32 s89, s89, 1024")
            Lz = self.newlabel("g1z")
            e("s_cmp_eq_u32 s67, 0"); e(f"s_cbranch_scc0 {Lz}")
            e("s_waitcnt vmcnt(12)"); e(f"s_branch {Lb}"); self.label(Lz)
            e("s_waitcnt vmcnt(13)")
            if side:
                def pub8():
                    Lp = self.newlabel("g1pub")
                    e(f"s_cmp_eq_u32 {s(S_WV)}, 4"); e(f"s_cbranch_scc0 {Lp}"); self.publish(4); self.label(Lp)
                hook(3, pub8)
            e(f"s_branch {Lb}")
            self.label(La)
        if pre:
            e(f"buffer_store_dwordx4 v[132:135], v128, {s(SRD_WS,4)}, s89 offen sc1")
            e("s_add_u32 s89, s89, 1024")
            for per, cnt in ((0, 12), (13, 12)):
                La = self.newlabel("g1a"); Lz = self.newlabel("g1z")
                e(f"s_cmp_eq_u32 s67, {per}"); e(f"s_cbranch_scc0 {La}")
                e(f"s_waitcnt vmcnt({cnt})"); e(f"s_branch {Lb}"); self.label(La)
            e("s_waitcnt vmcnt(13)")
        else:
            e("s_waitcnt vmcnt(11)")
        if side:
            def pub():
                Lp = self.newlabel("g1pub")
                e(f"s_cmp_eq_u32 {s(S_WV)}, 4"); e(f"s_cbranch_scc0 {Lp}"); self.publish(4); self.label(Lp)
            hook(3, pub)
        e(f"s_branch {Lb}")
        self.label(Lw)
        L15 = self.newlabel("g1l15")
        e("s_cmp_eq_u32 s67, 14")
        e(f"s_cbranch_scc0 {L15}")
        if side:
            self.g1_side_loads()
            e("s_waitcnt vmcnt(12)")
        else:
            e("s_waitcnt vmcnt(0)")
        e(f"s_branch {Lb}")
        self.label(L15)
        e("s_waitcnt vmcnt(0)")
        if side:
            self.g1_side_final_tok()
            self.g1_side_final_col()
        self.label(Lb)
        e("s_barrier")
        e("s_add_u32 s67, s67, 1")
        e("s_cmp_lt_u32 s67, 16")
        e(f"s_cbranch_scc1 {L}")

    def g1_dep_wait(self):
        if "c" in self.o["phases"]: self.wait_all(3, wave=4)
        else: self.e("s_barrier")

    G1_X, G1_Y, G1_ACC = 8, 52, 96
    def g1_frag_reads(self, base, u):
        r = []
        def wread(ft):
            areg = 2 if ft % 2 == 0 else 3
            return [f"ds_read_b64_tr_b16 {v(base + 4*ft + 2*h, 2)}, {v(areg)} offset:{32*ft + u*32*448 + h*4*448}" for h in range(2)]
        def tread(tt):
            return [f"ds_read_b64_tr_b16 {v(base + 28 + 4*tt + 2*h, 2)}, {v(4+tt)} offset:{u*8192 + h*1024}" for h in range(2)]
        for tt in range(4): r += tread(tt)
        for ft in range(7): r += wread(ft)
        return r

    def g1_half(self, mf_base, rd_base, rd_u, first=False, mfma=True, reads=True, tail=(), waits=None):
        e = self.e
        rds = self.g1_frag_reads(rd_base, rd_u) if (reads and not self.o.get("g1_noreads")) else []
        if self.o.get("g1_nomfma"): mfma = False
        mf = []
        if mfma:
            for ft in range(7):
                for tt in range(4):
                    a = self.G1_ACC + (ft * 4 + tt) * 4
                    c = "0" if first else v(a, 4)
                    mf.append(f"v_mfma_f32_16x16x32_bf16 {v(a,4)}, {v(mf_base + 4*ft, 4)}, {v(mf_base + 28 + 4*tt, 4)}, {c}")
        fill = list(rds) + list(tail)
        i = 0
        for k, m in enumerate(mf):
            if waits and k in waits: e(waits[k])
            e(m)
            if i < len(fill): e(fill[i]); i += 1
        while i < len(fill): e(fill[i]); i += 1

    def g1_compute_setup(self):
        e = self.e
        e(f"s_lshr_b32 s58, {s(S_WV)}, 1      ; wf")
        e(f"s_and_b32 s59, {s(S_WV)}, 1       ; wt")
        e("v_lshrrev_b32 v13, 4, v0          ; g")
        e("v_and_b32 v14, 15, v0")
        e("v_lshrrev_b32 v15, 2, v14         ; r")
        e("v_and_b32 v16, 3, v14             ; c")
        e("v_lshl_add_u32 v17, v13, 3, v15   ; row = 8g + r")
        e("v_and_b32 v18, 1, v13             ; g&1")
        e("v_mul_u32_u24 v19, 448, v17")
        e("v_lshl_add_u32 v19, v16, 3, v19")
        e("s_mul_i32 s57, s58, 224           ; 32*7*wf")
        e(f"s_add_u32 s57, s57, {self.G1_W}")
        e("v_add_u32 v19, s57, v19")
        e("v_lshlrev_b32 v20, 5, v18         ; 32*(g&1)")
        e("v_add_u32 v21, v19, v20")
        e("v_sub_u32 v22, v19, v20")
        e("s_cmp_eq_u32 s58, 0")
        e("s_cselect_b64 vcc, -1, 0")
        e("v_cndmask_b32 v2, v22, v21, vcc")
        e("v_cndmask_b32 v3, v21, v22, vcc")
        e("v_lshl_or_b32 v20, v18, 2, v15    ; f(row)")
        e("v_lshlrev_b32 v21, 8, v17")
        e("v_lshl_add_u32 v21, v16, 3, v21")
        e("s_lshl_b32 s57, s59, 2            ; 4*wt")
        for tt in range(4):
            e(f"s_add_u32 s56, s57, {tt}")
            e("v_xor_b32 v22, s56, v20")
            e(f"v_lshl_add_u32 {v(4+tt)}, v22, 5, v21")

    def g1_compute(self):
        e = self.e
        X, Y = self.G1_X, self.G1_Y
        STG = self.G1_STG
        self.g1_compute_setup()
        side = not self.o.get("g1_noside")
        for r in range(4): e(f"v_mov_b32 {v(224+r)}, 0x3f803f80")
        e("s_barrier                        ; W(r) resident")
        self.g1_dep_wait()
        e("s_barrier                        ; B_0")
        self.stamp("g1_loop")
        def adv(delta):
            return [f"v_add_u32 {v(r)}, {delta & 0xffffffff:#x}, {v(r)}" for r in range(2, 8)]
        W5 = {0: "s_waitcnt lgkmcnt(4)", 20: "s_waitcnt lgkmcnt(15)"}
        for r in self.g1_frag_reads(X, 0): e(r)
        e("s_waitcnt lgkmcnt(0)")
        self.g1_half(X, Y, 1, first=True, tail=adv(STG))
        if side: self.g1_tok_mfma(X, True)
        e("s_waitcnt lgkmcnt(0)")
        if side:
            self.g1_tok_mfma(Y, False)
            self.g1_tok_store()
        e("s_barrier                        ; B_1")
        e("s_mov_b32 s67, 0")
        L = self.newlabel("g1c")
        self.label(L)
        for k in range(3):
            delta = STG if k != 1 else -2 * STG
            self.g1_half(Y, X, 0)
            tail = adv(delta)
            if k == 2: tail = tail[:5] + ["s_add_u32 s67, s67, 1"] + tail[5:]
            self.g1_half(X, Y, 1, tail=tail, waits=(W5 if not self.o.get("g1_noreads") else None))
            if k == 2: e("s_cmp_lt_u32 s67, 5")
            e("s_waitcnt vmcnt(0) lgkmcnt(0)" if k == 1 else "s_waitcnt lgkmcnt(0)")
            e("s_barrier")
        e(f"s_cbranch_scc1 {L}")
        self.g1_half(Y, None, 0, reads=False)
        self.stamp("g1_loopend")

    def g1_handoff_send(self):
        e = self.e
        e(f"s_mul_i32 s56, {s(S_WV)}, 14336")
        e("v_lshlrev_b32 v2, 4, v0")
        e("v_add_u32 v2, s56, v2")
        for ft in range(7):
            for j in range(2):
                e(f"ds_write_b128 v2, {v(self.G1_ACC + (ft*4 + 2 + j)*4, 4)} offset:{(ft*2 + j)*1024}")
        e("s_waitcnt lgkmcnt(0)")
        e("s_barrier                        ; hand-off")

    def g1_handoff_recv(self):
        e = self.e
        e("s_barrier                        ; hand-off")
        e(f"s_sub_u32 s57, {s(S_WV)}, 4")
        e("s_mul_i32 s56, s57, 14336")
        e("v_lshlrev_b32 v2, 4, v0")
        e("v_add_u32 v2, s56, v2")
        for ft in range(7):
            for j in range(2):
                e(f"ds_read_b128 {v(self.G1_ACC + (ft*4 + j)*4, 4)}, v2 offset:{(ft*2 + j)*1024}")
        e("s_lshr_b32 s58, s57, 1")
        e("s_and_b32 s59, s57, 1            ; wt")

    def g1_epilogue(self):
        e = self.e
        ACC = self.G1_ACC
        e("v_and_b32 v2, 15, v0               ; n")
        e("v_lshrrev_b32 v3, 4, v0            ; g / rho")
        e("s_lshl_b32 s56, s59, 9")
        e("s_lshl_b32 s57, s64, 7")
        e("s_add_u32 s56, s56, s57")
        e(f"s_add_u32 s56, s56, {self.G1_AST}")
        e("v_lshl_add_u32 v4, v2, 3, s56")
        AS = 8
        for j in range(2): e(f"ds_read_b64 {v(AS+2*j,2)}, v4 offset:{128*j}")
        e("s_mul_i32 s56, s58, 448")
        e(f"s_add_u32 s56, s56, {self.G1_CS}")
        e("v_lshl_add_u32 v5, v3, 4, s56")
        CB = 16
        for ft in range(7):
            e(f"ds_read_b128 {v(CB+8*ft,4)}, v5 offset:{64*ft}")
            e(f"ds_read_b128 {v(CB+8*ft+4,4)}, v5 offset:{64*ft + self.G1_B1 - self.G1_CS}")
        c2 = -2.0 * 0.7978845608028654 * 1.4426950408889634
        c1 = c2 * 0.044715
        import struct
        fb = lambda x: "0x%08x" % struct.unpack("<I", struct.pack("<f", x))[0]
        C1, C2, ONE = 72, 74, 76
        for r, val in ((C1, c1), (C2, c2), (ONE, 1.0)):
            e(f"v_mov_b32 {v(r)}, {fb(val)}"); e(f"v_mov_b32 {v(r+1)}, {fb(val)}")
        e("v_and_b32 v79, 1, v3               ; rho&1")
        e("v_lshrrev_b32 v81, 1, v3           ; rho>>1")
        e("v_lshl_add_u32 v80, v79, 1, v81")
        e("v_lshlrev_b32 v80, 11, v80")
        e("v_lshl_add_u32 v82, v2, 4, v80")
        e("s_lshl_b32 s56, s58, 1")
        e("v_add_u32 v80, s56, v81")
        e("v_lshlrev_b32 v80, 11, v80")
        e("v_lshl_add_u32 v80, v79, 8, v80")
        e("v_lshl_add_u32 v83, v2, 4, v80")
        e("s_mul_i32 s62, s60, 112")
        e("s_mul_i32 s56, s61, 7")
        e("s_add_u32 s62, s62, s56")
        e("s_lshl_b32 s62, s62, 13")
        e("s_lshl_b32 s56, s59, 10")
        e("s_add_u32 s62, s62, s56")
        e("s_lshl_b32 s56, s64, 8")
        e("s_add_u32 s62, s62, s56")
        e(f"s_add_u32 s62, s62, {WS_HM}")
        e("s_mul_i32 s56, s58, 3*8192")
        e("s_add_u32 s63, s62, s56")
        e("s_waitcnt lgkmcnt(0)")
        def gelu_tile(ft, j, out, T):
            a = ACC + (ft*4 + j)*4
            cs, b1 = CB + 8*ft, CB + 8*ft + 4
            A = AS + 2*j
            for h in range(2):
                e(f"v_pk_fma_f32 {v(T+2*h,2)}, {v(A,2)}, {v(cs+2*h,2)}, {v(b1+2*h,2)} op_sel:[1,0,0] op_sel_hi:[1,1,1] neg_lo:[1,0,0] neg_hi:[1,0,0]")
            for h in range(2):
                e(f"v_pk_fma_f32 {v(a+2*h,2)}, {v(A,2)}, {v(a+2*h,2)}, {v(T+2*h,2)} op_sel:[0,0,0] op_sel_hi:[0,1,1]")
            for h in range(2): e(f"v_pk_mul_f32 {v(T+2*h,2)}, {v(a+2*h,2)}, {v(a+2*h,2)}")
            for h in range(2): e(f"v_pk_fma_f32 {v(T+2*h,2)}, {v(T+2*h,2)}, {v(C1,2)}, {v(C2,2)}")
            for h in range(2): e(f"v_pk_mul_f32 {v(T+2*h,2)}, {v(T+2*h,2)}, {v(a+2*h,2)}")
            for r in range(4): e(f"v_exp_f32 {v(T+r)}, {v(T+r)}")
            for h in range(2): e(f"v_pk_add_f32 {v(T+2*h,2)}, {v(T+2*h,2)}, {v(ONE,2)}")
            for r in range(4): e(f"v_rcp_f32 {v(T+r)}, {v(T+r)}")
            for h in range(2): e(f"v_pk_mul_f32 {v(a+2*h,2)}, {v(a+2*h,2)}, {v(T+2*h,2)}")
            for h in range(2): e(f"v_cvt_pk_bf16_f32 {v(out+h)}, {v(a+2*h)}, {v(a+2*h+1)}")
        aux = self.o.get('hm_aux', 'sc1')
        k = 0
        for fp in range(3):
            for j in range(2):
                O = 208 + 4 * (k & 1); T = 216 + 4 * (k & 1); k += 1
                gelu_tile(2*fp, j, O, T)
                gelu_tile(2*fp + 1, j, O + 2, T + 8 if False else T)
                e(f"v_permlane16_swap_b32 {v(O)}, {v(O+2)}")
                e(f"v_permlane16_swap_b32 {v(O+1)}, {v(O+3)}")
                e(f"s_add_u32 s56, s63, {fp*8192 + j*256}")
                e(f"buffer_store_dwordx4 {v(O,4)}, v82, {s(SRD_WS,4)}, s56 offen {aux}")
        O = 208 + 4 * (k & 1); T = 216 + 4 * (k & 1)
        gelu_tile(6, 0, O, T)
        gelu_tile(6, 1, O + 2, T)
        e(f"v_permlane16_swap_b32 {v(O)}, {v(O+2)}")
        e(f"v_permlane16_swap_b32 {v(O+1)}, {v(O+3)}")
        e(f"s_add_u32 s56, s62, {6*8192}")
        e(f"buffer_store_dwordx4 {v(O,4)}, v83, {s(SRD_WS,4)}, s56 offen {aux}")

    def g1(self):
        e = self.e
        self.g1_ids()
        Lc = self.newlabel("g1comp"); Le = self.newlabel("g1epi")
        e(f"s_cmp_lt_u32 {s(S_WV)}, 4")
        e(f"s_cbranch_scc1 {Lc}")
        self.g1_loader()
        self.g1_handoff_recv()
        e("s_mov_b32 s64, 2")
        e(f"s_branch {Le}")
        self.label(Lc)
        self.g1_compute()
        self.g1_handoff_send()
        e("s_mov_b32 s64, 0")
        self.label(Le)
        self.g1_epilogue()
        self.stamp("g1_epi")
        L = self.newlabel("g1pre")
        if "g2" in self.o["phases"]:
            e(f"s_cmp_lt_u32 {s(S_WV)}, 4")
            e(f"s_cbranch_scc1 {L}")
            self.g2_loader_pre()
            self.label(L)
        e("s_waitcnt vmcnt(0)")
        e("s_barrier")
        L = self.newlabel("g1sig")
        e(f"s_cmp_lg_u32 {s(S_WV)}, 0")
        e(f"s_cbranch_scc1 {L}")
        self.publish(5)
        self.label(L)

    G2_STG = 32768
    G2_NBUF = 5
    G2_RES = 98304

    def g2_ids(self):
        e = self.e
        e(f"s_and_b32 s56, {s(S_XI)}, 1")
        e("s_lshl_b32 s56, s56, 3")
        e(f"s_and_b32 s57, {s(S_J)}, 7")
        e("s_add_u32 s60, s56, s57          ; mb")
        e(f"s_lshr_b32 s56, {s(S_XI)}, 1")
        e("s_lshl_b32 s56, s56, 2")
        e(f"s_lshr_b32 s57, {s(S_J)}, 3")
        e("s_add_u32 s56, s56, s57          ; n'")
        e("s_and_b32 s61, s56, 7            ; db")
        e("s_lshr_b32 s69, s56, 3           ; kh")

    def g2_issue_w(self, sbuf, sk):
        e = self.e
        e(f"s_add_u32 m0, {s(sbuf)}, s63")
        for ii in range(4):
            e(f"buffer_load_dwordx4 {v(6+ii)}, {s(SRD_B,4)}, {s(sk)} offen lds")
            if ii < 3: e("s_add_u32 m0, m0, 1024")

    def g2_issue_t(self, sbuf, sk):
        e = self.e
        e(f"s_add_u32 m0, {s(sbuf)}, s62")
        for ii in range(4):
            e(f"buffer_load_dwordx4 v2, {s(SRD_WS,4)}, {s(sk)} offen sc1 lds")
            if ii < 3:
                e("s_add_u32 m0, m0, 1024"); e(f"s_add_u32 {s(sk)}, {s(sk)}, 1024")
        e(f"s_add_u32 {s(sk)}, {s(sk)}, {16384 - 3*1024}")

    def g2_w_off(self):
        e = self.e
        e("s_lshl_b32 s56, s84, 1")
        e("s_add_u32 s56, s56, s87          ; 2q + half")
        e("s_cmp_ge_u32 s84, 3")
        e("s_addc_u32 s56, s56, 0")
        e("s_mul_i32 s57, s87, 7")
        e("s_add_u32 s57, s57, 6            ; half ? 13 : 6")
        e("s_cmp_eq_u32 s84, 6")
        e("s_cselect_b32 s56, s57, s56")
        e("s_lshl_b32 s56, s56, 4")
        e("s_add_u32 s56, s56, s86")
        e("s_lshl_b32 s65, s56, 11")

    def g2_adv_w(self):
        e = self.e
        e("s_add_u32 s84, s84, 2")
        e("s_cmp_ge_u32 s84, 7")
        e("s_cselect_b32 s56, 7, 0")
        e("s_cselect_b32 s57, 224, 0")
        e("s_sub_u32 s84, s84, s56")
        e("s_add_u32 s86, s86, s57")
        self.g2_w_off()

    def g2_loader_pre(self):
        e = self.e
        self.g2_ids()
        self.srd(SRD_B, S_W2, F_ * D_ * 2)
        e(f"s_sub_u32 s58, {s(S_WV)}, 4       ; lw")
        e("v_lshrrev_b32 v13, 4, v0")
        e("v_and_b32 v14, 15, v0")
        e("v_lshrrev_b32 v15, 1, v14")
        e("v_and_b32 v16, 1, v14")
        e("v_xor_b32 v15, v15, v13")
        e("v_lshlrev_b32 v17, 11, v13")
        e("v_lshl_add_u32 v17, v16, 4, v17")
        e("s_lshl_b32 s59, s61, 8            ; db*256")
        e("v_add_u32 v17, s59, v17")
        for ii in range(4):
            x4 = 4 if (ii >> 1) & 1 else 0
            e(f"v_xor_b32 v18, {x4}, v15")
            e("v_lshl_add_u32 v18, v18, 5, v17")
            e(f"v_add_u32 {v(6+ii)}, {ii*4*2048}, v18")
        e("v_lshlrev_b32 v2, 4, v0")
        e("s_lshl_b32 s62, s58, 12")
        e(f"s_add_u32 s63, s62, 16384")
        e("s_lshl_b32 s86, s69, 3")
        e("s_mul_i32 s86, s86, 224          ; 224 * 8kh")
        e("s_lshr_b32 s84, s58, 1           ; q = lw>>1")
        e("s_and_b32 s87, s58, 1            ; half")
        self.g2_w_off()
        e("s_mul_i32 s66, s60, 112")
        e("s_mul_i32 s56, s69, 56")
        e("s_add_u32 s66, s66, s56")
        e("s_lshl_b32 s66, s66, 13")
        e("s_add_u32 s66, s66, s62")
        e(f"s_add_u32 s66, s66, {WS_HM}")

    def g2_loader(self):
        e = self.e
        STG = self.G2_STG
        e("s_mov_b32 s64, 0")
        self.g2_issue_w(64, 65)
        self.g2_adv_w()
        Lq = self.newlabel("g2q")
        e(f"s_cmp_eq_u32 {s(S_WV)}, 4")
        e(f"s_cbranch_scc0 {Lq}")
        e("v_and_b32 v20, 7, v0")
        e("s_lshl_b32 s56, s69, 3")
        e("v_add_u32 v21, s56, v20")
        e("v_mov_b32 v20, s60")
        self.wg_of(40, 20, 21, 26)
        e("s_xor_b32 s56, s2, 4")
        e("v_mov_b32 v20, s56")
        e("v_bfe_u32 v21, v0, 3, 1")
        e("v_cmp_eq_u32 vcc, 1, v21")
        e("v_cndmask_b32 v40, v40, v20, vcc")
        self.flag_addr(40, 26)
        if not self.o.get("nosync"): self.poll_addr(5, 40, 41)
        self.label(Lq)
        e("s_barrier                        ; dep")
        self.stamp("g2_dep")
        self.g2_issue_t(64, 66)
        for st in range(1, 4):
            e(f"s_add_u32 s64, s64, {STG}")
            self.g2_issue_w(64, 65)
            self.g2_adv_w()
            self.g2_issue_t(64, 66)
        e("s_waitcnt vmcnt(24)")
        e("s_barrier                        ; B_0")
        e("s_mov_b32 s67, 0")
        e(f"s_mov_b32 s64, {4*STG}")
        pre = self.o.get("prealloc", False)
        if pre:
            self.srd(SRD_A, S_OUT, S_ * D_ * 2)
            e("s_and_b32 s56, s58, 1")
            e("s_lshl_b32 s56, s56, 6")
            e("s_lshl_b32 s57, s60, 7")
            e("s_add_u32 s56, s56, s57")
            e("s_lshl_b32 s57, s69, 5")
            e("s_add_u32 s56, s56, s57")
            e("v_lshrrev_b32 v22, 3, v0")
            e("v_add_u32 v22, s56, v22")
            e("v_lshlrev_b32 v22, 11, v22")
            e("v_and_b32 v23, 7, v0")
            e("v_lshl_add_u32 v22, v23, 4, v22")
            e("s_lshr_b32 s56, s58, 1")
            e("s_lshl_b32 s56, s56, 7")
            e("s_lshl_b32 s57, s61, 8")
            e("s_add_u32 s56, s56, s57")
            e("v_add_u32 v22, s56, v22")
        L = self.newlabel("g2l"); Lw = self.newlabel("g2lw"); Lb = self.newlabel("g2lb")
        def waits(cases):
            for per, cnt in cases:
                Ln = self.newlabel("g2w")
                e(f"s_cmp_eq_u32 s67, {per}")
                e(f"s_cbranch_scc0 {Ln}")
                e(f"s_waitcnt vmcnt({cnt})")
                e(f"s_branch {Lb}")
                self.label(Ln)
        self.label(L)
        if pre:
            Lo = self.newlabel("g2o")
            e("s_sub_u32 s56, s67, 4")
            e("s_cmp_lt_u32 s56, 4")
            e(f"s_cbranch_scc0 {Lo}")
            e("s_lshl_b32 s56, s56, 14          ; 8 rows * 2048")
            e(f"buffer_store_dwordx4 v[24:27], v22, {s(SRD_A,4)}, s56 offen sc1")
            self.label(Lo)
        e("s_cmp_ge_u32 s67, 24")
        e(f"s_cbranch_scc1 {Lw}")
        self.g2_issue_w(64, 65)
        self.g2_adv_w()
        self.g2_issue_t(64, 66)
        e(f"s_add_u32 s64, s64, {STG}")
        e(f"s_cmp_eq_u32 s64, {5*STG}")
        e("s_cselect_b32 s64, 0, s64")
        e("s_waitcnt vmcnt(24)")
        e(f"s_branch {Lb}")
        self.label(Lw)
        Lw1 = self.newlabel("g2lw1")
        e("s_cmp_eq_u32 s67, 24")
        e(f"s_cbranch_scc0 {Lw1}")
        e("v_lshrrev_b32 v20, 2, v0")
        e("s_lshl_b32 s56, s58, 5")
        e("v_add_u32 v20, s56, v20")
        e("v_lshlrev_b32 v20, 8, v20          ; row*256")
        e("v_and_b32 v21, 3, v0")
        e("v_lshl_add_u32 v20, v21, 4, v20")
        e("s_lshl_b32 s56, s60, 18")
        e("s_lshl_b32 s57, s61, 15            ; 128db*256")
        e("s_add_u32 s56, s56, s57")
        e("s_lshl_b32 s57, s69, 6             ; 32kh*2")
        e("s_add_u32 s56, s56, s57")
        e(f"s_add_u32 s56, s56, {WS_HT}")
        for ii in range(4):
            wt, hh = ii >> 1, ii & 1
            e(f"s_add_u32 s57, s56, {wt*128 + hh*16*256}")
            e("s_lshl_b32 s59, s58, 11          ; 32lw*64")
            e(f"s_add_u32 m0, s59, {self.G2_RES + wt*8192 + hh*1024}")
            e(f"buffer_load_dwordx4 v20, {s(SRD_WS,4)}, s57 offen sc1 lds")
        e("s_waitcnt vmcnt(20)")
        e(f"s_branch {Lb}")
        self.label(Lw1)
        waits([(25, 12), (26, 4)])
        e("s_waitcnt vmcnt(0)")
        self.label(Lb)
        e("s_barrier")
        e("s_add_u32 s67, s67, 1")
        e("s_cmp_lt_u32 s67, 28")
        e(f"s_cbranch_scc1 {L}")

    G2_X, G2_Y, G2_ACC = 8, 40, 72
    def g2_frag_reads(self, base, u):
        r = []
        for tt in range(4): r.append(f"ds_read_b128 {v(base + 16 + 4*tt, 4)}, v6 offset:{u*8192 + tt*256}")
        for dt in range(4):
            for h in range(2):
                r.append(f"ds_read_b64_tr_b16 {v(base + 4*dt + 2*h, 2)}, {v(2+dt)} offset:{u*8192 + h*1024}")
        return r

    def g2_half(self, mf_base, rd_base, rd_u, first=False, reads=True, tail=(), waits=None):
        e = self.e
        rds = self.g2_frag_reads(rd_base, rd_u) if reads else []
        fill = list(rds) + list(tail)
        i = 0; k = 0
        for dt in range(4):
            for tt in range(4):
                a = self.G2_ACC + (dt*4 + tt)*4
                if waits and k in waits: e(waits[k])
                e(f"v_mfma_f32_16x16x32_bf16 {v(a,4)}, {v(mf_base + 4*dt, 4)}, {v(mf_base + 16 + 4*tt, 4)}, {'0' if first else v(a,4)}")
                if i < len(fill): e(fill[i]); i += 1
                k += 1
        while i < len(fill): e(fill[i]); i += 1

    def g2_compute(self):
        e = self.e
        X, Y, STG = self.G2_X, self.G2_Y, self.G2_STG
        self.g2_ids()
        e(f"s_lshr_b32 s58, {s(S_WV)}, 1      ; wd")
        e(f"s_and_b32 s59, {s(S_WV)}, 1       ; wt")
        e("v_lshrrev_b32 v13, 4, v0          ; g")
        e("v_and_b32 v14, 15, v0             ; n")
        e("v_lshrrev_b32 v15, 2, v14         ; r")
        e("v_and_b32 v16, 3, v14             ; c")
        e("v_lshl_add_u32 v17, v13, 3, v15   ; row = 8g + r")
        e("v_and_b32 v18, 1, v13")
        e("v_lshl_or_b32 v20, v18, 2, v15    ; f(row)")
        e("v_lshlrev_b32 v21, 8, v17")
        e("v_lshl_add_u32 v21, v16, 3, v21")
        e("v_add_u32 v21, 16384, v21")
        e("s_lshl_b32 s57, s58, 2            ; 4*wd")
        for dt in range(4):
            e(f"s_add_u32 s56, s57, {dt}")
            e("v_xor_b32 v22, s56, v20")
            e(f"v_lshl_add_u32 {v(2+dt)}, v22, 5, v21")
        e("v_lshlrev_b32 v22, 11, v13")
        e("v_lshl_add_u32 v22, v14, 4, v22")
        e("s_lshl_b32 s56, s59, 10")
        e("v_add_u32 v6, s56, v22")
        self.srd(SRD_C, S_B2, D_ * 2)
        e("s_lshl_b32 s56, s61, 8")
        e("s_lshl_b32 s57, s58, 7")
        e("s_add_u32 s56, s56, s57")
        e("v_lshl_add_u32 v7, v13, 3, s56")
        B2 = 200
        for dt in range(4): e(f"buffer_load_dwordx2 {v(B2+2*dt,2)}, v7, {s(SRD_C,4)}, 0 offen offset:{32*dt}")
        e("s_barrier                        ; dep")
        e("s_barrier                        ; B_0")
        self.stamp("g2_loop")
        e("s_mov_b32 s64, 0")
        e(f"s_mov_b32 s62, {STG}")
        e(f"s_mov_b32 s63, {(-4*STG) & 0xffffffff}")
        def adv():
            return ["s_add_u32 s64, s64, 1", "s_cmp_eq_u32 s64, 4"]
        def adv2():
            return [f"v_add_u32 {v(r)}, s65, {v(r)}" for r in range(2, 7)]
        pre = ["s_add_u32 s64, s64, 1", "s_cmp_eq_u32 s64, 5", "s_cselect_b32 s65, s63, s62", "s_cselect_b32 s64, 0, s64"]
        WX = {0: "s_waitcnt lgkmcnt(6)", 4: "s_waitcnt lgkmcnt(8)", 8: "s_waitcnt lgkmcnt(10)", 12: "s_waitcnt lgkmcnt(12)"}
        if self.o.get("g2_fullwait"): WX = {0: "s_waitcnt lgkmcnt(0)"}
        for r in self.g2_frag_reads(X, 0): e(r)
        for p in pre: e(p)
        e("s_waitcnt lgkmcnt(0)")
        self.g2_half(X, Y, 1, first=True, tail=adv2()[:4])
        e(adv2()[4])
        e("s_waitcnt lgkmcnt(0)")
        e("s_barrier                        ; B_1")
        e("s_mov_b32 s67, 0")
        L = self.newlabel("g2c")
        self.label(L)
        for k in range(3):
            self.g2_half(Y, X, 0, tail=pre)
            self.g2_half(X, Y, 1, tail=adv2()[:4], waits=WX)
            e(adv2()[4])
            if k == 2:
                e("s_add_u32 s67, s67, 1"); e("s_cmp_lt_u32 s67, 9")
            e("s_waitcnt lgkmcnt(0)")
            e("s_barrier")
        e(f"s_cbranch_scc1 {L}")
        self.g2_half(Y, None, 0, reads=False)
        self.stamp("g2_loopend")

    def g2_epilogue(self):
        e = self.e
        ACC = self.G2_ACC
        Lk = self.newlabel("g2k")
        e("s_cmp_eq_u32 s69, 0")
        e(f"s_cbranch_scc1 {Lk}")
        for dt in range(4):
            for r in range(8):
                a = ACC + dt*16 + r
                e(f"v_swap_b32 {v(a)}, {v(a+8)}")
        self.label(Lk)
        e("s_xor_b32 s56, s2, 4")
        e("s_lshl_b32 s56, s56, 15")
        e(f"s_lshl_b32 s57, {s(S_WV)}, 13")
        e("s_add_u32 s56, s56, s57")
        e(f"s_add_u32 s62, s56, {WS_EX}")
        e("v_lshlrev_b32 v8, 4, v0")
        for dt in range(4):
            for tk in range(2):
                i = dt*2 + tk
                e(f"s_add_u32 s56, s62, {1024*i}")
                e(f"buffer_store_dwordx4 {v(ACC + dt*16 + 8 + 4*tk, 4)}, v8, {s(SRD_WS,4)}, s56 offen sc1")
        e("v_lshrrev_b32 v13, 4, v0          ; g")
        e("v_and_b32 v14, 15, v0             ; n")
        e("v_lshrrev_b32 v15, 2, v14")
        e("v_and_b32 v16, 3, v14")
        e("v_lshl_add_u32 v17, v13, 2, v15   ; 4g + r")
        e("v_lshlrev_b32 v17, 6, v17")
        e("v_lshl_add_u32 v17, v16, 3, v17")
        e("s_lshl_b32 s56, s59, 13")
        e("s_lshl_b32 s57, s58, 12           ; 64wd*64")
        e("s_add_u32 s56, s56, s57")
        e(f"s_add_u32 s56, s56, {self.G2_RES}")
        e("v_add_u32 v17, s56, v17")
        RS = 168
        for dt in range(4):
            for tk in range(2):
                e(f"ds_read_b64_tr_b16 {v(RS + 2*(2*dt+tk), 2)}, v17 offset:{dt*16*64 + tk*32}")
        self.stamp("g2_sent")

    def g2_epilogue2(self):
        e = self.e
        ACC = self.G2_ACC; RS = 168; B2 = 200
        e("s_lshl_b32 s56, s2, 15")
        e(f"s_lshl_b32 s57, {s(S_WV)}, 13")
        e("s_add_u32 s56, s56, s57")
        e(f"s_add_u32 s62, s56, {WS_EX}")
        IN = 136
        for i in range(1, 8): e(f"s_add_u32 {s(80+i)}, s62, {1024*i}")
        e("s_mov_b32 s80, s62")
        self.srd(SRD_A, S_OUT, S_ * D_ * 2)
        e(f"s_lshl_b32 s56, {s(S_WV)}, 12")
        e("v_and_b32 v10, 1, v13")
        e("v_lshlrev_b32 v10, 1, v10")
        e("v_lshrrev_b32 v11, 1, v13")
        e("v_add_u32 v10, v10, v11")
        e("v_and_b32 v11, 7, v14")
        for dp in range(2):
            e(f"v_add_u32 v12, {4*dp}, v10")
            e("v_xor_b32 v12, v12, v11")
            e("v_lshlrev_b32 v12, 4, v12")
            e("v_lshl_add_u32 v12, v14, 7, v12")
            e(f"v_add_u32 {v(32+dp)}, s56, v12")
        e("v_lshrrev_b32 v11, 3, v0           ; l>>3")
        e("v_and_b32 v12, 7, v0")
        e("v_xor_b32 v10, v12, v11")
        e("v_lshlrev_b32 v10, 4, v10")
        e("v_lshl_add_u32 v10, v11, 7, v10")
        e("v_add_u32 v34, s56, v10")
        e("s_lshl_b32 s56, s60, 7")
        e("s_lshl_b32 s57, s59, 6")
        e("s_add_u32 s56, s56, s57")
        e("s_lshl_b32 s57, s69, 5")
        e("s_add_u32 s56, s56, s57")
        e("v_add_u32 v9, s56, v11")
        e("v_lshlrev_b32 v9, 11, v9")
        e("v_lshl_add_u32 v9, v12, 4, v9")
        e("s_lshl_b32 s56, s61, 8")
        e("s_lshl_b32 s57, s58, 7")
        e("s_add_u32 s63, s56, s57")
        BF = 40
        for dt in range(4):
            self.unpack(BF+4*dt,   B2+2*dt,   0); self.unpack(BF+4*dt+1, B2+2*dt,   1)
            self.unpack(BF+4*dt+2, B2+2*dt+1, 0); self.unpack(BF+4*dt+3, B2+2*dt+1, 1)
        L = self.newlabel("g2in"); Lx = self.newlabel("g2inx")
        L1 = self.newlabel("g2w1"); L1x = self.newlabel("g2w1x")
        e("s_mov_b32 s57, 0x40000")
        e("s_mov_b32 exec_lo, 0"); e("s_mov_b32 exec_hi, 0x80000000")
        self.label(L1)
        e(f"buffer_load_dword v35, v8, {s(SRD_WS,4)}, s87 offen offset:12 sc1")
        e("s_sub_u32 s57, s57, 1")
        e("s_cmp_eq_u32 s57, 0")
        e(f"s_cbranch_scc1 {L1x}")
        e("s_waitcnt vmcnt(0)")
        e("v_cmp_eq_u32 vcc, -1, v35")
        e(f"s_cbranch_vccnz {L1}")
        self.label(L1x)
        e("s_waitcnt vmcnt(0)")
        e("s_mov_b64 exec, -1")
        e("s_mov_b32 s57, 0x40000")
        self.label(L)
        for i in range(8):
            e(f"buffer_load_dwordx4 {v(IN+4*i,4)}, v8, {s(SRD_WS,4)}, {s(80+i)} offen sc1")
        e("s_sub_u32 s57, s57, 1")
        e("s_cmp_eq_u32 s57, 0")
        e(f"s_cbranch_scc1 {Lx}")
        e("s_waitcnt vmcnt(0)")
        e(f"v_max_u32 v35, {v(IN)}, {v(IN+3)}")
        for i in range(1, 8):
            e(f"v_max3_u32 v35, v35, {v(IN+4*i)}, {v(IN+4*i+3)}")
        e("v_cmp_eq_u32 vcc, -1, v35")
        e(f"s_cbranch_vccnz {L}")
        self.label(Lx)
        e("s_waitcnt vmcnt(0) lgkmcnt(0)")
        self.stamp("g2_got")
        k = 0
        for tk in range(2):
            for dp in range(2):
                O = 56 + 4*(k & 1); k += 1
                for dd in range(2):
                    dt = 2*dp + dd
                    i = dt*2 + tk
                    a = ACC + dt*16 + 4*tk
                    T = 64
                    r0 = RS + 2*i
                    self.unpack(T, r0, 0); self.unpack(T+1, r0, 1); self.unpack(T+2, r0+1, 0); self.unpack(T+3, r0+1, 1)
                    for h in range(2):
                        e(f"v_pk_add_f32 {v(a+2*h,2)}, {v(a+2*h,2)}, {v(IN+4*i+2*h,2)}")
                        e(f"v_pk_add_f32 {v(T+2*h,2)}, {v(T+2*h,2)}, {v(BF+4*dt+2*h,2)}")
                        e(f"v_pk_add_f32 {v(a+2*h,2)}, {v(a+2*h,2)}, {v(T+2*h,2)}")
                        e(f"v_cvt_pk_bf16_f32 {v(O+2*dd+h)}, {v(a+2*h)}, {v(a+2*h+1)}")
                e(f"v_permlane16_swap_b32 {v(O)}, {v(O+2)}")
                e(f"v_permlane16_swap_b32 {v(O+1)}, {v(O+3)}")
                e(f"ds_write_b128 {v(32+dp)}, {v(O,4)} offset:{tk*2048}")
        e("s_waitcnt lgkmcnt(0)")
        for i in range(4): e(f"ds_read_b128 {v(72+4*i,4)}, v34 offset:{1024*i}")
        for i in range(4):
            e(f"s_add_u32 s56, s63, {i*8*2048}")
            e(f"s_waitcnt lgkmcnt({3-i})")
            e(f"buffer_store_dwordx4 {v(72+4*i,4)}, v9, {s(SRD_A,4)}, s56 offen {self.o.get('out_aux', '')}")

    def g2(self):
        e = self.e
        Lc = self.newlabel("g2comp"); Le = self.newlabel("g2end")
        e(f"s_cmp_lt_u32 {s(S_WV)}, 4")
        e(f"s_cbranch_scc1 {Lc}")
        self.g2_loader()
        L0 = self.newlabel("g2ep")
        e(f"s_cmp_lg_u32 {s(S_WV)}, 4")
        e(f"s_cbranch_scc1 {L0}")
        e("s_cmp_lg_u32 s2, 0")
        e(f"s_cbranch_scc1 {L0}")
        e(f"v_mov_b32 v254, {s(S_EP)}")
        e(f"v_mov_b32 v255, {WS_EPOCH}")
        e("s_mov_b64 exec, 1")
        e(f"buffer_store_dword v254, v255, {s(SRD_WS,4)}, 0 offen sc1")
        e("s_mov_b64 exec, -1")
        self.label(L0)
        e(f"s_branch {Le}")
        self.label(Lc)
        self.g2_compute()
        self.g2_epilogue()
        self.g2_epilogue2()
        self.label(Le)

    def finish(self):
        self.label("L_end")
        self.e("s_endpgm")

def wrap(body, lds=LDS_BYTES):
    hdr = f"""; Kernarg layout (112 bytes, ptrs only, base s[0:1]): q,k,v,shift_k,ssm_k,ssm_D,B_x,w1,b1,w2,b2,out,debug,ws
; @launch grid=(256,1,1) block=(512,1,1) lds={lds}
.amdgcn_target "amdgcn-amd-amdhsa--gfx950"
.text
.globl {KNAME}
.p2align 8
.type {KNAME},@function
{KNAME}:
"""
    tail = f"""
.section .rodata,"a"
.p2align 6
.amdhsa_kernel {KNAME}
  .amdhsa_next_free_vgpr 256
  .amdhsa_next_free_sgpr 102
  .amdhsa_accum_offset 256
  .amdhsa_group_segment_fixed_size 0
  .amdhsa_kernarg_size 112
  .amdhsa_user_sgpr_count 2
  .amdhsa_user_sgpr_kernarg_segment_ptr 1
  .amdhsa_system_sgpr_workgroup_id_x 1
  .amdhsa_float_denorm_mode_32 3
.end_amdhsa_kernel
"""
    return hdr + body + tail

def build(opts, ret_g=False):
    g = G(opts)
    g.prologue()
    g.stamp("start", defer=True)
    ph = opts["phases"]
    if "p" in ph:
        g.phase_p()
    else:
        g.epoch_ready()
    if "c" in ph:
        g.phase_c()
        g.stamp("c_end")
        g.signal(3, pf_w2=opts.get("prefetch_w", True))
        g.stamp("c_sig")
    if "g1" in ph:
        g.g1()
        g.stamp("g1_end")
    if "g2" in ph:
        g.g2()
        g.stamp("g2_end")
    g.stamp_flush()
    g.finish()
    src = wrap(g.finalize())
    return (src, g) if ret_g else src

if __name__ == "__main__":
    out = build(dict(phases=["p", "c", "g1", "g2"]))
    path = sys.argv[1] if len(sys.argv) > 1 else "sequential_preLN__ssm_conv_h3__mixer_channel_mlp__prompt.s"
    open(path, "w").write(out)
    print("wrote", path, len(out))
```

```python
import sys
from asmb import Asm, v, s

KNAME = "sequential_preLN__ssm_conv_h3__mixer_channel_mlp__prompt_kernel"
S_, D_, F_ = 2048, 1024, 3584

WS_FLAGS = 0
WS_EPOCH = 32768
WS_ST    = 65536
WS_TSP   = 131072
WS_CSP   = 393216
WS_STAMP = 786432
WS_XR    = 1 << 20
WS_XT    = 5 << 20
WS_HT    = 9 << 20
WS_HM    = 13 << 20
WS_EX    = 28 << 20
WS_SIZE  = 64 << 20

S_X, S_K, S_V, S_SH, S_SSMK, S_SSMD, S_BX, S_W1 = 8, 10, 12, 14, 16, 18, 20, 22
S_B1, S_W2, S_B2, S_OUT = 24, 26, 28, 30
S_DBG, S_WS = 32, 34
SRD_WS, SRD_A, SRD_B, SRD_C = 36, 40, 44, 48
S_WV, S_XI, S_J, S_EP = 52, 53, 54, 55

LDS_BYTES = 163840

class G(Asm):
    def __init__(self, opts):
        super().__init__()
        self.o = opts
        self.stamp_names = []
        self.deferred = []
        self.nt = " nt" if opts.get("nt", True) else ""

    def srd(self, dst, ptr, nbytes):
        self.e(f"s_mov_b32 {s(dst)}, {s(ptr)}")
        self.e(f"s_mov_b32 {s(dst+1)}, {s(ptr+1)}")
        self.e(f"s_mov_b32 {s(dst+2)}, {nbytes}")
        self.e(f"s_mov_b32 {s(dst+3)}, 0x20000")

    def stamp(self, name, defer=False):
        if not self.o.get("stamps"): return
        if name in self.stamp_names: i = self.stamp_names.index(name)
        else:
            i = len(self.stamp_names)
            assert i < 32
            self.stamp_names.append(name)
        op = 's_memtime' if self.o.get('cyc') else 's_memrealtime'
        if defer:
            k = len(self.deferred)
            assert k < 5
            self.deferred.append((i, 70 + 2*k))
            self.e(f"{op} s[{70+2*k}:{71+2*k}]")
            return
        self.e(f"{op} s[100:101]")
        self.e("s_waitcnt lgkmcnt(0)")
        self.e(f"v_writelane_b32 v253, s100, {i}")

    def stamp_commit(self):
        if not self.o.get("stamps"): return
        self.e("s_waitcnt lgkmcnt(0)")
        for i, r in self.deferred: self.e(f"v_writelane_b32 v253, s{r}, {i}")
        self.deferred = []

    def tick(self, i): pass
    def tick_flush(self, n): pass

    def stamp_flush_debug(self):
        e = self.e
        sel = self.o["dbg_sel"]
        self.srd(SRD_A, S_DBG, 256)
        for wave in (0, 4):
            L = self.newlabel("dbgf")
            e(f"s_cmp_lg_u32 {s(S_WV)}, {wave}")
            e(f"s_cbranch_scc1 {L}")
            for i, (nm, w) in enumerate(sel):
                if w != wave: continue
                idx = self.stamp_names.index(nm)
                e(f"v_readlane_b32 s98, v253, {idx}")
                if nm == "start": e("s_not_b32 s98, s98")
                e("v_mov_b32 v254, s98")
                e(f"v_mov_b32 v255, {4*i}")
                e("s_mov_b64 exec, 1")
                e(f"buffer_atomic_umax v254, v255, {s(SRD_A,4)}, 0 offen")
                e("s_mov_b64 exec, -1")
            self.label(L)

    def stamp_flush(self):
        if not self.o.get("stamps"): return
        if self.o.get("dbg_sel"): return self.stamp_flush_debug()
        L = self.newlabel("tf")
        self.e(f"s_and_b32 s98, {s(S_WV)}, 3")
        self.e("s_cmp_lg_u32 s98, 0")
        self.e(f"s_cbranch_scc1 {L}")
        self.e(f"s_lshl_b32 s98, s2, 8")
        self.e(f"s_lshl_b32 s99, {s(S_WV)}, 5")
        self.e("s_add_u32 s98, s98, s99")
        self.e(f"s_add_u32 s98, s98, {WS_STAMP}")
        self.e("v_lshlrev_b32 v255, 2, v0")
        self.e("v_add_u32 v255, s98, v255")
        self.e("s_mov_b32 exec_hi, 0")
        self.e(f"buffer_store_dword v253, v255, {s(SRD_WS,4)}, 0 offen")
        self.e("s_mov_b64 exec, -1")
        self.label(L)

    def prologue(self):
        e = self.e
        e("s_cmp_ge_u32 s2, 256")
        e("s_cbranch_scc1 L_end")
        e("s_load_dwordx16 s[8:23], s[0:1], 0")
        e("s_load_dwordx8 s[24:31], s[0:1], 64")
        e("s_load_dwordx4 s[32:35], s[0:1], 96")
        if self.o.get("code_pf", True):
            e("s_getpc_b64 s[56:57]")
            self.label("L_pc")
            e(f"s_sub_u32 s56, s56, L_pc-{KNAME}")
            e("s_subb_u32 s57, s57, 0")
            e("v_and_b32 v1, 255, v0")
            e("v_lshlrev_b32 v1, 7, v1")
            e("v_lshrrev_b32 v2, 8, v0")
            e("v_lshl_add_u32 v1, v2, 6, v1")
            e(f"v_min_u32 v1, L_end-{KNAME}, v1")
            e("global_load_dword v245, v1, s[56:57]")
        e("v_lshrrev_b32 v1, 6, v0")
        e(f"v_readfirstlane_b32 {s(S_WV)}, v1")
        e("v_and_b32 v0, 63, v0")
        e(f"s_and_b32 {s(S_XI)}, s2, 7")
        e(f"s_lshr_b32 {s(S_J)}, s2, 3")
        e(f"v_mov_b32 v2, {self.C_CNT}")
        e("v_mov_b32 v3, 0")
        e("v_lshl_add_u32 v2, v0, 2, v2")
        e("ds_write_b32 v2, v3")
        e("s_waitcnt lgkmcnt(0)")
        e("s_barrier")
        self.srd(SRD_WS, S_WS, WS_SIZE)
        e(f"s_load_dword {s(S_EP)}, {s(S_WS,2)}, {WS_EPOCH}")

    def lds_count(self, idx, target, then):
        e = self.e
        L = self.newlabel("cnt")
        e(f"v_mov_b32 v250, {self.C_CNT + 4*idx}")
        e("v_mov_b32 v251, 1")
        e("s_mov_b64 exec, 1")
        e("ds_add_rtn_u32 v252, v250, v251")
        e("s_waitcnt lgkmcnt(0)")
        e("v_readfirstlane_b32 s56, v252")
        e("s_mov_b64 exec, -1")
        if then is not None:
            e(f"s_cmp_eq_u32 s56, {target-1}")
            e(f"s_cbranch_scc0 {L}")
            then()
            self.label(L)

    def lds_wait(self, idx, target):
        e = self.e
        L = self.newlabel("lw"); Lx = self.newlabel("lwx")
        e(f"v_mov_b32 v250, {self.C_CNT + 4*idx}")
        e("s_mov_b32 s57, 0x400000")
        self.label(L)
        e("ds_read_b32 v251, v250")
        e("s_sub_u32 s57, s57, 1")
        e("s_cmp_eq_u32 s57, 0")
        e(f"s_cbranch_scc1 {Lx}")
        e("s_waitcnt lgkmcnt(0)")
        e("v_readfirstlane_b32 s56, v251")
        e(f"s_cmp_lt_u32 s56, {target}")
        e(f"s_cbranch_scc1 {L}")
        self.label(Lx)
        e("s_waitcnt lgkmcnt(0)")

    def epoch_ready(self):
        e = self.e
        e("s_waitcnt lgkmcnt(0)")
        e(f"s_and_b32 {s(S_EP)}, {s(S_EP)}, 0xfffffff0")
        e(f"s_add_u32 {s(S_EP)}, {s(S_EP)}, 16")

    def signal(self, p, wave=0, pf_w2=False):
        e = self.e
        e("s_waitcnt vmcnt(0) lgkmcnt(0)")
        e("s_barrier")
        L = self.newlabel("sig")
        e(f"s_cmp_lg_u32 {s(S_WV)}, {wave}")
        e(f"s_cbranch_scc1 {L}")
        self.publish(p)
        self.label(L)
        if pf_w2:
            L = self.newlabel("sgp")
            e(f"s_cmp_ge_u32 {s(S_WV)}, 4")
            e(f"s_cbranch_scc1 {L}")
            self.prefetch_w(2, S_WV)
            self.label(L)

    def poll_all(self, p, t0=248, sleep=0, arr=0):
        e = self.e
        L = self.newlabel("poll"); Lx = self.newlabel("pollx")
        e(f"s_add_u32 s56, {s(S_EP)}, {p}")
        e(f"v_lshlrev_b32 {v(t0+4)}, 7, v0")
        if arr: e(f"v_add_u32 {v(t0+4)}, {8192*arr}, {v(t0+4)}")
        e("s_mov_b32 s57, 0x100000")
        self.label(L)
        if sleep: e(f"s_sleep {sleep}")
        e(f"buffer_load_dwordx4 {v(t0,4)}, {v(t0+4)}, {s(SRD_WS,4)}, 0 offen sc1")
        e("s_sub_u32 s57, s57, 1")
        e("s_cmp_eq_u32 s57, 0")
        e(f"s_cbranch_scc1 {Lx}")
        e("s_waitcnt vmcnt(0)")
        for i in range(4):
            e(f"v_subrev_u32 {v(t0+i)}, s56, {v(t0+i)}")
        e(f"v_max_u32 {v(t0)}, {v(t0)}, {v(t0+1)}")
        e(f"v_max3_u32 {v(t0)}, {v(t0)}, {v(t0+2)}, {v(t0+3)}")
        e(f"v_cmp_le_u32 vcc, 16, {v(t0)}")
        e(f"s_cbranch_vccnz {L}")
        self.label(Lx)
        e("s_waitcnt vmcnt(0)")

    def poll_group(self, p, t0=248, sleep=0, arr=0):
        e = self.e
        L = self.newlabel("pollg"); Lx = self.newlabel("pollgx")
        e(f"s_add_u32 s56, {s(S_EP)}, {p}")
        e(f"v_and_b32 {v(t0+4)}, 7, v0")
        e(f"v_lshlrev_b32 {v(t0+4)}, 7, {v(t0+4)}")
        e(f"s_lshl_b32 s57, {s(S_XI)}, 10")
        if arr: e(f"s_add_u32 s57, s57, {8192*arr}")
        e(f"v_add_u32 {v(t0+4)}, s57, {v(t0+4)}")
        e("s_mov_b32 s57, 0x100000")
        self.label(L)
        if sleep: e(f"s_sleep {sleep}")
        e("s_mov_b64 exec, 0xff")
        e(f"buffer_load_dwordx4 {v(t0,4)}, {v(t0+4)}, {s(SRD_WS,4)}, 0 offen sc1")
        e("s_sub_u32 s57, s57, 1")
        e("s_cmp_eq_u32 s57, 0")
        e(f"s_cbranch_scc1 {Lx}")
        e("s_waitcnt vmcnt(0)")
        for i in range(4):
            e(f"v_subrev_u32 {v(t0+i)}, s56, {v(t0+i)}")
        e(f"v_max_u32 {v(t0)}, {v(t0)}, {v(t0+1)}")
        e(f"v_max3_u32 {v(t0)}, {v(t0)}, {v(t0+2)}, {v(t0+3)}")
        e(f"v_cmp_le_u32 vcc, 16, {v(t0)}")
        e(f"s_cbranch_vccnz {L}")
        self.label(Lx)
        e("s_waitcnt vmcnt(0)")
        e("s_mov_b64 exec, -1")

    def wait_all(self, p, wave=0):
        e = self.e
        if self.o.get("nosync"):
            e("s_barrier"); return
        L = self.newlabel("wa")
        e(f"s_cmp_lg_u32 {s(S_WV)}, {wave}")
        e(f"s_cbranch_scc1 {L}")
        self.poll_all(p)
        self.label(L)
        e("s_barrier")

    def allreduce_add(self, regs, tmp):
        e = self.e
        for mod in ("quad_perm:[1,0,3,2]", "quad_perm:[2,3,0,1]", "row_half_mirror", "row_mirror"):
            for r in regs:
                e(f"v_add_f32_dpp {v(r)}, {v(r)}, {v(r)} {mod} row_mask:0xf bank_mask:0xf")
        for op in ("v_permlane16_swap_b32", "v_permlane32_swap_b32"):
            for r, t in zip(regs, tmp): e(f"v_mov_b32 {v(t)}, {v(r)}")
            for r, t in zip(regs, tmp): e(f"{op} {v(t)}, {v(r)}")
            for r, t in zip(regs, tmp): e(f"v_add_f32 {v(r)}, {v(r)}, {v(t)}")

    def round_bf16(self, dst, src):
        self.e(f"v_cvt_pk_bf16_f32 {v(dst)}, {v(src)}, {v(src)}")
        self.e(f"v_and_b32 {v(dst)}, 0xffff0000, {v(dst)}")

    C_HC, C_HSTR, C_HCH = 0, 4160, 16640
    C_XR, C_XCH = 66560, 4608
    C_ST = 84992
    C_EX = 101376
    C_XT = 134144
    C_CNT = 150528

    def unpack(self, dst, src, hi):
        if hi: self.e(f"v_and_b32 {v(dst)}, 0xffff0000, {v(src)}")
        else:  self.e(f"v_lshlrev_b32 {v(dst)}, 16, {v(src)}")

    def chC(self, dst):
        e = self.e
        e(f"s_and_b32 s58, {s(S_WV)}, 3")
        e(f"s_lshl_b32 s56, {s(S_XI)}, 7")
        e(f"s_lshl_b32 s57, {s(S_J)}, 2")
        e("s_add_u32 s56, s56, s57")
        e(f"s_add_u32 {s(dst)}, s56, s58")

    def lds_transpose_setup(self):
        e = self.e
        e(f"s_lshl_b32 s56, {s(S_WV)}, 12")
        e(f"s_add_u32 s56, s56, {self.C_EX}")
        e("v_xor_b32 v126, v1, v2")
        e("v_lshlrev_b32 v126, 4, v126")
        e("v_lshl_add_u32 v126, v2, 9, v126")
        e("v_add_u32 v126, s56, v126")
        e("v_lshrrev_b32 v127, 5, v0")
        e("v_lshl_add_u32 v128, v1, 7, s56")
        for i in range(4):
            e(f"v_add_u32 v129, {2*i}, v127")
            e("v_xor_b32 v129, v129, v2")
            e(f"v_lshl_add_u32 {v(130+i)}, v129, 4, v128")

    def h_loads(self):
        e = self.e
        e("s_lshl_b32 s56, s63, 12")
        e(f"s_add_u32 {s(SRD_C)}, {s(S_SSMK)}, s56")
        e(f"s_addc_u32 {s(SRD_C+1)}, {s(S_SSMK+1)}, 0")
        e(f"s_mov_b32 {s(SRD_C+2)}, 4096")
        e(f"s_mov_b32 {s(SRD_C+3)}, 0x20000")
        e("v_lshlrev_b32 v8, 4, v0")
        e("v_subrev_u32 v9, 32, v8")
        for it in range(5):
            if it: e(f"v_add_u32 v9, 1024, v9")
            e(f"buffer_load_dwordx4 {v(140+6*it,4)}, v9, {s(SRD_C,4)}, 0 offen{self.nt}")
            e(f"buffer_load_dwordx2 {v(140+6*it+4,2)}, v9, {s(SRD_C,4)}, 0 offen offset:16{self.nt}")

    def h_build(self, younger=0):
        e = self.e
        e(f"s_mul_i32 s56, s58, {self.C_HCH}")
        e("v_add_u32 v8, s56, v8")
        T = 172
        for it in range(5):
            a = 140 + 6*it
            e(f"s_waitcnt vmcnt({2*(4-it) + younger})")
            if it == 4: e("s_mov_b64 exec, 15")
            off = 1024 * it
            e(f"ds_write_b128 v8, {v(a,4)} offset:{self.C_HC + off}")
            for d in range(4): e(f"v_mov_b32 {v(T+d)}, {v(a+1+d)}")
            e(f"ds_write_b128 v8, {v(T,4)} offset:{self.C_HC + 2*self.C_HSTR + off}")
            for d in range(4): e(f"v_alignbit_b32 {v(T+4+d)}, {v(a+d+1)}, {v(a+d)}, 16")
            e(f"ds_write_b128 v8, {v(T+4,4)} offset:{self.C_HC + 1*self.C_HSTR + off}")
            for d in range(4): e(f"v_alignbit_b32 {v(T+8+d)}, {v(a+d+2)}, {v(a+d+1)}, 16")
            e(f"ds_write_b128 v8, {v(T+8,4)} offset:{self.C_HC + 3*self.C_HSTR + off}")
            T = 184 if T == 172 else 172
        e("s_mov_b64 exec, -1")

    def phase_p(self):
        e = self.e
        Lb = self.newlabel("p_b"); Le = self.newlabel("p_e")
        self.chC(63)
        e("v_lshrrev_b32 v1, 3, v0           ; pbk")
        e("v_and_b32 v2, 7, v0               ; cq")
        if self.o.get("p_rot"):
            e(f"s_add_u32 s56, {s(S_XI)}, {s(S_J)}")
            e("s_and_b32 s56, s56, 7")
            e("s_lshl_b32 s56, s56, 7")
        else:
            e(f"s_lshl_b32 s56, {s(S_XI)}, 7")
        e("s_lshl_b32 s57, s58, 5")
        e("s_add_u32 s59, s56, s57            ; 128cb + 32w")
        e("v_lshl_add_u32 v3, v2, 2, s59      ; ch0")
        e(f"s_lshl_b32 s56, {s(S_J)}, 6")
        e("v_lshl_add_u32 v4, v1, 3, s56")
        e("v_lshlrev_b32 v5, 11, v4")
        e("v_lshl_add_u32 v5, v3, 1, v5")
        e(f"s_cmp_ge_u32 {s(S_WV)}, 4")
        e(f"s_cbranch_scc1 {Lb}")
        self.g2_b2_load()
        self.srd(SRD_A, S_K, S_ * D_ * 2)
        self.srd(SRD_B, S_V, S_ * D_ * 2)
        self.srd(SRD_C, S_SH, D_ * 8)
        KD, VD, WD = 10, 32, 48
        e("v_subrev_u32 v120, 6144, v5")
        for i in range(1, 6): e(f"v_add_u32 {v(120+i)}, {4096*i}, v120")
        for i in range(11):
            e(f"buffer_load_dwordx2 {v(KD+2*i,2)}, {v(120+i//2)}, {s(SRD_A,4)}, 0 offen offset:{2048*(i&1)}{self.nt}")
        e("v_lshlrev_b32 v7, 3, v3            ; ch0*8")
        e(f"buffer_load_dwordx4 {v(WD,4)}, v7, {s(SRD_C,4)}, 0 offen")
        e(f"buffer_load_dwordx4 {v(WD+4,4)}, v7, {s(SRD_C,4)}, 0 offen offset:16")
        for p in range(8):
            i = p + 3
            e(f"buffer_load_dwordx2 {v(VD+2*p,2)}, {v(120+i//2)}, {s(SRD_B,4)}, 0 offen offset:{2048*(i&1)}{self.nt}")
        e("v_mov_b32 v8, 0"); e("v_mov_b32 v9, 0")
        e(f"s_mul_i32 s56, s58, {self.C_XCH}")
        e(f"s_add_u32 s56, s56, {self.C_XR + 4096}")
        e("v_lshl_add_u32 v6, v0, 3, s56")
        e("ds_write_b64 v6, v[8:9]")
        self.lds_transpose_setup()
        e("v_lshlrev_b32 v6, 4, v2")
        e(f"s_lshl_b32 s56, {s(S_J)}, 7")
        e("s_sub_u32 s56, 4080, s56")
        e("v_sub_u32 v6, s56, v6")
        e("v_add_u32 v7, s59, v1")
        e("v_lshl_add_u32 v6, v7, 12, v6")
        e(f"v_add_u32 v6, {WS_XR}, v6")
        for c in range(1, 4): e(f"s_mov_b32 {s(64+c)}, {8*4096*c}")
        e("s_mov_b32 s64, 0")
        WP, KP, R, VP, O = 56, 64, 86, 102, 104
        self.stamp("p_issue", defer=True)
        e("s_waitcnt vmcnt(8)")
        self.stamp("p_kdata", defer=True)
        for cp in range(2):
            for j in range(4):
                self.unpack(WP + 2*j,     WD + 2*(2*cp)   + (j >> 1), j & 1)
                self.unpack(WP + 2*j + 1, WD + 2*(2*cp+1) + (j >> 1), j & 1)
            for i in range(11):
                self.unpack(KP + 2*i,     KD + 2*i + cp, 0)
                self.unpack(KP + 2*i + 1, KD + 2*i + cp, 1)
            if cp == 0:
                e("s_waitcnt vmcnt(0)")
                self.stamp("p_vdata", defer=True)
            for p in range(8):
                r = R + 2*p
                e(f"v_pk_mul_f32 {v(r,2)}, {v(KP+2*(p+3),2)}, {v(WP,2)}")
                for j in range(1, 4):
                    e(f"v_pk_fma_f32 {v(r,2)}, {v(KP+2*(p+3-j),2)}, {v(WP+2*j,2)}, {v(r,2)}")
                self.unpack(VP,     VD + 2*p + cp, 0)
                self.unpack(VP + 1, VD + 2*p + cp, 1)
                e(f"v_pk_mul_f32 {v(r,2)}, {v(r,2)}, {v(VP,2)}")
            for cc in range(2):
                c = 2*cp + cc
                for j in range(4):
                    e(f"v_cvt_pk_bf16_f32 {v(O+4*c+j)}, {v(R+2*(7-2*j)+cc)}, {v(R+2*(6-2*j)+cc)}")
                e(f"ds_write_b128 v126, {v(O+4*c,4)} offset:{128*c}")
        e("s_waitcnt lgkmcnt(0)")
        for i in range(4): e(f"ds_read_b128 {v(O+4*i,4)}, {v(130+i)} offset:{1024*i}")
        for i in range(4):
            e(f"s_waitcnt lgkmcnt({3-i})")
            e(f"buffer_store_dwordx4 {v(O+4*i,4)}, v6, {s(SRD_WS,4)}, {s(64+i)} offen {self.o.get('xr_aux', 'sc1')}")
        self.stamp("p_stored", defer=True)
        if self.o.get("x_late", False):
            e(f"v_mov_b32 v250, {self.C_CNT + 4*5}")
            e("v_mov_b32 v251, 1")
            e("s_mov_b64 exec, 1")
            e("ds_add_u32 v250, v251")
            e("s_mov_b64 exec, -1")
        e("s_and_b32 s56, s63, 0xfffffffe")
        e("s_lshl_b32 s56, s56, 1")
        e(f"s_load_dword s69, {s(S_SSMD,2)}, s56")
        self.epoch_ready()
        self.stamp_commit()
        e("s_waitcnt vmcnt(0)")
        self.lds_count(0, 4, lambda: self.publish(1))
        self.stamp("p_sig")
        e(f"s_branch {Le}")
        self.label(Lb)
        if self.o.get("stamps"): self.deferred = [(self.stamp_names.index("start"), 70)]
        self.g1_b1_load()
        self.srd(SRD_A, S_X, S_ * D_ * 2)
        XD, SD = 10, 26
        e("s_lshl_b32 s56, s2, 3")
        e("s_lshl_b32 s57, s58, 1")
        e("s_add_u32 s62, s56, s57            ; R0 = 8w + 2w'")
        e("s_lshl_b32 s56, s62, 11")
        e("v_lshl_add_u32 v6, v0, 4, s56")
        for i in range(4):
            e(f"buffer_load_dwordx4 {v(SD+4*i,4)}, v6, {s(SRD_A,4)}, 0 offen offset:{1024*i}{self.nt}")
        self.h_loads()
        e("v_mov_b32 v120, v5")
        for i in range(1, 4): e(f"v_add_u32 {v(120+i)}, {4096*i}, v5")
        for p in range(8):
            e(f"buffer_load_dwordx2 {v(XD+2*p,2)}, {v(120+p//2)}, {s(SRD_A,4)}, 0 offen offset:{2048*(p&1)}{self.nt}")
        e("s_and_b32 s56, s63, 0xfffffffe")
        e("s_lshl_b32 s56, s56, 1")
        e(f"s_load_dword s69, {s(S_SSMD,2)}, s56")
        U = 44
        e("s_waitcnt vmcnt(18)")
        for r in range(2):
            for d in range(8):
                self.unpack(U+16*r+2*d, SD+8*r+d, 0)
                self.unpack(U+16*r+2*d+1, SD+8*r+d, 1)
        SUM = [80, 81]; TMP = [82, 83]; VAR = [86, 87]
        for r in range(2):
            b = U + 16*r
            e(f"v_pk_add_f32 v[84:85], {v(b,2)}, {v(b+2,2)}")
            for d in range(2, 8):
                e(f"v_pk_add_f32 v[84:85], v[84:85], {v(b+2*d,2)}")
            e(f"v_add_f32 {v(SUM[r])}, v84, v85")
        self.allreduce_add(SUM, TMP)
        for r in range(2):
            e(f"v_mul_f32 {v(SUM[r])}, 0x3a800000, {v(SUM[r])}")
        for r in range(2):
            b = U + 16*r
            for d in range(0, 16, 2):
                e(f"v_sub_f32 {v(b+d)}, {v(b+d)}, {v(SUM[r])}")
                e(f"v_sub_f32 {v(b+d+1)}, {v(b+d+1)}, {v(SUM[r])}")
            e(f"v_pk_mul_f32 v[84:85], {v(b,2)}, {v(b,2)}")
            for d in range(1, 8):
                e(f"v_pk_fma_f32 v[84:85], {v(b+2*d,2)}, {v(b+2*d,2)}, v[84:85]")
            e(f"v_add_f32 {v(VAR[r])}, v84, v85")
        self.allreduce_add(VAR, TMP)
        ST = 88
        for r in range(2):
            e(f"v_mul_f32 {v(VAR[r])}, 0x3a800000, {v(VAR[r])}")
            self.round_bf16(VAR[r], VAR[r])
            e(f"v_add_f32 {v(VAR[r])}, 0x3727c5ac, {v(VAR[r])}")
            self.round_bf16(VAR[r], VAR[r])
            e(f"v_sqrt_f32 {v(VAR[r])}, {v(VAR[r])}")
            self.round_bf16(VAR[r], VAR[r])
            e(f"v_rcp_f32 {v(ST+2*r+1)}, {v(VAR[r])}")
            self.round_bf16(ST + 2*r, SUM[r])
        e("s_lshl_b32 s56, s62, 3")
        e(f"s_add_u32 s56, s56, {WS_ST}")
        e("v_mov_b32 v6, s56")
        e("s_mov_b64 exec, 1")
        e(f"buffer_store_dwordx4 {v(ST,4)}, v6, {s(SRD_WS,4)}, 0 offen sc1")
        e("s_mov_b64 exec, -1")
        self.h_build(younger=9)
        e("s_waitcnt lgkmcnt(0)")
        self.lds_count(1, 4, None)
        self.stamp_commit()
        self.stamp("p_hb")
        self.epoch_ready()
        e("s_waitcnt vmcnt(0)")
        self.lds_count(2, 4, lambda: self.publish(1, arr=1))
        self.stamp("p_stsig")
        self.lds_transpose_setup()
        e("v_lshlrev_b32 v6, 4, v2")
        e(f"s_lshl_b32 s56, {s(S_J)}, 7")
        e("v_add_u32 v6, s56, v6")
        e("v_add_u32 v7, s59, v1")
        e("v_lshl_add_u32 v6, v7, 12, v6")
        e(f"v_add_u32 v7, {WS_XT}, v6")
        for c in range(1, 4): e(f"s_mov_b32 {s(64+c)}, {8*4096*c}")
        e("s_mov_b32 s64, 0")
        e("s_mov_b32 s60, 0x05040100")
        e("s_mov_b32 s61, 0x07060302")
        O = 104
        for c in range(4):
            sel = s(61) if c & 1 else s(60)
            for j in range(4):
                e(f"v_perm_b32 {v(O+4*c+j)}, {v(XD+2*(2*j+1)+(c>>1))}, {v(XD+2*(2*j)+(c>>1))}, {sel}")
            e(f"ds_write_b128 v126, {v(O+4*c,4)} offset:{128*c}")
        for i in range(4): e(f"ds_read_b128 {v(O+4*i,4)}, {v(130+i)} offset:{1024*i}")
        e("s_waitcnt lgkmcnt(0)")
        if self.o.get("xt_late", True):
            self.lds_wait(6, 4)
        for i in range(4):
            e(f"buffer_store_dwordx4 {v(O+4*i,4)}, v7, {s(SRD_WS,4)}, {s(64+i)} offen {self.o.get('xt_aux', 'sc1')}")
        self.stamp("p_stored")
        e("s_waitcnt vmcnt(0)")
        self.lds_count(7, 4, lambda: self.publish(1, arr=2))
        self.stamp("p_sig")
        self.label(Le)

    def publish(self, p, arr=0):
        e = self.e
        e(f"s_add_u32 s56, {s(S_EP)}, {p}")
        e("v_mov_b32 v254, s56")
        e(f"s_lshl_b32 s57, {s(S_XI)}, 10")
        e(f"s_lshr_b32 s56, {s(S_J)}, 2")
        e("s_lshl_b32 s56, s56, 7")
        e("s_add_u32 s57, s57, s56")
        e(f"s_and_b32 s56, {s(S_J)}, 3")
        e("s_lshl_b32 s56, s56, 2")
        e("s_add_u32 s57, s57, s56")
        if arr: e(f"s_add_u32 s57, s57, {8192*arr}")
        e("v_mov_b32 v255, s57")
        e("s_mov_b64 exec, 1")
        e(f"buffer_store_dword v254, v255, {s(SRD_WS,4)}, 0 offen sc1")
        e("s_mov_b64 exec, -1")

    def phase_c(self):
        e = self.e
        Lh = self.newlabel("c_help"); Lj = self.newlabel("c_join"); Lep = self.newlabel("c_epi")
        e(f"s_cmp_ge_u32 {s(S_WV)}, 4")
        e(f"s_cbranch_scc1 {Lh}")
        self.chC(63)
        e("v_lshlrev_b32 v1, 4, v0            ; lane*16")
        Lp = self.newlabel("c_p"); Lp2 = self.newlabel("c_p2")
        e(f"s_cmp_eq_u32 {s(S_WV)}, 0")
        e(f"s_cbranch_scc0 {Lp}")
        if not self.o.get("nosync"): self.poll_group(1, sleep=self.o.get("g_sleep", 4))
        self.lds_count(4, 1, None)
        e(f"s_branch {Lp2}")
        self.label(Lp)
        self.lds_wait(4, 1)
        self.label(Lp2)
        self.stamp("c_start")
        e("s_lshl_b32 s56, s63, 12")
        e(f"s_add_u32 s60, s56, {WS_XR}")
        e(f"s_mul_i32 s56, s58, {self.C_XCH}")
        e(f"s_add_u32 m0, s56, {self.C_XR}")
        for i in range(4):
            e(f"buffer_load_dwordx4 v1, {s(SRD_WS,4)}, s60 offen sc1 lds")
            if i < 3: e("s_add_u32 m0, m0, 1024"); e("s_add_u32 s60, s60, 1024")
        if self.o.get("xt_late", True):
            e(f"v_mov_b32 v250, {self.C_CNT + 4*6}")
            e("v_mov_b32 v251, 1")
            e("s_mov_b64 exec, 1")
            e("ds_add_u32 v250, v251")
            e("s_mov_b64 exec, -1")
        e("v_and_b32 v2, 15, v0               ; n / m")
        e("v_lshrrev_b32 v3, 4, v0            ; g / rho")
        e("v_add_u32 v6, 1, v2")
        e("v_and_b32 v7, 3, v6")
        e(f"v_mul_u32_u24 v7, {self.C_HSTR}, v7")
        e("v_and_b32 v6, 0x1c, v6")
        e("v_lshl_add_u32 v7, v6, 1, v7")
        e("v_lshl_add_u32 v7, v3, 4, v7")
        e(f"s_mul_i32 s56, s58, {self.C_HCH}")
        e(f"s_add_u32 s56, s56, {self.C_HC}")
        e("v_add_u32 v8, s56, v7              ; v8 = A base")
        e("v_lshlrev_b32 v6, 5, v2")
        e("v_lshlrev_b32 v7, 4, v3")
        e("v_sub_u32 v6, v7, v6")
        e(f"s_mul_i32 s56, s58, {self.C_XCH}")
        e(f"s_add_u32 s56, s56, {self.C_XR + 480}")
        e("v_add_u32 v9, s56, v6              ; v9 = B base")
        self.lds_wait(1, 4)
        e("s_waitcnt vmcnt(0)")
        if self.o.get("tlb_touch", False): self.tlb_touch()
        if self.o.get("prefetch_w1", True): self.prefetch_w(1, 58)
        self.stamp("c_loop")
        ACC = 10
        FA = [42, 106]; FB = [74, 138]
        def reads(st, tt):
            r = []
            for i in range(8):
                r.append(f"ds_read_b128 {v(FB[st]+4*i,4)}, v9 offset:{512*(7-i) + 64*tt}")
                for hh in range(2):
                    r.append(f"ds_read_b64 {v(FA[st]+4*i+2*hh,2)}, v8 offset:{512*i + 64*tt + 8*hh}")
            return r
        pairs = sorted([(q, cp) for q in range(8) for cp in range(8 - q)], key=lambda t: (max(t), t[0] + t[1]))
        for r in reads(0, 0): e(r)
        for tt in range(8):
            st = tt & 1
            e("s_waitcnt lgkmcnt(0)")
            nxt = reads(st ^ 1, tt + 1) if tt < 7 else []
            seen = set(); i = 0
            for (q, cp) in pairs:
                c = q + cp
                a = ACC + 4*c
                src = "0" if (tt == 0 and c not in seen) else v(a, 4)
                seen.add(c)
                e(f"v_mfma_f32_16x16x32_bf16 {v(a,4)}, {v(FA[st]+4*q,4)}, {v(FB[st]+4*cp,4)}, {src}")
                if i < len(nxt): e(nxt[i]); i += 1
        self.stamp("c_loopend")
        e(f"s_lshl_b32 s56, s58, 12")
        e(f"s_add_u32 s56, s56, {self.C_EX + 16384}")
        e("v_add_u32 v6, s56, v1")
        for i in range(4): e(f"ds_write_b128 v6, {v(ACC+16+4*i,4)} offset:{1024*i}")
        e("s_waitcnt lgkmcnt(0)")
        e("s_barrier")
        e(f"s_branch {Lep}")
        self.label(Lh)
        self.chC(63)
        Lq = self.newlabel("c_q"); Lq2 = self.newlabel("c_q2")
        e("v_lshlrev_b32 v1, 4, v0")
        e(f"s_cmp_eq_u32 {s(S_WV)}, 4")
        e(f"s_cbranch_scc0 {Lq}")
        if not self.o.get("nosync"): self.poll_all(1, sleep=self.o.get('x_sleep', 8), arr=1)
        self.stamp("c_xpoll")
        e(f"s_mov_b32 s60, {WS_ST}")
        e(f"s_mov_b32 m0, {self.C_ST}")
        for i in range(16):
            e(f"buffer_load_dwordx4 v1, {s(SRD_WS,4)}, s60 offen sc1 lds")
            if i < 15: e("s_add_u32 m0, m0, 1024"); e("s_add_u32 s60, s60, 1024")
        if not self.o.get("nosync"): self.poll_group(1, sleep=self.o.get('g_sleep', 4), arr=2)
        self.stamp("c_xtpoll")
        self.lds_count(8, 1, None)
        Lx = self.newlabel("c_x")
        e(f"s_branch {Lx}")
        self.label(Lq)
        self.lds_wait(8, 1)
        self.label(Lx)
        e("s_lshl_b32 s56, s63, 12")
        e(f"s_add_u32 s60, s56, {WS_XT}")
        e("s_lshl_b32 s56, s58, 12")
        e(f"s_add_u32 m0, s56, {self.C_XT}")
        for i in range(4):
            e(f"buffer_load_dwordx4 v1, {s(SRD_WS,4)}, s60 offen sc1 lds")
            if i < 3: e("s_add_u32 m0, m0, 1024"); e("s_add_u32 s60, s60, 1024")
        e("s_waitcnt vmcnt(0)")
        self.stamp("c_xjob")
        if self.o.get("prealloc", False):
            L5 = self.newlabel("c_5")
            e(f"s_cmp_eq_u32 {s(S_WV)}, 5")
            e(f"s_cbranch_scc0 {L5}")
            e("v_lshrrev_b32 v1, 4, v0")
            e("v_lshlrev_b32 v1, 18, v1")
            e("v_and_b32 v2, 15, v0")
            e("v_lshl_add_u32 v1, v2, 4, v1")
            e("s_and_b32 s56, s63, 0xfffffffc")
            e("s_lshl_b32 s56, s56, 8")
            e(f"s_add_u32 s60, s56, {WS_HT}")
            for c in range(4):
                for mq in range(4):
                    e(f"s_add_u32 s56, s60, {c*256 + mq*4*262144}")
                    e(f"buffer_store_dwordx4 v[12:15], v1, {s(SRD_WS,4)}, s56 offen sc1")
            e("s_waitcnt vmcnt(0)")
            self.label(L5)
        if "g2" in self.o["phases"] and self.o.get("sent_c"):
            e(f"s_cmp_lt_u32 {s(S_WV)}, 6")
            e(f"s_cbranch_scc1 {Lq2}")
            e("s_lshl_b32 s56, s2, 15")
            e(f"s_sub_u32 s57, {s(S_WV)}, 6")
            e("s_lshl_b32 s57, s57, 14")
            e("s_add_u32 s56, s56, s57")
            e(f"s_add_u32 s60, s56, {WS_EX}")
            e("v_lshlrev_b32 v1, 4, v0")
            for r in range(4): e(f"v_mov_b32 {v(12+r)}, -1")
            for i in range(16):
                e(f"buffer_store_dwordx4 v[12:15], v1, {s(SRD_WS,4)}, s60 offen sc1")
                if i < 15: e("s_add_u32 s60, s60, 1024")
        self.label(Lq2)
        self.stamp("c_loopend")
        e("s_barrier")
        self.chC(63)
        e("v_lshlrev_b32 v1, 4, v0")
        e("v_and_b32 v2, 15, v0")
        e("v_lshrrev_b32 v3, 4, v0")
        e(f"s_lshl_b32 s56, s58, 12")
        e(f"s_add_u32 s56, s56, {self.C_EX + 16384}")
        e("v_add_u32 v6, s56, v1")
        for i in range(4): e(f"ds_read_b128 {v(ACC+4*i,4)}, v6 offset:{1024*i}")
        self.label(Lep)
        self.stamp("c_exch")
        e(f"s_lshr_b32 s59, {s(S_WV)}, 2       ; kh")
        e("v_and_b32 v4, 1, v3")
        e("s_lshl_b32 s56, s59, 2")
        e("v_add_u32 v4, s56, v4")
        e("v_lshlrev_b32 v4, 8, v4")
        e("v_lshl_add_u32 v4, v2, 4, v4")
        e("v_lshrrev_b32 v5, 1, v3")
        e("v_lshl_add_u32 v4, v5, 3, v4       ; v4 = s (pair 0)")
        KV, STT, XE = 42, 50, 82
        e("v_sub_u32 v5, 2040, v4")
        e("v_lshlrev_b32 v5, 1, v5")
        e(f"s_mul_i32 s56, s58, {self.C_XCH}")
        e(f"s_add_u32 s56, s56, {self.C_XR - 1024}")
        e("v_add_u32 v5, s56, v5")
        e(f"ds_read_b128 {v(KV,4)}, v5 offset:1024")
        e(f"ds_read_b128 {v(KV+4,4)}, v5")
        e("s_lshl_b32 s56, s58, 12")
        e(f"s_add_u32 s56, s56, {self.C_XT}")
        e("v_lshl_add_u32 v5, v4, 1, s56")
        e(f"ds_read_b128 {v(XE,4)}, v5")
        e(f"ds_read_b128 {v(XE+4,4)}, v5 offset:1024")
        e("v_lshlrev_b32 v5, 3, v4")
        e(f"v_add_u32 v5, {self.C_ST}, v5")
        for p in range(2):
            for i in range(4):
                e(f"ds_read_b128 {v(STT+16*p+4*i,4)}, v5 offset:{4096*p + 16*i}")
        e("v_lshrrev_b32 v5, 7, v4")
        e("v_lshlrev_b32 v5, 18, v5")
        e("v_and_b32 v6, 127, v4")
        e("v_lshl_add_u32 v5, v6, 1, v5")
        e("s_lshl_b32 s56, s63, 8")
        e(f"s_add_u32 s60, s56, {WS_HT}")
        e(f"s_add_u32 s62, s60, {4 << 18}")
        e("s_and_b32 s56, s63, 1")
        e("s_lshl_b32 s56, s56, 4")
        e("s_lshr_b32 s61, s69, s56")
        e("s_lshl_b32 s61, s61, 16")
        e("s_waitcnt lgkmcnt(0)")
        H = 110
        for p in range(2):
            a = ACC + 8*p; b = a + 4
            for r in range(4):
                e(f"v_permlane16_swap_b32 {v(a+r)}, {v(b+r)}")
            for el in range(8):
                y = a + el
                xr_ = XE + 4*p + (el >> 1)
                kj = KV + 4*p + ((7 - el) >> 1)
                t0 = H + 16 + (el & 1) * 4
                self.unpack(t0, xr_, el & 1)
                self.unpack(t0 + 1, kj, 1 - (el & 1))
                m_ = STT + 16*p + 2*el
                e(f"v_fmac_f32 {v(y)}, s61, {v(t0+1)}")
                e(f"v_sub_f32 {v(t0+2)}, {v(t0)}, {v(m_)}")
                e(f"v_mul_f32 {v(t0+2)}, {v(t0+2)}, {v(m_+1)}")
                e(f"v_fma_f32 {v(H+el)}, {v(t0+2)}, {v(y)}, {v(t0)}")
            O = H + 8
            for j in range(4):
                e(f"v_cvt_pk_bf16_f32 {v(O+j)}, {v(H+2*j)}, {v(H+2*j+1)}")
            e(f"buffer_store_dwordx4 {v(O,4)}, v5, {s(SRD_WS,4)}, {s(60 if p == 0 else 62)} offen {self.o.get('ht_aux', 'sc1')}")
            H = 140

    def tlb_touch(self):
        e = self.e
        L = self.newlabel("tlb")
        e(f"s_cmp_lg_u32 {s(S_WV)}, 0")
        e(f"s_cbranch_scc1 {L}")
        e("v_min_u32 v244, 23, v0")
        e("v_lshlrev_b32 v244, 20, v244")
        e(f"v_add_u32 v244, {WS_HM + 4096}, v244")
        e(f"buffer_load_dword v243, v244, {s(SRD_WS,4)}, 0 offen")
        self.srd(SRD_A, S_OUT, S_ * D_ * 2)
        e("v_min_u32 v244, 3, v0")
        e("v_lshlrev_b32 v244, 20, v244")
        e(f"buffer_load_dword v242, v244, {s(SRD_A,4)}, 0 offen")
        self.label(L)

    def prefetch_w(self, which, swave):
        e = self.e
        ptr = S_W1 if which == 1 else S_W2
        gran = self.o.get("pf_gran", 64)
        self.srd(SRD_C, ptr, D_ * F_ * 2)
        e("s_lshl_b32 s56, s2, 2")
        e(f"s_add_u32 s56, s56, {s(swave)}")
        e("s_mul_i32 s56, s56, 56*128")
        e("v_min_u32 v247, 55, v0")
        e("v_lshlrev_b32 v247, 7, v247")
        e("v_add_u32 v247, s56, v247")
        e(f"buffer_load_dword v246, v247, {s(SRD_C,4)}, 0 offen")
        if gran == 64: e(f"buffer_load_dword v245, v247, {s(SRD_C,4)}, 0 offen offset:64")

    G1_STG = 45056
    G1_TOK, G1_W = 0, 16384
    G1_AST = 135168
    G1_CS  = 136192
    G1_B1  = 137216
    G1_CNT = 138240

    def g1_ids(self):
        e = self.e
        e(f"s_and_b32 s56, {s(S_XI)}, 1")
        e("s_lshl_b32 s56, s56, 3")
        e(f"s_and_b32 s57, {s(S_J)}, 7")
        e("s_add_u32 s60, s56, s57          ; mb")
        e(f"s_lshr_b32 s56, {s(S_XI)}, 1")
        e("s_lshl_b32 s56, s56, 2")
        e(f"s_lshr_b32 s57, {s(S_J)}, 3")
        e("s_add_u32 s61, s56, s57          ; nb")

    def wg_of(self, dst, vmb, vnb, t):
        e = self.e
        e(f"v_lshrrev_b32 {v(dst)}, 3, {v(vmb)}")
        e(f"v_lshrrev_b32 {v(t)}, 2, {v(vnb)}")
        e(f"v_lshl_add_u32 {v(dst)}, {v(t)}, 1, {v(dst)}      ; x")
        e(f"v_and_b32 {v(t)}, 7, {v(vmb)}")
        e(f"v_lshl_add_u32 {v(dst)}, {v(t)}, 3, {v(dst)}")
        e(f"v_and_b32 {v(t)}, 3, {v(vnb)}")
        e(f"v_lshl_add_u32 {v(dst)}, {v(t)}, 6, {v(dst)}")

    def flag_addr(self, dst, t):
        e = self.e
        e(f"v_and_b32 {v(t)}, 7, {v(dst)}")
        e(f"v_lshlrev_b32 {v(t)}, 10, {v(t)}")
        e(f"v_lshrrev_b32 {v(t+1)}, 5, {v(dst)}")
        e(f"v_lshl_add_u32 {v(t)}, {v(t+1)}, 7, {v(t)}")
        e(f"v_bfe_u32 {v(dst)}, {v(dst)}, 3, 2")
        e(f"v_lshl_add_u32 {v(dst)}, {v(dst)}, 2, {v(t)}")

    def poll_addr(self, p, va, vd):
        e = self.e
        L = self.newlabel("pa"); Lx = self.newlabel("pax")
        e(f"s_add_u32 s56, {s(S_EP)}, {p}")
        e("s_mov_b32 s57, 0x100000")
        self.label(L)
        e(f"buffer_load_dword {v(vd)}, {v(va)}, {s(SRD_WS,4)}, 0 offen sc1")
        e("s_sub_u32 s57, s57, 1")
        e("s_cmp_eq_u32 s57, 0")
        e(f"s_cbranch_scc1 {Lx}")
        e("s_waitcnt vmcnt(0)")
        e(f"v_subrev_u32 {v(vd)}, s56, {v(vd)}")
        e(f"v_cmp_le_u32 vcc, 16, {v(vd)}")
        e(f"s_cbranch_vccnz {L}")
        self.label(Lx)
        e("s_waitcnt vmcnt(0)")

    def g1_loader_setup(self):
        e = self.e
        e(f"s_sub_u32 s58, {s(S_WV)}, 4       ; lw")
        e("v_lshrrev_b32 v13, 4, v0          ; g = lane>>4")
        e("v_and_b32 v14, 15, v0             ; p")
        e("v_lshrrev_b32 v15, 1, v14         ; b'")
        e("v_and_b32 v16, 1, v14             ; half")
        e("v_xor_b32 v15, v15, v13           ; b' ^ (row&3)")
        e("s_lshl_b32 s59, s58, 4")
        e("v_add_u32 v17, s59, v13")
        e("v_lshlrev_b32 v17, 8, v17         ; *256")
        e("v_lshl_add_u32 v17, v16, 4, v17")
        e("s_lshl_b32 s59, s60, 18           ; mb*262144")
        e(f"s_add_u32 s59, s59, {WS_HT}")
        e("v_add_u32 v17, s59, v17")
        for ii in range(4):
            x4 = 4 if (ii >> 1) & 1 else 0
            e(f"v_xor_b32 v18, {x4}, v15")
            e("v_lshl_add_u32 v18, v18, 5, v17")
            e(f"v_add_u32 {v(2+ii)}, {ii*4*256}, v18")
        e("s_mov_b32 s59, 0x924924a          ; ceil(2^32/28)")
        for ii in range(7):
            e(f"v_add_u32 v13, {64*ii}, v0")
            e("v_mul_hi_u32 v14, s59, v13        ; row_local")
            e("v_mul_u32_u24 v15, 28, v14")
            e("v_sub_u32 v15, v13, v15           ; p")
            e("v_bfe_u32 v16, v14, 3, 1          ; bit3(row)")
            e("v_lshrrev_b32 v17, 1, v15         ; b'")
            e("v_xor_b32 v17, v17, v16           ; b")
            e("v_and_b32 v15, 1, v15")
            e("v_lshlrev_b32 v15, 4, v15")
            e("v_lshl_add_u32 v15, v17, 5, v15   ; b*32 + half*16")
            e("v_mul_u32_u24 v14, 7168, v14")
            e(f"v_add_u32 {v(6+ii)}, v14, v15")
        e("s_mul_i32 s59, s58, 16*7168")
        e("s_mul_i32 s57, s61, 448")
        e("s_add_u32 s59, s59, s57")
        for ii in range(7):
            e(f"v_add_u32 {v(6+ii)}, s59, {v(6+ii)}")
        e("s_lshl_b32 s62, s58, 12")
        e("s_mul_i32 s63, s58, 7168")
        e(f"s_add_u32 s63, s63, {self.G1_W}")

    def g1_issue_w(self, sbuf, sk):
        e = self.e
        if self.o.get("g1_nodma"): return
        e(f"s_add_u32 m0, {s(sbuf)}, s63")
        for ii in range(7):
            e(f"buffer_load_dwordx4 {v(6+ii)}, {s(SRD_B,4)}, {s(sk)} offen lds")
            if ii < 6: e("s_add_u32 m0, m0, 1024")

    def g1_issue_t(self, sbuf, sk):
        e = self.e
        if self.o.get("g1_nodma"): return
        e(f"s_add_u32 m0, {s(sbuf)}, s62")
        for ii in range(4):
            e(f"buffer_load_dwordx4 {v(2+ii)}, {s(SRD_WS,4)}, {s(sk)} offen {self.o.get('t_aux', 'sc1')} lds")
            if ii < 3: e("s_add_u32 m0, m0, 1024")

    def g1_next_k(self):
        e = self.e
        e("s_add_u32 s68, s68, 1")
        e("s_and_b32 s68, s68, 15")
        e(f"s_mul_i32 s65, s68, {64*7168}")
        e(f"s_lshl_b32 s66, s68, 14")

    def g1_side_col(self):
        e = self.e
        e("v_lshrrev_b32 v20, 4, v0          ; g")
        e("v_and_b32 v21, 15, v0")
        e("v_lshrrev_b32 v22, 2, v21         ; r")
        e("v_and_b32 v23, 3, v21             ; c")
        e("v_lshl_add_u32 v24, v20, 3, v22   ; row = 8g + r")
        e("v_and_b32 v25, 1, v20             ; g&1")
        e("v_mul_u32_u24 v27, 448, v24")
        e("v_lshl_add_u32 v27, v23, 3, v27")
        e(f"v_add_u32 v27, {self.G1_W}, v27")
        WF, ONE, DC = 48, 80, 100
        for i in range(4):
            e(f"s_add_u32 s56, s58, {4*i}")
            e("s_min_u32 s56, s56, 13")
            e(f"s_mov_b32 {s(84+i)}, s56")
            e("v_xor_b32 v28, s56, v25")
            e(f"v_lshl_add_u32 {v(116+i)}, v28, 5, v27")
        for i in range(4):
            for u in range(2):
                for h in range(2):
                    e(f"ds_read_b64_tr_b16 {v(WF+8*i+4*u+2*h,2)}, {v(116+i)} offset:{u*32*448 + h*4*448}")
        for r in range(4): e(f"v_mov_b32 {v(ONE+r)}, 0x3f803f80")
        e("s_waitcnt lgkmcnt(0)")
        for u in range(2):
            for i in range(4):
                e(f"v_mfma_f32_16x16x32_bf16 {v(DC+4*i,4)}, {v(WF+8*i+4*u,4)}, {v(ONE,4)}, {'0' if u == 0 else v(DC+4*i,4)}")
        e("s_lshl_b32 s56, s61, 4")
        e("s_add_u32 s56, s56, s60")
        e("s_lshl_b32 s56, s56, 10")
        e(f"s_add_u32 s56, s56, {WS_CSP}")
        e("v_lshl_add_u32 v28, v20, 4, s56")
        e("s_mov_b32 exec_lo, 0x00010001"); e("s_mov_b32 exec_hi, 0x00010001")
        for i in range(4):
            e(f"s_lshl_b32 s56, {s(84+i)}, 6")
            e(f"buffer_store_dwordx4 {v(DC+4*i,4)}, v28, {s(SRD_WS,4)}, s56 offen sc1")
        e("s_mov_b64 exec, -1")

    def g1_tok_mfma(self, base, first):
        e = self.e
        ONE, D1, D2 = 224, 208, 216
        La = self.newlabel("g1t"); Lb = self.newlabel("g1t2")
        e("s_cmp_eq_u32 s58, 0")
        e(f"s_cbranch_scc0 {La}")
        for pas in range(2):
            if pas == 1: self.label(La)
            for i in range(2):
                t = v(base + 28 + 4*(2*pas + i), 4)
                e(f"v_mfma_f32_16x16x32_bf16 {v(D1+4*i,4)}, {v(ONE,4)}, {t}, {'0' if first else v(D1+4*i,4)}")
                e(f"v_mfma_f32_16x16x32_bf16 {v(D2+4*i,4)}, {t}, {t}, {'0' if first else v(D2+4*i,4)}")
            if pas == 0: e(f"s_branch {Lb}")
        self.label(Lb)

    def g1_tok_store(self):
        e = self.e
        D1, D2 = 208, 216
        e("s_lshl_b32 s56, s60, 4")
        e("s_add_u32 s56, s56, s61")
        e("s_lshl_b32 s56, s56, 10")
        e(f"s_add_u32 s56, s56, {WS_TSP}")
        e("s_lshl_b32 s57, s59, 9            ; 4wt*16*8")
        e("s_add_u32 s56, s56, s57")
        e("s_lshl_b32 s57, s58, 8            ; 2wf*16*8")
        e("s_add_u32 s56, s56, s57")
        e("v_and_b32 v228, 15, v0")
        e("v_lshl_add_u32 v228, v228, 3, s56")
        e("s_mov_b32 s80, 0x22222222"); e("s_mov_b32 s81, 0x22222222")
        e("s_mov_b32 s82, 0x44444444"); e("s_mov_b32 s83, 0x44444444")
        e("s_mov_b32 vcc_lo, 0x88888888"); e("s_mov_b32 vcc_hi, 0x88888888")
        for i in range(2):
            o = 230 + 2*i
            e(f"v_mov_b32 {v(o)}, {v(D1+4*i)}")
            e(f"v_cndmask_b32 {v(o+1)}, {v(D2+4*i)}, {v(D2+4*i+1)}, s[80:81]")
            e(f"v_cndmask_b32 {v(o+1)}, {v(o+1)}, {v(D2+4*i+2)}, s[82:83]")
            e(f"v_cndmask_b32 {v(o+1)}, {v(o+1)}, {v(D2+4*i+3)}, vcc")
        e("s_mov_b32 exec_lo, 0x00f0000f"); e("s_mov_b32 exec_hi, 0xf0000f00")
        for i in range(2):
            e(f"buffer_store_dwordx2 {v(230+2*i,2)}, v228, {s(SRD_WS,4)}, 0 offen offset:{128*i} sc1")
        e("s_mov_b64 exec, -1")

    def g1_side_signal(self):
        e = self.e
        L = self.newlabel("g1s")
        e(f"v_mov_b32 v20, {self.G1_CNT}")
        e("v_mov_b32 v21, 1")
        e("s_mov_b64 exec, 1")
        e("ds_add_rtn_u32 v22, v20, v21")
        e("s_waitcnt lgkmcnt(0)")
        e("v_readfirstlane_b32 s56, v22")
        e("s_mov_b64 exec, -1")
        e("s_cmp_eq_u32 s56, 3")
        e(f"s_cbranch_scc0 {L}")
        self.publish(4)
        self.label(L)

    def g1_side_poll_issue(self):
        e = self.e
        e("v_and_b32 v20, 15, v0")
        e("v_bfe_u32 v21, v0, 4, 1")
        e("v_cmp_eq_u32 vcc, 0, v21")
        e("v_mov_b32 v22, s60"); e("v_mov_b32 v23, s61")
        e("v_cndmask_b32 v24, v20, v22, vcc")
        e("v_cndmask_b32 v25, v23, v20, vcc")
        self.wg_of(40, 24, 25, 26)
        self.flag_addr(40, 26)
        e(f"buffer_load_dword v41, v40, {s(SRD_WS,4)}, 0 offen sc1")

    def g1_side_loads(self):
        e = self.e
        L = self.newlabel("g1p")
        e(f"s_add_u32 s56, {s(S_EP)}, 4")
        e("v_subrev_u32 v41, s56, v41")
        e("v_cmp_le_u32 vcc, 16, v41")
        e(f"s_cbranch_vccz {L}")
        if not self.o.get("nosync"): self.poll_addr(4, 40, 41)
        self.label(L)
        e("v_and_b32 v20, 31, v0")
        e("s_lshl_b32 s56, s58, 5")
        e("v_add_u32 v42, s56, v20            ; token")
        e("v_lshrrev_b32 v21, 5, v0")
        e("v_lshlrev_b32 v21, 13, v21         ; hf*8*1024")
        e("v_lshl_add_u32 v21, v42, 3, v21")
        e("s_lshl_b32 s56, s60, 14")
        e(f"s_add_u32 s56, s56, {WS_TSP}")
        e("v_add_u32 v21, s56, v21")
        for jj in range(8):
            if jj == 4: e("v_add_u32 v21, 4096, v21")
            e(f"buffer_load_dwordx2 {v(44+2*jj,2)}, v21, {s(SRD_WS,4)}, 0 offen offset:{1024*(jj&3)} sc1")
        e("v_and_b32 v20, 15, v0")
        e("v_min_u32 v20, 13, v20")
        e("s_mul_i32 s56, s58, 14")
        e("v_add_u32 v43, s56, v20            ; fq")
        e("v_lshrrev_b32 v21, 4, v0")
        e("v_lshlrev_b32 v21, 12, v21")
        e("v_lshl_add_u32 v21, v43, 4, v21")
        e("s_lshl_b32 s56, s61, 14")
        e(f"s_add_u32 s56, s56, {WS_CSP}")
        e("v_add_u32 v21, s56, v21")
        for jj in range(4):
            e(f"buffer_load_dwordx4 {v(60+4*jj,4)}, v21, {s(SRD_WS,4)}, 0 offen offset:{1024*jj} sc1")

    def g1_b1_load(self):
        e = self.e
        self.srd(SRD_B, S_B1, F_ * 2)
        e(f"s_lshr_b32 s56, {s(S_XI)}, 1")
        e("s_lshl_b32 s56, s56, 2")
        e(f"s_lshr_b32 s57, {s(S_J)}, 3")
        e("s_add_u32 s56, s56, s57          ; nb")
        e("s_mul_i32 s56, s56, 448")
        e("v_and_b32 v240, 15, v0")
        e("v_min_u32 v240, 13, v240")
        e("s_mul_i32 s57, s58, 14")
        e("v_add_u32 v240, s57, v240")
        e("v_lshl_add_u32 v240, v240, 3, s56")
        e(f"buffer_load_dwordx2 v[240:241], v240, {s(SRD_B,4)}, 0 offen")

    def g1_side_final_tok(self):
        e = self.e
        for jj in range(1, 8): e(f"v_pk_add_f32 v[44:45], v[44:45], {v(44+2*jj,2)}")
        e("v_mov_b32 v46, v44"); e("v_mov_b32 v47, v45")
        e("v_permlane32_swap_b32 v46, v44"); e("v_permlane32_swap_b32 v47, v45")
        e("v_add_f32 v44, v44, v46"); e("v_add_f32 v45, v45, v47")
        e("v_mul_f32 v44, 0x3a800000, v44      ; mu")
        e("v_mul_f32 v45, 0x3a800000, v45      ; E[h^2]")
        e("v_fma_f32 v45, -v44, v44, v45       ; var")
        e("v_max_f32 v45, 0, v45")
        self.round_bf16(46, 44)
        self.round_bf16(47, 45)
        e("v_add_f32 v47, 0x3727c5ac, v47")
        self.round_bf16(47, 47)
        e("v_sqrt_f32 v47, v47")
        self.round_bf16(47, 47)
        e("v_rcp_f32 v48, v47                  ; 1/sd1")
        e("v_sub_f32 v49, v44, v46")
        e("v_mul_f32 v49, v49, v48             ; mean(y1)")
        self.round_bf16(49, 49)
        e("v_mul_f32 v50, v45, v48")
        e("v_mul_f32 v50, v50, v48             ; var(y1)")
        self.round_bf16(50, 50)
        e("v_add_f32 v50, 0x3727c5ac, v50")
        self.round_bf16(50, 50)
        e("v_sqrt_f32 v50, v50")
        self.round_bf16(50, 50)
        e("v_rcp_f32 v50, v50")
        e("v_mul_f32 v52, v48, v50")
        e("v_fma_f32 v51, v49, v47, v46        ; M = m1 + m2*sd1")
        e("v_mul_f32 v53, v52, v51             ; am")
        e(f"v_lshlrev_b32 v20, 3, v42")
        e(f"v_add_u32 v20, {self.G1_AST}, v20")
        e("s_mov_b32 exec_hi, 0")
        e("ds_write_b64 v20, v[52:53]")
        e("s_mov_b64 exec, -1")
        e("s_waitcnt lgkmcnt(0)")

    def g1_side_final_col(self):
        e = self.e
        for jj in range(1, 4):
            e(f"v_pk_add_f32 v[60:61], v[60:61], {v(60+4*jj,2)}")
            e(f"v_pk_add_f32 v[62:63], v[62:63], {v(62+4*jj,2)}")
        for op in ("v_permlane16_swap_b32", "v_permlane32_swap_b32"):
            for r in range(4): e(f"v_mov_b32 {v(64+r)}, {v(60+r)}")
            for r in range(4): e(f"{op} {v(64+r)}, {v(60+r)}")
            for r in range(4): e(f"v_add_f32 {v(60+r)}, {v(60+r)}, {v(64+r)}")
        self.unpack(68, 240, 0); self.unpack(69, 240, 1); self.unpack(70, 241, 0); self.unpack(71, 241, 1)
        e("v_lshlrev_b32 v20, 4, v43")
        e(f"v_add_u32 v20, {self.G1_CS}, v20")
        e("s_mov_b64 exec, 0x3fff")
        e("ds_write_b128 v20, v[60:63]")
        e(f"ds_write_b128 v20, v[68:71] offset:{self.G1_B1 - self.G1_CS}")
        e("s_mov_b64 exec, -1")
        e("s_waitcnt lgkmcnt(0)")

    def g1_loader(self):
        e = self.e
        STG = self.G1_STG
        side = not self.o.get("g1_noside")
        self.srd(SRD_B, S_W1, D_ * F_ * 2)
        self.g1_loader_setup()
        if self.o.get("g1_norot"): e("s_mov_b32 s68, 0")
        else: e("s_add_u32 s68, s60, s61")
        e("s_sub_u32 s68, s68, 1")
        self.g1_next_k()
        e("s_mov_b32 s88, s66")
        e("s_mov_b32 s64, 0")
        self.g1_issue_w(64, 65)
        self.g1_next_k()
        e(f"s_mov_b32 s64, {STG}")
        self.g1_issue_w(64, 65)
        e("s_waitcnt vmcnt(7)")
        e("s_barrier                        ; W(r) resident")
        if side: self.g1_side_col()
        self.g1_dep_wait()
        e("s_mov_b32 s64, 0")
        self.g1_issue_t(64, 88)
        e(f"s_mov_b32 s64, {STG}")
        self.g1_issue_t(64, 66)
        e("s_waitcnt vmcnt(4) lgkmcnt(0)")
        e("s_barrier                        ; B_0")
        e("s_mov_b32 s67, 0                 ; period i")
        e(f"s_mov_b32 s64, {2*STG}")
        sent = "g2" in self.o["phases"] and not self.o.get("sent_c")
        if sent:
            e("s_lshl_b32 s89, s2, 15")
            e("s_lshl_b32 s56, s58, 13")
            e("s_add_u32 s89, s89, s56")
            e(f"s_add_u32 s89, s89, {WS_EX}")
            e("v_lshlrev_b32 v128, 4, v0")
            for r in range(4): e(f"v_mov_b32 {v(132+r)}, -1")
        pre = self.o.get("prealloc", False)
        if pre:
            e("s_mul_i32 s89, s60, 112")
            e("s_mul_i32 s56, s61, 7")
            e("s_add_u32 s89, s89, s56")
            e("s_lshl_b32 s89, s89, 13")
            e("s_mul_i32 s56, s58, 14336")
            e("s_add_u32 s89, s89, s56")
            e(f"s_add_u32 s89, s89, {WS_HM}")
            e("v_lshlrev_b32 v128, 4, v0")
        L = self.newlabel("g1l"); Lw = self.newlabel("g1lw"); Lb = self.newlabel("g1lb")
        def hook(per, fn):
            La = self.newlabel("g1a"); e(f"s_cmp_eq_u32 s67, {per}"); e(f"s_cbranch_scc0 {La}"); fn(); self.label(La)
        self.label(L)
        if side:
            hook(12, self.g1_side_poll_issue)
        e("s_cmp_ge_u32 s67, 14")
        e(f"s_cbranch_scc1 {Lw}")
        self.g1_next_k()
        self.g1_issue_w(64, 65)
        self.g1_issue_t(64, 66)
        e(f"s_add_u32 s64, s64, {STG}")
        e(f"s_cmp_eq_u32 s64, {3*STG}")
        e("s_cselect_b32 s64, 0, s64")
        def special(per, fn, cnt):
            La = self.newlabel("g1a"); e(f"s_cmp_eq_u32 s67, {per}"); e(f"s_cbranch_scc0 {La}")
            if fn: fn()
            e(f"s_waitcnt vmcnt({cnt})"); e(f"s_branch {Lb}"); self.label(La)
        if side: special(13, self.g1_side_loads, 23)
        if sent:
            special(0, lambda: self.g1_sent_store(), 12)
            La = self.newlabel("g1s8")
            e("s_cmp_lt_u32 s67, 8"); e(f"s_cbranch_scc0 {La}")
            self.g1_sent_store()
            e("s_waitcnt vmcnt(13)")
            if side:
                def pub8():
                    Lp = self.newlabel("g1pub")
                    e(f"s_cmp_eq_u32 {s(S_WV)}, 4"); e(f"s_cbranch_scc0 {Lp}"); self.publish(4); self.label(Lp)
                hook(3, pub8)
            e(f"s_branch {Lb}")
            self.label(La)
        e("s_waitcnt vmcnt(11)")
        if side and not sent:
            def pub():
                Lp = self.newlabel("g1pub")
                e(f"s_cmp_eq_u32 {s(S_WV)}, 4"); e(f"s_cbranch_scc0 {Lp}"); self.publish(4); self.label(Lp)
            hook(3, pub)
        e(f"s_branch {Lb}")
        self.label(Lw)
        L15 = self.newlabel("g1l15")
        e("s_cmp_eq_u32 s67, 14")
        e(f"s_cbranch_scc0 {L15}")
        e("s_waitcnt vmcnt(%d)" % (12 if side else 0))
        e(f"s_branch {Lb}")
        self.label(L15)
        e("s_waitcnt vmcnt(0)")
        if side: self.g1_side_final_tok()
        self.label(Lb)
        e("s_barrier")
        e("s_add_u32 s67, s67, 1")
        e("s_cmp_lt_u32 s67, 16")
        e(f"s_cbranch_scc1 {L}")

    def g1_sent_store(self):
        self.e(f"buffer_store_dwordx4 v[132:135], v128, {s(SRD_WS,4)}, s89 offen sc1")
        self.e("s_add_u32 s89, s89, 1024")

    def g1_dep_wait(self):
        if "c" in self.o["phases"]: self.wait_all(3, wave=4)
        else: self.e("s_barrier")

    G1_X, G1_Y, G1_ACC = 8, 52, 96
    def g1_frag_reads(self, base, u):
        r = []
        def wread(ft):
            areg = 2 if ft % 2 == 0 else 3
            return [f"ds_read_b64_tr_b16 {v(base + 4*ft + 2*h, 2)}, {v(areg)} offset:{32*ft + u*32*448 + h*4*448}" for h in range(2)]
        def tread(tt):
            return [f"ds_read_b64_tr_b16 {v(base + 28 + 4*tt + 2*h, 2)}, {v(4+tt)} offset:{u*8192 + h*1024}" for h in range(2)]
        for tt in range(4): r += tread(tt)
        for ft in range(7): r += wread(ft)
        return r

    def g1_half(self, mf_base, rd_base, rd_u, first=False, mfma=True, reads=True, tail=(), waits=None):
        e = self.e
        rds = self.g1_frag_reads(rd_base, rd_u) if (reads and not self.o.get("g1_noreads")) else []
        if self.o.get("g1_nomfma"): mfma = False
        mf = []
        if mfma:
            for ft in range(7):
                for tt in range(4):
                    a = self.G1_ACC + (ft * 4 + tt) * 4
                    c = "0" if first else v(a, 4)
                    mf.append(f"v_mfma_f32_16x16x32_bf16 {v(a,4)}, {v(mf_base + 4*ft, 4)}, {v(mf_base + 28 + 4*tt, 4)}, {c}")
        fill = list(rds) + list(tail)
        i = 0
        for k, m in enumerate(mf):
            if waits and k in waits: e(waits[k])
            e(m)
            if i < len(fill): e(fill[i]); i += 1
        while i < len(fill): e(fill[i]); i += 1

    def g1_compute_setup(self):
        e = self.e
        e(f"s_lshr_b32 s58, {s(S_WV)}, 1      ; wf")
        e(f"s_and_b32 s59, {s(S_WV)}, 1       ; wt")
        e("v_lshrrev_b32 v13, 4, v0          ; g")
        e("v_and_b32 v14, 15, v0")
        e("v_lshrrev_b32 v15, 2, v14         ; r")
        e("v_and_b32 v16, 3, v14             ; c")
        e("v_lshl_add_u32 v17, v13, 3, v15   ; row = 8g + r")
        e("v_and_b32 v18, 1, v13             ; g&1")
        e("v_mul_u32_u24 v19, 448, v17")
        e("v_lshl_add_u32 v19, v16, 3, v19")
        e("s_mul_i32 s57, s58, 224           ; 32*7*wf")
        e(f"s_add_u32 s57, s57, {self.G1_W}")
        e("v_add_u32 v19, s57, v19")
        e("v_lshlrev_b32 v20, 5, v18         ; 32*(g&1)")
        e("v_add_u32 v21, v19, v20")
        e("v_sub_u32 v22, v19, v20")
        e("s_cmp_eq_u32 s58, 0")
        e("s_cselect_b64 vcc, -1, 0")
        e("v_cndmask_b32 v2, v22, v21, vcc")
        e("v_cndmask_b32 v3, v21, v22, vcc")
        e("v_lshl_or_b32 v20, v18, 2, v15    ; f(row)")
        e("v_lshlrev_b32 v21, 8, v17")
        e("v_lshl_add_u32 v21, v16, 3, v21")
        e("s_lshl_b32 s57, s59, 2            ; 4*wt")
        for tt in range(4):
            e(f"s_add_u32 s56, s57, {tt}")
            e("v_xor_b32 v22, s56, v20")
            e(f"v_lshl_add_u32 {v(4+tt)}, v22, 5, v21")

    def g1_compute(self):
        e = self.e
        X, Y = self.G1_X, self.G1_Y
        STG = self.G1_STG
        self.g1_compute_setup()
        side = not self.o.get("g1_noside")
        for r in range(4): e(f"v_mov_b32 {v(224+r)}, 0x3f803f80")
        e("s_barrier                        ; W(r) resident")
        self.g1_dep_wait()
        e("s_barrier                        ; B_0")
        self.stamp("g1_loop")
        def adv(delta):
            return [f"v_add_u32 {v(r)}, {delta & 0xffffffff:#x}, {v(r)}" for r in range(2, 8)]
        W5 = {0: "s_waitcnt lgkmcnt(4)", 20: "s_waitcnt lgkmcnt(15)"}
        for r in self.g1_frag_reads(X, 0): e(r)
        e("s_waitcnt lgkmcnt(0)")
        self.g1_half(X, Y, 1, first=True, tail=adv(STG))
        if side: self.g1_tok_mfma(X, True)
        e("s_waitcnt lgkmcnt(0)")
        if side:
            self.g1_tok_mfma(Y, False)
            self.g1_tok_store()
        e("s_barrier                        ; B_1")
        e("s_mov_b32 s67, 0")
        L = self.newlabel("g1c")
        self.label(L)
        for k in range(3):
            delta = STG if k != 1 else -2 * STG
            self.g1_half(Y, X, 0)
            tail = adv(delta)
            if k == 2: tail = tail[:5] + ["s_add_u32 s67, s67, 1"] + tail[5:]
            self.g1_half(X, Y, 1, tail=tail, waits=(W5 if not self.o.get("g1_noreads") else None))
            if k == 2: e("s_cmp_lt_u32 s67, 5")
            e("s_waitcnt vmcnt(0) lgkmcnt(0)" if k == 1 else "s_waitcnt lgkmcnt(0)")
            e("s_barrier")
            if self.o.get("per_stamps"):
                e("s_memrealtime s[100:101]")
                e("s_mul_i32 s98, s67, 3")
                e(f"s_add_u32 s98, s98, {k + (0 if k < 2 else -3)}")
                e("s_mov_b32 m0, s98")
                e("s_waitcnt lgkmcnt(0)")
                e("v_writelane_b32 v252, s100, m0")
                if k == 2: e("s_cmp_lt_u32 s67, 5")
        e(f"s_cbranch_scc1 {L}")
        self.g1_half(Y, None, 0, reads=False)
        if self.o.get("per_stamps"):
            e("s_lshl_b32 s98, s2, 8")
            e(f"s_add_u32 s98, s98, {WS_STAMP + 65536}")
            e("v_lshlrev_b32 v251, 2, v0")
            e("v_add_u32 v251, s98, v251")
            Lq = self.newlabel("pst")
            e(f"s_cmp_lg_u32 {s(S_WV)}, 0"); e(f"s_cbranch_scc1 {Lq}")
            e(f"buffer_store_dword v252, v251, {s(SRD_WS,4)}, 0 offen")
            self.label(Lq)
        self.stamp("g1_loopend")

    def g1_epilogue(self):
        e = self.e
        ACC = self.G1_ACC
        own = "g2" in self.o["phases"]
        e("v_and_b32 v2, 15, v0               ; n")
        e("v_lshrrev_b32 v3, 4, v0            ; g / rho")
        e("s_lshl_b32 s56, s59, 9")
        e(f"s_add_u32 s56, s56, {self.G1_AST}")
        e("v_lshl_add_u32 v4, v2, 3, s56")
        AS = 8
        for tt in range(4): e(f"ds_read_b64 {v(AS+2*tt,2)}, v4 offset:{128*tt}")
        e("s_mul_i32 s56, s58, 448")
        e(f"s_add_u32 s56, s56, {self.G1_CS}")
        e("v_lshl_add_u32 v5, v3, 4, s56")
        CB = 16
        for ft in range(7):
            e(f"ds_read_b128 {v(CB+8*ft,4)}, v5 offset:{64*ft}")
            e(f"ds_read_b128 {v(CB+8*ft+4,4)}, v5 offset:{64*ft + self.G1_B1 - self.G1_CS}")
        c2 = -2.0 * 0.7978845608028654 * 1.4426950408889634
        c1 = c2 * 0.044715
        import struct
        fb = lambda x: "0x%08x" % struct.unpack("<I", struct.pack("<f", x))[0]
        C1, C2, ONE = 72, 74, 76
        for r, val in ((C1, c1), (C2, c2), (ONE, 1.0)):
            e(f"v_mov_b32 {v(r)}, {fb(val)}"); e(f"v_mov_b32 {v(r+1)}, {fb(val)}")
        e("v_and_b32 v79, 1, v3               ; rho&1")
        e("v_lshrrev_b32 v81, 1, v3           ; rho>>1")
        e("v_lshl_add_u32 v80, v79, 1, v81")
        e("v_lshlrev_b32 v80, 11, v80")
        e("v_lshl_add_u32 v82, v2, 4, v80")
        e("s_lshl_b32 s56, s58, 1")
        e("v_add_u32 v80, s56, v81")
        e("v_lshlrev_b32 v80, 11, v80")
        e("v_lshl_add_u32 v80, v79, 8, v80")
        e("v_lshl_add_u32 v83, v2, 4, v80")
        e("s_mul_i32 s62, s60, 112")
        e("s_mul_i32 s56, s61, 7")
        e("s_add_u32 s62, s62, s56")
        e("s_lshl_b32 s62, s62, 13")
        e("s_lshl_b32 s56, s59, 10")
        e("s_add_u32 s62, s62, s56")
        e(f"s_add_u32 s62, s62, {WS_HM}")
        e("s_mul_i32 s56, s58, 3*8192")
        e("s_add_u32 s63, s62, s56")
        if own:
            for fp in range(3):
                e("s_mul_i32 s56, s58, 3")
                e(f"s_add_u32 s56, s56, {fp}")
                e("s_lshr_b32 s57, s56, 1")
                e("s_lshl_b32 s57, s57, 15")
                e("s_and_b32 s56, s56, 1")
                e("s_lshl_b32 s56, s56, 13")
                e("s_add_u32 s56, s56, s57")
                e("s_lshl_b32 s57, s59, 10")
                e("s_add_u32 s56, s56, s57")
                e(f"v_add_u32 {v(84+fp)}, s56, v82")
        e("s_waitcnt lgkmcnt(0)")
        def gelu_tile(ft, tt, out, T):
            a = ACC + (ft*4 + tt)*4
            cs, b1 = CB + 8*ft, CB + 8*ft + 4
            A = AS + 2*tt
            for h in range(2):
                e(f"v_pk_fma_f32 {v(T+2*h,2)}, {v(A,2)}, {v(cs+2*h,2)}, {v(b1+2*h,2)} op_sel:[1,0,0] op_sel_hi:[1,1,1] neg_lo:[1,0,0] neg_hi:[1,0,0]")
            for h in range(2):
                e(f"v_pk_fma_f32 {v(a+2*h,2)}, {v(A,2)}, {v(a+2*h,2)}, {v(T+2*h,2)} op_sel:[0,0,0] op_sel_hi:[0,1,1]")
            for h in range(2): e(f"v_pk_mul_f32 {v(T+2*h,2)}, {v(a+2*h,2)}, {v(a+2*h,2)}")
            for h in range(2): e(f"v_pk_fma_f32 {v(T+2*h,2)}, {v(T+2*h,2)}, {v(C1,2)}, {v(C2,2)}")
            for h in range(2): e(f"v_pk_mul_f32 {v(T+2*h,2)}, {v(T+2*h,2)}, {v(a+2*h,2)}")
            for r in range(4): e(f"v_exp_f32 {v(T+r)}, {v(T+r)}")
            for h in range(2): e(f"v_pk_add_f32 {v(T+2*h,2)}, {v(T+2*h,2)}, {v(ONE,2)}")
            for r in range(4): e(f"v_rcp_f32 {v(T+r)}, {v(T+r)}")
            for h in range(2): e(f"v_pk_mul_f32 {v(a+2*h,2)}, {v(a+2*h,2)}, {v(T+2*h,2)}")
            for h in range(2): e(f"v_cvt_pk_bf16_f32 {v(out+h)}, {v(a+2*h)}, {v(a+2*h+1)}")
        aux = self.o.get('hm_aux', 'sc1')
        k = 0
        for fp in range(3):
            for tt in range(4):
                O = 208 + 4 * (k & 1); T = 216 + 4 * (k & 1); k += 1
                gelu_tile(2*fp, tt, O, T)
                gelu_tile(2*fp + 1, tt, O + 2, T)
                e(f"v_permlane16_swap_b32 {v(O)}, {v(O+2)}")
                e(f"v_permlane16_swap_b32 {v(O+1)}, {v(O+3)}")
                e(f"s_add_u32 s56, s63, {fp*8192 + tt*256}")
                e(f"buffer_store_dwordx4 {v(O,4)}, v82, {s(SRD_WS,4)}, s56 offen {aux}")
                if own: e(f"ds_write_b128 {v(84+fp)}, {v(O,4)} offset:{tt*256}")
        for tp in range(2):
            O = 208 + 4 * (k & 1); T = 216 + 4 * (k & 1); k += 1
            gelu_tile(6, 2*tp, O, T)
            gelu_tile(6, 2*tp + 1, O + 2, T)
            e(f"v_permlane16_swap_b32 {v(O)}, {v(O+2)}")
            e(f"v_permlane16_swap_b32 {v(O+1)}, {v(O+3)}")
            e(f"s_add_u32 s56, s62, {6*8192 + 2*tp*256}")
            e(f"buffer_store_dwordx4 {v(O,4)}, v83, {s(SRD_WS,4)}, s56 offen {aux}")

    def g1(self):
        e = self.e
        own = "g2" in self.o["phases"]
        self.g1_ids()
        Lc = self.newlabel("g1comp"); Le = self.newlabel("g1end")
        e(f"s_cmp_lt_u32 {s(S_WV)}, 4")
        e(f"s_cbranch_scc1 {Lc}")
        self.g1_loader()
        if not self.o.get("g1_noside"): self.g1_side_final_col()
        e("s_barrier")
        e(f"s_branch {Le}")
        self.label(Lc)
        self.g1_compute()
        e("s_barrier                        ; H")
        self.g1_epilogue()
        self.stamp("g1_epi")
        if not own:
            e("s_waitcnt vmcnt(0)")
        self.label(Le)
        if not own:
            e("s_barrier")
            L = self.newlabel("g1sig")
            e(f"s_cmp_lg_u32 {s(S_WV)}, 0")
            e(f"s_cbranch_scc1 {L}")
            self.publish(5)
            self.label(L)

    G2_STG = 32768
    G2_NBUF = 5
    G2_RES = 98304

    def g2_b2_load(self):
        e = self.e
        self.srd(SRD_A, S_B2, D_ * 2)
        e(f"s_lshr_b32 s56, {s(S_XI)}, 1")
        e("s_lshl_b32 s56, s56, 2")
        e(f"s_lshr_b32 s57, {s(S_J)}, 3")
        e("s_add_u32 s56, s56, s57")
        e("s_and_b32 s56, s56, 7            ; db")
        e("s_lshl_b32 s56, s56, 8")
        e(f"s_lshr_b32 s57, {s(S_WV)}, 1     ; wd")
        e("s_lshl_b32 s57, s57, 7")
        e("s_add_u32 s56, s56, s57")
        e("v_lshrrev_b32 v234, 4, v0")
        e("v_lshl_add_u32 v242, v234, 3, s56")
        for dt in range(4): e(f"buffer_load_dwordx2 {v(234+2*dt,2)}, v242, {s(SRD_A,4)}, 0 offen offset:{32*dt}")

    def g2_ids(self):
        e = self.e
        e(f"s_and_b32 s56, {s(S_XI)}, 1")
        e("s_lshl_b32 s56, s56, 3")
        e(f"s_and_b32 s57, {s(S_J)}, 7")
        e("s_add_u32 s60, s56, s57          ; mb")
        e(f"s_lshr_b32 s56, {s(S_XI)}, 1")
        e("s_lshl_b32 s56, s56, 2")
        e(f"s_lshr_b32 s57, {s(S_J)}, 3")
        e("s_add_u32 s56, s56, s57          ; n'")
        e("s_and_b32 s61, s56, 7            ; db")
        e("s_lshr_b32 s69, s56, 3           ; kh")

    def g2_issue_w(self, sbuf, sk):
        e = self.e
        e(f"s_add_u32 m0, {s(sbuf)}, s63")
        for ii in range(4):
            e(f"buffer_load_dwordx4 {v(6+ii)}, {s(SRD_B,4)}, {s(sk)} offen lds")
            if ii < 3: e("s_add_u32 m0, m0, 1024")

    def g2_issue_t(self, sbuf):
        e = self.e
        e("s_mul_i32 s56, s85, 7")
        e("s_add_u32 s56, s56, s84")
        e("s_lshl_b32 s56, s56, 13")
        e("s_add_u32 s66, s90, s56")
        e(f"s_add_u32 m0, {s(sbuf)}, s62")
        for ii in range(4):
            e(f"buffer_load_dwordx4 v2, {s(SRD_WS,4)}, s66 offen sc1 lds")
            if ii < 3:
                e("s_add_u32 m0, m0, 1024"); e("s_add_u32 s66, s66, 1024")

    def g2_w_off(self):
        e = self.e
        e("s_lshl_b32 s56, s84, 1")
        e("s_add_u32 s56, s56, s87          ; 2q + half")
        e("s_cmp_ge_u32 s84, 3")
        e("s_addc_u32 s56, s56, 0")
        e("s_mul_i32 s57, s87, 7")
        e("s_add_u32 s57, s57, 6            ; half ? 13 : 6")
        e("s_cmp_eq_u32 s84, 6")
        e("s_cselect_b32 s56, s57, s56")
        e("s_lshl_b32 s56, s56, 4")
        e("s_add_u32 s56, s56, s86")
        e("s_lshl_b32 s65, s56, 11")

    def g2_adv(self, own=False):
        e = self.e
        if own:
            e("s_add_u32 s84, s84, 2")
        else:
            e("s_add_u32 s91, s91, 2")
            self.g2_pos()
        e("s_lshl_b32 s56, s69, 3")
        e("s_add_u32 s56, s56, s85")
        e("s_mul_i32 s86, s56, 224")
        self.g2_w_off()

    def g2_pos(self):
        e = self.e
        e("s_mul_i32 s56, s61, 7")
        e("s_cmp_ge_u32 s91, s56")
        e("s_cselect_b32 s56, 6, 0")
        e("s_add_u32 s56, s56, s91          ; Q")
        e("s_mul_i32 s85, s56, 9363")
        e("s_lshr_b32 s85, s85, 16")
        e("s_mul_i32 s57, s85, 7")
        e("s_sub_u32 s84, s56, s57")

    def g2_loader_pre(self):
        e = self.e
        self.g2_ids()
        self.srd(SRD_B, S_W2, F_ * D_ * 2)
        e(f"s_sub_u32 s58, {s(S_WV)}, 4       ; lw")
        e("v_lshrrev_b32 v13, 4, v0")
        e("v_and_b32 v14, 15, v0")
        e("v_lshrrev_b32 v15, 1, v14")
        e("v_and_b32 v16, 1, v14")
        e("v_xor_b32 v15, v15, v13")
        e("v_lshlrev_b32 v17, 11, v13")
        e("v_lshl_add_u32 v17, v16, 4, v17")
        e("s_lshl_b32 s59, s61, 8            ; db*256")
        e("v_add_u32 v17, s59, v17")
        for ii in range(4):
            x4 = 4 if (ii >> 1) & 1 else 0
            e(f"v_xor_b32 v18, {x4}, v15")
            e("v_lshl_add_u32 v18, v18, 5, v17")
            e(f"v_add_u32 {v(6+ii)}, {ii*4*2048}, v18")
        e("v_lshlrev_b32 v2, 4, v0")
        e("s_lshl_b32 s62, s58, 12")
        e(f"s_add_u32 s63, s62, 16384")
        e("s_mov_b32 s85, s61               ; local block = db: start with this workgroup's own G1 tile")
        e("s_lshl_b32 s86, s69, 3")
        e("s_add_u32 s86, s86, s85")
        e("s_mul_i32 s86, s86, 224")
        e("s_lshr_b32 s84, s58, 1           ; q = lw>>1")
        e("s_and_b32 s87, s58, 1            ; half")
        self.g2_w_off()
        e("s_mul_i32 s90, s60, 112")
        e("s_mul_i32 s56, s69, 56")
        e("s_add_u32 s90, s90, s56")
        e("s_lshl_b32 s90, s90, 13")
        e("s_lshl_b32 s56, s87, 12")
        e("s_add_u32 s90, s90, s56")
        e(f"s_add_u32 s90, s90, {WS_HM}")

    def g2_loader(self):
        e = self.e
        STG = self.G2_STG
        self.g2_loader_pre()
        e("s_mov_b32 s64, 0")
        def to_shared():
            e("s_lshr_b32 s91, s58, 1")
            e("s_sub_u32 s91, s91, 2")
            self.g2_adv()
        if self.o.get("w2_late", False):
            self.g2_issue_w(64, 65)
            self.g2_adv(own=True)
            e("s_waitcnt vmcnt(0)")
            e("s_barrier                        ; A = B_0")
            for st in range(1, 3):
                e(f"s_add_u32 s64, s64, {STG}")
                self.g2_issue_w(64, 65)
                if st == 1: self.g2_adv(own=True)
            e(f"s_add_u32 s64, s64, {STG}")
            to_shared()
        else:
            for st in range(3):
                self.g2_issue_w(64, 65)
                if st < 2: self.g2_adv(own=True)
                e(f"s_add_u32 s64, s64, {STG}")
            to_shared()
            e("s_waitcnt vmcnt(8)")
            e("s_barrier                        ; A = B_0")
        e("s_waitcnt vmcnt(4)")
        e("s_barrier")
        self.stamp("g2_b1")
        Lp = self.newlabel("g2pub")
        e(f"s_cmp_eq_u32 {s(S_WV)}, 4"); e(f"s_cbranch_scc0 {Lp}"); self.publish(5); self.label(Lp)
        e("s_waitcnt vmcnt(0)")
        e("s_barrier                        ; B_2")
        e("v_and_b32 v20, 7, v0")
        e("s_lshl_b32 s56, s69, 3")
        e("v_add_u32 v21, s56, v20")
        e("v_mov_b32 v20, s60")
        self.wg_of(40, 20, 21, 26)
        e("s_xor_b32 s56, s2, 4")
        e("v_mov_b32 v20, s56")
        e("v_bfe_u32 v21, v0, 3, 1")
        e("v_cmp_eq_u32 vcc, 1, v21")
        e("v_cndmask_b32 v40, v40, v20, vcc")
        self.flag_addr(40, 26)
        if not self.o.get("nosync"):
            e("s_mov_b64 exec, 0xffff")
            self.poll_addr(5, 40, 41)
            e("s_mov_b64 exec, -1")
        self.stamp("g2_dep")
        for st in range(3, 7):
            self.g2_issue_t(64)
            self.g2_issue_w(64, 65)
            self.g2_adv()
            e(f"s_add_u32 s64, s64, {STG}")
            e(f"s_cmp_eq_u32 s64, {5*STG}")
            e("s_cselect_b32 s64, 0, s64")
        e("s_waitcnt vmcnt(24)")
        e("s_barrier                        ; B_3")
        self.stamp("g2_b3")
        e("s_mov_b32 s67, 3")
        pre = self.o.get("prealloc", False)
        if pre:
            self.srd(SRD_A, S_OUT, S_ * D_ * 2)
            e("s_and_b32 s56, s58, 1")
            e("s_lshl_b32 s56, s56, 6")
            e("s_lshl_b32 s57, s60, 7")
            e("s_add_u32 s56, s56, s57")
            e("s_lshl_b32 s57, s69, 5")
            e("s_add_u32 s56, s56, s57")
            e("v_lshrrev_b32 v22, 3, v0")
            e("v_add_u32 v22, s56, v22")
            e("v_lshlrev_b32 v22, 11, v22")
            e("v_and_b32 v23, 7, v0")
            e("v_lshl_add_u32 v22, v23, 4, v22")
            e("s_lshr_b32 s56, s58, 1")
            e("s_lshl_b32 s56, s56, 7")
            e("s_lshl_b32 s57, s61, 8")
            e("s_add_u32 s56, s56, s57")
            e("v_add_u32 v22, s56, v22")
        L = self.newlabel("g2l"); Lw = self.newlabel("g2lw"); Lb = self.newlabel("g2lb")
        def waits(cases):
            for per, cnt in cases:
                Ln = self.newlabel("g2w")
                e(f"s_cmp_eq_u32 s67, {per}")
                e(f"s_cbranch_scc0 {Ln}")
                e(f"s_waitcnt vmcnt({cnt})")
                e(f"s_branch {Lb}")
                self.label(Ln)
        self.label(L)
        if pre:
            Lo = self.newlabel("g2o")
            e("s_sub_u32 s56, s67, 4")
            e("s_cmp_lt_u32 s56, 4")
            e(f"s_cbranch_scc0 {Lo}")
            e("s_lshl_b32 s56, s56, 14          ; 8 rows * 2048")
            e(f"buffer_store_dwordx4 v[24:27], v22, {s(SRD_A,4)}, s56 offen sc1")
            self.label(Lo)
        e("s_cmp_ge_u32 s67, 24")
        e(f"s_cbranch_scc1 {Lw}")
        self.g2_issue_t(64)
        self.g2_issue_w(64, 65)
        self.g2_adv()
        e(f"s_add_u32 s64, s64, {STG}")
        e(f"s_cmp_eq_u32 s64, {5*STG}")
        e("s_cselect_b32 s64, 0, s64")
        e("s_waitcnt vmcnt(24)")
        e(f"s_branch {Lb}")
        self.label(Lw)
        Lw1 = self.newlabel("g2lw1")
        e("s_cmp_eq_u32 s67, 24")
        e(f"s_cbranch_scc0 {Lw1}")
        e("v_lshrrev_b32 v20, 2, v0")
        e("s_lshl_b32 s56, s58, 5")
        e("v_add_u32 v20, s56, v20")
        e("v_lshlrev_b32 v20, 8, v20          ; row*256")
        e("v_and_b32 v21, 3, v0")
        e("v_lshl_add_u32 v20, v21, 4, v20")
        e("s_lshl_b32 s56, s60, 18")
        e("s_lshl_b32 s57, s61, 15            ; 128db*256")
        e("s_add_u32 s56, s56, s57")
        e("s_lshl_b32 s57, s69, 6             ; 32kh*2")
        e("s_add_u32 s56, s56, s57")
        e(f"s_add_u32 s56, s56, {WS_HT}")
        for ii in range(4):
            wt, hh = ii >> 1, ii & 1
            e(f"s_add_u32 s57, s56, {wt*128 + hh*16*256}")
            e("s_lshl_b32 s59, s58, 11          ; 32lw*64")
            e(f"s_add_u32 m0, s59, {self.G2_RES + wt*8192 + hh*1024}")
            e(f"buffer_load_dwordx4 v20, {s(SRD_WS,4)}, s57 offen sc1 lds")
        e("s_waitcnt vmcnt(20)")
        e(f"s_branch {Lb}")
        self.label(Lw1)
        waits([(25, 12), (26, 4)])
        e("s_waitcnt vmcnt(0)")
        self.label(Lb)
        e("s_barrier")
        e("s_add_u32 s67, s67, 1")
        e("s_cmp_lt_u32 s67, 28")
        e(f"s_cbranch_scc1 {L}")

    G2_X, G2_Y, G2_ACC = 8, 40, 72
    def g2_frag_reads(self, base, u):
        r = []
        for tt in range(4): r.append(f"ds_read_b128 {v(base + 16 + 4*tt, 4)}, v6 offset:{u*8192 + tt*256}")
        for dt in range(4):
            for h in range(2):
                r.append(f"ds_read_b64_tr_b16 {v(base + 4*dt + 2*h, 2)}, {v(2+dt)} offset:{u*8192 + h*1024}")
        return r

    def g2_half(self, mf_base, rd_base, rd_u, first=False, reads=True, tail=(), waits=None):
        e = self.e
        rds = self.g2_frag_reads(rd_base, rd_u) if reads else []
        fill = list(rds) + list(tail)
        i = 0; k = 0
        for dt in range(4):
            for tt in range(4):
                a = self.G2_ACC + (dt*4 + tt)*4
                if waits and k in waits: e(waits[k])
                e(f"v_mfma_f32_16x16x32_bf16 {v(a,4)}, {v(mf_base + 4*dt, 4)}, {v(mf_base + 16 + 4*tt, 4)}, {'0' if first else v(a,4)}")
                if i < len(fill): e(fill[i]); i += 1
                k += 1
        while i < len(fill): e(fill[i]); i += 1

    def g2_compute(self):
        e = self.e
        X, Y, STG = self.G2_X, self.G2_Y, self.G2_STG
        self.g2_ids()
        e(f"s_lshr_b32 s58, {s(S_WV)}, 1      ; wd")
        e(f"s_and_b32 s59, {s(S_WV)}, 1       ; wt")
        e("v_lshrrev_b32 v13, 4, v0          ; g")
        e("v_and_b32 v14, 15, v0             ; n")
        e("v_lshrrev_b32 v15, 2, v14         ; r")
        e("v_and_b32 v16, 3, v14             ; c")
        e("v_lshl_add_u32 v17, v13, 3, v15   ; row = 8g + r")
        e("v_and_b32 v18, 1, v13")
        e("v_lshl_or_b32 v20, v18, 2, v15    ; f(row)")
        e("v_lshlrev_b32 v21, 8, v17")
        e("v_lshl_add_u32 v21, v16, 3, v21")
        e("v_add_u32 v21, 16384, v21")
        e("s_lshl_b32 s57, s58, 2            ; 4*wd")
        for dt in range(4):
            e(f"s_add_u32 s56, s57, {dt}")
            e("v_xor_b32 v22, s56, v20")
            e(f"v_lshl_add_u32 {v(2+dt)}, v22, 5, v21")
        e("v_lshlrev_b32 v22, 11, v13")
        e("v_lshl_add_u32 v22, v14, 4, v22")
        e("s_lshl_b32 s56, s59, 10")
        e("v_add_u32 v6, s56, v22")
        e("s_waitcnt lgkmcnt(0)")
        e("s_barrier                        ; A = B_0")
        self.stamp("g2_loop")
        e("s_mov_b32 s64, 0")
        e(f"s_mov_b32 s62, {STG}")
        e(f"s_mov_b32 s63, {(-4*STG) & 0xffffffff}")
        def adv():
            return ["s_add_u32 s64, s64, 1", "s_cmp_eq_u32 s64, 4"]
        def adv2():
            return [f"v_add_u32 {v(r)}, s65, {v(r)}" for r in range(2, 7)]
        pre = ["s_add_u32 s64, s64, 1", "s_cmp_eq_u32 s64, 5", "s_cselect_b32 s65, s63, s62", "s_cselect_b32 s64, 0, s64"]
        WX = {0: "s_waitcnt lgkmcnt(6)", 4: "s_waitcnt lgkmcnt(8)", 8: "s_waitcnt lgkmcnt(10)", 12: "s_waitcnt lgkmcnt(12)"}
        if self.o.get("g2_fullwait"): WX = {0: "s_waitcnt lgkmcnt(0)"}
        for r in self.g2_frag_reads(X, 0): e(r)
        for p in pre: e(p)
        e("s_waitcnt lgkmcnt(0)")
        self.g2_half(X, Y, 1, first=True, tail=adv2()[:4])
        e(adv2()[4])
        e("s_waitcnt vmcnt(0) lgkmcnt(0)")
        e("s_barrier                        ; B_1")
        e("s_mov_b32 s67, 0")
        L = self.newlabel("g2c")
        self.label(L)
        for k in range(3):
            self.g2_half(Y, X, 0, tail=pre)
            self.g2_half(X, Y, 1, tail=adv2()[:4], waits=WX)
            e(adv2()[4])
            if k == 2:
                e("s_add_u32 s67, s67, 1"); e("s_cmp_lt_u32 s67, 9")
            e("s_waitcnt lgkmcnt(0)")
            e("s_barrier")
        e(f"s_cbranch_scc1 {L}")
        self.g2_half(Y, None, 0, reads=False)
        self.stamp("g2_loopend")

    def g2_epilogue(self):
        e = self.e
        ACC = self.G2_ACC
        Lk = self.newlabel("g2k")
        e("s_cmp_eq_u32 s69, 0")
        e(f"s_cbranch_scc1 {Lk}")
        for dt in range(4):
            for r in range(8):
                a = ACC + dt*16 + r
                e(f"v_swap_b32 {v(a)}, {v(a+8)}")
        self.label(Lk)
        e("s_xor_b32 s56, s2, 4")
        e("s_lshl_b32 s56, s56, 15")
        e(f"s_lshl_b32 s57, {s(S_WV)}, 13")
        e("s_add_u32 s56, s56, s57")
        e(f"s_add_u32 s62, s56, {WS_EX}")
        e("v_lshlrev_b32 v8, 4, v0")
        for dt in range(4):
            for tk in range(2):
                i = dt*2 + tk
                e(f"s_add_u32 s56, s62, {1024*i}")
                e(f"buffer_store_dwordx4 {v(ACC + dt*16 + 8 + 4*tk, 4)}, v8, {s(SRD_WS,4)}, s56 offen sc1")
        e("v_lshrrev_b32 v13, 4, v0          ; g")
        e("v_and_b32 v14, 15, v0             ; n")
        e("v_lshrrev_b32 v15, 2, v14")
        e("v_and_b32 v16, 3, v14")
        e("v_lshl_add_u32 v17, v13, 2, v15   ; 4g + r")
        e("v_lshlrev_b32 v17, 6, v17")
        e("v_lshl_add_u32 v17, v16, 3, v17")
        e("s_lshl_b32 s56, s59, 13")
        e("s_lshl_b32 s57, s58, 12           ; 64wd*64")
        e("s_add_u32 s56, s56, s57")
        e(f"s_add_u32 s56, s56, {self.G2_RES}")
        e("v_add_u32 v17, s56, v17")
        RS = 168
        for dt in range(4):
            for tk in range(2):
                e(f"ds_read_b64_tr_b16 {v(RS + 2*(2*dt+tk), 2)}, v17 offset:{dt*16*64 + tk*32}")
        self.stamp("g2_sent")

    def g2_epilogue2(self):
        e = self.e
        ACC = self.G2_ACC; RS = 168; B2 = 234
        e("s_lshl_b32 s56, s2, 15")
        e(f"s_lshl_b32 s57, {s(S_WV)}, 13")
        e("s_add_u32 s56, s56, s57")
        e(f"s_add_u32 s62, s56, {WS_EX}")
        IN = 136
        for i in range(1, 8): e(f"s_add_u32 {s(80+i)}, s62, {1024*i}")
        e("s_mov_b32 s80, s62")
        self.srd(SRD_A, S_OUT, S_ * D_ * 2)
        e(f"s_lshl_b32 s56, {s(S_WV)}, 12")
        e("v_and_b32 v10, 1, v13")
        e("v_lshlrev_b32 v10, 1, v10")
        e("v_lshrrev_b32 v11, 1, v13")
        e("v_add_u32 v10, v10, v11")
        e("v_and_b32 v11, 7, v14")
        for dp in range(2):
            e(f"v_add_u32 v12, {4*dp}, v10")
            e("v_xor_b32 v12, v12, v11")
            e("v_lshlrev_b32 v12, 4, v12")
            e("v_lshl_add_u32 v12, v14, 7, v12")
            e(f"v_add_u32 {v(32+dp)}, s56, v12")
        e("v_lshrrev_b32 v11, 3, v0           ; l>>3")
        e("v_and_b32 v12, 7, v0")
        e("v_xor_b32 v10, v12, v11")
        e("v_lshlrev_b32 v10, 4, v10")
        e("v_lshl_add_u32 v10, v11, 7, v10")
        e("v_add_u32 v34, s56, v10")
        e("s_lshl_b32 s56, s60, 7")
        e("s_lshl_b32 s57, s59, 6")
        e("s_add_u32 s56, s56, s57")
        e("s_lshl_b32 s57, s69, 5")
        e("s_add_u32 s56, s56, s57")
        e("v_add_u32 v9, s56, v11")
        e("v_lshlrev_b32 v9, 11, v9")
        e("v_lshl_add_u32 v9, v12, 4, v9")
        e("s_lshl_b32 s56, s61, 8")
        e("s_lshl_b32 s57, s58, 7")
        e("s_add_u32 s63, s56, s57")
        BF = 40
        for dt in range(4):
            self.unpack(BF+4*dt,   B2+2*dt,   0); self.unpack(BF+4*dt+1, B2+2*dt,   1)
            self.unpack(BF+4*dt+2, B2+2*dt+1, 0); self.unpack(BF+4*dt+3, B2+2*dt+1, 1)
        L = self.newlabel("g2in"); Lx = self.newlabel("g2inx")
        L1 = self.newlabel("g2w1"); L1x = self.newlabel("g2w1x")
        e("s_mov_b32 s57, 0x40000")
        e("s_mov_b32 exec_lo, 0"); e("s_mov_b32 exec_hi, 0x80000000")
        self.label(L1)
        e(f"buffer_load_dword v35, v8, {s(SRD_WS,4)}, s87 offen offset:12 sc1")
        e("s_sub_u32 s57, s57, 1")
        e("s_cmp_eq_u32 s57, 0")
        e(f"s_cbranch_scc1 {L1x}")
        e("s_waitcnt vmcnt(0)")
        e("v_cmp_eq_u32 vcc, -1, v35")
        e(f"s_cbranch_vccnz {L1}")
        self.label(L1x)
        e("s_waitcnt vmcnt(0)")
        e("s_mov_b64 exec, -1")
        e("s_mov_b32 s57, 0x40000")
        self.label(L)
        for i in range(8):
            e(f"buffer_load_dwordx4 {v(IN+4*i,4)}, v8, {s(SRD_WS,4)}, {s(80+i)} offen sc1")
        e("s_sub_u32 s57, s57, 1")
        e("s_cmp_eq_u32 s57, 0")
        e(f"s_cbranch_scc1 {Lx}")
        e("s_waitcnt vmcnt(0)")
        e(f"v_max_u32 v35, {v(IN)}, {v(IN+3)}")
        for i in range(1, 8):
            e(f"v_max3_u32 v35, v35, {v(IN+4*i)}, {v(IN+4*i+3)}")
        e("v_cmp_eq_u32 vcc, -1, v35")
        e(f"s_cbranch_vccnz {L}")
        self.label(Lx)
        e("s_waitcnt vmcnt(0) lgkmcnt(0)")
        self.stamp("g2_got")
        k = 0
        for tk in range(2):
            for dp in range(2):
                O = 56 + 4*(k & 1); k += 1
                for dd in range(2):
                    dt = 2*dp + dd
                    i = dt*2 + tk
                    a = ACC + dt*16 + 4*tk
                    T = 64
                    r0 = RS + 2*i
                    self.unpack(T, r0, 0); self.unpack(T+1, r0, 1); self.unpack(T+2, r0+1, 0); self.unpack(T+3, r0+1, 1)
                    for h in range(2):
                        e(f"v_pk_add_f32 {v(a+2*h,2)}, {v(a+2*h,2)}, {v(IN+4*i+2*h,2)}")
                        e(f"v_pk_add_f32 {v(T+2*h,2)}, {v(T+2*h,2)}, {v(BF+4*dt+2*h,2)}")
                        e(f"v_pk_add_f32 {v(a+2*h,2)}, {v(a+2*h,2)}, {v(T+2*h,2)}")
                        e(f"v_cvt_pk_bf16_f32 {v(O+2*dd+h)}, {v(a+2*h)}, {v(a+2*h+1)}")
                e(f"v_permlane16_swap_b32 {v(O)}, {v(O+2)}")
                e(f"v_permlane16_swap_b32 {v(O+1)}, {v(O+3)}")
                e(f"ds_write_b128 {v(32+dp)}, {v(O,4)} offset:{tk*2048}")
        e("s_waitcnt lgkmcnt(0)")
        for i in range(4): e(f"ds_read_b128 {v(72+4*i,4)}, v34 offset:{1024*i}")
        for i in range(4):
            e(f"s_add_u32 s56, s63, {i*8*2048}")
            e(f"s_waitcnt lgkmcnt({3-i})")
            e(f"buffer_store_dwordx4 {v(72+4*i,4)}, v9, {s(SRD_A,4)}, s56 offen {self.o.get('out_aux', '')}")

    def g2(self):
        e = self.e
        Lc = self.newlabel("g2comp"); Le = self.newlabel("g2end")
        e(f"s_cmp_lt_u32 {s(S_WV)}, 4")
        e(f"s_cbranch_scc1 {Lc}")
        self.g2_loader()
        L0 = self.newlabel("g2ep")
        e(f"s_cmp_lg_u32 {s(S_WV)}, 4")
        e(f"s_cbranch_scc1 {L0}")
        e("s_cmp_lg_u32 s2, 0")
        e(f"s_cbranch_scc1 {L0}")
        e(f"v_mov_b32 v254, {s(S_EP)}")
        e(f"v_mov_b32 v255, {WS_EPOCH}")
        e("s_mov_b64 exec, 1")
        e(f"buffer_store_dword v254, v255, {s(SRD_WS,4)}, 0 offen sc1")
        e("s_mov_b64 exec, -1")
        self.label(L0)
        e(f"s_branch {Le}")
        self.label(Lc)
        self.g2_compute()
        self.g2_epilogue()
        self.g2_epilogue2()
        self.label(Le)

    def finish(self):
        self.label("L_end")
        self.e("s_endpgm")

def wrap(body, lds=LDS_BYTES):
    hdr = f"""; Kernarg layout (112 bytes, ptrs only, base s[0:1]): q,k,v,shift_k,ssm_k,ssm_D,B_x,w1,b1,w2,b2,out,debug,ws
; @launch grid=(256,1,1) block=(512,1,1) lds={lds}
.amdgcn_target "amdgcn-amd-amdhsa--gfx950"
.text
.globl {KNAME}
.p2align 8
.type {KNAME},@function
{KNAME}:
"""
    tail = f"""
.section .rodata,"a"
.p2align 6
.amdhsa_kernel {KNAME}
  .amdhsa_next_free_vgpr 256
  .amdhsa_next_free_sgpr 102
  .amdhsa_accum_offset 256
  .amdhsa_group_segment_fixed_size 0
  .amdhsa_kernarg_size 112
  .amdhsa_user_sgpr_count 2
  .amdhsa_user_sgpr_kernarg_segment_ptr 1
  .amdhsa_system_sgpr_workgroup_id_x 1
  .amdhsa_float_denorm_mode_32 3
.end_amdhsa_kernel
"""
    return hdr + body + tail

def build(opts, ret_g=False):
    g = G(opts)
    g.prologue()
    g.stamp("start", defer=True)
    ph = opts["phases"]
    if "p" in ph:
        g.phase_p()
    else:
        g.epoch_ready()
    if "c" in ph:
        g.phase_c()
        g.stamp("c_end")
        g.signal(3, pf_w2=opts.get("prefetch_w", True))
        g.stamp("c_sig")
    if "g1" in ph:
        g.g1()
        g.stamp("g1_end")
    if "g2" in ph:
        g.g2()
        g.stamp("g2_end")
    g.stamp_flush()
    g.finish()
    src = wrap(g.finalize())
    return (src, g) if ret_g else src

if __name__ == "__main__":
    out = build(dict(phases=["p", "c", "g1", "g2"]))
    path = sys.argv[1] if len(sys.argv) > 1 else "sequential_preLN__ssm_conv_h3__mixer_channel_mlp__prompt.s"
    open(path, "w").write(out)
    print("wrote", path, len(out))
```

```python
import sys
from asmb import Asm, v, s

KNAME = "sequential_preLN__ssm_conv_h3__mixer_channel_mlp__prompt_kernel"
S_, D_, F_ = 2048, 1024, 3584

WS_FLAGS = 0
WS_EPOCH = 32768
WS_ST    = 65536
WS_TSP   = 131072
WS_CSP   = 393216
WS_STAMP = 786432
WS_XR    = 1 << 20
WS_XT    = 5 << 20
WS_HT    = 9 << 20
WS_HM    = 13 << 20
WS_EX    = 28 << 20
WS_SIZE  = 64 << 20

S_X, S_K, S_V, S_SH, S_SSMK, S_SSMD, S_BX, S_W1 = 8, 10, 12, 14, 16, 18, 20, 22
S_B1, S_W2, S_B2, S_OUT = 24, 26, 28, 30
S_DBG, S_WS = 32, 34
SRD_WS, SRD_A, SRD_B, SRD_C = 36, 40, 44, 48
S_WV, S_XI, S_J, S_EP = 52, 53, 54, 55

LDS_BYTES = 163840

class G(Asm):
    def __init__(self, opts):
        super().__init__()
        self.o = opts
        self.stamp_names = []
        self.deferred = []
        self.nt = " nt" if opts.get("nt", True) else ""

    def srd(self, dst, ptr, nbytes):
        self.e(f"s_mov_b32 {s(dst)}, {s(ptr)}")
        self.e(f"s_mov_b32 {s(dst+1)}, {s(ptr+1)}")
        self.e(f"s_mov_b32 {s(dst+2)}, {nbytes}")
        self.e(f"s_mov_b32 {s(dst+3)}, 0x20000")

    def stamp(self, name, defer=False):
        if not self.o.get("stamps"): return
        if name in self.stamp_names: i = self.stamp_names.index(name)
        else:
            i = len(self.stamp_names)
            assert i < 32
            self.stamp_names.append(name)
        op = 's_memtime' if self.o.get('cyc') else 's_memrealtime'
        if defer:
            k = len(self.deferred)
            assert k < 5
            self.deferred.append((i, 70 + 2*k))
            self.e(f"{op} s[{70+2*k}:{71+2*k}]")
            return
        self.e(f"{op} s[100:101]")
        self.e("s_waitcnt lgkmcnt(0)")
        self.e(f"v_writelane_b32 v253, s100, {i}")

    def stamp_commit(self):
        if not self.o.get("stamps"): return
        self.e("s_waitcnt lgkmcnt(0)")
        for i, r in self.deferred: self.e(f"v_writelane_b32 v253, s{r}, {i}")
        self.deferred = []

    def tick(self, i): pass
    def tick_flush(self, n): pass

    def stamp_flush_debug(self):
        e = self.e
        sel = self.o["dbg_sel"]
        self.srd(SRD_A, S_DBG, 256)
        for wave in (0, 4):
            L = self.newlabel("dbgf")
            e(f"s_cmp_lg_u32 {s(S_WV)}, {wave}")
            e(f"s_cbranch_scc1 {L}")
            for i, (nm, w) in enumerate(sel):
                if w != wave: continue
                idx = self.stamp_names.index(nm)
                e(f"v_readlane_b32 s98, v253, {idx}")
                if nm == "start": e("s_not_b32 s98, s98")
                e("v_mov_b32 v254, s98")
                e(f"v_mov_b32 v255, {4*i}")
                e("s_mov_b64 exec, 1")
                e(f"buffer_atomic_umax v254, v255, {s(SRD_A,4)}, 0 offen")
                e("s_mov_b64 exec, -1")
            self.label(L)

    def stamp_flush(self):
        if not self.o.get("stamps"): return
        if self.o.get("dbg_sel"): return self.stamp_flush_debug()
        L = self.newlabel("tf")
        self.e(f"s_and_b32 s98, {s(S_WV)}, 3")
        self.e("s_cmp_lg_u32 s98, 0")
        self.e(f"s_cbranch_scc1 {L}")
        self.e(f"s_lshl_b32 s98, s2, 8")
        self.e(f"s_lshl_b32 s99, {s(S_WV)}, 5")
        self.e("s_add_u32 s98, s98, s99")
        self.e(f"s_add_u32 s98, s98, {WS_STAMP}")
        self.e("v_lshlrev_b32 v255, 2, v0")
        self.e("v_add_u32 v255, s98, v255")
        self.e("s_mov_b32 exec_hi, 0")
        self.e(f"buffer_store_dword v253, v255, {s(SRD_WS,4)}, 0 offen")
        self.e("s_mov_b64 exec, -1")
        self.label(L)

    def prologue(self):
        e = self.e
        e("s_cmp_ge_u32 s2, 256")
        e("s_cbranch_scc1 L_end")
        e("s_load_dwordx16 s[8:23], s[0:1], 0")
        e("s_load_dwordx8 s[24:31], s[0:1], 64")
        e("s_load_dwordx4 s[32:35], s[0:1], 96")
        if self.o.get("code_pf", True):
            e("s_getpc_b64 s[56:57]")
            self.label("L_pc")
            e(f"s_sub_u32 s56, s56, L_pc-{KNAME}")
            e("s_subb_u32 s57, s57, 0")
            e("v_and_b32 v1, 255, v0")
            e("v_lshlrev_b32 v1, 7, v1")
            e("v_lshrrev_b32 v2, 8, v0")
            e("v_lshl_add_u32 v1, v2, 6, v1")
            e(f"v_min_u32 v1, L_end-{KNAME}, v1")
            e("global_load_dword v245, v1, s[56:57]")
        e("v_lshrrev_b32 v1, 6, v0")
        e(f"v_readfirstlane_b32 {s(S_WV)}, v1")
        e("v_and_b32 v0, 63, v0")
        e(f"s_and_b32 {s(S_XI)}, s2, 7")
        e(f"s_lshr_b32 {s(S_J)}, s2, 3")
        e(f"v_mov_b32 v2, {self.C_CNT}")
        e("v_mov_b32 v3, 0")
        e("v_lshl_add_u32 v2, v0, 2, v2")
        e("ds_write_b32 v2, v3")
        e("s_waitcnt lgkmcnt(0)")
        e("s_barrier")
        self.srd(SRD_WS, S_WS, WS_SIZE)
        e(f"s_load_dword {s(S_EP)}, {s(S_WS,2)}, {WS_EPOCH}")

    def lds_count(self, idx, target, then):
        e = self.e
        L = self.newlabel("cnt")
        e(f"v_mov_b32 v250, {self.C_CNT + 4*idx}")
        e("v_mov_b32 v251, 1")
        e("s_mov_b64 exec, 1")
        e("ds_add_rtn_u32 v252, v250, v251")
        e("s_waitcnt lgkmcnt(0)")
        e("v_readfirstlane_b32 s56, v252")
        e("s_mov_b64 exec, -1")
        if then is not None:
            e(f"s_cmp_eq_u32 s56, {target-1}")
            e(f"s_cbranch_scc0 {L}")
            then()
            self.label(L)

    def lds_wait(self, idx, target):
        e = self.e
        L = self.newlabel("lw"); Lx = self.newlabel("lwx")
        e(f"v_mov_b32 v250, {self.C_CNT + 4*idx}")
        e("s_mov_b32 s57, 0x400000")
        self.label(L)
        e("ds_read_b32 v251, v250")
        e("s_sub_u32 s57, s57, 1")
        e("s_cmp_eq_u32 s57, 0")
        e(f"s_cbranch_scc1 {Lx}")
        e("s_waitcnt lgkmcnt(0)")
        e("v_readfirstlane_b32 s56, v251")
        e(f"s_cmp_lt_u32 s56, {target}")
        e(f"s_cbranch_scc1 {L}")
        self.label(Lx)
        e("s_waitcnt lgkmcnt(0)")

    def epoch_ready(self):
        e = self.e
        e("s_waitcnt lgkmcnt(0)")
        e(f"s_and_b32 {s(S_EP)}, {s(S_EP)}, 0xfffffff0")
        e(f"s_add_u32 {s(S_EP)}, {s(S_EP)}, 16")

    def signal(self, p, wave=0, pf_w2=False):
        e = self.e
        e("s_waitcnt vmcnt(0) lgkmcnt(0)")
        e("s_barrier")
        L = self.newlabel("sig")
        e(f"s_cmp_lg_u32 {s(S_WV)}, {wave}")
        e(f"s_cbranch_scc1 {L}")
        self.publish(p)
        self.label(L)
        if pf_w2:
            L = self.newlabel("sgp")
            e(f"s_cmp_ge_u32 {s(S_WV)}, 4")
            e(f"s_cbranch_scc1 {L}")
            self.prefetch_w(2, S_WV)
            self.label(L)

    def poll_all(self, p, t0=248, sleep=0, arr=0):
        e = self.e
        L = self.newlabel("poll"); Lx = self.newlabel("pollx")
        e(f"s_add_u32 s56, {s(S_EP)}, {p}")
        e(f"v_lshlrev_b32 {v(t0+4)}, 7, v0")
        if arr: e(f"v_add_u32 {v(t0+4)}, {8192*arr}, {v(t0+4)}")
        e("s_mov_b32 s57, 0x100000")
        self.label(L)
        if sleep: e(f"s_sleep {sleep}")
        e(f"buffer_load_dwordx4 {v(t0,4)}, {v(t0+4)}, {s(SRD_WS,4)}, 0 offen sc1")
        e("s_sub_u32 s57, s57, 1")
        e("s_cmp_eq_u32 s57, 0")
        e(f"s_cbranch_scc1 {Lx}")
        e("s_waitcnt vmcnt(0)")
        for i in range(4):
            e(f"v_subrev_u32 {v(t0+i)}, s56, {v(t0+i)}")
        e(f"v_max_u32 {v(t0)}, {v(t0)}, {v(t0+1)}")
        e(f"v_max3_u32 {v(t0)}, {v(t0)}, {v(t0+2)}, {v(t0+3)}")
        e(f"v_cmp_le_u32 vcc, 16, {v(t0)}")
        e(f"s_cbranch_vccnz {L}")
        self.label(Lx)
        e("s_waitcnt vmcnt(0)")

    def poll_group(self, p, t0=248, sleep=0, arr=0):
        e = self.e
        L = self.newlabel("pollg"); Lx = self.newlabel("pollgx")
        e(f"s_add_u32 s56, {s(S_EP)}, {p}")
        e(f"v_and_b32 {v(t0+4)}, 7, v0")
        e(f"v_lshlrev_b32 {v(t0+4)}, 7, {v(t0+4)}")
        e(f"s_lshl_b32 s57, {s(S_XI)}, 10")
        if arr: e(f"s_add_u32 s57, s57, {8192*arr}")
        e(f"v_add_u32 {v(t0+4)}, s57, {v(t0+4)}")
        e("s_mov_b32 s57, 0x100000")
        self.label(L)
        if sleep: e(f"s_sleep {sleep}")
        e("s_mov_b64 exec, 0xff")
        e(f"buffer_load_dwordx4 {v(t0,4)}, {v(t0+4)}, {s(SRD_WS,4)}, 0 offen sc1")
        e("s_sub_u32 s57, s57, 1")
        e("s_cmp_eq_u32 s57, 0")
        e(f"s_cbranch_scc1 {Lx}")
        e("s_waitcnt vmcnt(0)")
        for i in range(4):
            e(f"v_subrev_u32 {v(t0+i)}, s56, {v(t0+i)}")
        e(f"v_max_u32 {v(t0)}, {v(t0)}, {v(t0+1)}")
        e(f"v_max3_u32 {v(t0)}, {v(t0)}, {v(t0+2)}, {v(t0+3)}")
        e(f"v_cmp_le_u32 vcc, 16, {v(t0)}")
        e(f"s_cbranch_vccnz {L}")
        self.label(Lx)
        e("s_waitcnt vmcnt(0)")
        e("s_mov_b64 exec, -1")

    def wait_all(self, p, wave=0):
        e = self.e
        if self.o.get("nosync"):
            e("s_barrier"); return
        L = self.newlabel("wa")
        e(f"s_cmp_lg_u32 {s(S_WV)}, {wave}")
        e(f"s_cbranch_scc1 {L}")
        self.poll_all(p)
        self.label(L)
        e("s_barrier")

    def allreduce_add(self, regs, tmp):
        e = self.e
        for mod in ("quad_perm:[1,0,3,2]", "quad_perm:[2,3,0,1]", "row_half_mirror", "row_mirror"):
            for r in regs:
                e(f"v_add_f32_dpp {v(r)}, {v(r)}, {v(r)} {mod} row_mask:0xf bank_mask:0xf")
        for op in ("v_permlane16_swap_b32", "v_permlane32_swap_b32"):
            for r, t in zip(regs, tmp): e(f"v_mov_b32 {v(t)}, {v(r)}")
            for r, t in zip(regs, tmp): e(f"{op} {v(t)}, {v(r)}")
            for r, t in zip(regs, tmp): e(f"v_add_f32 {v(r)}, {v(r)}, {v(t)}")

    def round_bf16(self, dst, src):
        self.e(f"v_cvt_pk_bf16_f32 {v(dst)}, {v(src)}, {v(src)}")
        self.e(f"v_and_b32 {v(dst)}, 0xffff0000, {v(dst)}")

    C_HC, C_HSTR, C_HCH = 0, 4160, 16640
    C_XR, C_XCH = 66560, 4608
    C_ST = 84992
    C_EX = 101376
    C_XT = 134144
    C_CNT = 150528

    def unpack(self, dst, src, hi):
        if hi: self.e(f"v_and_b32 {v(dst)}, 0xffff0000, {v(src)}")
        else:  self.e(f"v_lshlrev_b32 {v(dst)}, 16, {v(src)}")

    def chC(self, dst):
        e = self.e
        e(f"s_and_b32 s58, {s(S_WV)}, 3")
        e(f"s_lshl_b32 s56, {s(S_XI)}, 7")
        e(f"s_lshl_b32 s57, {s(S_J)}, 2")
        e("s_add_u32 s56, s56, s57")
        e(f"s_add_u32 {s(dst)}, s56, s58")

    def lds_transpose_setup(self):
        e = self.e
        e(f"s_lshl_b32 s56, {s(S_WV)}, 12")
        e(f"s_add_u32 s56, s56, {self.C_EX}")
        e("v_xor_b32 v126, v1, v2")
        e("v_lshlrev_b32 v126, 4, v126")
        e("v_lshl_add_u32 v126, v2, 9, v126")
        e("v_add_u32 v126, s56, v126")
        e("v_lshrrev_b32 v127, 5, v0")
        e("v_lshl_add_u32 v128, v1, 7, s56")
        for i in range(4):
            e(f"v_add_u32 v129, {2*i}, v127")
            e("v_xor_b32 v129, v129, v2")
            e(f"v_lshl_add_u32 {v(130+i)}, v129, 4, v128")

    def h_loads(self):
        e = self.e
        e("s_lshl_b32 s56, s63, 12")
        e(f"s_add_u32 {s(SRD_C)}, {s(S_SSMK)}, s56")
        e(f"s_addc_u32 {s(SRD_C+1)}, {s(S_SSMK+1)}, 0")
        e(f"s_mov_b32 {s(SRD_C+2)}, 4096")
        e(f"s_mov_b32 {s(SRD_C+3)}, 0x20000")
        e("v_lshlrev_b32 v8, 4, v0")
        e("v_subrev_u32 v9, 32, v8")
        for it in range(5):
            if it: e(f"v_add_u32 v9, 1024, v9")
            e(f"buffer_load_dwordx4 {v(140+6*it,4)}, v9, {s(SRD_C,4)}, 0 offen{self.nt}")
            e(f"buffer_load_dwordx2 {v(140+6*it+4,2)}, v9, {s(SRD_C,4)}, 0 offen offset:16{self.nt}")

    def h_build(self, younger=0):
        e = self.e
        e(f"s_mul_i32 s56, s58, {self.C_HCH}")
        e("v_add_u32 v8, s56, v8")
        T = 172
        for it in range(5):
            a = 140 + 6*it
            e(f"s_waitcnt vmcnt({2*(4-it) + younger})")
            if it == 4: e("s_mov_b64 exec, 15")
            off = 1024 * it
            e(f"ds_write_b128 v8, {v(a,4)} offset:{self.C_HC + off}")
            for d in range(4): e(f"v_mov_b32 {v(T+d)}, {v(a+1+d)}")
            e(f"ds_write_b128 v8, {v(T,4)} offset:{self.C_HC + 2*self.C_HSTR + off}")
            for d in range(4): e(f"v_alignbit_b32 {v(T+4+d)}, {v(a+d+1)}, {v(a+d)}, 16")
            e(f"ds_write_b128 v8, {v(T+4,4)} offset:{self.C_HC + 1*self.C_HSTR + off}")
            for d in range(4): e(f"v_alignbit_b32 {v(T+8+d)}, {v(a+d+2)}, {v(a+d+1)}, 16")
            e(f"ds_write_b128 v8, {v(T+8,4)} offset:{self.C_HC + 3*self.C_HSTR + off}")
            T = 184 if T == 172 else 172
        e("s_mov_b64 exec, -1")

    def phase_p(self):
        e = self.e
        Lb = self.newlabel("p_b"); Le = self.newlabel("p_e")
        self.chC(63)
        e("v_lshrrev_b32 v1, 3, v0           ; pbk")
        e("v_and_b32 v2, 7, v0               ; cq")
        if self.o.get("p_rot"):
            e(f"s_add_u32 s56, {s(S_XI)}, {s(S_J)}")
            e("s_and_b32 s56, s56, 7")
            e("s_lshl_b32 s56, s56, 7")
        else:
            e(f"s_lshl_b32 s56, {s(S_XI)}, 7")
        e("s_lshl_b32 s57, s58, 5")
        e("s_add_u32 s59, s56, s57            ; 128cb + 32w")
        e("v_lshl_add_u32 v3, v2, 2, s59      ; ch0")
        e(f"s_lshl_b32 s56, {s(S_J)}, 6")
        e("v_lshl_add_u32 v4, v1, 3, s56")
        e("v_lshlrev_b32 v5, 11, v4")
        e("v_lshl_add_u32 v5, v3, 1, v5")
        e(f"s_cmp_ge_u32 {s(S_WV)}, 4")
        e(f"s_cbranch_scc1 {Lb}")
        self.g2_b2_load()
        self.srd(SRD_A, S_K, S_ * D_ * 2)
        self.srd(SRD_B, S_V, S_ * D_ * 2)
        self.srd(SRD_C, S_SH, D_ * 8)
        KD, VD, WD = 10, 32, 48
        e("v_subrev_u32 v120, 6144, v5")
        for i in range(1, 6): e(f"v_add_u32 {v(120+i)}, {4096*i}, v120")
        for i in range(11):
            e(f"buffer_load_dwordx2 {v(KD+2*i,2)}, {v(120+i//2)}, {s(SRD_A,4)}, 0 offen offset:{2048*(i&1)}{self.nt}")
        e("v_lshlrev_b32 v7, 3, v3            ; ch0*8")
        e(f"buffer_load_dwordx4 {v(WD,4)}, v7, {s(SRD_C,4)}, 0 offen")
        e(f"buffer_load_dwordx4 {v(WD+4,4)}, v7, {s(SRD_C,4)}, 0 offen offset:16")
        for p in range(8):
            i = p + 3
            e(f"buffer_load_dwordx2 {v(VD+2*p,2)}, {v(120+i//2)}, {s(SRD_B,4)}, 0 offen offset:{2048*(i&1)}{self.nt}")
        e("v_mov_b32 v8, 0"); e("v_mov_b32 v9, 0")
        e(f"s_mul_i32 s56, s58, {self.C_XCH}")
        e(f"s_add_u32 s56, s56, {self.C_XR + 4096}")
        e("v_lshl_add_u32 v6, v0, 3, s56")
        e("ds_write_b64 v6, v[8:9]")
        self.lds_transpose_setup()
        e("v_lshlrev_b32 v6, 4, v2")
        e(f"s_lshl_b32 s56, {s(S_J)}, 7")
        e("s_sub_u32 s56, 4080, s56")
        e("v_sub_u32 v6, s56, v6")
        e("v_add_u32 v7, s59, v1")
        e("v_lshl_add_u32 v6, v7, 12, v6")
        e(f"v_add_u32 v6, {WS_XR}, v6")
        for c in range(1, 4): e(f"s_mov_b32 {s(64+c)}, {8*4096*c}")
        e("s_mov_b32 s64, 0")
        WP, KP, R, VP, O = 56, 64, 86, 102, 104
        self.stamp("p_issue", defer=True)
        e("s_waitcnt vmcnt(8)")
        self.stamp("p_kdata", defer=True)
        for cp in range(2):
            for j in range(4):
                self.unpack(WP + 2*j,     WD + 2*(2*cp)   + (j >> 1), j & 1)
                self.unpack(WP + 2*j + 1, WD + 2*(2*cp+1) + (j >> 1), j & 1)
            for i in range(11):
                self.unpack(KP + 2*i,     KD + 2*i + cp, 0)
                self.unpack(KP + 2*i + 1, KD + 2*i + cp, 1)
            if cp == 0:
                e("s_waitcnt vmcnt(0)")
                self.stamp("p_vdata", defer=True)
            for p in range(8):
                r = R + 2*p
                e(f"v_pk_mul_f32 {v(r,2)}, {v(KP+2*(p+3),2)}, {v(WP,2)}")
                for j in range(1, 4):
                    e(f"v_pk_fma_f32 {v(r,2)}, {v(KP+2*(p+3-j),2)}, {v(WP+2*j,2)}, {v(r,2)}")
                self.unpack(VP,     VD + 2*p + cp, 0)
                self.unpack(VP + 1, VD + 2*p + cp, 1)
                e(f"v_pk_mul_f32 {v(r,2)}, {v(r,2)}, {v(VP,2)}")
            for cc in range(2):
                c = 2*cp + cc
                for j in range(4):
                    e(f"v_cvt_pk_bf16_f32 {v(O+4*c+j)}, {v(R+2*(7-2*j)+cc)}, {v(R+2*(6-2*j)+cc)}")
                e(f"ds_write_b128 v126, {v(O+4*c,4)} offset:{128*c}")
        e("s_waitcnt lgkmcnt(0)")
        for i in range(4): e(f"ds_read_b128 {v(O+4*i,4)}, {v(130+i)} offset:{1024*i}")
        for i in range(4):
            e(f"s_waitcnt lgkmcnt({3-i})")
            e(f"buffer_store_dwordx4 {v(O+4*i,4)}, v6, {s(SRD_WS,4)}, {s(64+i)} offen {self.o.get('xr_aux', 'sc1')}")
        self.stamp("p_stored", defer=True)
        if self.o.get("x_late", False):
            e(f"v_mov_b32 v250, {self.C_CNT + 4*5}")
            e("v_mov_b32 v251, 1")
            e("s_mov_b64 exec, 1")
            e("ds_add_u32 v250, v251")
            e("s_mov_b64 exec, -1")
        e("s_and_b32 s56, s63, 0xfffffffe")
        e("s_lshl_b32 s56, s56, 1")
        e(f"s_load_dword s69, {s(S_SSMD,2)}, s56")
        self.epoch_ready()
        self.stamp_commit()
        e("s_waitcnt vmcnt(0)")
        self.lds_count(0, 4, lambda: self.publish(1))
        self.stamp("p_sig")
        e(f"s_branch {Le}")
        self.label(Lb)
        if self.o.get("stamps"): self.deferred = [(self.stamp_names.index("start"), 70)]
        self.g1_b1_load()
        self.srd(SRD_A, S_X, S_ * D_ * 2)
        XD, SD = 10, 26
        e("s_lshl_b32 s56, s2, 3")
        e("s_lshl_b32 s57, s58, 1")
        e("s_add_u32 s62, s56, s57            ; R0 = 8w + 2w'")
        e("s_lshl_b32 s56, s62, 11")
        e("v_lshl_add_u32 v6, v0, 4, s56")
        for i in range(4):
            e(f"buffer_load_dwordx4 {v(SD+4*i,4)}, v6, {s(SRD_A,4)}, 0 offen offset:{1024*i}{self.nt}")
        self.h_loads()
        e("v_mov_b32 v120, v5")
        for i in range(1, 4): e(f"v_add_u32 {v(120+i)}, {4096*i}, v5")
        for p in range(8):
            e(f"buffer_load_dwordx2 {v(XD+2*p,2)}, {v(120+p//2)}, {s(SRD_A,4)}, 0 offen offset:{2048*(p&1)}{self.nt}")
        e("s_and_b32 s56, s63, 0xfffffffe")
        e("s_lshl_b32 s56, s56, 1")
        e(f"s_load_dword s69, {s(S_SSMD,2)}, s56")
        U = 44
        e("s_waitcnt vmcnt(18)")
        for r in range(2):
            for d in range(8):
                self.unpack(U+16*r+2*d, SD+8*r+d, 0)
                self.unpack(U+16*r+2*d+1, SD+8*r+d, 1)
        SUM = [80, 81]; TMP = [82, 83]; VAR = [86, 87]
        for r in range(2):
            b = U + 16*r
            e(f"v_pk_add_f32 v[84:85], {v(b,2)}, {v(b+2,2)}")
            for d in range(2, 8):
                e(f"v_pk_add_f32 v[84:85], v[84:85], {v(b+2*d,2)}")
            e(f"v_add_f32 {v(SUM[r])}, v84, v85")
        self.allreduce_add(SUM, TMP)
        for r in range(2):
            e(f"v_mul_f32 {v(SUM[r])}, 0x3a800000, {v(SUM[r])}")
        for r in range(2):
            b = U + 16*r
            for d in range(0, 16, 2):
                e(f"v_sub_f32 {v(b+d)}, {v(b+d)}, {v(SUM[r])}")
                e(f"v_sub_f32 {v(b+d+1)}, {v(b+d+1)}, {v(SUM[r])}")
            e(f"v_pk_mul_f32 v[84:85], {v(b,2)}, {v(b,2)}")
            for d in range(1, 8):
                e(f"v_pk_fma_f32 v[84:85], {v(b+2*d,2)}, {v(b+2*d,2)}, v[84:85]")
            e(f"v_add_f32 {v(VAR[r])}, v84, v85")
        self.allreduce_add(VAR, TMP)
        ST = 88
        for r in range(2):
            e(f"v_mul_f32 {v(VAR[r])}, 0x3a800000, {v(VAR[r])}")
            self.round_bf16(VAR[r], VAR[r])
            e(f"v_add_f32 {v(VAR[r])}, 0x3727c5ac, {v(VAR[r])}")
            self.round_bf16(VAR[r], VAR[r])
            e(f"v_sqrt_f32 {v(VAR[r])}, {v(VAR[r])}")
            self.round_bf16(VAR[r], VAR[r])
            e(f"v_rcp_f32 {v(ST+2*r+1)}, {v(VAR[r])}")
            self.round_bf16(ST + 2*r, SUM[r])
        e("s_lshl_b32 s56, s62, 3")
        e(f"s_add_u32 s56, s56, {WS_ST}")
        e("v_mov_b32 v6, s56")
        e("s_mov_b64 exec, 1")
        e(f"buffer_store_dwordx4 {v(ST,4)}, v6, {s(SRD_WS,4)}, 0 offen sc1")
        e("s_mov_b64 exec, -1")
        self.h_build(younger=9)
        e("s_waitcnt lgkmcnt(0)")
        self.lds_count(1, 4, None)
        self.stamp_commit()
        self.stamp("p_hb")
        self.epoch_ready()
        e("s_waitcnt vmcnt(0)")
        self.lds_count(2, 4, lambda: self.publish(1, arr=1))
        self.stamp("p_stsig")
        self.lds_transpose_setup()
        e("v_lshlrev_b32 v6, 4, v2")
        e(f"s_lshl_b32 s56, {s(S_J)}, 7")
        e("v_add_u32 v6, s56, v6")
        e("v_add_u32 v7, s59, v1")
        e("v_lshl_add_u32 v6, v7, 12, v6")
        e(f"v_add_u32 v7, {WS_XT}, v6")
        for c in range(1, 4): e(f"s_mov_b32 {s(64+c)}, {8*4096*c}")
        e("s_mov_b32 s64, 0")
        e("s_mov_b32 s60, 0x05040100")
        e("s_mov_b32 s61, 0x07060302")
        O = 104
        for c in range(4):
            sel = s(61) if c & 1 else s(60)
            for j in range(4):
                e(f"v_perm_b32 {v(O+4*c+j)}, {v(XD+2*(2*j+1)+(c>>1))}, {v(XD+2*(2*j)+(c>>1))}, {sel}")
            e(f"ds_write_b128 v126, {v(O+4*c,4)} offset:{128*c}")
        for i in range(4): e(f"ds_read_b128 {v(O+4*i,4)}, {v(130+i)} offset:{1024*i}")
        e("s_waitcnt lgkmcnt(0)")
        if self.o.get("xt_late", True):
            self.lds_wait(6, 4)
        for i in range(4):
            e(f"buffer_store_dwordx4 {v(O+4*i,4)}, v7, {s(SRD_WS,4)}, {s(64+i)} offen {self.o.get('xt_aux', 'sc1')}")
        self.stamp("p_stored")
        e("s_waitcnt vmcnt(0)")
        self.lds_count(7, 4, lambda: self.publish(1, arr=2))
        self.stamp("p_sig")
        self.label(Le)

    def publish(self, p, arr=0):
        e = self.e
        e(f"s_add_u32 s56, {s(S_EP)}, {p}")
        e("v_mov_b32 v254, s56")
        e(f"s_lshl_b32 s57, {s(S_XI)}, 10")
        e(f"s_lshr_b32 s56, {s(S_J)}, 2")
        e("s_lshl_b32 s56, s56, 7")
        e("s_add_u32 s57, s57, s56")
        e(f"s_and_b32 s56, {s(S_J)}, 3")
        e("s_lshl_b32 s56, s56, 2")
        e("s_add_u32 s57, s57, s56")
        if arr: e(f"s_add_u32 s57, s57, {8192*arr}")
        e("v_mov_b32 v255, s57")
        e("s_mov_b64 exec, 1")
        e(f"buffer_store_dword v254, v255, {s(SRD_WS,4)}, 0 offen sc1")
        e("s_mov_b64 exec, -1")

    def phase_c(self):
        e = self.e
        Lh = self.newlabel("c_help"); Lj = self.newlabel("c_join"); Lep = self.newlabel("c_epi")
        e(f"s_cmp_ge_u32 {s(S_WV)}, 4")
        e(f"s_cbranch_scc1 {Lh}")
        self.chC(63)
        e("v_lshlrev_b32 v1, 4, v0            ; lane*16")
        Lp = self.newlabel("c_p"); Lp2 = self.newlabel("c_p2")
        e(f"s_cmp_eq_u32 {s(S_WV)}, 0")
        e(f"s_cbranch_scc0 {Lp}")
        if not self.o.get("nosync"): self.poll_group(1, sleep=self.o.get("g_sleep", 4))
        self.lds_count(4, 1, None)
        e(f"s_branch {Lp2}")
        self.label(Lp)
        self.lds_wait(4, 1)
        self.label(Lp2)
        self.stamp("c_start")
        e("s_lshl_b32 s56, s63, 12")
        e(f"s_add_u32 s60, s56, {WS_XR}")
        e(f"s_mul_i32 s56, s58, {self.C_XCH}")
        e(f"s_add_u32 m0, s56, {self.C_XR}")
        for i in range(4):
            e(f"buffer_load_dwordx4 v1, {s(SRD_WS,4)}, s60 offen sc1 lds")
            if i < 3: e("s_add_u32 m0, m0, 1024"); e("s_add_u32 s60, s60, 1024")
        if self.o.get("xt_late", True):
            e(f"v_mov_b32 v250, {self.C_CNT + 4*6}")
            e("v_mov_b32 v251, 1")
            e("s_mov_b64 exec, 1")
            e("ds_add_u32 v250, v251")
            e("s_mov_b64 exec, -1")
        e("v_and_b32 v2, 15, v0               ; n / m")
        e("v_lshrrev_b32 v3, 4, v0            ; g / rho")
        e("v_add_u32 v6, 1, v2")
        e("v_and_b32 v7, 3, v6")
        e(f"v_mul_u32_u24 v7, {self.C_HSTR}, v7")
        e("v_and_b32 v6, 0x1c, v6")
        e("v_lshl_add_u32 v7, v6, 1, v7")
        e("v_lshl_add_u32 v7, v3, 4, v7")
        e(f"s_mul_i32 s56, s58, {self.C_HCH}")
        e(f"s_add_u32 s56, s56, {self.C_HC}")
        e("v_add_u32 v8, s56, v7              ; v8 = A base")
        e("v_lshlrev_b32 v6, 5, v2")
        e("v_lshlrev_b32 v7, 4, v3")
        e("v_sub_u32 v6, v7, v6")
        e(f"s_mul_i32 s56, s58, {self.C_XCH}")
        e(f"s_add_u32 s56, s56, {self.C_XR + 480}")
        e("v_add_u32 v9, s56, v6              ; v9 = B base")
        self.lds_wait(1, 4)
        e("s_waitcnt vmcnt(0)")
        if self.o.get("tlb_touch", False): self.tlb_touch()
        if self.o.get("prefetch_w1", True): self.prefetch_w(1, 58)
        self.stamp("c_loop")
        ACC = 10
        FA = [42, 106]; FB = [74, 138]
        def reads(st, tt):
            r = []
            for i in range(8):
                r.append(f"ds_read_b128 {v(FB[st]+4*i,4)}, v9 offset:{512*(7-i) + 64*tt}")
                for hh in range(2):
                    r.append(f"ds_read_b64 {v(FA[st]+4*i+2*hh,2)}, v8 offset:{512*i + 64*tt + 8*hh}")
            return r
        pairs = sorted([(q, cp) for q in range(8) for cp in range(8 - q)], key=lambda t: (max(t), t[0] + t[1]))
        for r in reads(0, 0): e(r)
        for tt in range(8):
            st = tt & 1
            e("s_waitcnt lgkmcnt(0)")
            nxt = reads(st ^ 1, tt + 1) if tt < 7 else []
            seen = set(); i = 0
            for (q, cp) in pairs:
                c = q + cp
                a = ACC + 4*c
                src = "0" if (tt == 0 and c not in seen) else v(a, 4)
                seen.add(c)
                e(f"v_mfma_f32_16x16x32_bf16 {v(a,4)}, {v(FA[st]+4*q,4)}, {v(FB[st]+4*cp,4)}, {src}")
                if i < len(nxt): e(nxt[i]); i += 1
        self.stamp("c_loopend")
        e(f"s_lshl_b32 s56, s58, 12")
        e(f"s_add_u32 s56, s56, {self.C_EX + 16384}")
        e("v_add_u32 v6, s56, v1")
        for i in range(4): e(f"ds_write_b128 v6, {v(ACC+16+4*i,4)} offset:{1024*i}")
        e("s_waitcnt lgkmcnt(0)")
        e("s_barrier")
        e(f"s_branch {Lep}")
        self.label(Lh)
        self.chC(63)
        Lq = self.newlabel("c_q"); Lq2 = self.newlabel("c_q2")
        e("v_lshlrev_b32 v1, 4, v0")
        e(f"s_cmp_eq_u32 {s(S_WV)}, 4")
        e(f"s_cbranch_scc0 {Lq}")
        if not self.o.get("nosync"): self.poll_all(1, sleep=self.o.get('x_sleep', 8), arr=1)
        self.stamp("c_xpoll")
        e(f"s_mov_b32 s60, {WS_ST}")
        e(f"s_mov_b32 m0, {self.C_ST}")
        for i in range(16):
            e(f"buffer_load_dwordx4 v1, {s(SRD_WS,4)}, s60 offen sc1 lds")
            if i < 15: e("s_add_u32 m0, m0, 1024"); e("s_add_u32 s60, s60, 1024")
        if not self.o.get("nosync"): self.poll_group(1, sleep=self.o.get('g_sleep', 4), arr=2)
        self.stamp("c_xtpoll")
        self.lds_count(8, 1, None)
        Lx = self.newlabel("c_x")
        e(f"s_branch {Lx}")
        self.label(Lq)
        self.lds_wait(8, 1)
        self.label(Lx)
        e("s_lshl_b32 s56, s63, 12")
        e(f"s_add_u32 s60, s56, {WS_XT}")
        e("s_lshl_b32 s56, s58, 12")
        e(f"s_add_u32 m0, s56, {self.C_XT}")
        for i in range(4):
            e(f"buffer_load_dwordx4 v1, {s(SRD_WS,4)}, s60 offen sc1 lds")
            if i < 3: e("s_add_u32 m0, m0, 1024"); e("s_add_u32 s60, s60, 1024")
        e("s_waitcnt vmcnt(0)")
        self.stamp("c_xjob")
        if self.o.get("prealloc", False):
            L5 = self.newlabel("c_5")
            e(f"s_cmp_eq_u32 {s(S_WV)}, 5")
            e(f"s_cbranch_scc0 {L5}")
            e("v_lshrrev_b32 v1, 4, v0")
            e("v_lshlrev_b32 v1, 18, v1")
            e("v_and_b32 v2, 15, v0")
            e("v_lshl_add_u32 v1, v2, 4, v1")
            e("s_and_b32 s56, s63, 0xfffffffc")
            e("s_lshl_b32 s56, s56, 8")
            e(f"s_add_u32 s60, s56, {WS_HT}")
            for c in range(4):
                for mq in range(4):
                    e(f"s_add_u32 s56, s60, {c*256 + mq*4*262144}")
                    e(f"buffer_store_dwordx4 v[12:15], v1, {s(SRD_WS,4)}, s56 offen sc1")
            e("s_waitcnt vmcnt(0)")
            self.label(L5)
        if "g2" in self.o["phases"] and self.o.get("sent_c"):
            e(f"s_cmp_lt_u32 {s(S_WV)}, 6")
            e(f"s_cbranch_scc1 {Lq2}")
            e("s_lshl_b32 s56, s2, 15")
            e(f"s_sub_u32 s57, {s(S_WV)}, 6")
            e("s_lshl_b32 s57, s57, 14")
            e("s_add_u32 s56, s56, s57")
            e(f"s_add_u32 s60, s56, {WS_EX}")
            e("v_lshlrev_b32 v1, 4, v0")
            for r in range(4): e(f"v_mov_b32 {v(12+r)}, -1")
            for i in range(16):
                e(f"buffer_store_dwordx4 v[12:15], v1, {s(SRD_WS,4)}, s60 offen sc1")
                if i < 15: e("s_add_u32 s60, s60, 1024")
        self.label(Lq2)
        self.stamp("c_loopend")
        e("s_barrier")
        self.chC(63)
        e("v_lshlrev_b32 v1, 4, v0")
        e("v_and_b32 v2, 15, v0")
        e("v_lshrrev_b32 v3, 4, v0")
        e(f"s_lshl_b32 s56, s58, 12")
        e(f"s_add_u32 s56, s56, {self.C_EX + 16384}")
        e("v_add_u32 v6, s56, v1")
        for i in range(4): e(f"ds_read_b128 {v(ACC+4*i,4)}, v6 offset:{1024*i}")
        self.label(Lep)
        self.stamp("c_exch")
        e(f"s_lshr_b32 s59, {s(S_WV)}, 2       ; kh")
        e("v_and_b32 v4, 1, v3")
        e("s_lshl_b32 s56, s59, 2")
        e("v_add_u32 v4, s56, v4")
        e("v_lshlrev_b32 v4, 8, v4")
        e("v_lshl_add_u32 v4, v2, 4, v4")
        e("v_lshrrev_b32 v5, 1, v3")
        e("v_lshl_add_u32 v4, v5, 3, v4       ; v4 = s (pair 0)")
        KV, STT, XE = 42, 50, 82
        e("v_sub_u32 v5, 2040, v4")
        e("v_lshlrev_b32 v5, 1, v5")
        e(f"s_mul_i32 s56, s58, {self.C_XCH}")
        e(f"s_add_u32 s56, s56, {self.C_XR - 1024}")
        e("v_add_u32 v5, s56, v5")
        e(f"ds_read_b128 {v(KV,4)}, v5 offset:1024")
        e(f"ds_read_b128 {v(KV+4,4)}, v5")
        e("s_lshl_b32 s56, s58, 12")
        e(f"s_add_u32 s56, s56, {self.C_XT}")
        e("v_lshl_add_u32 v5, v4, 1, s56")
        e(f"ds_read_b128 {v(XE,4)}, v5")
        e(f"ds_read_b128 {v(XE+4,4)}, v5 offset:1024")
        e("v_lshlrev_b32 v5, 3, v4")
        e(f"v_add_u32 v5, {self.C_ST}, v5")
        for p in range(2):
            for i in range(4):
                e(f"ds_read_b128 {v(STT+16*p+4*i,4)}, v5 offset:{4096*p + 16*i}")
        e("v_lshrrev_b32 v5, 7, v4")
        e("v_lshlrev_b32 v5, 18, v5")
        e("v_and_b32 v6, 127, v4")
        e("v_lshl_add_u32 v5, v6, 1, v5")
        e("s_lshl_b32 s56, s63, 8")
        e(f"s_add_u32 s60, s56, {WS_HT}")
        e(f"s_add_u32 s62, s60, {4 << 18}")
        e("s_and_b32 s56, s63, 1")
        e("s_lshl_b32 s56, s56, 4")
        e("s_lshr_b32 s61, s69, s56")
        e("s_lshl_b32 s61, s61, 16")
        e("s_waitcnt lgkmcnt(0)")
        H = 110
        for p in range(2):
            a = ACC + 8*p; b = a + 4
            for r in range(4):
                e(f"v_permlane16_swap_b32 {v(a+r)}, {v(b+r)}")
            for el in range(8):
                y = a + el
                xr_ = XE + 4*p + (el >> 1)
                kj = KV + 4*p + ((7 - el) >> 1)
                t0 = H + 16 + (el & 1) * 4
                self.unpack(t0, xr_, el & 1)
                self.unpack(t0 + 1, kj, 1 - (el & 1))
                m_ = STT + 16*p + 2*el
                e(f"v_fmac_f32 {v(y)}, s61, {v(t0+1)}")
                e(f"v_sub_f32 {v(t0+2)}, {v(t0)}, {v(m_)}")
                e(f"v_mul_f32 {v(t0+2)}, {v(t0+2)}, {v(m_+1)}")
                e(f"v_fma_f32 {v(H+el)}, {v(t0+2)}, {v(y)}, {v(t0)}")
            O = H + 8
            for j in range(4):
                e(f"v_cvt_pk_bf16_f32 {v(O+j)}, {v(H+2*j)}, {v(H+2*j+1)}")
            e(f"buffer_store_dwordx4 {v(O,4)}, v5, {s(SRD_WS,4)}, {s(60 if p == 0 else 62)} offen {self.o.get('ht_aux', 'sc1')}")
            H = 140

    def tlb_touch(self):
        e = self.e
        L = self.newlabel("tlb")
        e(f"s_cmp_lg_u32 {s(S_WV)}, 0")
        e(f"s_cbranch_scc1 {L}")
        e("v_min_u32 v244, 23, v0")
        e("v_lshlrev_b32 v244, 20, v244")
        e(f"v_add_u32 v244, {WS_HM + 4096}, v244")
        e(f"buffer_load_dword v243, v244, {s(SRD_WS,4)}, 0 offen")
        self.srd(SRD_A, S_OUT, S_ * D_ * 2)
        e("v_min_u32 v244, 3, v0")
        e("v_lshlrev_b32 v244, 20, v244")
        e(f"buffer_load_dword v242, v244, {s(SRD_A,4)}, 0 offen")
        self.label(L)

    def prefetch_w(self, which, swave):
        e = self.e
        ptr = S_W1 if which == 1 else S_W2
        gran = self.o.get("pf_gran", 64)
        self.srd(SRD_C, ptr, D_ * F_ * 2)
        e("s_lshl_b32 s56, s2, 2")
        e(f"s_add_u32 s56, s56, {s(swave)}")
        e("s_mul_i32 s56, s56, 56*128")
        e("v_min_u32 v247, 55, v0")
        e("v_lshlrev_b32 v247, 7, v247")
        e("v_add_u32 v247, s56, v247")
        e(f"buffer_load_dword v246, v247, {s(SRD_C,4)}, 0 offen")
        if gran == 64: e(f"buffer_load_dword v245, v247, {s(SRD_C,4)}, 0 offen offset:64")

    G1_STG = 45056
    G1_TOK, G1_W = 0, 16384
    G1_AST = 135168
    G1_CS  = 136192
    G1_B1  = 137216
    G1_CNT = 138240

    def g1_ids(self):
        e = self.e
        e(f"s_and_b32 s56, {s(S_XI)}, 1")
        e("s_lshl_b32 s56, s56, 3")
        e(f"s_and_b32 s57, {s(S_J)}, 7")
        e("s_add_u32 s60, s56, s57          ; mb")
        e(f"s_lshr_b32 s56, {s(S_XI)}, 1")
        e("s_lshl_b32 s56, s56, 2")
        e(f"s_lshr_b32 s57, {s(S_J)}, 3")
        e("s_add_u32 s61, s56, s57          ; nb")

    def wg_of(self, dst, vmb, vnb, t):
        e = self.e
        e(f"v_lshrrev_b32 {v(dst)}, 3, {v(vmb)}")
        e(f"v_lshrrev_b32 {v(t)}, 2, {v(vnb)}")
        e(f"v_lshl_add_u32 {v(dst)}, {v(t)}, 1, {v(dst)}      ; x")
        e(f"v_and_b32 {v(t)}, 7, {v(vmb)}")
        e(f"v_lshl_add_u32 {v(dst)}, {v(t)}, 3, {v(dst)}")
        e(f"v_and_b32 {v(t)}, 3, {v(vnb)}")
        e(f"v_lshl_add_u32 {v(dst)}, {v(t)}, 6, {v(dst)}")

    def flag_addr(self, dst, t):
        e = self.e
        e(f"v_and_b32 {v(t)}, 7, {v(dst)}")
        e(f"v_lshlrev_b32 {v(t)}, 10, {v(t)}")
        e(f"v_lshrrev_b32 {v(t+1)}, 5, {v(dst)}")
        e(f"v_lshl_add_u32 {v(t)}, {v(t+1)}, 7, {v(t)}")
        e(f"v_bfe_u32 {v(dst)}, {v(dst)}, 3, 2")
        e(f"v_lshl_add_u32 {v(dst)}, {v(dst)}, 2, {v(t)}")

    def poll_addr(self, p, va, vd):
        e = self.e
        L = self.newlabel("pa"); Lx = self.newlabel("pax")
        e(f"s_add_u32 s56, {s(S_EP)}, {p}")
        e("s_mov_b32 s57, 0x100000")
        self.label(L)
        e(f"buffer_load_dword {v(vd)}, {v(va)}, {s(SRD_WS,4)}, 0 offen sc1")
        e("s_sub_u32 s57, s57, 1")
        e("s_cmp_eq_u32 s57, 0")
        e(f"s_cbranch_scc1 {Lx}")
        e("s_waitcnt vmcnt(0)")
        e(f"v_subrev_u32 {v(vd)}, s56, {v(vd)}")
        e(f"v_cmp_le_u32 vcc, 16, {v(vd)}")
        e(f"s_cbranch_vccnz {L}")
        self.label(Lx)
        e("s_waitcnt vmcnt(0)")

    def g1_loader_setup(self):
        e = self.e
        e(f"s_sub_u32 s58, {s(S_WV)}, 4       ; lw")
        e("v_lshrrev_b32 v13, 4, v0          ; g = lane>>4")
        e("v_and_b32 v14, 15, v0             ; p")
        e("v_lshrrev_b32 v15, 1, v14         ; b'")
        e("v_and_b32 v16, 1, v14             ; half")
        e("v_xor_b32 v15, v15, v13           ; b' ^ (row&3)")
        e("s_lshl_b32 s59, s58, 4")
        e("v_add_u32 v17, s59, v13")
        e("v_lshlrev_b32 v17, 8, v17         ; *256")
        e("v_lshl_add_u32 v17, v16, 4, v17")
        e("s_lshl_b32 s59, s60, 18           ; mb*262144")
        e(f"s_add_u32 s59, s59, {WS_HT}")
        e("v_add_u32 v17, s59, v17")
        for ii in range(4):
            x4 = 4 if (ii >> 1) & 1 else 0
            e(f"v_xor_b32 v18, {x4}, v15")
            e("v_lshl_add_u32 v18, v18, 5, v17")
            e(f"v_add_u32 {v(2+ii)}, {ii*4*256}, v18")
        e("s_mov_b32 s59, 0x924924a          ; ceil(2^32/28)")
        for ii in range(7):
            e(f"v_add_u32 v13, {64*ii}, v0")
            e("v_mul_hi_u32 v14, s59, v13        ; row_local")
            e("v_mul_u32_u24 v15, 28, v14")
            e("v_sub_u32 v15, v13, v15           ; p")
            e("v_bfe_u32 v16, v14, 3, 1          ; bit3(row)")
            e("v_lshrrev_b32 v17, 1, v15         ; b'")
            e("v_xor_b32 v17, v17, v16           ; b")
            e("v_and_b32 v15, 1, v15")
            e("v_lshlrev_b32 v15, 4, v15")
            e("v_lshl_add_u32 v15, v17, 5, v15   ; b*32 + half*16")
            e("v_mul_u32_u24 v14, 7168, v14")
            e(f"v_add_u32 {v(6+ii)}, v14, v15")
        e("s_mul_i32 s59, s58, 16*7168")
        e("s_mul_i32 s57, s61, 448")
        e("s_add_u32 s59, s59, s57")
        for ii in range(7):
            e(f"v_add_u32 {v(6+ii)}, s59, {v(6+ii)}")
        e("s_lshl_b32 s62, s58, 12")
        e("s_mul_i32 s63, s58, 7168")
        e(f"s_add_u32 s63, s63, {self.G1_W}")

    def g1_issue_w(self, sbuf, sk):
        e = self.e
        if self.o.get("g1_nodma"): return
        e(f"s_add_u32 m0, {s(sbuf)}, s63")
        for ii in range(7):
            e(f"buffer_load_dwordx4 {v(6+ii)}, {s(SRD_B,4)}, {s(sk)} offen lds")
            if ii < 6: e("s_add_u32 m0, m0, 1024")

    def g1_issue_t(self, sbuf, sk):
        e = self.e
        if self.o.get("g1_nodma"): return
        e(f"s_add_u32 m0, {s(sbuf)}, s62")
        for ii in range(4):
            e(f"buffer_load_dwordx4 {v(2+ii)}, {s(SRD_WS,4)}, {s(sk)} offen {self.o.get('t_aux', 'sc1')} lds")
            if ii < 3: e("s_add_u32 m0, m0, 1024")

    def g1_next_k(self):
        e = self.e
        e("s_add_u32 s68, s68, 1")
        e("s_and_b32 s68, s68, 15")
        e(f"s_mul_i32 s65, s68, {64*7168}")
        e(f"s_lshl_b32 s66, s68, 14")

    def g1_side_col(self):
        e = self.e
        e("v_lshrrev_b32 v20, 4, v0          ; g")
        e("v_and_b32 v21, 15, v0")
        e("v_lshrrev_b32 v22, 2, v21         ; r")
        e("v_and_b32 v23, 3, v21             ; c")
        e("v_lshl_add_u32 v24, v20, 3, v22   ; row = 8g + r")
        e("v_and_b32 v25, 1, v20             ; g&1")
        e("v_mul_u32_u24 v27, 448, v24")
        e("v_lshl_add_u32 v27, v23, 3, v27")
        e(f"v_add_u32 v27, {self.G1_W}, v27")
        WF, ONE, DC = 48, 80, 100
        for i in range(4):
            e(f"s_add_u32 s56, s58, {4*i}")
            e("s_min_u32 s56, s56, 13")
            e(f"s_mov_b32 {s(84+i)}, s56")
            e("v_xor_b32 v28, s56, v25")
            e(f"v_lshl_add_u32 {v(116+i)}, v28, 5, v27")
        for i in range(4):
            for u in range(2):
                for h in range(2):
                    e(f"ds_read_b64_tr_b16 {v(WF+8*i+4*u+2*h,2)}, {v(116+i)} offset:{u*32*448 + h*4*448}")
        for r in range(4): e(f"v_mov_b32 {v(ONE+r)}, 0x3f803f80")
        e("s_waitcnt lgkmcnt(0)")
        for u in range(2):
            for i in range(4):
                e(f"v_mfma_f32_16x16x32_bf16 {v(DC+4*i,4)}, {v(WF+8*i+4*u,4)}, {v(ONE,4)}, {'0' if u == 0 else v(DC+4*i,4)}")
        e("s_lshl_b32 s56, s61, 4")
        e("s_add_u32 s56, s56, s60")
        e("s_lshl_b32 s56, s56, 10")
        e(f"s_add_u32 s56, s56, {WS_CSP}")
        e("v_lshl_add_u32 v28, v20, 4, s56")
        e("s_mov_b32 exec_lo, 0x00010001"); e("s_mov_b32 exec_hi, 0x00010001")
        for i in range(4):
            e(f"s_lshl_b32 s56, {s(84+i)}, 6")
            e(f"buffer_store_dwordx4 {v(DC+4*i,4)}, v28, {s(SRD_WS,4)}, s56 offen sc1")
        e("s_mov_b64 exec, -1")

    def g1_tok_mfma(self, base, first):
        e = self.e
        ONE, D1, D2 = 224, 208, 216
        La = self.newlabel("g1t"); Lb = self.newlabel("g1t2")
        e("s_cmp_eq_u32 s58, 0")
        e(f"s_cbranch_scc0 {La}")
        for pas in range(2):
            if pas == 1: self.label(La)
            for i in range(2):
                t = v(base + 28 + 4*(2*pas + i), 4)
                e(f"v_mfma_f32_16x16x32_bf16 {v(D1+4*i,4)}, {v(ONE,4)}, {t}, {'0' if first else v(D1+4*i,4)}")
                e(f"v_mfma_f32_16x16x32_bf16 {v(D2+4*i,4)}, {t}, {t}, {'0' if first else v(D2+4*i,4)}")
            if pas == 0: e(f"s_branch {Lb}")
        self.label(Lb)

    def g1_tok_store(self):
        e = self.e
        D1, D2 = 208, 216
        e("s_lshl_b32 s56, s60, 4")
        e("s_add_u32 s56, s56, s61")
        e("s_lshl_b32 s56, s56, 10")
        e(f"s_add_u32 s56, s56, {WS_TSP}")
        e("s_lshl_b32 s57, s59, 9            ; 4wt*16*8")
        e("s_add_u32 s56, s56, s57")
        e("s_lshl_b32 s57, s58, 8            ; 2wf*16*8")
        e("s_add_u32 s56, s56, s57")
        e("v_and_b32 v228, 15, v0")
        e("v_lshl_add_u32 v228, v228, 3, s56")
        e("s_mov_b32 s80, 0x22222222"); e("s_mov_b32 s81, 0x22222222")
        e("s_mov_b32 s82, 0x44444444"); e("s_mov_b32 s83, 0x44444444")
        e("s_mov_b32 vcc_lo, 0x88888888"); e("s_mov_b32 vcc_hi, 0x88888888")
        for i in range(2):
            o = 230 + 2*i
            e(f"v_mov_b32 {v(o)}, {v(D1+4*i)}")
            e(f"v_cndmask_b32 {v(o+1)}, {v(D2+4*i)}, {v(D2+4*i+1)}, s[80:81]")
            e(f"v_cndmask_b32 {v(o+1)}, {v(o+1)}, {v(D2+4*i+2)}, s[82:83]")
            e(f"v_cndmask_b32 {v(o+1)}, {v(o+1)}, {v(D2+4*i+3)}, vcc")
        e("s_mov_b32 exec_lo, 0x00f0000f"); e("s_mov_b32 exec_hi, 0xf0000f00")
        for i in range(2):
            e(f"buffer_store_dwordx2 {v(230+2*i,2)}, v228, {s(SRD_WS,4)}, 0 offen offset:{128*i} sc1")
        e("s_mov_b64 exec, -1")

    def g1_side_signal(self):
        e = self.e
        L = self.newlabel("g1s")
        e(f"v_mov_b32 v20, {self.G1_CNT}")
        e("v_mov_b32 v21, 1")
        e("s_mov_b64 exec, 1")
        e("ds_add_rtn_u32 v22, v20, v21")
        e("s_waitcnt lgkmcnt(0)")
        e("v_readfirstlane_b32 s56, v22")
        e("s_mov_b64 exec, -1")
        e("s_cmp_eq_u32 s56, 3")
        e(f"s_cbranch_scc0 {L}")
        self.publish(4)
        self.label(L)

    def g1_side_poll_issue(self):
        e = self.e
        e("v_and_b32 v20, 15, v0")
        e("v_bfe_u32 v21, v0, 4, 1")
        e("v_cmp_eq_u32 vcc, 0, v21")
        e("v_mov_b32 v22, s60"); e("v_mov_b32 v23, s61")
        e("v_cndmask_b32 v24, v20, v22, vcc")
        e("v_cndmask_b32 v25, v23, v20, vcc")
        self.wg_of(40, 24, 25, 26)
        self.flag_addr(40, 26)
        e(f"buffer_load_dword v41, v40, {s(SRD_WS,4)}, 0 offen sc1")

    def g1_side_loads(self):
        e = self.e
        L = self.newlabel("g1p")
        e(f"s_add_u32 s56, {s(S_EP)}, 4")
        e("v_subrev_u32 v41, s56, v41")
        e("v_cmp_le_u32 vcc, 16, v41")
        e(f"s_cbranch_vccz {L}")
        if not self.o.get("nosync"): self.poll_addr(4, 40, 41)
        self.label(L)
        e("v_and_b32 v20, 31, v0")
        e("s_lshl_b32 s56, s58, 5")
        e("v_add_u32 v42, s56, v20            ; token")
        e("v_lshrrev_b32 v21, 5, v0")
        e("v_lshlrev_b32 v21, 13, v21         ; hf*8*1024")
        e("v_lshl_add_u32 v21, v42, 3, v21")
        e("s_lshl_b32 s56, s60, 14")
        e(f"s_add_u32 s56, s56, {WS_TSP}")
        e("v_add_u32 v21, s56, v21")
        for jj in range(8):
            if jj == 4: e("v_add_u32 v21, 4096, v21")
            e(f"buffer_load_dwordx2 {v(44+2*jj,2)}, v21, {s(SRD_WS,4)}, 0 offen offset:{1024*(jj&3)} sc1")
        e("v_and_b32 v20, 15, v0")
        e("v_min_u32 v20, 13, v20")
        e("s_mul_i32 s56, s58, 14")
        e("v_add_u32 v43, s56, v20            ; fq")
        e("v_lshrrev_b32 v21, 4, v0")
        e("v_lshlrev_b32 v21, 12, v21")
        e("v_lshl_add_u32 v21, v43, 4, v21")
        e("s_lshl_b32 s56, s61, 14")
        e(f"s_add_u32 s56, s56, {WS_CSP}")
        e("v_add_u32 v21, s56, v21")
        for jj in range(4):
            e(f"buffer_load_dwordx4 {v(60+4*jj,4)}, v21, {s(SRD_WS,4)}, 0 offen offset:{1024*jj} sc1")

    def g1_b1_load(self):
        e = self.e
        self.srd(SRD_B, S_B1, F_ * 2)
        e(f"s_lshr_b32 s56, {s(S_XI)}, 1")
        e("s_lshl_b32 s56, s56, 2")
        e(f"s_lshr_b32 s57, {s(S_J)}, 3")
        e("s_add_u32 s56, s56, s57          ; nb")
        e("s_mul_i32 s56, s56, 448")
        e("v_and_b32 v240, 15, v0")
        e("v_min_u32 v240, 13, v240")
        e("s_mul_i32 s57, s58, 14")
        e("v_add_u32 v240, s57, v240")
        e("v_lshl_add_u32 v240, v240, 3, s56")
        e(f"buffer_load_dwordx2 v[240:241], v240, {s(SRD_B,4)}, 0 offen")

    def g1_side_final_tok(self):
        e = self.e
        for jj in range(1, 8): e(f"v_pk_add_f32 v[44:45], v[44:45], {v(44+2*jj,2)}")
        e("v_mov_b32 v46, v44"); e("v_mov_b32 v47, v45")
        e("v_permlane32_swap_b32 v46, v44"); e("v_permlane32_swap_b32 v47, v45")
        e("v_add_f32 v44, v44, v46"); e("v_add_f32 v45, v45, v47")
        e("v_mul_f32 v44, 0x3a800000, v44      ; mu")
        e("v_mul_f32 v45, 0x3a800000, v45      ; E[h^2]")
        e("v_fma_f32 v45, -v44, v44, v45       ; var")
        e("v_max_f32 v45, 0, v45")
        self.round_bf16(46, 44)
        self.round_bf16(47, 45)
        e("v_add_f32 v47, 0x3727c5ac, v47")
        self.round_bf16(47, 47)
        e("v_sqrt_f32 v47, v47")
        self.round_bf16(47, 47)
        e("v_rcp_f32 v48, v47                  ; 1/sd1")
        e("v_sub_f32 v49, v44, v46")
        e("v_mul_f32 v49, v49, v48             ; mean(y1)")
        self.round_bf16(49, 49)
        e("v_mul_f32 v50, v45, v48")
        e("v_mul_f32 v50, v50, v48             ; var(y1)")
        self.round_bf16(50, 50)
        e("v_add_f32 v50, 0x3727c5ac, v50")
        self.round_bf16(50, 50)
        e("v_sqrt_f32 v50, v50")
        self.round_bf16(50, 50)
        e("v_rcp_f32 v50, v50")
        e("v_mul_f32 v52, v48, v50")
        e("v_fma_f32 v51, v49, v47, v46        ; M = m1 + m2*sd1")
        e("v_mul_f32 v53, v52, v51             ; am")
        e(f"v_lshlrev_b32 v20, 3, v42")
        e(f"v_add_u32 v20, {self.G1_AST}, v20")
        e("s_mov_b32 exec_hi, 0")
        e("ds_write_b64 v20, v[52:53]")
        e("s_mov_b64 exec, -1")
        e("s_waitcnt lgkmcnt(0)")

    def g1_side_final_col(self):
        e = self.e
        for jj in range(1, 4):
            e(f"v_pk_add_f32 v[60:61], v[60:61], {v(60+4*jj,2)}")
            e(f"v_pk_add_f32 v[62:63], v[62:63], {v(62+4*jj,2)}")
        for op in ("v_permlane16_swap_b32", "v_permlane32_swap_b32"):
            for r in range(4): e(f"v_mov_b32 {v(64+r)}, {v(60+r)}")
            for r in range(4): e(f"{op} {v(64+r)}, {v(60+r)}")
            for r in range(4): e(f"v_add_f32 {v(60+r)}, {v(60+r)}, {v(64+r)}")
        self.unpack(68, 240, 0); self.unpack(69, 240, 1); self.unpack(70, 241, 0); self.unpack(71, 241, 1)
        e("v_lshlrev_b32 v20, 4, v43")
        e(f"v_add_u32 v20, {self.G1_CS}, v20")
        e("s_mov_b64 exec, 0x3fff")
        e("ds_write_b128 v20, v[60:63]")
        e(f"ds_write_b128 v20, v[68:71] offset:{self.G1_B1 - self.G1_CS}")
        e("s_mov_b64 exec, -1")
        e("s_waitcnt lgkmcnt(0)")

    def g1_loader(self):
        e = self.e
        STG = self.G1_STG
        side = not self.o.get("g1_noside")
        self.srd(SRD_B, S_W1, D_ * F_ * 2)
        self.g1_loader_setup()
        if self.o.get("g1_norot"): e("s_mov_b32 s68, 0")
        else:
            mm, mn = self.o.get("g1_rot", (9, 1))
            e(f"s_mul_i32 s68, s60, {mm}")
            e(f"s_mul_i32 s56, s61, {mn}")
            e("s_add_u32 s68, s68, s56")
        e("s_sub_u32 s68, s68, 1")
        self.g1_next_k()
        e("s_mov_b32 s88, s66")
        e("s_mov_b32 s64, 0")
        self.g1_issue_w(64, 65)
        self.g1_next_k()
        e(f"s_mov_b32 s64, {STG}")
        self.g1_issue_w(64, 65)
        e("s_waitcnt vmcnt(7)")
        e("s_barrier                        ; W(r) resident")
        if side: self.g1_side_col()
        self.g1_dep_wait()
        e("s_mov_b32 s64, 0")
        self.g1_issue_t(64, 88)
        e(f"s_mov_b32 s64, {STG}")
        self.g1_issue_t(64, 66)
        e("s_waitcnt vmcnt(4) lgkmcnt(0)")
        e("s_barrier                        ; B_0")
        e("s_mov_b32 s67, 0                 ; period i")
        e(f"s_mov_b32 s64, {2*STG}")
        sent = "g2" in self.o["phases"] and not self.o.get("sent_c")
        if sent:
            e("s_lshl_b32 s89, s2, 15")
            e("s_lshl_b32 s56, s58, 13")
            e("s_add_u32 s89, s89, s56")
            e(f"s_add_u32 s89, s89, {WS_EX}")
            e("v_lshlrev_b32 v128, 4, v0")
            for r in range(4): e(f"v_mov_b32 {v(132+r)}, -1")
        pre = self.o.get("prealloc", False)
        if pre:
            e("s_mul_i32 s89, s60, 112")
            e("s_mul_i32 s56, s61, 7")
            e("s_add_u32 s89, s89, s56")
            e("s_lshl_b32 s89, s89, 13")
            e("s_mul_i32 s56, s58, 14336")
            e("s_add_u32 s89, s89, s56")
            e(f"s_add_u32 s89, s89, {WS_HM}")
            e("v_lshlrev_b32 v128, 4, v0")
        L = self.newlabel("g1l"); Lw = self.newlabel("g1lw"); Lb = self.newlabel("g1lb")
        def hook(per, fn):
            La = self.newlabel("g1a"); e(f"s_cmp_eq_u32 s67, {per}"); e(f"s_cbranch_scc0 {La}"); fn(); self.label(La)
        self.label(L)
        if side:
            hook(12, self.g1_side_poll_issue)
        e("s_cmp_ge_u32 s67, 14")
        e(f"s_cbranch_scc1 {Lw}")
        self.g1_next_k()
        self.g1_issue_w(64, 65)
        self.g1_issue_t(64, 66)
        e(f"s_add_u32 s64, s64, {STG}")
        e(f"s_cmp_eq_u32 s64, {3*STG}")
        e("s_cselect_b32 s64, 0, s64")
        def special(per, fn, cnt):
            La = self.newlabel("g1a"); e(f"s_cmp_eq_u32 s67, {per}"); e(f"s_cbranch_scc0 {La}")
            if fn: fn()
            e(f"s_waitcnt vmcnt({cnt})"); e(f"s_branch {Lb}"); self.label(La)
        if side: special(13, self.g1_side_loads, 23)
        if sent:
            special(0, lambda: self.g1_sent_store(), 12)
            La = self.newlabel("g1s8")
            e("s_cmp_lt_u32 s67, 8"); e(f"s_cbranch_scc0 {La}")
            self.g1_sent_store()
            e("s_waitcnt vmcnt(13)")
            if side:
                def pub8():
                    Lp = self.newlabel("g1pub")
                    e(f"s_cmp_eq_u32 {s(S_WV)}, 4"); e(f"s_cbranch_scc0 {Lp}"); self.publish(4); self.label(Lp)
                hook(3, pub8)
            e(f"s_branch {Lb}")
            self.label(La)
        e("s_waitcnt vmcnt(11)")
        if side and not sent:
            def pub():
                Lp = self.newlabel("g1pub")
                e(f"s_cmp_eq_u32 {s(S_WV)}, 4"); e(f"s_cbranch_scc0 {Lp}"); self.publish(4); self.label(Lp)
            hook(3, pub)
        e(f"s_branch {Lb}")
        self.label(Lw)
        L15 = self.newlabel("g1l15")
        e("s_cmp_eq_u32 s67, 14")
        e(f"s_cbranch_scc0 {L15}")
        e("s_waitcnt vmcnt(%d)" % (12 if side else 0))
        e(f"s_branch {Lb}")
        self.label(L15)
        e("s_waitcnt vmcnt(0)")
        if side: self.g1_side_final_tok()
        self.label(Lb)
        e("s_barrier")
        e("s_add_u32 s67, s67, 1")
        e("s_cmp_lt_u32 s67, 16")
        e(f"s_cbranch_scc1 {L}")

    def g1_sent_store(self):
        self.e(f"buffer_store_dwordx4 v[132:135], v128, {s(SRD_WS,4)}, s89 offen sc1")
        self.e("s_add_u32 s89, s89, 1024")

    def g1_dep_wait(self):
        if "c" in self.o["phases"]: self.wait_all(3, wave=4)
        else: self.e("s_barrier")

    G1_X, G1_Y, G1_ACC = 8, 52, 96
    def g1_frag_reads(self, base, u):
        r = []
        def wread(ft):
            areg = 2 if ft % 2 == 0 else 3
            return [f"ds_read_b64_tr_b16 {v(base + 4*ft + 2*h, 2)}, {v(areg)} offset:{32*ft + u*32*448 + h*4*448}" for h in range(2)]
        def tread(tt):
            return [f"ds_read_b64_tr_b16 {v(base + 28 + 4*tt + 2*h, 2)}, {v(4+tt)} offset:{u*8192 + h*1024}" for h in range(2)]
        for tt in range(4): r += tread(tt)
        for ft in range(7): r += wread(ft)
        return r

    def g1_half(self, mf_base, rd_base, rd_u, first=False, mfma=True, reads=True, tail=(), waits=None):
        e = self.e
        rds = self.g1_frag_reads(rd_base, rd_u) if (reads and not self.o.get("g1_noreads")) else []
        if self.o.get("g1_nomfma"): mfma = False
        mf = []
        if mfma:
            for ft in range(7):
                for tt in range(4):
                    a = self.G1_ACC + (ft * 4 + tt) * 4
                    c = "0" if first else v(a, 4)
                    mf.append(f"v_mfma_f32_16x16x32_bf16 {v(a,4)}, {v(mf_base + 4*ft, 4)}, {v(mf_base + 28 + 4*tt, 4)}, {c}")
        fill = list(rds) + list(tail)
        i = 0
        for k, m in enumerate(mf):
            if waits and k in waits: e(waits[k])
            e(m)
            if i < len(fill): e(fill[i]); i += 1
        while i < len(fill): e(fill[i]); i += 1

    def g1_compute_setup(self):
        e = self.e
        e(f"s_lshr_b32 s58, {s(S_WV)}, 1      ; wf")
        e(f"s_and_b32 s59, {s(S_WV)}, 1       ; wt")
        e("v_lshrrev_b32 v13, 4, v0          ; g")
        e("v_and_b32 v14, 15, v0")
        e("v_lshrrev_b32 v15, 2, v14         ; r")
        e("v_and_b32 v16, 3, v14             ; c")
        e("v_lshl_add_u32 v17, v13, 3, v15   ; row = 8g + r")
        e("v_and_b32 v18, 1, v13             ; g&1")
        e("v_mul_u32_u24 v19, 448, v17")
        e("v_lshl_add_u32 v19, v16, 3, v19")
        e("s_mul_i32 s57, s58, 224           ; 32*7*wf")
        e(f"s_add_u32 s57, s57, {self.G1_W}")
        e("v_add_u32 v19, s57, v19")
        e("v_lshlrev_b32 v20, 5, v18         ; 32*(g&1)")
        e("v_add_u32 v21, v19, v20")
        e("v_sub_u32 v22, v19, v20")
        e("s_cmp_eq_u32 s58, 0")
        e("s_cselect_b64 vcc, -1, 0")
        e("v_cndmask_b32 v2, v22, v21, vcc")
        e("v_cndmask_b32 v3, v21, v22, vcc")
        e("v_lshl_or_b32 v20, v18, 2, v15    ; f(row)")
        e("v_lshlrev_b32 v21, 8, v17")
        e("v_lshl_add_u32 v21, v16, 3, v21")
        e("s_lshl_b32 s57, s59, 2            ; 4*wt")
        for tt in range(4):
            e(f"s_add_u32 s56, s57, {tt}")
            e("v_xor_b32 v22, s56, v20")
            e(f"v_lshl_add_u32 {v(4+tt)}, v22, 5, v21")

    def g1_compute(self):
        e = self.e
        X, Y = self.G1_X, self.G1_Y
        STG = self.G1_STG
        self.g1_compute_setup()
        side = not self.o.get("g1_noside")
        for r in range(4): e(f"v_mov_b32 {v(224+r)}, 0x3f803f80")
        e("s_barrier                        ; W(r) resident")
        self.g1_dep_wait()
        e("s_barrier                        ; B_0")
        self.stamp("g1_loop")
        def adv(delta):
            return [f"v_add_u32 {v(r)}, {delta & 0xffffffff:#x}, {v(r)}" for r in range(2, 8)]
        W5 = {0: "s_waitcnt lgkmcnt(4)", 20: "s_waitcnt lgkmcnt(15)"}
        for r in self.g1_frag_reads(X, 0): e(r)
        e("s_waitcnt lgkmcnt(0)")
        self.g1_half(X, Y, 1, first=True, tail=adv(STG))
        if side: self.g1_tok_mfma(X, True)
        e("s_waitcnt lgkmcnt(0)")
        if side:
            self.g1_tok_mfma(Y, False)
            self.g1_tok_store()
        e("s_barrier                        ; B_1")
        e("s_mov_b32 s67, 0")
        L = self.newlabel("g1c")
        self.label(L)
        for k in range(3):
            delta = STG if k != 1 else -2 * STG
            self.g1_half(Y, X, 0)
            tail = adv(delta)
            if k == 2: tail = tail[:5] + ["s_add_u32 s67, s67, 1"] + tail[5:]
            self.g1_half(X, Y, 1, tail=tail, waits=(W5 if not self.o.get("g1_noreads") else None))
            if k == 2: e("s_cmp_lt_u32 s67, 5")
            e("s_waitcnt vmcnt(0) lgkmcnt(0)" if k == 1 else "s_waitcnt lgkmcnt(0)")
            e("s_barrier")
            if self.o.get("per_stamps"):
                e("s_memrealtime s[100:101]")
                e("s_mul_i32 s98, s67, 3")
                e(f"s_add_u32 s98, s98, {k + (0 if k < 2 else -3)}")
                e("s_mov_b32 m0, s98")
                e("s_waitcnt lgkmcnt(0)")
                e("v_writelane_b32 v252, s100, m0")
                if k == 2: e("s_cmp_lt_u32 s67, 5")
        e(f"s_cbranch_scc1 {L}")
        self.g1_half(Y, None, 0, reads=False)
        if self.o.get("per_stamps"):
            e("s_lshl_b32 s98, s2, 8")
            e(f"s_add_u32 s98, s98, {WS_STAMP + 65536}")
            e("v_lshlrev_b32 v251, 2, v0")
            e("v_add_u32 v251, s98, v251")
            Lq = self.newlabel("pst")
            e(f"s_cmp_lg_u32 {s(S_WV)}, 0"); e(f"s_cbranch_scc1 {Lq}")
            e(f"buffer_store_dword v252, v251, {s(SRD_WS,4)}, 0 offen")
            self.label(Lq)
        self.stamp("g1_loopend")

    def g1_epilogue(self):
        e = self.e
        ACC = self.G1_ACC
        own = "g2" in self.o["phases"]
        e("v_and_b32 v2, 15, v0               ; n")
        e("v_lshrrev_b32 v3, 4, v0            ; g / rho")
        e("s_lshl_b32 s56, s59, 9")
        e(f"s_add_u32 s56, s56, {self.G1_AST}")
        e("v_lshl_add_u32 v4, v2, 3, s56")
        AS = 8
        for tt in range(4): e(f"ds_read_b64 {v(AS+2*tt,2)}, v4 offset:{128*tt}")
        e("s_mul_i32 s56, s58, 448")
        e(f"s_add_u32 s56, s56, {self.G1_CS}")
        e("v_lshl_add_u32 v5, v3, 4, s56")
        CB = 16
        for ft in range(7):
            e(f"ds_read_b128 {v(CB+8*ft,4)}, v5 offset:{64*ft}")
            e(f"ds_read_b128 {v(CB+8*ft+4,4)}, v5 offset:{64*ft + self.G1_B1 - self.G1_CS}")
        c2 = -2.0 * 0.7978845608028654 * 1.4426950408889634
        c1 = c2 * 0.044715
        import struct
        fb = lambda x: "0x%08x" % struct.unpack("<I", struct.pack("<f", x))[0]
        C1, C2, ONE = 72, 74, 76
        for r, val in ((C1, c1), (C2, c2), (ONE, 1.0)):
            e(f"v_mov_b32 {v(r)}, {fb(val)}"); e(f"v_mov_b32 {v(r+1)}, {fb(val)}")
        e("v_and_b32 v79, 1, v3               ; rho&1")
        e("v_lshrrev_b32 v81, 1, v3           ; rho>>1")
        e("v_lshl_add_u32 v80, v79, 1, v81")
        e("v_lshlrev_b32 v80, 11, v80")
        e("v_lshl_add_u32 v82, v2, 4, v80")
        e("s_lshl_b32 s56, s58, 1")
        e("v_add_u32 v80, s56, v81")
        e("v_lshlrev_b32 v80, 11, v80")
        e("v_lshl_add_u32 v80, v79, 8, v80")
        e("v_lshl_add_u32 v83, v2, 4, v80")
        e("s_mul_i32 s62, s60, 112")
        e("s_mul_i32 s56, s61, 7")
        e("s_add_u32 s62, s62, s56")
        e("s_lshl_b32 s62, s62, 13")
        e("s_lshl_b32 s56, s59, 10")
        e("s_add_u32 s62, s62, s56")
        e(f"s_add_u32 s62, s62, {WS_HM}")
        e("s_mul_i32 s56, s58, 3*8192")
        e("s_add_u32 s63, s62, s56")
        if own:
            for fp in range(3):
                e("s_mul_i32 s56, s58, 3")
                e(f"s_add_u32 s56, s56, {fp}")
                e("s_lshr_b32 s57, s56, 1")
                e("s_lshl_b32 s57, s57, 15")
                e("s_and_b32 s56, s56, 1")
                e("s_lshl_b32 s56, s56, 13")
                e("s_add_u32 s56, s56, s57")
                e("s_lshl_b32 s57, s59, 10")
                e("s_add_u32 s56, s56, s57")
                e(f"v_add_u32 {v(84+fp)}, s56, v82")
        e("s_waitcnt lgkmcnt(0)")
        def gelu_tile(ft, tt, out, T):
            a = ACC + (ft*4 + tt)*4
            cs, b1 = CB + 8*ft, CB + 8*ft + 4
            A = AS + 2*tt
            for h in range(2):
                e(f"v_pk_fma_f32 {v(T+2*h,2)}, {v(A,2)}, {v(cs+2*h,2)}, {v(b1+2*h,2)} op_sel:[1,0,0] op_sel_hi:[1,1,1] neg_lo:[1,0,0] neg_hi:[1,0,0]")
            for h in range(2):
                e(f"v_pk_fma_f32 {v(a+2*h,2)}, {v(A,2)}, {v(a+2*h,2)}, {v(T+2*h,2)} op_sel:[0,0,0] op_sel_hi:[0,1,1]")
            for h in range(2): e(f"v_pk_mul_f32 {v(T+2*h,2)}, {v(a+2*h,2)}, {v(a+2*h,2)}")
            for h in range(2): e(f"v_pk_fma_f32 {v(T+2*h,2)}, {v(T+2*h,2)}, {v(C1,2)}, {v(C2,2)}")
            for h in range(2): e(f"v_pk_mul_f32 {v(T+2*h,2)}, {v(T+2*h,2)}, {v(a+2*h,2)}")
            for r in range(4): e(f"v_exp_f32 {v(T+r)}, {v(T+r)}")
            for h in range(2): e(f"v_pk_add_f32 {v(T+2*h,2)}, {v(T+2*h,2)}, {v(ONE,2)}")
            for r in range(4): e(f"v_rcp_f32 {v(T+r)}, {v(T+r)}")
            for h in range(2): e(f"v_pk_mul_f32 {v(a+2*h,2)}, {v(a+2*h,2)}, {v(T+2*h,2)}")
            for h in range(2): e(f"v_cvt_pk_bf16_f32 {v(out+h)}, {v(a+2*h)}, {v(a+2*h+1)}")
        aux = self.o.get('hm_aux', 'sc1')
        k = 0
        for fp in range(3):
            for tt in range(4):
                O = 208 + 4 * (k & 1); T = 216 + 4 * (k & 1); k += 1
                gelu_tile(2*fp, tt, O, T)
                gelu_tile(2*fp + 1, tt, O + 2, T)
                e(f"v_permlane16_swap_b32 {v(O)}, {v(O+2)}")
                e(f"v_permlane16_swap_b32 {v(O+1)}, {v(O+3)}")
                e(f"s_add_u32 s56, s63, {fp*8192 + tt*256}")
                e(f"buffer_store_dwordx4 {v(O,4)}, v82, {s(SRD_WS,4)}, s56 offen {aux}")
                if own: e(f"ds_write_b128 {v(84+fp)}, {v(O,4)} offset:{tt*256}")
        for tp in range(2):
            O = 208 + 4 * (k & 1); T = 216 + 4 * (k & 1); k += 1
            gelu_tile(6, 2*tp, O, T)
            gelu_tile(6, 2*tp + 1, O + 2, T)
            e(f"v_permlane16_swap_b32 {v(O)}, {v(O+2)}")
            e(f"v_permlane16_swap_b32 {v(O+1)}, {v(O+3)}")
            e(f"s_add_u32 s56, s62, {6*8192 + 2*tp*256}")
            e(f"buffer_store_dwordx4 {v(O,4)}, v83, {s(SRD_WS,4)}, s56 offen {aux}")

    def g1(self):
        e = self.e
        own = "g2" in self.o["phases"]
        self.g1_ids()
        Lc = self.newlabel("g1comp"); Le = self.newlabel("g1end")
        e(f"s_cmp_lt_u32 {s(S_WV)}, 4")
        e(f"s_cbranch_scc1 {Lc}")
        self.g1_loader()
        if not self.o.get("g1_noside"): self.g1_side_final_col()
        e("s_barrier")
        e(f"s_branch {Le}")
        self.label(Lc)
        self.g1_compute()
        e("s_barrier                        ; H")
        self.g1_epilogue()
        self.stamp("g1_epi")
        if not own:
            e("s_waitcnt vmcnt(0)")
        self.label(Le)
        if not own:
            e("s_barrier")
            L = self.newlabel("g1sig")
            e(f"s_cmp_lg_u32 {s(S_WV)}, 0")
            e(f"s_cbranch_scc1 {L}")
            self.publish(5)
            self.label(L)

    G2_STG = 32768
    G2_NBUF = 5
    G2_RES = 98304

    def g2_b2_load(self):
        e = self.e
        self.srd(SRD_A, S_B2, D_ * 2)
        e(f"s_lshr_b32 s56, {s(S_XI)}, 1")
        e("s_lshl_b32 s56, s56, 2")
        e(f"s_lshr_b32 s57, {s(S_J)}, 3")
        e("s_add_u32 s56, s56, s57")
        e("s_and_b32 s56, s56, 7            ; db")
        e(f"s_lshr_b32 s57, {s(S_WV)}, 1     ; wd")
        self.g2_dbh(56, 56, 57)
        e("s_lshl_b32 s56, s56, 8")
        e("s_lshl_b32 s57, s57, 7")
        e("s_add_u32 s56, s56, s57")
        e("v_lshrrev_b32 v234, 4, v0")
        e("v_lshl_add_u32 v242, v234, 3, s56")
        for dt in range(4): e(f"buffer_load_dwordx2 {v(234+2*dt,2)}, v242, {s(SRD_A,4)}, 0 offen offset:{32*dt}")

    def g2_dbh(self, dst, sdb, shalf):
        e = self.e
        if self.o.get("g2_mix", False):
            e(f"s_add_u32 {s(dst)}, {s(sdb)}, {s(shalf)}")
            e(f"s_and_b32 {s(dst)}, {s(dst)}, 7")
        else:
            e(f"s_mov_b32 {s(dst)}, {s(sdb)}")

    def g2_ids(self):
        e = self.e
        e(f"s_and_b32 s56, {s(S_XI)}, 1")
        e("s_lshl_b32 s56, s56, 3")
        e(f"s_and_b32 s57, {s(S_J)}, 7")
        e("s_add_u32 s60, s56, s57          ; mb")
        e(f"s_lshr_b32 s56, {s(S_XI)}, 1")
        e("s_lshl_b32 s56, s56, 2")
        e(f"s_lshr_b32 s57, {s(S_J)}, 3")
        e("s_add_u32 s56, s56, s57          ; n'")
        e("s_and_b32 s61, s56, 7            ; db")
        e("s_lshr_b32 s69, s56, 3           ; kh")

    def g2_issue_w(self, sbuf, sk):
        e = self.e
        e(f"s_add_u32 m0, {s(sbuf)}, s63")
        for ii in range(4):
            e(f"buffer_load_dwordx4 {v(6+ii)}, {s(SRD_B,4)}, {s(sk)} offen lds")
            if ii < 3: e("s_add_u32 m0, m0, 1024")

    def g2_issue_t(self, sbuf):
        e = self.e
        e("s_mul_i32 s56, s85, 7")
        e("s_add_u32 s56, s56, s84")
        e("s_lshl_b32 s56, s56, 13")
        e("s_add_u32 s66, s90, s56")
        e(f"s_add_u32 m0, {s(sbuf)}, s62")
        for ii in range(4):
            e(f"buffer_load_dwordx4 v2, {s(SRD_WS,4)}, s66 offen sc1 lds")
            if ii < 3:
                e("s_add_u32 m0, m0, 1024"); e("s_add_u32 s66, s66, 1024")

    def g2_w_off(self):
        e = self.e
        e("s_lshl_b32 s56, s84, 1")
        e("s_add_u32 s56, s56, s87          ; 2q + half")
        e("s_cmp_ge_u32 s84, 3")
        e("s_addc_u32 s56, s56, 0")
        e("s_mul_i32 s57, s87, 7")
        e("s_add_u32 s57, s57, 6            ; half ? 13 : 6")
        e("s_cmp_eq_u32 s84, 6")
        e("s_cselect_b32 s56, s57, s56")
        e("s_lshl_b32 s56, s56, 4")
        e("s_add_u32 s56, s56, s86")
        e("s_lshl_b32 s65, s56, 11")

    def g2_adv(self, own=False):
        e = self.e
        if own:
            e("s_add_u32 s84, s84, 2")
        else:
            e("s_add_u32 s91, s91, 2")
            self.g2_pos()
        e("s_lshl_b32 s56, s69, 3")
        e("s_add_u32 s56, s56, s85")
        e("s_mul_i32 s86, s56, 224")
        self.g2_w_off()

    def g2_pos(self):
        e = self.e
        e("s_mul_i32 s56, s61, 7")
        e("s_cmp_ge_u32 s91, s56")
        e("s_cselect_b32 s56, 6, 0")
        e("s_add_u32 s56, s56, s91          ; Q")
        e("s_mul_i32 s85, s56, 9363")
        e("s_lshr_b32 s85, s85, 16")
        e("s_mul_i32 s57, s85, 7")
        e("s_sub_u32 s84, s56, s57")

    def g2_loader_pre(self):
        e = self.e
        self.g2_ids()
        self.srd(SRD_B, S_W2, F_ * D_ * 2)
        e(f"s_sub_u32 s58, {s(S_WV)}, 4       ; lw")
        e("v_lshrrev_b32 v13, 4, v0")
        e("v_and_b32 v14, 15, v0")
        e("v_lshrrev_b32 v15, 1, v14")
        e("v_and_b32 v16, 1, v14")
        e("v_xor_b32 v15, v15, v13")
        e("v_lshlrev_b32 v17, 11, v13")
        e("v_lshl_add_u32 v17, v16, 4, v17")
        e("s_lshl_b32 s59, s61, 8            ; db*256")
        e("v_add_u32 v17, s59, v17")
        if self.o.get("g2_mix", False):
            e("s_add_u32 s56, s61, 1")
            e("s_and_b32 s56, s56, 7")
            e("s_sub_u32 s56, s56, s61")
            e("s_lshl_b32 s56, s56, 8")
        else:
            e("s_mov_b32 s56, 0")
        for ii in range(4):
            x4 = 4 if (ii >> 1) & 1 else 0
            e(f"v_xor_b32 v18, {x4}, v15")
            e("v_lshrrev_b32 v19, 2, v18")
            e("v_mul_lo_u32 v19, v19, s56")
            e("v_lshl_add_u32 v18, v18, 5, v17")
            e("v_add_u32 v18, v18, v19")
            e(f"v_add_u32 {v(6+ii)}, {ii*4*2048}, v18")
        e("v_lshlrev_b32 v2, 4, v0")
        e("s_lshl_b32 s62, s58, 12")
        e(f"s_add_u32 s63, s62, 16384")
        e("s_mov_b32 s85, s61               ; local block = db: start with this workgroup's own G1 tile")
        e("s_lshl_b32 s86, s69, 3")
        e("s_add_u32 s86, s86, s85")
        e("s_mul_i32 s86, s86, 224")
        e("s_lshr_b32 s84, s58, 1           ; q = lw>>1")
        e("s_and_b32 s87, s58, 1            ; half")
        self.g2_w_off()
        e("s_mul_i32 s90, s60, 112")
        e("s_mul_i32 s56, s69, 56")
        e("s_add_u32 s90, s90, s56")
        e("s_lshl_b32 s90, s90, 13")
        e("s_lshl_b32 s56, s87, 12")
        e("s_add_u32 s90, s90, s56")
        e(f"s_add_u32 s90, s90, {WS_HM}")

    def g2_loader(self):
        e = self.e
        STG = self.G2_STG
        self.g2_loader_pre()
        e("s_mov_b32 s64, 0")
        def to_shared():
            e("s_lshr_b32 s91, s58, 1")
            e("s_sub_u32 s91, s91, 2")
            self.g2_adv()
        if self.o.get("w2_late", False):
            self.g2_issue_w(64, 65)
            self.g2_adv(own=True)
            e("s_waitcnt vmcnt(0)")
            e("s_barrier                        ; A = B_0")
            for st in range(1, 3):
                e(f"s_add_u32 s64, s64, {STG}")
                self.g2_issue_w(64, 65)
                if st == 1: self.g2_adv(own=True)
            e(f"s_add_u32 s64, s64, {STG}")
            to_shared()
        else:
            for st in range(3):
                self.g2_issue_w(64, 65)
                if st < 2: self.g2_adv(own=True)
                e(f"s_add_u32 s64, s64, {STG}")
            to_shared()
            e("s_waitcnt vmcnt(8)")
            e("s_barrier                        ; A = B_0")
        e("s_waitcnt vmcnt(4)")
        e("s_barrier")
        self.stamp("g2_b1")
        Lp = self.newlabel("g2pub")
        e(f"s_cmp_eq_u32 {s(S_WV)}, 4"); e(f"s_cbranch_scc0 {Lp}"); self.publish(5); self.label(Lp)
        e("s_waitcnt vmcnt(0)")
        e("s_barrier                        ; B_2")
        e("v_and_b32 v20, 7, v0")
        e("s_lshl_b32 s56, s69, 3")
        e("v_add_u32 v21, s56, v20")
        e("v_mov_b32 v20, s60")
        self.wg_of(40, 20, 21, 26)
        e("s_xor_b32 s56, s2, 4")
        e("v_mov_b32 v20, s56")
        e("v_bfe_u32 v21, v0, 3, 1")
        e("v_cmp_eq_u32 vcc, 1, v21")
        e("v_cndmask_b32 v40, v40, v20, vcc")
        self.flag_addr(40, 26)
        if not self.o.get("nosync"):
            e("s_mov_b64 exec, 0xffff")
            self.poll_addr(5, 40, 41)
            e("s_mov_b64 exec, -1")
        self.stamp("g2_dep")
        for st in range(3, 7):
            self.g2_issue_t(64)
            self.g2_issue_w(64, 65)
            self.g2_adv()
            e(f"s_add_u32 s64, s64, {STG}")
            e(f"s_cmp_eq_u32 s64, {5*STG}")
            e("s_cselect_b32 s64, 0, s64")
        e("s_waitcnt vmcnt(24)")
        e("s_barrier                        ; B_3")
        self.stamp("g2_b3")
        e("s_mov_b32 s67, 3")
        pre = self.o.get("prealloc", False)
        if pre:
            self.srd(SRD_A, S_OUT, S_ * D_ * 2)
            e("s_and_b32 s56, s58, 1")
            e("s_lshl_b32 s56, s56, 6")
            e("s_lshl_b32 s57, s60, 7")
            e("s_add_u32 s56, s56, s57")
            e("s_lshl_b32 s57, s69, 5")
            e("s_add_u32 s56, s56, s57")
            e("v_lshrrev_b32 v22, 3, v0")
            e("v_add_u32 v22, s56, v22")
            e("v_lshlrev_b32 v22, 11, v22")
            e("v_and_b32 v23, 7, v0")
            e("v_lshl_add_u32 v22, v23, 4, v22")
            e("s_lshr_b32 s56, s58, 1")
            e("s_lshl_b32 s56, s56, 7")
            e("s_lshl_b32 s57, s61, 8")
            e("s_add_u32 s56, s56, s57")
            e("v_add_u32 v22, s56, v22")
        L = self.newlabel("g2l"); Lw = self.newlabel("g2lw"); Lb = self.newlabel("g2lb")
        def waits(cases):
            for per, cnt in cases:
                Ln = self.newlabel("g2w")
                e(f"s_cmp_eq_u32 s67, {per}")
                e(f"s_cbranch_scc0 {Ln}")
                e(f"s_waitcnt vmcnt({cnt})")
                e(f"s_branch {Lb}")
                self.label(Ln)
        self.label(L)
        if pre:
            Lo = self.newlabel("g2o")
            e("s_sub_u32 s56, s67, 4")
            e("s_cmp_lt_u32 s56, 4")
            e(f"s_cbranch_scc0 {Lo}")
            e("s_lshl_b32 s56, s56, 14          ; 8 rows * 2048")
            e(f"buffer_store_dwordx4 v[24:27], v22, {s(SRD_A,4)}, s56 offen sc1")
            self.label(Lo)
        e("s_cmp_ge_u32 s67, 24")
        e(f"s_cbranch_scc1 {Lw}")
        self.g2_issue_t(64)
        self.g2_issue_w(64, 65)
        self.g2_adv()
        e(f"s_add_u32 s64, s64, {STG}")
        e(f"s_cmp_eq_u32 s64, {5*STG}")
        e("s_cselect_b32 s64, 0, s64")
        e("s_waitcnt vmcnt(24)")
        e(f"s_branch {Lb}")
        self.label(Lw)
        Lw1 = self.newlabel("g2lw1")
        e("s_cmp_eq_u32 s67, 24")
        e(f"s_cbranch_scc0 {Lw1}")
        e("v_lshrrev_b32 v20, 2, v0")
        e("s_lshl_b32 s56, s58, 5")
        e("v_add_u32 v20, s56, v20")
        e("v_lshlrev_b32 v20, 8, v20          ; row*256")
        e("v_and_b32 v21, 3, v0")
        e("v_lshl_add_u32 v20, v21, 4, v20")
        e("s_lshr_b32 s57, s58, 1")
        self.g2_dbh(59, 61, 57)
        e("s_lshl_b32 s56, s60, 18")
        e("s_lshl_b32 s57, s59, 15            ; 128db'*256")
        e("s_add_u32 s56, s56, s57")
        e("s_lshl_b32 s57, s69, 6             ; 32kh*2")
        e("s_add_u32 s56, s56, s57")
        e(f"s_add_u32 s56, s56, {WS_HT}")
        for ii in range(4):
            wt, hh = ii >> 1, ii & 1
            e(f"s_add_u32 s57, s56, {wt*128 + hh*16*256}")
            e("s_lshl_b32 s59, s58, 11          ; 32lw*64")
            e(f"s_add_u32 m0, s59, {self.G2_RES + wt*8192 + hh*1024}")
            e(f"buffer_load_dwordx4 v20, {s(SRD_WS,4)}, s57 offen sc1 lds")
        e("s_waitcnt vmcnt(20)")
        e(f"s_branch {Lb}")
        self.label(Lw1)
        waits([(25, 12), (26, 4)])
        e("s_waitcnt vmcnt(0)")
        self.label(Lb)
        e("s_barrier")
        e("s_add_u32 s67, s67, 1")
        e("s_cmp_lt_u32 s67, 28")
        e(f"s_cbranch_scc1 {L}")

    G2_X, G2_Y, G2_ACC = 8, 40, 72
    def g2_frag_reads(self, base, u):
        r = []
        for tt in range(4): r.append(f"ds_read_b128 {v(base + 16 + 4*tt, 4)}, v6 offset:{u*8192 + tt*256}")
        for dt in range(4):
            for h in range(2):
                r.append(f"ds_read_b64_tr_b16 {v(base + 4*dt + 2*h, 2)}, {v(2+dt)} offset:{u*8192 + h*1024}")
        return r

    def g2_half(self, mf_base, rd_base, rd_u, first=False, reads=True, tail=(), waits=None):
        e = self.e
        rds = self.g2_frag_reads(rd_base, rd_u) if reads else []
        fill = list(rds) + list(tail)
        i = 0; k = 0
        for dt in range(4):
            for tt in range(4):
                a = self.G2_ACC + (dt*4 + tt)*4
                if waits and k in waits: e(waits[k])
                e(f"v_mfma_f32_16x16x32_bf16 {v(a,4)}, {v(mf_base + 4*dt, 4)}, {v(mf_base + 16 + 4*tt, 4)}, {'0' if first else v(a,4)}")
                if i < len(fill): e(fill[i]); i += 1
                k += 1
        while i < len(fill): e(fill[i]); i += 1

    def g2_compute(self):
        e = self.e
        X, Y, STG = self.G2_X, self.G2_Y, self.G2_STG
        self.g2_ids()
        e(f"s_lshr_b32 s58, {s(S_WV)}, 1      ; wd")
        e(f"s_and_b32 s59, {s(S_WV)}, 1       ; wt")
        e("v_lshrrev_b32 v13, 4, v0          ; g")
        e("v_and_b32 v14, 15, v0             ; n")
        e("v_lshrrev_b32 v15, 2, v14         ; r")
        e("v_and_b32 v16, 3, v14             ; c")
        e("v_lshl_add_u32 v17, v13, 3, v15   ; row = 8g + r")
        e("v_and_b32 v18, 1, v13")
        e("v_lshl_or_b32 v20, v18, 2, v15    ; f(row)")
        e("v_lshlrev_b32 v21, 8, v17")
        e("v_lshl_add_u32 v21, v16, 3, v21")
        e("v_add_u32 v21, 16384, v21")
        e("s_lshl_b32 s57, s58, 2            ; 4*wd")
        for dt in range(4):
            e(f"s_add_u32 s56, s57, {dt}")
            e("v_xor_b32 v22, s56, v20")
            e(f"v_lshl_add_u32 {v(2+dt)}, v22, 5, v21")
        e("v_lshlrev_b32 v22, 11, v13")
        e("v_lshl_add_u32 v22, v14, 4, v22")
        e("s_lshl_b32 s56, s59, 10")
        e("v_add_u32 v6, s56, v22")
        e("s_waitcnt lgkmcnt(0)")
        e("s_barrier                        ; A = B_0")
        self.stamp("g2_loop")
        e("s_mov_b32 s64, 0")
        e(f"s_mov_b32 s62, {STG}")
        e(f"s_mov_b32 s63, {(-4*STG) & 0xffffffff}")
        def adv():
            return ["s_add_u32 s64, s64, 1", "s_cmp_eq_u32 s64, 4"]
        def adv2():
            return [f"v_add_u32 {v(r)}, s65, {v(r)}" for r in range(2, 7)]
        pre = ["s_add_u32 s64, s64, 1", "s_cmp_eq_u32 s64, 5", "s_cselect_b32 s65, s63, s62", "s_cselect_b32 s64, 0, s64"]
        WX = {0: "s_waitcnt lgkmcnt(6)", 4: "s_waitcnt lgkmcnt(8)", 8: "s_waitcnt lgkmcnt(10)", 12: "s_waitcnt lgkmcnt(12)"}
        if self.o.get("g2_fullwait"): WX = {0: "s_waitcnt lgkmcnt(0)"}
        for r in self.g2_frag_reads(X, 0): e(r)
        for p in pre: e(p)
        e("s_waitcnt lgkmcnt(0)")
        self.g2_half(X, Y, 1, first=True, tail=adv2()[:4])
        e(adv2()[4])
        e("s_waitcnt vmcnt(0) lgkmcnt(0)")
        e("s_barrier                        ; B_1")
        e("s_mov_b32 s67, 0")
        L = self.newlabel("g2c")
        self.label(L)
        for k in range(3):
            self.g2_half(Y, X, 0, tail=pre)
            self.g2_half(X, Y, 1, tail=adv2()[:4], waits=WX)
            e(adv2()[4])
            if k == 2:
                e("s_add_u32 s67, s67, 1"); e("s_cmp_lt_u32 s67, 9")
            e("s_waitcnt lgkmcnt(0)")
            e("s_barrier")
        e(f"s_cbranch_scc1 {L}")
        self.g2_half(Y, None, 0, reads=False)
        self.stamp("g2_loopend")

    def g2_epilogue(self):
        e = self.e
        ACC = self.G2_ACC
        Lk = self.newlabel("g2k")
        e("s_cmp_eq_u32 s69, 0")
        e(f"s_cbranch_scc1 {Lk}")
        for dt in range(4):
            for r in range(8):
                a = ACC + dt*16 + r
                e(f"v_swap_b32 {v(a)}, {v(a+8)}")
        self.label(Lk)
        e("s_xor_b32 s56, s2, 4")
        e("s_lshl_b32 s56, s56, 15")
        e(f"s_lshl_b32 s57, {s(S_WV)}, 13")
        e("s_add_u32 s56, s56, s57")
        e(f"s_add_u32 s62, s56, {WS_EX}")
        e("v_lshlrev_b32 v8, 4, v0")
        for dt in range(4):
            for tk in range(2):
                i = dt*2 + tk
                e(f"s_add_u32 s56, s62, {1024*i}")
                e(f"buffer_store_dwordx4 {v(ACC + dt*16 + 8 + 4*tk, 4)}, v8, {s(SRD_WS,4)}, s56 offen sc1")
        e("v_lshrrev_b32 v13, 4, v0          ; g")
        e("v_and_b32 v14, 15, v0             ; n")
        e("v_lshrrev_b32 v15, 2, v14")
        e("v_and_b32 v16, 3, v14")
        e("v_lshl_add_u32 v17, v13, 2, v15   ; 4g + r")
        e("v_lshlrev_b32 v17, 6, v17")
        e("v_lshl_add_u32 v17, v16, 3, v17")
        e("s_lshl_b32 s56, s59, 13")
        e("s_lshl_b32 s57, s58, 12           ; 64wd*64")
        e("s_add_u32 s56, s56, s57")
        e(f"s_add_u32 s56, s56, {self.G2_RES}")
        e("v_add_u32 v17, s56, v17")
        RS = 168
        for dt in range(4):
            for tk in range(2):
                e(f"ds_read_b64_tr_b16 {v(RS + 2*(2*dt+tk), 2)}, v17 offset:{dt*16*64 + tk*32}")
        self.stamp("g2_sent")

    def g2_epilogue2(self):
        e = self.e
        ACC = self.G2_ACC; RS = 168; B2 = 234
        e("s_lshl_b32 s56, s2, 15")
        e(f"s_lshl_b32 s57, {s(S_WV)}, 13")
        e("s_add_u32 s56, s56, s57")
        e(f"s_add_u32 s62, s56, {WS_EX}")
        IN = 136
        for i in range(1, 8): e(f"s_add_u32 {s(80+i)}, s62, {1024*i}")
        e("s_mov_b32 s80, s62")
        self.srd(SRD_A, S_OUT, S_ * D_ * 2)
        e(f"s_lshl_b32 s56, {s(S_WV)}, 12")
        e("v_and_b32 v10, 1, v13")
        e("v_lshlrev_b32 v10, 1, v10")
        e("v_lshrrev_b32 v11, 1, v13")
        e("v_add_u32 v10, v10, v11")
        e("v_and_b32 v11, 7, v14")
        for dp in range(2):
            e(f"v_add_u32 v12, {4*dp}, v10")
            e("v_xor_b32 v12, v12, v11")
            e("v_lshlrev_b32 v12, 4, v12")
            e("v_lshl_add_u32 v12, v14, 7, v12")
            e(f"v_add_u32 {v(32+dp)}, s56, v12")
        e("v_lshrrev_b32 v11, 3, v0           ; l>>3")
        e("v_and_b32 v12, 7, v0")
        e("v_xor_b32 v10, v12, v11")
        e("v_lshlrev_b32 v10, 4, v10")
        e("v_lshl_add_u32 v10, v11, 7, v10")
        e("v_add_u32 v34, s56, v10")
        e("s_lshl_b32 s56, s60, 7")
        e("s_lshl_b32 s57, s59, 6")
        e("s_add_u32 s56, s56, s57")
        e("s_lshl_b32 s57, s69, 5")
        e("s_add_u32 s56, s56, s57")
        e("v_add_u32 v9, s56, v11")
        e("v_lshlrev_b32 v9, 11, v9")
        e("v_lshl_add_u32 v9, v12, 4, v9")
        self.g2_dbh(56, 61, 58)
        e("s_lshl_b32 s56, s56, 8")
        e("s_lshl_b32 s57, s58, 7")
        e("s_add_u32 s63, s56, s57")
        BF = 40
        for dt in range(4):
            self.unpack(BF+4*dt,   B2+2*dt,   0); self.unpack(BF+4*dt+1, B2+2*dt,   1)
            self.unpack(BF+4*dt+2, B2+2*dt+1, 0); self.unpack(BF+4*dt+3, B2+2*dt+1, 1)
        L = self.newlabel("g2in"); Lx = self.newlabel("g2inx")
        L1 = self.newlabel("g2w1"); L1x = self.newlabel("g2w1x")
        e("s_mov_b32 s57, 0x40000")
        e("s_mov_b32 exec_lo, 0"); e("s_mov_b32 exec_hi, 0x80000000")
        self.label(L1)
        e(f"buffer_load_dword v35, v8, {s(SRD_WS,4)}, s87 offen offset:12 sc1")
        e("s_sub_u32 s57, s57, 1")
        e("s_cmp_eq_u32 s57, 0")
        e(f"s_cbranch_scc1 {L1x}")
        e("s_waitcnt vmcnt(0)")
        e("v_cmp_eq_u32 vcc, -1, v35")
        e(f"s_cbranch_vccnz {L1}")
        self.label(L1x)
        e("s_waitcnt vmcnt(0)")
        e("s_mov_b64 exec, -1")
        e("s_mov_b32 s57, 0x40000")
        self.label(L)
        for i in range(8):
            e(f"buffer_load_dwordx4 {v(IN+4*i,4)}, v8, {s(SRD_WS,4)}, {s(80+i)} offen sc1")
        e("s_sub_u32 s57, s57, 1")
        e("s_cmp_eq_u32 s57, 0")
        e(f"s_cbranch_scc1 {Lx}")
        e("s_waitcnt vmcnt(0)")
        e(f"v_max_u32 v35, {v(IN)}, {v(IN+3)}")
        for i in range(1, 8):
            e(f"v_max3_u32 v35, v35, {v(IN+4*i)}, {v(IN+4*i+3)}")
        e("v_cmp_eq_u32 vcc, -1, v35")
        e(f"s_cbranch_vccnz {L}")
        self.label(Lx)
        e("s_waitcnt vmcnt(0) lgkmcnt(0)")
        self.stamp("g2_got")
        k = 0
        for tk in range(2):
            for dp in range(2):
                O = 56 + 4*(k & 1); k += 1
                for dd in range(2):
                    dt = 2*dp + dd
                    i = dt*2 + tk
                    a = ACC + dt*16 + 4*tk
                    T = 64
                    r0 = RS + 2*i
                    self.unpack(T, r0, 0); self.unpack(T+1, r0, 1); self.unpack(T+2, r0+1, 0); self.unpack(T+3, r0+1, 1)
                    for h in range(2):
                        e(f"v_pk_add_f32 {v(a+2*h,2)}, {v(a+2*h,2)}, {v(IN+4*i+2*h,2)}")
                        e(f"v_pk_add_f32 {v(T+2*h,2)}, {v(T+2*h,2)}, {v(BF+4*dt+2*h,2)}")
                        e(f"v_pk_add_f32 {v(a+2*h,2)}, {v(a+2*h,2)}, {v(T+2*h,2)}")
                        e(f"v_cvt_pk_bf16_f32 {v(O+2*dd+h)}, {v(a+2*h)}, {v(a+2*h+1)}")
                e(f"v_permlane16_swap_b32 {v(O)}, {v(O+2)}")
                e(f"v_permlane16_swap_b32 {v(O+1)}, {v(O+3)}")
                e(f"ds_write_b128 {v(32+dp)}, {v(O,4)} offset:{tk*2048}")
        e("s_waitcnt lgkmcnt(0)")
        for i in range(4): e(f"ds_read_b128 {v(72+4*i,4)}, v34 offset:{1024*i}")
        for i in range(4):
            e(f"s_add_u32 s56, s63, {i*8*2048}")
            e(f"s_waitcnt lgkmcnt({3-i})")
            e(f"buffer_store_dwordx4 {v(72+4*i,4)}, v9, {s(SRD_A,4)}, s56 offen {self.o.get('out_aux', '')}")

    def g2(self):
        e = self.e
        Lc = self.newlabel("g2comp"); Le = self.newlabel("g2end")
        e(f"s_cmp_lt_u32 {s(S_WV)}, 4")
        e(f"s_cbranch_scc1 {Lc}")
        self.g2_loader()
        L0 = self.newlabel("g2ep")
        e(f"s_cmp_lg_u32 {s(S_WV)}, 4")
        e(f"s_cbranch_scc1 {L0}")
        e("s_cmp_lg_u32 s2, 0")
        e(f"s_cbranch_scc1 {L0}")
        e(f"v_mov_b32 v254, {s(S_EP)}")
        e(f"v_mov_b32 v255, {WS_EPOCH}")
        e("s_mov_b64 exec, 1")
        e(f"buffer_store_dword v254, v255, {s(SRD_WS,4)}, 0 offen sc1")
        e("s_mov_b64 exec, -1")
        self.label(L0)
        e(f"s_branch {Le}")
        self.label(Lc)
        self.g2_compute()
        self.g2_epilogue()
        self.g2_epilogue2()
        self.label(Le)

    def finish(self):
        self.label("L_end")
        self.e("s_endpgm")

def wrap(body, lds=LDS_BYTES):
    hdr = f"""; Kernarg layout for this problem (112 bytes, ptrs only, base s[0:1]):
;
; One persistent launch, 256 workgroups (one per CU) x 8 waves, four phases handed over through d_ws
; @launch grid=(256,1,1) block=(512,1,1) lds={lds}
.amdgcn_target "amdgcn-amd-amdhsa--gfx950"
.text
.globl {KNAME}
.p2align 8
.type {KNAME},@function
{KNAME}:
"""
    tail = f"""
.section .rodata,"a"
.p2align 6
.amdhsa_kernel {KNAME}
  .amdhsa_next_free_vgpr 256
  .amdhsa_next_free_sgpr 102
  .amdhsa_accum_offset 256
  .amdhsa_group_segment_fixed_size 0
  .amdhsa_kernarg_size 112
  .amdhsa_user_sgpr_count 2
  .amdhsa_user_sgpr_kernarg_segment_ptr 1
  .amdhsa_system_sgpr_workgroup_id_x 1
  .amdhsa_float_denorm_mode_32 3
.end_amdhsa_kernel
"""
    return hdr + body + tail

def build(opts, ret_g=False):
    g = G(opts)
    g.prologue()
    g.stamp("start", defer=True)
    ph = opts["phases"]
    if "p" in ph:
        g.phase_p()
    else:
        g.epoch_ready()
    if "c" in ph:
        g.phase_c()
        g.stamp("c_end")
        g.signal(3, pf_w2=opts.get("prefetch_w", True))
        g.stamp("c_sig")
    if "g1" in ph:
        g.g1()
        g.stamp("g1_end")
    if "g2" in ph:
        g.g2()
        g.stamp("g2_end")
    g.stamp_flush()
    g.finish()
    src = wrap(g.finalize())
    return (src, g) if ret_g else src

if __name__ == "__main__":
    out = build(dict(phases=["p", "c", "g1", "g2"]))
    path = sys.argv[1] if len(sys.argv) > 1 else "sequential_preLN__ssm_conv_h3__mixer_channel_mlp__prompt.s"
    open(path, "w").write(out)
    print("wrote", path, len(out))
```

```python
import sys
from asmb import Asm, v, s

KNAME = "sequential_preLN__ssm_conv_h3__mixer_channel_mlp__prompt_kernel"
S_, D_, F_ = 2048, 1024, 3584

WS_FLAGS = 0
WS_EPOCH = 32768
WS_ST    = 65536
WS_TSP   = 131072
WS_CSP   = 393216
WS_STAMP = 786432
WS_XR    = 1 << 20
WS_XT    = 5 << 20
WS_HT    = 9 << 20
WS_HM    = 13 << 20
WS_EX    = 28 << 20
WS_SIZE  = 64 << 20

S_X, S_K, S_V, S_SH, S_SSMK, S_SSMD, S_BX, S_W1 = 8, 10, 12, 14, 16, 18, 20, 22
S_B1, S_W2, S_B2, S_OUT = 24, 26, 28, 30
S_DBG, S_WS = 32, 34
SRD_WS, SRD_A, SRD_B, SRD_C = 36, 40, 44, 48
S_WV, S_XI, S_J, S_EP = 52, 53, 54, 55

LDS_BYTES = 163840

class G(Asm):
    def __init__(self, opts):
        super().__init__()
        self.o = opts
        self.stamp_names = []
        self.deferred = []
        self.nt = " nt" if opts.get("nt", False) else ""

    def srd(self, dst, ptr, nbytes):
        self.e(f"s_mov_b32 {s(dst)}, {s(ptr)}")
        self.e(f"s_mov_b32 {s(dst+1)}, {s(ptr+1)}")
        self.e(f"s_mov_b32 {s(dst+2)}, {nbytes}")
        self.e(f"s_mov_b32 {s(dst+3)}, 0x20000")

    def stamp(self, name, defer=False):
        if not self.o.get("stamps"): return
        if name in self.stamp_names: i = self.stamp_names.index(name)
        else:
            i = len(self.stamp_names)
            assert i < 32
            self.stamp_names.append(name)
        op = 's_memtime' if self.o.get('cyc') else 's_memrealtime'
        if defer:
            k = len(self.deferred)
            assert k < 5
            self.deferred.append((i, 70 + 2*k))
            self.e(f"{op} s[{70+2*k}:{71+2*k}]")
            return
        self.e(f"{op} s[100:101]")
        self.e("s_waitcnt lgkmcnt(0)")
        self.e(f"v_writelane_b32 v253, s100, {i}")

    def stamp_commit(self):
        if not self.o.get("stamps"): return
        self.e("s_waitcnt lgkmcnt(0)")
        for i, r in self.deferred: self.e(f"v_writelane_b32 v253, s{r}, {i}")
        self.deferred = []

    def tick(self, i): pass
    def tick_flush(self, n): pass

    def stamp_flush_debug(self):
        e = self.e
        sel = self.o["dbg_sel"]
        self.srd(SRD_A, S_DBG, 256)
        for wave in (0, 4):
            L = self.newlabel("dbgf")
            e(f"s_cmp_lg_u32 {s(S_WV)}, {wave}")
            e(f"s_cbranch_scc1 {L}")
            for i, (nm, w) in enumerate(sel):
                if w != wave: continue
                idx = self.stamp_names.index(nm)
                e(f"v_readlane_b32 s98, v253, {idx}")
                if nm == "start": e("s_not_b32 s98, s98")
                e("v_mov_b32 v254, s98")
                e(f"v_mov_b32 v255, {4*i}")
                e("s_mov_b64 exec, 1")
                e(f"buffer_atomic_umax v254, v255, {s(SRD_A,4)}, 0 offen")
                e("s_mov_b64 exec, -1")
            self.label(L)

    def stamp_flush(self):
        if not self.o.get("stamps"): return
        if self.o.get("dbg_sel"): return self.stamp_flush_debug()
        L = self.newlabel("tf")
        self.e(f"s_and_b32 s98, {s(S_WV)}, 3")
        self.e("s_cmp_lg_u32 s98, 0")
        self.e(f"s_cbranch_scc1 {L}")
        self.e(f"s_lshl_b32 s98, s2, 8")
        self.e(f"s_lshl_b32 s99, {s(S_WV)}, 5")
        self.e("s_add_u32 s98, s98, s99")
        self.e(f"s_add_u32 s98, s98, {WS_STAMP}")
        self.e("v_lshlrev_b32 v255, 2, v0")
        self.e("v_add_u32 v255, s98, v255")
        self.e("s_mov_b32 exec_hi, 0")
        self.e(f"buffer_store_dword v253, v255, {s(SRD_WS,4)}, 0 offen")
        self.e("s_mov_b64 exec, -1")
        self.label(L)

    def prologue(self):
        e = self.e
        e("s_cmp_ge_u32 s2, 256")
        e("s_cbranch_scc1 L_end")
        e("s_load_dwordx16 s[8:23], s[0:1], 0")
        e("s_load_dwordx8 s[24:31], s[0:1], 64")
        e("s_load_dwordx4 s[32:35], s[0:1], 96")
        e("v_lshrrev_b32 v1, 6, v0")
        e(f"v_readfirstlane_b32 {s(S_WV)}, v1")
        e("v_and_b32 v0, 63, v0")
        e(f"s_and_b32 {s(S_XI)}, s2, 7")
        e(f"s_lshr_b32 {s(S_J)}, s2, 3")
        for r in range(200, 211): e(f"v_mov_b32 {v(r)}, 0")
        e(f"v_mov_b32 v2, {self.C_CNT}")
        e("v_mov_b32 v3, 0")
        e("v_lshl_add_u32 v2, v0, 2, v2")
        e("ds_write_b32 v2, v3")
        e("s_waitcnt lgkmcnt(0)")
        e("s_barrier")
        self.srd(SRD_WS, S_WS, WS_SIZE)
        e(f"s_load_dword {s(S_EP)}, {s(S_WS,2)}, {WS_EPOCH}")

    def lds_count(self, idx, target, then):
        e = self.e
        L = self.newlabel("cnt")
        e(f"v_mov_b32 v250, {self.C_CNT + 4*idx}")
        e("v_mov_b32 v251, 1")
        e("s_mov_b64 exec, 1")
        e("ds_add_rtn_u32 v252, v250, v251")
        e("s_waitcnt lgkmcnt(0)")
        e("v_readfirstlane_b32 s56, v252")
        e("s_mov_b64 exec, -1")
        if then is not None:
            e(f"s_cmp_eq_u32 s56, {target-1}")
            e(f"s_cbranch_scc0 {L}")
            then()
            self.label(L)

    def lds_wait(self, idx, target):
        e = self.e
        L = self.newlabel("lw"); Lx = self.newlabel("lwx")
        e(f"v_mov_b32 v250, {self.C_CNT + 4*idx}")
        e("s_mov_b32 s57, 0x400000")
        self.label(L)
        e("ds_read_b32 v251, v250")
        e("s_sub_u32 s57, s57, 1")
        e("s_cmp_eq_u32 s57, 0")
        e(f"s_cbranch_scc1 {Lx}")
        e("s_waitcnt lgkmcnt(0)")
        e("v_readfirstlane_b32 s56, v251")
        e(f"s_cmp_lt_u32 s56, {target}")
        e(f"s_cbranch_scc1 {L}")
        self.label(Lx)
        e("s_waitcnt lgkmcnt(0)")

    def code_prefetch(self):
        e = self.e
        e("s_getpc_b64 s[56:57]")
        self.label("L_pc")
        e(f"s_sub_u32 s56, s56, L_pc-{KNAME}")
        e("s_subb_u32 s57, s57, 0")
        e(f"s_lshl_b32 s60, {s(S_WV)}, 13")
        e("v_lshlrev_b32 v244, 7, v0")
        e("v_add_u32 v244, s60, v244")
        e(f"v_min_u32 v244, L_end-{KNAME}, v244")
        e("global_load_dword v245, v244, s[56:57]")

    def epoch_ready(self):
        e = self.e
        e("s_waitcnt lgkmcnt(0)")
        e(f"s_and_b32 {s(S_EP)}, {s(S_EP)}, 0xfffffff0")
        e(f"s_add_u32 {s(S_EP)}, {s(S_EP)}, 16")

    def signal(self, p, wave=0, pf_w2=False):
        e = self.e
        e("s_waitcnt vmcnt(0) lgkmcnt(0)")
        e("s_barrier")
        L = self.newlabel("sig")
        e(f"s_cmp_lg_u32 {s(S_WV)}, {wave}")
        e(f"s_cbranch_scc1 {L}")
        self.publish(p)
        self.label(L)
        if pf_w2:
            L = self.newlabel("sgp")
            e(f"s_cmp_ge_u32 {s(S_WV)}, 4")
            e(f"s_cbranch_scc1 {L}")
            self.prefetch_w(2, S_WV)
            self.label(L)

    def poll_all(self, p, t0=248, sleep=0, arr=0):
        e = self.e
        L = self.newlabel("poll"); Lx = self.newlabel("pollx")
        e(f"s_add_u32 s56, {s(S_EP)}, {p}")
        e(f"v_lshlrev_b32 {v(t0+4)}, 7, v0")
        if arr: e(f"v_add_u32 {v(t0+4)}, {8192*arr}, {v(t0+4)}")
        e("s_mov_b32 s57, 0x100000")
        self.label(L)
        if sleep: e(f"s_sleep {sleep}")
        e(f"buffer_load_dwordx4 {v(t0,4)}, {v(t0+4)}, {s(SRD_WS,4)}, 0 offen sc1")
        e("s_sub_u32 s57, s57, 1")
        e("s_cmp_eq_u32 s57, 0")
        e(f"s_cbranch_scc1 {Lx}")
        e("s_waitcnt vmcnt(0)")
        for i in range(4):
            e(f"v_subrev_u32 {v(t0+i)}, s56, {v(t0+i)}")
        e(f"v_max_u32 {v(t0)}, {v(t0)}, {v(t0+1)}")
        e(f"v_max3_u32 {v(t0)}, {v(t0)}, {v(t0+2)}, {v(t0+3)}")
        e(f"v_cmp_le_u32 vcc, 16, {v(t0)}")
        e(f"s_cbranch_vccnz {L}")
        self.label(Lx)
        e("s_waitcnt vmcnt(0)")

    def poll_group(self, p, t0=248, sleep=0, arr=0):
        e = self.e
        L = self.newlabel("pollg"); Lx = self.newlabel("pollgx")
        e(f"s_add_u32 s56, {s(S_EP)}, {p}")
        e(f"v_and_b32 {v(t0+4)}, 7, v0")
        e(f"v_lshlrev_b32 {v(t0+4)}, 7, {v(t0+4)}")
        e(f"s_lshl_b32 s57, {s(S_XI)}, 10")
        if arr: e(f"s_add_u32 s57, s57, {8192*arr}")
        e(f"v_add_u32 {v(t0+4)}, s57, {v(t0+4)}")
        e("s_mov_b32 s57, 0x100000")
        self.label(L)
        if sleep: e(f"s_sleep {sleep}")
        e("s_mov_b64 exec, 0xff")
        e(f"buffer_load_dwordx4 {v(t0,4)}, {v(t0+4)}, {s(SRD_WS,4)}, 0 offen sc1")
        e("s_sub_u32 s57, s57, 1")
        e("s_cmp_eq_u32 s57, 0")
        e(f"s_cbranch_scc1 {Lx}")
        e("s_waitcnt vmcnt(0)")
        for i in range(4):
            e(f"v_subrev_u32 {v(t0+i)}, s56, {v(t0+i)}")
        e(f"v_max_u32 {v(t0)}, {v(t0)}, {v(t0+1)}")
        e(f"v_max3_u32 {v(t0)}, {v(t0)}, {v(t0+2)}, {v(t0+3)}")
        e(f"v_cmp_le_u32 vcc, 16, {v(t0)}")
        e(f"s_cbranch_vccnz {L}")
        self.label(Lx)
        e("s_waitcnt vmcnt(0)")
        e("s_mov_b64 exec, -1")

    def wait_all(self, p, wave=0):
        e = self.e
        if self.o.get("nosync"):
            e("s_barrier"); return
        L = self.newlabel("wa")
        e(f"s_cmp_lg_u32 {s(S_WV)}, {wave}")
        e(f"s_cbranch_scc1 {L}")
        self.poll_all(p)
        self.label(L)
        e("s_barrier")

    def allreduce_add(self, regs, tmp):
        e = self.e
        for mod in ("quad_perm:[1,0,3,2]", "quad_perm:[2,3,0,1]", "row_half_mirror", "row_mirror"):
            for r in regs:
                e(f"v_add_f32_dpp {v(r)}, {v(r)}, {v(r)} {mod} row_mask:0xf bank_mask:0xf")
        for op in ("v_permlane16_swap_b32", "v_permlane32_swap_b32"):
            for r, t in zip(regs, tmp): e(f"v_mov_b32 {v(t)}, {v(r)}")
            for r, t in zip(regs, tmp): e(f"{op} {v(t)}, {v(r)}")
            for r, t in zip(regs, tmp): e(f"v_add_f32 {v(r)}, {v(r)}, {v(t)}")

    def round_bf16(self, dst, src):
        self.e(f"v_cvt_pk_bf16_f32 {v(dst)}, {v(src)}, {v(src)}")
        self.e(f"v_and_b32 {v(dst)}, 0xffff0000, {v(dst)}")

    C_HC, C_HSTR, C_HCH = 0, 4160, 16640
    C_XR, C_XCH = 66560, 4608
    C_ST = 84992
    C_EX = 101376
    C_XT = 134144
    C_CNT = 150528

    def unpack(self, dst, src, hi):
        if hi: self.e(f"v_and_b32 {v(dst)}, 0xffff0000, {v(src)}")
        else:  self.e(f"v_lshlrev_b32 {v(dst)}, 16, {v(src)}")

    def chC(self, dst):
        e = self.e
        e(f"s_and_b32 s58, {s(S_WV)}, 3")
        e(f"s_lshl_b32 s56, {s(S_XI)}, 7")
        e(f"s_lshl_b32 s57, {s(S_J)}, 2")
        e("s_add_u32 s56, s56, s57")
        e(f"s_add_u32 {s(dst)}, s56, s58")

    def lds_transpose_setup(self):
        e = self.e
        e(f"s_lshl_b32 s56, {s(S_WV)}, 12")
        e(f"s_add_u32 s56, s56, {self.C_EX}")
        e("v_xor_b32 v126, v1, v2")
        e("v_lshlrev_b32 v126, 4, v126")
        e("v_lshl_add_u32 v126, v2, 9, v126")
        e("v_add_u32 v126, s56, v126")
        e("v_lshrrev_b32 v127, 5, v0")
        e("v_lshl_add_u32 v128, v1, 7, s56")
        for i in range(4):
            e(f"v_add_u32 v129, {2*i}, v127")
            e("v_xor_b32 v129, v129, v2")
            e(f"v_lshl_add_u32 {v(130+i)}, v129, 4, v128")

    def h_loads(self):
        e = self.e
        e("s_lshl_b32 s56, s63, 12")
        e(f"s_add_u32 {s(SRD_C)}, {s(S_SSMK)}, s56")
        e(f"s_addc_u32 {s(SRD_C+1)}, {s(S_SSMK+1)}, 0")
        e(f"s_mov_b32 {s(SRD_C+2)}, 4096")
        e(f"s_mov_b32 {s(SRD_C+3)}, 0x20000")
        e("v_lshlrev_b32 v8, 4, v0")
        e("v_subrev_u32 v9, 32, v8")
        for it in range(5):
            if it: e(f"v_add_u32 v9, 1024, v9")
            e(f"buffer_load_dwordx4 {v(140+6*it,4)}, v9, {s(SRD_C,4)}, 0 offen{self.nt}")
            e(f"buffer_load_dwordx2 {v(140+6*it+4,2)}, v9, {s(SRD_C,4)}, 0 offen offset:16{self.nt}")

    def h_build(self, younger=0):
        e = self.e
        e(f"s_mul_i32 s56, s58, {self.C_HCH}")
        e("v_add_u32 v8, s56, v8")
        T = 172
        for it in range(5):
            a = 140 + 6*it
            e(f"s_waitcnt vmcnt({2*(4-it) + younger})")
            if it == 4: e("s_mov_b64 exec, 15")
            off = 1024 * it
            e(f"ds_write_b128 v8, {v(a,4)} offset:{self.C_HC + off}")
            for d in range(4): e(f"v_mov_b32 {v(T+d)}, {v(a+1+d)}")
            e(f"ds_write_b128 v8, {v(T,4)} offset:{self.C_HC + 2*self.C_HSTR + off}")
            for d in range(4): e(f"v_alignbit_b32 {v(T+4+d)}, {v(a+d+1)}, {v(a+d)}, 16")
            e(f"ds_write_b128 v8, {v(T+4,4)} offset:{self.C_HC + 1*self.C_HSTR + off}")
            for d in range(4): e(f"v_alignbit_b32 {v(T+8+d)}, {v(a+d+2)}, {v(a+d+1)}, 16")
            e(f"ds_write_b128 v8, {v(T+8,4)} offset:{self.C_HC + 3*self.C_HSTR + off}")
            T = 184 if T == 172 else 172
        e("s_mov_b64 exec, -1")

    def phase_p(self):
        e = self.e
        Lb = self.newlabel("p_b"); Le = self.newlabel("p_e")
        self.chC(63)
        e("v_lshrrev_b32 v1, 3, v0           ; pbk")
        e("v_and_b32 v2, 7, v0               ; cq")
        if self.o.get("p_rot"):
            e(f"s_add_u32 s56, {s(S_XI)}, {s(S_J)}")
            e("s_and_b32 s56, s56, 7")
            e("s_lshl_b32 s56, s56, 7")
        else:
            e(f"s_lshl_b32 s56, {s(S_XI)}, 7")
        e("s_lshl_b32 s57, s58, 5")
        e("s_add_u32 s59, s56, s57            ; 128cb + 32w")
        e("v_lshl_add_u32 v3, v2, 2, s59      ; ch0")
        e(f"s_lshl_b32 s56, {s(S_J)}, 6")
        e("v_lshl_add_u32 v4, v1, 3, s56")
        e("v_lshlrev_b32 v5, 11, v4")
        e("v_lshl_add_u32 v5, v3, 1, v5")
        e(f"s_cmp_ge_u32 {s(S_WV)}, 4")
        e(f"s_cbranch_scc1 {Lb}")
        self.srd(SRD_A, S_K, S_ * D_ * 2)
        self.srd(SRD_B, S_V, S_ * D_ * 2)
        self.srd(SRD_C, S_SH, D_ * 8)
        KD, VD, WD = 10, 32, 48
        e("v_subrev_u32 v120, 6144, v5")
        for i in range(1, 6): e(f"v_add_u32 {v(120+i)}, {4096*i}, v120")
        for i in range(11):
            e(f"buffer_load_dwordx2 {v(KD+2*i,2)}, {v(120+i//2)}, {s(SRD_A,4)}, 0 offen offset:{2048*(i&1)}{self.nt}")
        e("v_lshlrev_b32 v7, 3, v3            ; ch0*8")
        e(f"buffer_load_dwordx4 {v(WD,4)}, v7, {s(SRD_C,4)}, 0 offen")
        e(f"buffer_load_dwordx4 {v(WD+4,4)}, v7, {s(SRD_C,4)}, 0 offen offset:16")
        for p in range(8):
            i = p + 3
            e(f"buffer_load_dwordx2 {v(VD+2*p,2)}, {v(120+i//2)}, {s(SRD_B,4)}, 0 offen offset:{2048*(i&1)}{self.nt}")
        self.g2_b2_load()
        extra = 4
        if self.o.get("code_pf", True):
            self.code_prefetch(); extra += 1
        e("v_mov_b32 v8, 0"); e("v_mov_b32 v9, 0")
        e(f"s_mul_i32 s56, s58, {self.C_XCH}")
        e(f"s_add_u32 s56, s56, {self.C_XR + 4096}")
        e("v_lshl_add_u32 v6, v0, 3, s56")
        e("ds_write_b64 v6, v[8:9]")
        self.lds_transpose_setup()
        e("v_lshlrev_b32 v6, 4, v2")
        e(f"s_lshl_b32 s56, {s(S_J)}, 7")
        e("s_sub_u32 s56, 4080, s56")
        e("v_sub_u32 v6, s56, v6")
        e("v_add_u32 v7, s59, v1")
        e("v_lshl_add_u32 v6, v7, 12, v6")
        e(f"v_add_u32 v6, {WS_XR}, v6")
        for c in range(1, 4): e(f"s_mov_b32 {s(64+c)}, {8*4096*c}")
        e("s_mov_b32 s64, 0")
        WP, KP, R, VP, O = 56, 64, 86, 102, 104
        pass
        e(f"s_waitcnt vmcnt({8 + extra})")
        for cp in range(2):
            for j in range(4):
                self.unpack(WP + 2*j,     WD + 2*(2*cp)   + (j >> 1), j & 1)
                self.unpack(WP + 2*j + 1, WD + 2*(2*cp+1) + (j >> 1), j & 1)
            for i in range(11):
                self.unpack(KP + 2*i,     KD + 2*i + cp, 0)
                self.unpack(KP + 2*i + 1, KD + 2*i + cp, 1)
            if cp == 0:
                e(f"s_waitcnt vmcnt({extra})")
            for p in range(8):
                r = R + 2*p
                e(f"v_pk_mul_f32 {v(r,2)}, {v(KP+2*(p+3),2)}, {v(WP,2)}")
                for j in range(1, 4):
                    e(f"v_pk_fma_f32 {v(r,2)}, {v(KP+2*(p+3-j),2)}, {v(WP+2*j,2)}, {v(r,2)}")
                self.unpack(VP,     VD + 2*p + cp, 0)
                self.unpack(VP + 1, VD + 2*p + cp, 1)
                e(f"v_pk_mul_f32 {v(r,2)}, {v(r,2)}, {v(VP,2)}")
            for cc in range(2):
                c = 2*cp + cc
                for j in range(4):
                    e(f"v_cvt_pk_bf16_f32 {v(O+4*c+j)}, {v(R+2*(7-2*j)+cc)}, {v(R+2*(6-2*j)+cc)}")
                e(f"ds_write_b128 v126, {v(O+4*c,4)} offset:{128*c}")
        e("s_waitcnt lgkmcnt(0)")
        for i in range(4): e(f"ds_read_b128 {v(O+4*i,4)}, {v(130+i)} offset:{1024*i}")
        for i in range(4):
            e(f"s_waitcnt lgkmcnt({3-i})")
            e(f"buffer_store_dwordx4 {v(O+4*i,4)}, v6, {s(SRD_WS,4)}, {s(64+i)} offen {self.o.get('xr_aux', 'sc1')}")
        self.stamp("p_stored", defer=True)
        if self.o.get("x_late", False):
            e(f"v_mov_b32 v250, {self.C_CNT + 4*5}")
            e("v_mov_b32 v251, 1")
            e("s_mov_b64 exec, 1")
            e("ds_add_u32 v250, v251")
            e("s_mov_b64 exec, -1")
        e("s_and_b32 s56, s63, 0xfffffffe")
        e("s_lshl_b32 s56, s56, 1")
        e(f"s_load_dword s69, {s(S_SSMD,2)}, s56")
        self.epoch_ready()
        self.stamp_commit()
        e("s_waitcnt vmcnt(0)")
        self.lds_count(0, 4, lambda: self.publish(1))
        self.stamp("p_sig")
        e(f"s_branch {Le}")
        self.label(Lb)
        if self.o.get("stamps"): self.deferred = [(self.stamp_names.index("start"), 70)]
        self.srd(SRD_A, S_X, S_ * D_ * 2)
        XD, SD = 10, 26
        e("s_lshl_b32 s56, s2, 3")
        e("s_lshl_b32 s57, s58, 1")
        e("s_add_u32 s62, s56, s57            ; R0 = 8w + 2w'")
        e("s_lshl_b32 s56, s62, 11")
        e("v_lshl_add_u32 v6, v0, 4, s56")
        for i in range(4):
            e(f"buffer_load_dwordx4 {v(SD+4*i,4)}, v6, {s(SRD_A,4)}, 0 offen offset:{1024*i}{self.nt}")
        self.h_loads()
        e("v_mov_b32 v120, v5")
        for i in range(1, 4): e(f"v_add_u32 {v(120+i)}, {4096*i}, v5")
        for p in range(8):
            e(f"buffer_load_dwordx2 {v(XD+2*p,2)}, {v(120+p//2)}, {s(SRD_A,4)}, 0 offen offset:{2048*(p&1)}{self.nt}")
        self.g1_b1_load()
        e("s_and_b32 s56, s63, 0xfffffffe")
        e("s_lshl_b32 s56, s56, 1")
        e(f"s_load_dword s69, {s(S_SSMD,2)}, s56")
        U = 44
        e("s_waitcnt vmcnt(19)")
        for r in range(2):
            for d in range(8):
                self.unpack(U+16*r+2*d, SD+8*r+d, 0)
                self.unpack(U+16*r+2*d+1, SD+8*r+d, 1)
        SUM = [80, 81]; TMP = [82, 83]; VAR = [86, 87]
        for r in range(2):
            b = U + 16*r
            e(f"v_pk_add_f32 v[84:85], {v(b,2)}, {v(b+2,2)}")
            for d in range(2, 8):
                e(f"v_pk_add_f32 v[84:85], v[84:85], {v(b+2*d,2)}")
            e(f"v_add_f32 {v(SUM[r])}, v84, v85")
        self.allreduce_add(SUM, TMP)
        for r in range(2):
            e(f"v_mul_f32 {v(SUM[r])}, 0x3a800000, {v(SUM[r])}")
        for r in range(2):
            b = U + 16*r
            for d in range(0, 16, 2):
                e(f"v_sub_f32 {v(b+d)}, {v(b+d)}, {v(SUM[r])}")
                e(f"v_sub_f32 {v(b+d+1)}, {v(b+d+1)}, {v(SUM[r])}")
            e(f"v_pk_mul_f32 v[84:85], {v(b,2)}, {v(b,2)}")
            for d in range(1, 8):
                e(f"v_pk_fma_f32 v[84:85], {v(b+2*d,2)}, {v(b+2*d,2)}, v[84:85]")
            e(f"v_add_f32 {v(VAR[r])}, v84, v85")
        self.allreduce_add(VAR, TMP)
        ST = 88
        for r in range(2):
            e(f"v_mul_f32 {v(VAR[r])}, 0x3a800000, {v(VAR[r])}")
            self.round_bf16(VAR[r], VAR[r])
            e(f"v_add_f32 {v(VAR[r])}, 0x3727c5ac, {v(VAR[r])}")
            self.round_bf16(VAR[r], VAR[r])
            e(f"v_sqrt_f32 {v(VAR[r])}, {v(VAR[r])}")
            self.round_bf16(VAR[r], VAR[r])
            e(f"v_rcp_f32 {v(ST+2*r+1)}, {v(VAR[r])}")
            self.round_bf16(ST + 2*r, SUM[r])
        e("s_lshl_b32 s56, s62, 3")
        e(f"s_add_u32 s56, s56, {WS_ST}")
        e("v_mov_b32 v6, s56")
        e("s_mov_b64 exec, 1")
        e(f"buffer_store_dwordx4 {v(ST,4)}, v6, {s(SRD_WS,4)}, 0 offen sc1")
        e("s_mov_b64 exec, -1")
        self.h_build(younger=10)
        e("s_waitcnt lgkmcnt(0)")
        self.lds_count(1, 4, None)
        self.stamp_commit()
        self.stamp("p_hb")
        self.epoch_ready()
        e("s_waitcnt vmcnt(0)")
        self.lds_count(2, 4, lambda: self.publish(1, arr=1))
        self.stamp("p_stsig")
        self.lds_transpose_setup()
        e("v_lshlrev_b32 v6, 4, v2")
        e(f"s_lshl_b32 s56, {s(S_J)}, 7")
        e("v_add_u32 v6, s56, v6")
        e("v_add_u32 v7, s59, v1")
        e("v_lshl_add_u32 v6, v7, 12, v6")
        e(f"v_add_u32 v7, {WS_XT}, v6")
        for c in range(1, 4): e(f"s_mov_b32 {s(64+c)}, {8*4096*c}")
        e("s_mov_b32 s64, 0")
        e("s_mov_b32 s60, 0x05040100")
        e("s_mov_b32 s61, 0x07060302")
        O = 104
        for c in range(4):
            sel = s(61) if c & 1 else s(60)
            for j in range(4):
                e(f"v_perm_b32 {v(O+4*c+j)}, {v(XD+2*(2*j+1)+(c>>1))}, {v(XD+2*(2*j)+(c>>1))}, {sel}")
            e(f"ds_write_b128 v126, {v(O+4*c,4)} offset:{128*c}")
        for i in range(4): e(f"ds_read_b128 {v(O+4*i,4)}, {v(130+i)} offset:{1024*i}")
        e("s_waitcnt lgkmcnt(0)")
        if self.o.get("xt_late", True):
            self.lds_wait(6, 4)
        for i in range(4):
            e(f"buffer_store_dwordx4 {v(O+4*i,4)}, v7, {s(SRD_WS,4)}, {s(64+i)} offen {self.o.get('xt_aux', 'sc1')}")
        self.stamp("p_stored")
        e("s_waitcnt vmcnt(0)")
        self.lds_count(7, 4, lambda: self.publish(1, arr=2))
        self.stamp("p_sig")
        self.label(Le)

    def publish(self, p, arr=0):
        e = self.e
        e(f"s_add_u32 s56, {s(S_EP)}, {p}")
        e("v_mov_b32 v254, s56")
        e(f"s_lshl_b32 s57, {s(S_XI)}, 10")
        e(f"s_lshr_b32 s56, {s(S_J)}, 2")
        e("s_lshl_b32 s56, s56, 7")
        e("s_add_u32 s57, s57, s56")
        e(f"s_and_b32 s56, {s(S_J)}, 3")
        e("s_lshl_b32 s56, s56, 2")
        e("s_add_u32 s57, s57, s56")
        if arr: e(f"s_add_u32 s57, s57, {8192*arr}")
        e("v_mov_b32 v255, s57")
        e("s_mov_b64 exec, 1")
        e(f"buffer_store_dword v254, v255, {s(SRD_WS,4)}, 0 offen sc1")
        e("s_mov_b64 exec, -1")

    def phase_c(self):
        e = self.e
        Lh = self.newlabel("c_help"); Lj = self.newlabel("c_join"); Lep = self.newlabel("c_epi")
        e(f"s_cmp_ge_u32 {s(S_WV)}, 4")
        e(f"s_cbranch_scc1 {Lh}")
        self.chC(63)
        e("v_lshlrev_b32 v1, 4, v0            ; lane*16")
        Lp = self.newlabel("c_p"); Lp2 = self.newlabel("c_p2")
        e(f"s_cmp_eq_u32 {s(S_WV)}, 0")
        e(f"s_cbranch_scc0 {Lp}")
        if not self.o.get("nosync"): self.poll_group(1, sleep=self.o.get("g_sleep", 4))
        self.lds_count(4, 1, None)
        e(f"s_branch {Lp2}")
        self.label(Lp)
        self.lds_wait(4, 1)
        self.label(Lp2)
        self.stamp("c_start")
        e("s_lshl_b32 s56, s63, 12")
        e(f"s_add_u32 s60, s56, {WS_XR}")
        e(f"s_mul_i32 s56, s58, {self.C_XCH}")
        e(f"s_add_u32 m0, s56, {self.C_XR}")
        for i in range(4):
            e(f"buffer_load_dwordx4 v1, {s(SRD_WS,4)}, s60 offen sc1 lds")
            if i < 3: e("s_add_u32 m0, m0, 1024"); e("s_add_u32 s60, s60, 1024")
        if self.o.get("xt_late", True):
            e(f"v_mov_b32 v250, {self.C_CNT + 4*6}")
            e("v_mov_b32 v251, 1")
            e("s_mov_b64 exec, 1")
            e("ds_add_u32 v250, v251")
            e("s_mov_b64 exec, -1")
        e("v_and_b32 v2, 15, v0               ; n / m")
        e("v_lshrrev_b32 v3, 4, v0            ; g / rho")
        e("v_add_u32 v6, 1, v2")
        e("v_and_b32 v7, 3, v6")
        e(f"v_mul_u32_u24 v7, {self.C_HSTR}, v7")
        e("v_and_b32 v6, 0x1c, v6")
        e("v_lshl_add_u32 v7, v6, 1, v7")
        e("v_lshl_add_u32 v7, v3, 4, v7")
        e(f"s_mul_i32 s56, s58, {self.C_HCH}")
        e(f"s_add_u32 s56, s56, {self.C_HC}")
        e("v_add_u32 v8, s56, v7              ; v8 = A base")
        e("v_lshlrev_b32 v6, 5, v2")
        e("v_lshlrev_b32 v7, 4, v3")
        e("v_sub_u32 v6, v7, v6")
        e(f"s_mul_i32 s56, s58, {self.C_XCH}")
        e(f"s_add_u32 s56, s56, {self.C_XR + 480}")
        e("v_add_u32 v9, s56, v6              ; v9 = B base")
        self.lds_wait(1, 4)
        e("s_waitcnt vmcnt(0)")
        if self.o.get("tlb_touch", False): self.tlb_touch()
        if self.o.get("prefetch_w1", False): self.prefetch_w(1, 58)
        if self.o.get("prefetch_w", True) and self.o.get("pf2_at") == "conv": self.prefetch_w(2, 58)
        self.stamp("c_loop")
        ACC = 10
        FA = [42, 106]; FB = [74, 138]
        def reads(st, tt):
            r = []
            for i in range(8):
                r.append(f"ds_read_b128 {v(FB[st]+4*i,4)}, v9 offset:{512*(7-i) + 64*tt}")
                for hh in range(2):
                    r.append(f"ds_read_b64 {v(FA[st]+4*i+2*hh,2)}, v8 offset:{512*i + 64*tt + 8*hh}")
            return r
        pairs = sorted([(q, cp) for q in range(8) for cp in range(8 - q)], key=lambda t: (max(t), t[0] + t[1]))
        for r in reads(0, 0): e(r)
        for tt in range(8):
            st = tt & 1
            e("s_waitcnt lgkmcnt(0)")
            nxt = reads(st ^ 1, tt + 1) if tt < 7 else []
            seen = set(); i = 0
            for (q, cp) in pairs:
                c = q + cp
                a = ACC + 4*c
                src = "0" if (tt == 0 and c not in seen) else v(a, 4)
                seen.add(c)
                e(f"v_mfma_f32_16x16x32_bf16 {v(a,4)}, {v(FA[st]+4*q,4)}, {v(FB[st]+4*cp,4)}, {src}")
                if i < len(nxt): e(nxt[i]); i += 1
        self.stamp("c_loopend")
        e(f"s_lshl_b32 s56, s58, 12")
        e(f"s_add_u32 s56, s56, {self.C_EX + 16384}")
        e("v_add_u32 v6, s56, v1")
        for i in range(4): e(f"ds_write_b128 v6, {v(ACC+16+4*i,4)} offset:{1024*i}")
        e("s_waitcnt lgkmcnt(0)")
        e("s_barrier")
        e(f"s_branch {Lep}")
        self.label(Lh)
        early = "g1" in self.o["phases"] and self.o.get("g1_early", True)
        if early:
            self.g1_ids()
            self.g1_loader_setup()
        self.chC(63)
        Lq = self.newlabel("c_q"); Lq2 = self.newlabel("c_q2")
        e("v_lshlrev_b32 v1, 4, v0")
        e(f"s_cmp_eq_u32 {s(S_WV)}, 4")
        e(f"s_cbranch_scc0 {Lq}")
        if not self.o.get("nosync"): self.poll_all(1, sleep=self.o.get('x_sleep', 8), arr=1)
        self.stamp("c_xpoll")
        e(f"s_mov_b32 s60, {WS_ST}")
        e(f"s_mov_b32 m0, {self.C_ST}")
        for i in range(16):
            e(f"buffer_load_dwordx4 v1, {s(SRD_WS,4)}, s60 offen sc1 lds")
            if i < 15: e("s_add_u32 m0, m0, 1024"); e("s_add_u32 s60, s60, 1024")
        if not self.o.get("nosync"): self.poll_group(1, sleep=self.o.get('g_sleep', 4), arr=2)
        self.stamp("c_xtpoll")
        self.lds_count(8, 1, None)
        Lx = self.newlabel("c_x")
        e(f"s_branch {Lx}")
        self.label(Lq)
        self.lds_wait(8, 1)
        self.label(Lx)
        e("s_lshl_b32 s56, s63, 12")
        e(f"s_add_u32 s60, s56, {WS_XT}")
        e("s_lshl_b32 s56, s58, 12")
        e(f"s_add_u32 m0, s56, {self.C_XT}")
        for i in range(4):
            e(f"buffer_load_dwordx4 v1, {s(SRD_WS,4)}, s60 offen sc1 lds")
            if i < 3: e("s_add_u32 m0, m0, 1024"); e("s_add_u32 s60, s60, 1024")
        e("s_waitcnt vmcnt(0)")
        self.stamp("c_xjob")
        if self.o.get("prealloc", False):
            L5 = self.newlabel("c_5")
            e(f"s_cmp_eq_u32 {s(S_WV)}, 5")
            e(f"s_cbranch_scc0 {L5}")
            e("v_lshrrev_b32 v1, 4, v0")
            e("v_lshlrev_b32 v1, 18, v1")
            e("v_and_b32 v2, 15, v0")
            e("v_lshl_add_u32 v1, v2, 4, v1")
            e("s_and_b32 s56, s63, 0xfffffffc")
            e("s_lshl_b32 s56, s56, 8")
            e(f"s_add_u32 s60, s56, {WS_HT}")
            for c in range(4):
                for mq in range(4):
                    e(f"s_add_u32 s56, s60, {c*256 + mq*4*262144}")
                    e(f"buffer_store_dwordx4 v[12:15], v1, {s(SRD_WS,4)}, s56 offen sc1")
            e("s_waitcnt vmcnt(0)")
            self.label(L5)
        if "g2" in self.o["phases"] and self.o.get("sent_c"):
            e(f"s_cmp_lt_u32 {s(S_WV)}, 6")
            e(f"s_cbranch_scc1 {Lq2}")
            e("s_lshl_b32 s56, s2, 15")
            e(f"s_sub_u32 s57, {s(S_WV)}, 6")
            e("s_lshl_b32 s57, s57, 14")
            e("s_add_u32 s56, s56, s57")
            e(f"s_add_u32 s60, s56, {WS_EX}")
            e("v_lshlrev_b32 v1, 4, v0")
            for r in range(4): e(f"v_mov_b32 {v(12+r)}, -1")
            for i in range(16):
                e(f"buffer_store_dwordx4 v[12:15], v1, {s(SRD_WS,4)}, s60 offen sc1")
                if i < 15: e("s_add_u32 s60, s60, 1024")
        self.label(Lq2)
        self.stamp("c_loopend")
        e("s_barrier")
        self.chC(63)
        e("v_lshlrev_b32 v1, 4, v0")
        e("v_and_b32 v2, 15, v0")
        e("v_lshrrev_b32 v3, 4, v0")
        e(f"s_lshl_b32 s56, s58, 12")
        e(f"s_add_u32 s56, s56, {self.C_EX + 16384}")
        e("v_add_u32 v6, s56, v1")
        for i in range(4): e(f"ds_read_b128 {v(ACC+4*i,4)}, v6 offset:{1024*i}")
        self.label(Lep)
        pass
        e(f"s_lshr_b32 s59, {s(S_WV)}, 2       ; kh")
        e("v_and_b32 v4, 1, v3")
        e("s_lshl_b32 s56, s59, 2")
        e("v_add_u32 v4, s56, v4")
        e("v_lshlrev_b32 v4, 8, v4")
        e("v_lshl_add_u32 v4, v2, 4, v4")
        e("v_lshrrev_b32 v5, 1, v3")
        e("v_lshl_add_u32 v4, v5, 3, v4       ; v4 = s (pair 0)")
        KV, STT, XE = 42, 50, 82
        e("v_sub_u32 v5, 2040, v4")
        e("v_lshlrev_b32 v5, 1, v5")
        e(f"s_mul_i32 s56, s58, {self.C_XCH}")
        e(f"s_add_u32 s56, s56, {self.C_XR - 1024}")
        e("v_add_u32 v5, s56, v5")
        e(f"ds_read_b128 {v(KV,4)}, v5 offset:1024")
        e(f"ds_read_b128 {v(KV+4,4)}, v5")
        e("s_lshl_b32 s56, s58, 12")
        e(f"s_add_u32 s56, s56, {self.C_XT}")
        e("v_lshl_add_u32 v5, v4, 1, s56")
        e(f"ds_read_b128 {v(XE,4)}, v5")
        e(f"ds_read_b128 {v(XE+4,4)}, v5 offset:1024")
        e("v_lshlrev_b32 v5, 3, v4")
        e(f"v_add_u32 v5, {self.C_ST}, v5")
        for p in range(2):
            for i in range(4):
                e(f"ds_read_b128 {v(STT+16*p+4*i,4)}, v5 offset:{4096*p + 16*i}")
        e("v_lshrrev_b32 v5, 7, v4")
        e("v_lshlrev_b32 v5, 18, v5")
        e("v_and_b32 v6, 127, v4")
        e("v_lshl_add_u32 v5, v6, 1, v5")
        e("s_lshl_b32 s56, s63, 8")
        e(f"s_add_u32 s60, s56, {WS_HT}")
        e(f"s_add_u32 s62, s60, {4 << 18}")
        e("s_and_b32 s56, s63, 1")
        e("s_lshl_b32 s56, s56, 4")
        e("s_lshr_b32 s61, s69, s56")
        e("s_lshl_b32 s61, s61, 16")
        e("s_waitcnt lgkmcnt(0)")
        H = 110
        for p in range(2):
            a = ACC + 8*p; b = a + 4
            for r in range(4):
                e(f"v_permlane16_swap_b32 {v(a+r)}, {v(b+r)}")
            for el in range(8):
                y = a + el
                xr_ = XE + 4*p + (el >> 1)
                kj = KV + 4*p + ((7 - el) >> 1)
                t0 = H + 16 + (el & 1) * 4
                self.unpack(t0, xr_, el & 1)
                self.unpack(t0 + 1, kj, 1 - (el & 1))
                m_ = STT + 16*p + 2*el
                e(f"v_fmac_f32 {v(y)}, s61, {v(t0+1)}")
                e(f"v_sub_f32 {v(t0+2)}, {v(t0)}, {v(m_)}")
                e(f"v_mul_f32 {v(t0+2)}, {v(t0+2)}, {v(m_+1)}")
                e(f"v_fma_f32 {v(H+el)}, {v(t0+2)}, {v(y)}, {v(t0)}")
            O = H + 8
            for j in range(4):
                e(f"v_cvt_pk_bf16_f32 {v(O+j)}, {v(H+2*j)}, {v(H+2*j+1)}")
            e(f"buffer_store_dwordx4 {v(O,4)}, v5, {s(SRD_WS,4)}, {s(60 if p == 0 else 62)} offen {self.o.get('ht_aux', 'sc1')}")
            H = 140

    def tlb_touch(self):
        e = self.e
        L = self.newlabel("tlb")
        e(f"s_cmp_lg_u32 {s(S_WV)}, 0")
        e(f"s_cbranch_scc1 {L}")
        e("v_min_u32 v244, 23, v0")
        e("v_lshlrev_b32 v244, 20, v244")
        e(f"v_add_u32 v244, {WS_HM + 4096}, v244")
        e(f"buffer_load_dword v243, v244, {s(SRD_WS,4)}, 0 offen")
        self.srd(SRD_A, S_OUT, S_ * D_ * 2)
        e("v_min_u32 v244, 3, v0")
        e("v_lshlrev_b32 v244, 20, v244")
        e(f"buffer_load_dword v242, v244, {s(SRD_A,4)}, 0 offen")
        self.label(L)

    def prefetch_w(self, which, swave):
        e = self.e
        ptr = S_W1 if which == 1 else S_W2
        gran = self.o.get("pf_gran", 128)
        self.srd(SRD_C, ptr, D_ * F_ * 2)
        e("s_lshl_b32 s56, s2, 2")
        e(f"s_add_u32 s56, s56, {s(swave)}")
        e("s_mul_i32 s56, s56, 56*128")
        e("v_min_u32 v247, 55, v0")
        e("v_lshlrev_b32 v247, 7, v247")
        e("v_add_u32 v247, s56, v247")
        e(f"buffer_load_dword v246, v247, {s(SRD_C,4)}, 0 offen")
        if gran == 64: e(f"buffer_load_dword v245, v247, {s(SRD_C,4)}, 0 offen offset:64")

    G1_STG = 45056
    G1_TOK, G1_W = 0, 16384
    G1_AST = 135168
    G1_CS  = 136192
    G1_B1  = 137216
    G1_CNT = 138240

    def g1_ids(self):
        e = self.e
        e(f"s_and_b32 s56, {s(S_XI)}, 1")
        e("s_lshl_b32 s56, s56, 3")
        e(f"s_and_b32 s57, {s(S_J)}, 7")
        e("s_add_u32 s60, s56, s57          ; mb")
        e(f"s_lshr_b32 s56, {s(S_XI)}, 1")
        e("s_lshl_b32 s56, s56, 2")
        e(f"s_lshr_b32 s57, {s(S_J)}, 3")
        e("s_add_u32 s61, s56, s57          ; nb")

    def wg_of(self, dst, vmb, vnb, t):
        e = self.e
        e(f"v_lshrrev_b32 {v(dst)}, 3, {v(vmb)}")
        e(f"v_lshrrev_b32 {v(t)}, 2, {v(vnb)}")
        e(f"v_lshl_add_u32 {v(dst)}, {v(t)}, 1, {v(dst)}      ; x")
        e(f"v_and_b32 {v(t)}, 7, {v(vmb)}")
        e(f"v_lshl_add_u32 {v(dst)}, {v(t)}, 3, {v(dst)}")
        e(f"v_and_b32 {v(t)}, 3, {v(vnb)}")
        e(f"v_lshl_add_u32 {v(dst)}, {v(t)}, 6, {v(dst)}")

    def flag_addr(self, dst, t):
        e = self.e
        e(f"v_and_b32 {v(t)}, 7, {v(dst)}")
        e(f"v_lshlrev_b32 {v(t)}, 10, {v(t)}")
        e(f"v_lshrrev_b32 {v(t+1)}, 5, {v(dst)}")
        e(f"v_lshl_add_u32 {v(t)}, {v(t+1)}, 7, {v(t)}")
        e(f"v_bfe_u32 {v(dst)}, {v(dst)}, 3, 2")
        e(f"v_lshl_add_u32 {v(dst)}, {v(dst)}, 2, {v(t)}")

    def poll_addr(self, p, va, vd):
        e = self.e
        L = self.newlabel("pa"); Lx = self.newlabel("pax")
        e(f"s_add_u32 s56, {s(S_EP)}, {p}")
        e("s_mov_b32 s57, 0x100000")
        self.label(L)
        e(f"buffer_load_dword {v(vd)}, {v(va)}, {s(SRD_WS,4)}, 0 offen sc1")
        e("s_sub_u32 s57, s57, 1")
        e("s_cmp_eq_u32 s57, 0")
        e(f"s_cbranch_scc1 {Lx}")
        e("s_waitcnt vmcnt(0)")
        e(f"v_subrev_u32 {v(vd)}, s56, {v(vd)}")
        e(f"v_cmp_le_u32 vcc, 16, {v(vd)}")
        e(f"s_cbranch_vccnz {L}")
        self.label(Lx)
        e("s_waitcnt vmcnt(0)")

    def g1_loader_setup(self):
        e = self.e
        e(f"s_sub_u32 s58, {s(S_WV)}, 4       ; lw")
        e("v_lshrrev_b32 v13, 4, v0          ; g = lane>>4")
        e("v_and_b32 v14, 15, v0             ; p")
        e("v_lshrrev_b32 v15, 1, v14         ; b'")
        e("v_and_b32 v16, 1, v14             ; half")
        e("v_xor_b32 v15, v15, v13           ; b' ^ (row&3)")
        e("s_lshl_b32 s59, s58, 4")
        e("v_add_u32 v17, s59, v13")
        e("v_lshlrev_b32 v17, 8, v17         ; *256")
        e("v_lshl_add_u32 v17, v16, 4, v17")
        e("s_lshl_b32 s59, s60, 18           ; mb*262144")
        e(f"s_add_u32 s59, s59, {WS_HT}")
        e("v_add_u32 v17, s59, v17")
        for ii in range(4):
            x4 = 4 if (ii >> 1) & 1 else 0
            e(f"v_xor_b32 v18, {x4}, v15")
            e("v_lshl_add_u32 v18, v18, 5, v17")
            e(f"v_add_u32 {v(200+ii)}, {ii*4*256}, v18")
        e("s_mov_b32 s59, 0x924924a          ; ceil(2^32/28)")
        for ii in range(7):
            e(f"v_add_u32 v13, {64*ii}, v0")
            e("v_mul_hi_u32 v14, s59, v13        ; row_local")
            e("v_mul_u32_u24 v15, 28, v14")
            e("v_sub_u32 v15, v13, v15           ; p")
            e("v_bfe_u32 v16, v14, 3, 1          ; bit3(row)")
            e("v_lshrrev_b32 v17, 1, v15         ; b'")
            e("v_xor_b32 v17, v17, v16           ; b")
            e("v_and_b32 v15, 1, v15")
            e("v_lshlrev_b32 v15, 4, v15")
            e("v_lshl_add_u32 v15, v17, 5, v15   ; b*32 + half*16")
            e("v_mul_u32_u24 v14, 7168, v14")
            e(f"v_add_u32 {v(204+ii)}, v14, v15")
        e("s_mul_i32 s59, s58, 16*7168")
        e("s_mul_i32 s57, s61, 448")
        e("s_add_u32 s59, s59, s57")
        for ii in range(7):
            e(f"v_add_u32 {v(204+ii)}, s59, {v(204+ii)}")

    def g1_loader_bases(self):
        e = self.e
        e(f"s_sub_u32 s58, {s(S_WV)}, 4       ; lw")
        e("s_lshl_b32 s62, s58, 12")
        e("s_mul_i32 s63, s58, 7168")
        e(f"s_add_u32 s63, s63, {self.G1_W}")

    def g1_issue_w(self, sbuf, sk):
        e = self.e
        if self.o.get("g1_nodma"): return
        e(f"s_add_u32 m0, {s(sbuf)}, s63")
        for ii in range(7):
            e(f"buffer_load_dwordx4 {v(204+ii)}, {s(SRD_B,4)}, {s(sk)} offen lds")
            if ii < 6: e("s_add_u32 m0, m0, 1024")

    def g1_issue_t(self, sbuf, sk):
        e = self.e
        if self.o.get("g1_nodma"): return
        e(f"s_add_u32 m0, {s(sbuf)}, s62")
        for ii in range(4):
            e(f"buffer_load_dwordx4 {v(200+ii)}, {s(SRD_WS,4)}, {s(sk)} offen {self.o.get('t_aux', 'sc1')} lds")
            if ii < 3: e("s_add_u32 m0, m0, 1024")

    def g1_next_k(self):
        e = self.e
        e("s_add_u32 s68, s68, 1")
        e("s_and_b32 s68, s68, 15")
        e(f"s_mul_i32 s65, s68, {64*7168}")
        e(f"s_lshl_b32 s66, s68, 14")

    def g1_side_col(self):
        e = self.e
        e("v_lshrrev_b32 v20, 4, v0          ; g")
        e("v_and_b32 v21, 15, v0")
        e("v_lshrrev_b32 v22, 2, v21         ; r")
        e("v_and_b32 v23, 3, v21             ; c")
        e("v_lshl_add_u32 v24, v20, 3, v22   ; row = 8g + r")
        e("v_and_b32 v25, 1, v20             ; g&1")
        e("v_mul_u32_u24 v27, 448, v24")
        e("v_lshl_add_u32 v27, v23, 3, v27")
        e(f"v_add_u32 v27, {self.G1_W}, v27")
        WF, ONE, DC = 48, 80, 100
        for i in range(4):
            e(f"s_add_u32 s56, s58, {4*i}")
            e("s_min_u32 s56, s56, 13")
            e(f"s_mov_b32 {s(84+i)}, s56")
            e("v_xor_b32 v28, s56, v25")
            e(f"v_lshl_add_u32 {v(116+i)}, v28, 5, v27")
        for i in range(4):
            for u in range(2):
                for h in range(2):
                    e(f"ds_read_b64_tr_b16 {v(WF+8*i+4*u+2*h,2)}, {v(116+i)} offset:{u*32*448 + h*4*448}")
        for r in range(4): e(f"v_mov_b32 {v(ONE+r)}, 0x3f803f80")
        e("s_waitcnt lgkmcnt(0)")
        for u in range(2):
            for i in range(4):
                e(f"v_mfma_f32_16x16x32_bf16 {v(DC+4*i,4)}, {v(WF+8*i+4*u,4)}, {v(ONE,4)}, {'0' if u == 0 else v(DC+4*i,4)}")
        e("s_lshl_b32 s56, s61, 4")
        e("s_add_u32 s56, s56, s60")
        e("s_lshl_b32 s56, s56, 10")
        e(f"s_add_u32 s56, s56, {WS_CSP}")
        e("v_lshl_add_u32 v28, v20, 4, s56")
        e("s_mov_b32 exec_lo, 0x00010001"); e("s_mov_b32 exec_hi, 0x00010001")
        for i in range(4):
            e(f"s_lshl_b32 s56, {s(84+i)}, 6")
            e(f"buffer_store_dwordx4 {v(DC+4*i,4)}, v28, {s(SRD_WS,4)}, s56 offen sc1")
        e("s_mov_b64 exec, -1")

    def g1_tok_mfma(self, base, first):
        e = self.e
        ONE, D1, D2 = 224, 208, 216
        La = self.newlabel("g1t"); Lb = self.newlabel("g1t2")
        e("s_cmp_eq_u32 s58, 0")
        e(f"s_cbranch_scc0 {La}")
        for pas in range(2):
            if pas == 1: self.label(La)
            for i in range(2):
                t = v(base + 28 + 4*(2*pas + i), 4)
                e(f"v_mfma_f32_16x16x32_bf16 {v(D1+4*i,4)}, {v(ONE,4)}, {t}, {'0' if first else v(D1+4*i,4)}")
                e(f"v_mfma_f32_16x16x32_bf16 {v(D2+4*i,4)}, {t}, {t}, {'0' if first else v(D2+4*i,4)}")
            if pas == 0: e(f"s_branch {Lb}")
        self.label(Lb)

    def g1_tok_store(self):
        e = self.e
        D1, D2 = 208, 216
        e("s_lshl_b32 s56, s60, 4")
        e("s_add_u32 s56, s56, s61")
        e("s_lshl_b32 s56, s56, 10")
        e(f"s_add_u32 s56, s56, {WS_TSP}")
        e("s_lshl_b32 s57, s59, 9            ; 4wt*16*8")
        e("s_add_u32 s56, s56, s57")
        e("s_lshl_b32 s57, s58, 8            ; 2wf*16*8")
        e("s_add_u32 s56, s56, s57")
        e("v_and_b32 v228, 15, v0")
        e("v_lshl_add_u32 v228, v228, 3, s56")
        e("s_mov_b32 s80, 0x22222222"); e("s_mov_b32 s81, 0x22222222")
        e("s_mov_b32 s82, 0x44444444"); e("s_mov_b32 s83, 0x44444444")
        e("s_mov_b32 vcc_lo, 0x88888888"); e("s_mov_b32 vcc_hi, 0x88888888")
        for i in range(2):
            o = 230 + 2*i
            e(f"v_mov_b32 {v(o)}, {v(D1+4*i)}")
            e(f"v_cndmask_b32 {v(o+1)}, {v(D2+4*i)}, {v(D2+4*i+1)}, s[80:81]")
            e(f"v_cndmask_b32 {v(o+1)}, {v(o+1)}, {v(D2+4*i+2)}, s[82:83]")
            e(f"v_cndmask_b32 {v(o+1)}, {v(o+1)}, {v(D2+4*i+3)}, vcc")
        e("s_mov_b32 exec_lo, 0x00f0000f"); e("s_mov_b32 exec_hi, 0xf0000f00")
        for i in range(2):
            e(f"buffer_store_dwordx2 {v(230+2*i,2)}, v228, {s(SRD_WS,4)}, 0 offen offset:{128*i} sc1")
        e("s_mov_b64 exec, -1")

    def g1_side_signal(self):
        e = self.e
        L = self.newlabel("g1s")
        e(f"v_mov_b32 v20, {self.G1_CNT}")
        e("v_mov_b32 v21, 1")
        e("s_mov_b64 exec, 1")
        e("ds_add_rtn_u32 v22, v20, v21")
        e("s_waitcnt lgkmcnt(0)")
        e("v_readfirstlane_b32 s56, v22")
        e("s_mov_b64 exec, -1")
        e("s_cmp_eq_u32 s56, 3")
        e(f"s_cbranch_scc0 {L}")
        self.publish(4)
        self.label(L)

    def g1_side_poll_issue(self):
        e = self.e
        e("v_and_b32 v20, 15, v0")
        e("v_bfe_u32 v21, v0, 4, 1")
        e("v_cmp_eq_u32 vcc, 0, v21")
        e("v_mov_b32 v22, s60"); e("v_mov_b32 v23, s61")
        e("v_cndmask_b32 v24, v20, v22, vcc")
        e("v_cndmask_b32 v25, v23, v20, vcc")
        self.wg_of(40, 24, 25, 26)
        self.flag_addr(40, 26)
        e(f"buffer_load_dword v41, v40, {s(SRD_WS,4)}, 0 offen sc1")

    def g1_side_loads(self):
        e = self.e
        L = self.newlabel("g1p")
        e(f"s_add_u32 s56, {s(S_EP)}, 4")
        e("v_subrev_u32 v41, s56, v41")
        e("v_cmp_le_u32 vcc, 16, v41")
        e(f"s_cbranch_vccz {L}")
        if not self.o.get("nosync"): self.poll_addr(4, 40, 41)
        self.label(L)
        e("v_and_b32 v20, 31, v0")
        e("s_lshl_b32 s56, s58, 5")
        e("v_add_u32 v42, s56, v20            ; token")
        e("v_lshrrev_b32 v21, 5, v0")
        e("v_lshlrev_b32 v21, 13, v21         ; hf*8*1024")
        e("v_lshl_add_u32 v21, v42, 3, v21")
        e("s_lshl_b32 s56, s60, 14")
        e(f"s_add_u32 s56, s56, {WS_TSP}")
        e("v_add_u32 v21, s56, v21")
        for jj in range(8):
            if jj == 4: e("v_add_u32 v21, 4096, v21")
            e(f"buffer_load_dwordx2 {v(44+2*jj,2)}, v21, {s(SRD_WS,4)}, 0 offen offset:{1024*(jj&3)} sc1")
        e("v_and_b32 v20, 15, v0")
        e("v_min_u32 v20, 13, v20")
        e("s_mul_i32 s56, s58, 14")
        e("v_add_u32 v43, s56, v20            ; fq")
        e("v_lshrrev_b32 v21, 4, v0")
        e("v_lshlrev_b32 v21, 12, v21")
        e("v_lshl_add_u32 v21, v43, 4, v21")
        e("s_lshl_b32 s56, s61, 14")
        e(f"s_add_u32 s56, s56, {WS_CSP}")
        e("v_add_u32 v21, s56, v21")
        for jj in range(4):
            e(f"buffer_load_dwordx4 {v(60+4*jj,4)}, v21, {s(SRD_WS,4)}, 0 offen offset:{1024*jj} sc1")

    def g1_b1_load(self):
        e = self.e
        self.srd(SRD_B, S_B1, F_ * 2)
        e(f"s_lshr_b32 s56, {s(S_XI)}, 1")
        e("s_lshl_b32 s56, s56, 2")
        e(f"s_lshr_b32 s57, {s(S_J)}, 3")
        e("s_add_u32 s56, s56, s57          ; nb")
        e("s_mul_i32 s56, s56, 448")
        e("v_and_b32 v240, 15, v0")
        e("v_min_u32 v240, 13, v240")
        e("s_mul_i32 s57, s58, 14")
        e("v_add_u32 v240, s57, v240")
        e("v_lshl_add_u32 v240, v240, 3, s56")
        e(f"buffer_load_dwordx2 v[240:241], v240, {s(SRD_B,4)}, 0 offen")

    def g1_side_final_tok(self):
        e = self.e
        for jj in range(1, 8): e(f"v_pk_add_f32 v[44:45], v[44:45], {v(44+2*jj,2)}")
        e("v_mov_b32 v46, v44"); e("v_mov_b32 v47, v45")
        e("v_permlane32_swap_b32 v46, v44"); e("v_permlane32_swap_b32 v47, v45")
        e("v_add_f32 v44, v44, v46"); e("v_add_f32 v45, v45, v47")
        e("v_mul_f32 v44, 0x3a800000, v44      ; mu")
        e("v_mul_f32 v45, 0x3a800000, v45      ; E[h^2]")
        e("v_fma_f32 v45, -v44, v44, v45       ; var")
        e("v_max_f32 v45, 0, v45")
        self.round_bf16(46, 44)
        self.round_bf16(47, 45)
        e("v_add_f32 v47, 0x3727c5ac, v47")
        self.round_bf16(47, 47)
        e("v_sqrt_f32 v47, v47")
        self.round_bf16(47, 47)
        e("v_rcp_f32 v48, v47                  ; 1/sd1")
        e("v_sub_f32 v49, v44, v46")
        e("v_mul_f32 v49, v49, v48             ; mean(y1)")
        self.round_bf16(49, 49)
        e("v_mul_f32 v50, v45, v48")
        e("v_mul_f32 v50, v50, v48             ; var(y1)")
        self.round_bf16(50, 50)
        e("v_add_f32 v50, 0x3727c5ac, v50")
        self.round_bf16(50, 50)
        e("v_sqrt_f32 v50, v50")
        self.round_bf16(50, 50)
        e("v_rcp_f32 v50, v50")
        e("v_mul_f32 v52, v48, v50")
        e("v_fma_f32 v51, v49, v47, v46        ; M = m1 + m2*sd1")
        e("v_mul_f32 v53, v52, v51             ; am")
        e(f"v_lshlrev_b32 v20, 3, v42")
        e(f"v_add_u32 v20, {self.G1_AST}, v20")
        e("s_mov_b32 exec_hi, 0")
        e("ds_write_b64 v20, v[52:53]")
        e("s_mov_b64 exec, -1")
        e("s_waitcnt lgkmcnt(0)")

    def g1_side_final_col(self):
        e = self.e
        for jj in range(1, 4):
            e(f"v_pk_add_f32 v[60:61], v[60:61], {v(60+4*jj,2)}")
            e(f"v_pk_add_f32 v[62:63], v[62:63], {v(62+4*jj,2)}")
        for op in ("v_permlane16_swap_b32", "v_permlane32_swap_b32"):
            for r in range(4): e(f"v_mov_b32 {v(64+r)}, {v(60+r)}")
            for r in range(4): e(f"{op} {v(64+r)}, {v(60+r)}")
            for r in range(4): e(f"v_add_f32 {v(60+r)}, {v(60+r)}, {v(64+r)}")
        self.unpack(68, 240, 0); self.unpack(69, 240, 1); self.unpack(70, 241, 0); self.unpack(71, 241, 1)
        e("v_lshlrev_b32 v20, 4, v43")
        e(f"v_add_u32 v20, {self.G1_CS}, v20")
        e("s_mov_b64 exec, 0x3fff")
        e("ds_write_b128 v20, v[60:63]")
        e(f"ds_write_b128 v20, v[68:71] offset:{self.G1_B1 - self.G1_CS}")
        e("s_mov_b64 exec, -1")
        e("s_waitcnt lgkmcnt(0)")

    def g1_loader(self):
        e = self.e
        STG = self.G1_STG
        side = not self.o.get("g1_noside")
        self.srd(SRD_B, S_W1, D_ * F_ * 2)
        if not ("c" in self.o["phases"] and self.o.get("g1_early", True)): self.g1_loader_setup()
        self.g1_loader_bases()
        if self.o.get("g1_norot"): e("s_mov_b32 s68, 0")
        else:
            mm, mn = self.o.get("g1_rot", (9, 1))
            e(f"s_mul_i32 s68, s60, {mm}")
            e(f"s_mul_i32 s56, s61, {mn}")
            e("s_add_u32 s68, s68, s56")
        e("s_sub_u32 s68, s68, 1")
        self.g1_next_k()
        e("s_mov_b32 s64, 0")
        both = self.o.get("g1_wboth", True)
        self.g1_issue_w(64, 65)
        e("s_mov_b32 s88, s66")
        self.g1_next_k()
        if both:
            e(f"s_mov_b32 s64, {STG}")
            self.g1_issue_w(64, 65)
        self.stamp("g1_wiss")
        e("s_waitcnt vmcnt(%d)" % (7 if both else 0))
        e("s_barrier                        ; W(r) resident")
        self.stamp("g1_wres")
        if side: self.g1_side_col()
        self.stamp("g1_col")
        self.g1_dep_wait()
        self.stamp("g1_dep")
        e("s_mov_b32 s64, 0")
        self.g1_issue_t(64, 88)
        e(f"s_mov_b32 s64, {STG}")
        if not both: self.g1_issue_w(64, 65)
        self.g1_issue_t(64, 66)
        e("s_waitcnt vmcnt(%d) lgkmcnt(0)" % (4 if both else 11))
        e("s_barrier                        ; B_0")
        e("s_mov_b32 s67, 0                 ; period i")
        e(f"s_mov_b32 s64, {2*STG}")
        sent = "g2" in self.o["phases"] and not self.o.get("sent_c")
        if sent:
            e("s_lshl_b32 s89, s2, 15")
            e("s_lshl_b32 s56, s58, 13")
            e("s_add_u32 s89, s89, s56")
            e(f"s_add_u32 s89, s89, {WS_EX}")
            e("v_lshlrev_b32 v128, 4, v0")
            for r in range(4): e(f"v_mov_b32 {v(132+r)}, -1")
        pre = self.o.get("prealloc", False)
        if pre:
            e("s_mul_i32 s89, s60, 112")
            e("s_mul_i32 s56, s61, 7")
            e("s_add_u32 s89, s89, s56")
            e("s_lshl_b32 s89, s89, 13")
            e("s_mul_i32 s56, s58, 14336")
            e("s_add_u32 s89, s89, s56")
            e(f"s_add_u32 s89, s89, {WS_HM}")
            e("v_lshlrev_b32 v128, 4, v0")
        L = self.newlabel("g1l"); Lw = self.newlabel("g1lw"); Lb = self.newlabel("g1lb")
        def hook(per, fn):
            La = self.newlabel("g1a"); e(f"s_cmp_eq_u32 s67, {per}"); e(f"s_cbranch_scc0 {La}"); fn(); self.label(La)
        self.label(L)
        if side:
            hook(12, self.g1_side_poll_issue)
        e("s_cmp_ge_u32 s67, 14")
        e(f"s_cbranch_scc1 {Lw}")
        self.g1_next_k()
        self.g1_issue_w(64, 65)
        self.g1_issue_t(64, 66)
        e(f"s_add_u32 s64, s64, {STG}")
        e(f"s_cmp_eq_u32 s64, {3*STG}")
        e("s_cselect_b32 s64, 0, s64")
        def special(per, fn, cnt):
            La = self.newlabel("g1a"); e(f"s_cmp_eq_u32 s67, {per}"); e(f"s_cbranch_scc0 {La}")
            if fn: fn()
            e(f"s_waitcnt vmcnt({cnt})"); e(f"s_branch {Lb}"); self.label(La)
        if side: special(13, self.g1_side_loads, 23)
        if sent:
            special(0, lambda: self.g1_sent_store(), 12)
            La = self.newlabel("g1s8")
            e("s_cmp_lt_u32 s67, 8"); e(f"s_cbranch_scc0 {La}")
            self.g1_sent_store()
            e("s_waitcnt vmcnt(13)")
            if side:
                def pub8():
                    Lp = self.newlabel("g1pub")
                    e(f"s_cmp_eq_u32 {s(S_WV)}, 4"); e(f"s_cbranch_scc0 {Lp}"); self.publish(4); self.label(Lp)
                hook(3, pub8)
            e(f"s_branch {Lb}")
            self.label(La)
        e("s_waitcnt vmcnt(11)")
        if side and not sent:
            def pub():
                Lp = self.newlabel("g1pub")
                e(f"s_cmp_eq_u32 {s(S_WV)}, 4"); e(f"s_cbranch_scc0 {Lp}"); self.publish(4); self.label(Lp)
            hook(3, pub)
        e(f"s_branch {Lb}")
        self.label(Lw)
        L15 = self.newlabel("g1l15")
        e("s_cmp_eq_u32 s67, 14")
        e(f"s_cbranch_scc0 {L15}")
        e("s_waitcnt vmcnt(%d)" % (12 if side else 0))
        pf2 = self.o.get("prefetch_w", True) and self.o.get("pf2_at", "g1end") == "g1end"
        if pf2: self.prefetch_w(2, 58)
        e(f"s_branch {Lb}")
        self.label(L15)
        e("s_waitcnt vmcnt(%d)" % ((2 if self.o.get("pf_gran", 128) == 64 else 1) if pf2 else 0))
        if side: self.g1_side_final_tok()
        self.label(Lb)
        e("s_barrier")
        e("s_add_u32 s67, s67, 1")
        e("s_cmp_lt_u32 s67, 16")
        e(f"s_cbranch_scc1 {L}")

    def g1_sent_store(self):
        self.e(f"buffer_store_dwordx4 v[132:135], v128, {s(SRD_WS,4)}, s89 offen sc1")
        self.e("s_add_u32 s89, s89, 1024")

    def g1_dep_wait(self):
        if "c" in self.o["phases"]: self.wait_all(3, wave=4)
        else: self.e("s_barrier")

    G1_X, G1_Y, G1_ACC = 8, 52, 96
    def g1_frag_reads(self, base, u):
        r = []
        def wread(ft):
            areg = 2 if ft % 2 == 0 else 3
            return [f"ds_read_b64_tr_b16 {v(base + 4*ft + 2*h, 2)}, {v(areg)} offset:{32*ft + u*32*448 + h*4*448}" for h in range(2)]
        def tread(tt):
            return [f"ds_read_b64_tr_b16 {v(base + 28 + 4*tt + 2*h, 2)}, {v(4+tt)} offset:{u*8192 + h*1024}" for h in range(2)]
        for tt in range(4): r += tread(tt)
        for ft in range(7): r += wread(ft)
        return r

    def g1_half(self, mf_base, rd_base, rd_u, first=False, mfma=True, reads=True, tail=(), waits=None):
        e = self.e
        rds = self.g1_frag_reads(rd_base, rd_u) if (reads and not self.o.get("g1_noreads")) else []
        if self.o.get("g1_nomfma"): mfma = False
        mf = []
        if mfma:
            for ft in range(7):
                for tt in range(4):
                    a = self.G1_ACC + (ft * 4 + tt) * 4
                    c = "0" if first else v(a, 4)
                    mf.append(f"v_mfma_f32_16x16x32_bf16 {v(a,4)}, {v(mf_base + 4*ft, 4)}, {v(mf_base + 28 + 4*tt, 4)}, {c}")
        fill = list(rds) + list(tail)
        i = 0
        for k, m in enumerate(mf):
            if waits and k in waits: e(waits[k])
            e(m)
            if i < len(fill): e(fill[i]); i += 1
        while i < len(fill): e(fill[i]); i += 1

    def g1_compute_setup(self):
        e = self.e
        e(f"s_lshr_b32 s58, {s(S_WV)}, 1      ; wf")
        e(f"s_and_b32 s59, {s(S_WV)}, 1       ; wt")
        e("v_lshrrev_b32 v13, 4, v0          ; g")
        e("v_and_b32 v14, 15, v0")
        e("v_lshrrev_b32 v15, 2, v14         ; r")
        e("v_and_b32 v16, 3, v14             ; c")
        e("v_lshl_add_u32 v17, v13, 3, v15   ; row = 8g + r")
        e("v_and_b32 v18, 1, v13             ; g&1")
        e("v_mul_u32_u24 v19, 448, v17")
        e("v_lshl_add_u32 v19, v16, 3, v19")
        e("s_mul_i32 s57, s58, 224           ; 32*7*wf")
        e(f"s_add_u32 s57, s57, {self.G1_W}")
        e("v_add_u32 v19, s57, v19")
        e("v_lshlrev_b32 v20, 5, v18         ; 32*(g&1)")
        e("v_add_u32 v21, v19, v20")
        e("v_sub_u32 v22, v19, v20")
        e("s_cmp_eq_u32 s58, 0")
        e("s_cselect_b64 vcc, -1, 0")
        e("v_cndmask_b32 v2, v22, v21, vcc")
        e("v_cndmask_b32 v3, v21, v22, vcc")
        e("v_lshl_or_b32 v20, v18, 2, v15    ; f(row)")
        e("v_lshlrev_b32 v21, 8, v17")
        e("v_lshl_add_u32 v21, v16, 3, v21")
        e("s_lshl_b32 s57, s59, 2            ; 4*wt")
        for tt in range(4):
            e(f"s_add_u32 s56, s57, {tt}")
            e("v_xor_b32 v22, s56, v20")
            e(f"v_lshl_add_u32 {v(4+tt)}, v22, 5, v21")

    def g1_compute(self):
        e = self.e
        X, Y = self.G1_X, self.G1_Y
        STG = self.G1_STG
        self.g1_compute_setup()
        side = not self.o.get("g1_noside")
        for r in range(4): e(f"v_mov_b32 {v(224+r)}, 0x3f803f80")
        e("s_barrier                        ; W(r) resident")
        self.g1_dep_wait()
        e("s_barrier                        ; B_0")
        self.stamp("g1_loop")
        def adv(delta):
            return [f"v_add_u32 {v(r)}, {delta & 0xffffffff:#x}, {v(r)}" for r in range(2, 8)]
        W5 = {0: "s_waitcnt lgkmcnt(4)", 20: "s_waitcnt lgkmcnt(15)"}
        for r in self.g1_frag_reads(X, 0): e(r)
        e("s_waitcnt lgkmcnt(0)")
        self.g1_half(X, Y, 1, first=True, tail=adv(STG))
        if side: self.g1_tok_mfma(X, True)
        e("s_waitcnt lgkmcnt(0)")
        if side:
            self.g1_tok_mfma(Y, False)
            self.g1_tok_store()
        e("s_barrier                        ; B_1")
        e("s_mov_b32 s67, 0")
        L = self.newlabel("g1c")
        self.label(L)
        for k in range(3):
            delta = STG if k != 1 else -2 * STG
            self.g1_half(Y, X, 0)
            tail = adv(delta)
            if k == 2: tail = tail[:5] + ["s_add_u32 s67, s67, 1"] + tail[5:]
            self.g1_half(X, Y, 1, tail=tail, waits=(W5 if not self.o.get("g1_noreads") else None))
            if k == 2: e("s_cmp_lt_u32 s67, 5")
            e("s_waitcnt vmcnt(0) lgkmcnt(0)" if k == 1 else "s_waitcnt lgkmcnt(0)")
            e("s_barrier")
            if self.o.get("per_stamps"):
                e("s_memrealtime s[100:101]")
                e("s_mul_i32 s98, s67, 3")
                e(f"s_add_u32 s98, s98, {k + (0 if k < 2 else -3)}")
                e("s_mov_b32 m0, s98")
                e("s_waitcnt lgkmcnt(0)")
                e("v_writelane_b32 v252, s100, m0")
                if k == 2: e("s_cmp_lt_u32 s67, 5")
        e(f"s_cbranch_scc1 {L}")
        self.g1_half(Y, None, 0, reads=False)
        if self.o.get("per_stamps"):
            e("s_lshl_b32 s98, s2, 8")
            e(f"s_add_u32 s98, s98, {WS_STAMP + 65536}")
            e("v_lshlrev_b32 v251, 2, v0")
            e("v_add_u32 v251, s98, v251")
            Lq = self.newlabel("pst")
            e(f"s_cmp_lg_u32 {s(S_WV)}, 0"); e(f"s_cbranch_scc1 {Lq}")
            e(f"buffer_store_dword v252, v251, {s(SRD_WS,4)}, 0 offen")
            self.label(Lq)
        self.stamp("g1_loopend")

    def g1_epilogue(self):
        e = self.e
        ACC = self.G1_ACC
        own = "g2" in self.o["phases"]
        e("v_and_b32 v2, 15, v0               ; n")
        e("v_lshrrev_b32 v3, 4, v0            ; g / rho")
        e("s_lshl_b32 s56, s59, 9")
        e(f"s_add_u32 s56, s56, {self.G1_AST}")
        e("v_lshl_add_u32 v4, v2, 3, s56")
        AS = 8
        for tt in range(4): e(f"ds_read_b64 {v(AS+2*tt,2)}, v4 offset:{128*tt}")
        e("s_mul_i32 s56, s58, 448")
        e(f"s_add_u32 s56, s56, {self.G1_CS}")
        e("v_lshl_add_u32 v5, v3, 4, s56")
        CB = 16
        for ft in range(7):
            e(f"ds_read_b128 {v(CB+8*ft,4)}, v5 offset:{64*ft}")
            e(f"ds_read_b128 {v(CB+8*ft+4,4)}, v5 offset:{64*ft + self.G1_B1 - self.G1_CS}")
        c2 = -2.0 * 0.7978845608028654 * 1.4426950408889634
        c1 = c2 * 0.044715
        import struct
        fb = lambda x: "0x%08x" % struct.unpack("<I", struct.pack("<f", x))[0]
        C1, C2, ONE = 72, 74, 76
        for r, val in ((C1, c1), (C2, c2), (ONE, 1.0)):
            e(f"v_mov_b32 {v(r)}, {fb(val)}"); e(f"v_mov_b32 {v(r+1)}, {fb(val)}")
        e("v_and_b32 v79, 1, v3               ; rho&1")
        e("v_lshrrev_b32 v81, 1, v3           ; rho>>1")
        e("v_lshl_add_u32 v80, v79, 1, v81")
        e("v_lshlrev_b32 v80, 11, v80")
        e("v_lshl_add_u32 v82, v2, 4, v80")
        e("s_lshl_b32 s56, s58, 1")
        e("v_add_u32 v80, s56, v81")
        e("v_lshlrev_b32 v80, 11, v80")
        e("v_lshl_add_u32 v80, v79, 8, v80")
        e("v_lshl_add_u32 v83, v2, 4, v80")
        e("s_mul_i32 s62, s60, 112")
        e("s_mul_i32 s56, s61, 7")
        e("s_add_u32 s62, s62, s56")
        e("s_lshl_b32 s62, s62, 13")
        e("s_lshl_b32 s56, s59, 10")
        e("s_add_u32 s62, s62, s56")
        e(f"s_add_u32 s62, s62, {WS_HM}")
        e("s_mul_i32 s56, s58, 3*8192")
        e("s_add_u32 s63, s62, s56")
        if own:
            for fp in range(3):
                e("s_mul_i32 s56, s58, 3")
                e(f"s_add_u32 s56, s56, {fp}")
                e("s_lshr_b32 s57, s56, 1")
                e("s_lshl_b32 s57, s57, 15")
                e("s_and_b32 s56, s56, 1")
                e("s_lshl_b32 s56, s56, 13")
                e("s_add_u32 s56, s56, s57")
                e("s_lshl_b32 s57, s59, 10")
                e("s_add_u32 s56, s56, s57")
                e(f"v_add_u32 {v(84+fp)}, s56, v82")
        e("s_waitcnt lgkmcnt(0)")
        def gelu_tile(ft, tt, out, T):
            a = ACC + (ft*4 + tt)*4
            cs, b1 = CB + 8*ft, CB + 8*ft + 4
            A = AS + 2*tt
            for h in range(2):
                e(f"v_pk_fma_f32 {v(T+2*h,2)}, {v(A,2)}, {v(cs+2*h,2)}, {v(b1+2*h,2)} op_sel:[1,0,0] op_sel_hi:[1,1,1] neg_lo:[1,0,0] neg_hi:[1,0,0]")
            for h in range(2):
                e(f"v_pk_fma_f32 {v(a+2*h,2)}, {v(A,2)}, {v(a+2*h,2)}, {v(T+2*h,2)} op_sel:[0,0,0] op_sel_hi:[0,1,1]")
            for h in range(2): e(f"v_pk_mul_f32 {v(T+2*h,2)}, {v(a+2*h,2)}, {v(a+2*h,2)}")
            for h in range(2): e(f"v_pk_fma_f32 {v(T+2*h,2)}, {v(T+2*h,2)}, {v(C1,2)}, {v(C2,2)}")
            for h in range(2): e(f"v_pk_mul_f32 {v(T+2*h,2)}, {v(T+2*h,2)}, {v(a+2*h,2)}")
            for r in range(4): e(f"v_exp_f32 {v(T+r)}, {v(T+r)}")
            for h in range(2): e(f"v_pk_add_f32 {v(T+2*h,2)}, {v(T+2*h,2)}, {v(ONE,2)}")
            for r in range(4): e(f"v_rcp_f32 {v(T+r)}, {v(T+r)}")
            for h in range(2): e(f"v_pk_mul_f32 {v(a+2*h,2)}, {v(a+2*h,2)}, {v(T+2*h,2)}")
            for h in range(2): e(f"v_cvt_pk_bf16_f32 {v(out+h)}, {v(a+2*h)}, {v(a+2*h+1)}")
        aux = self.o.get('hm_aux', 'sc1')
        k = 0
        for fp in range(3):
            for tt in range(4):
                O = 208 + 4 * (k & 1); T = 216 + 4 * (k & 1); k += 1
                gelu_tile(2*fp, tt, O, T)
                gelu_tile(2*fp + 1, tt, O + 2, T)
                e(f"v_permlane16_swap_b32 {v(O)}, {v(O+2)}")
                e(f"v_permlane16_swap_b32 {v(O+1)}, {v(O+3)}")
                e(f"s_add_u32 s56, s63, {fp*8192 + tt*256}")
                e(f"buffer_store_dwordx4 {v(O,4)}, v82, {s(SRD_WS,4)}, s56 offen {aux}")
                if own: e(f"ds_write_b128 {v(84+fp)}, {v(O,4)} offset:{tt*256}")
        for tp in range(2):
            O = 208 + 4 * (k & 1); T = 216 + 4 * (k & 1); k += 1
            gelu_tile(6, 2*tp, O, T)
            gelu_tile(6, 2*tp + 1, O + 2, T)
            e(f"v_permlane16_swap_b32 {v(O)}, {v(O+2)}")
            e(f"v_permlane16_swap_b32 {v(O+1)}, {v(O+3)}")
            e(f"s_add_u32 s56, s62, {6*8192 + 2*tp*256}")
            e(f"buffer_store_dwordx4 {v(O,4)}, v83, {s(SRD_WS,4)}, s56 offen {aux}")

    def g1(self):
        e = self.e
        own = "g2" in self.o["phases"]
        self.g1_ids()
        Lc = self.newlabel("g1comp"); Le = self.newlabel("g1end")
        e(f"s_cmp_lt_u32 {s(S_WV)}, 4")
        e(f"s_cbranch_scc1 {Lc}")
        self.g1_loader()
        if not self.o.get("g1_noside"): self.g1_side_final_col()
        e("s_barrier")
        e(f"s_branch {Le}")
        self.label(Lc)
        self.g1_compute()
        e("s_barrier                        ; H")
        self.g1_epilogue()
        self.stamp("g1_epi")
        if not own:
            e("s_waitcnt vmcnt(0)")
        self.label(Le)
        if not own:
            e("s_barrier")
            L = self.newlabel("g1sig")
            e(f"s_cmp_lg_u32 {s(S_WV)}, 0")
            e(f"s_cbranch_scc1 {L}")
            self.publish(5)
            self.label(L)

    G2_STG = 32768
    G2_NBUF = 5
    G2_RES = 98304

    def g2_b2_load(self):
        e = self.e
        self.srd(SRD_A, S_B2, D_ * 2)
        e(f"s_lshr_b32 s56, {s(S_XI)}, 1")
        e("s_lshl_b32 s56, s56, 2")
        e(f"s_lshr_b32 s57, {s(S_J)}, 3")
        e("s_add_u32 s56, s56, s57")
        e("s_and_b32 s56, s56, 7            ; db")
        e(f"s_lshr_b32 s57, {s(S_WV)}, 1     ; wd")
        self.g2_dbh(56, 56, 57)
        e("s_lshl_b32 s56, s56, 8")
        e("s_lshl_b32 s57, s57, 7")
        e("s_add_u32 s56, s56, s57")
        e("v_lshrrev_b32 v234, 4, v0")
        e("v_lshl_add_u32 v242, v234, 3, s56")
        for dt in range(4): e(f"buffer_load_dwordx2 {v(234+2*dt,2)}, v242, {s(SRD_A,4)}, 0 offen offset:{32*dt}")

    def g2_dbh(self, dst, sdb, shalf):
        e = self.e
        if self.o.get("g2_mix", False):
            e(f"s_add_u32 {s(dst)}, {s(sdb)}, {s(shalf)}")
            e(f"s_and_b32 {s(dst)}, {s(dst)}, 7")
        else:
            e(f"s_mov_b32 {s(dst)}, {s(sdb)}")

    def g2_ids(self):
        e = self.e
        e(f"s_and_b32 s56, {s(S_XI)}, 1")
        e("s_lshl_b32 s56, s56, 3")
        e(f"s_and_b32 s57, {s(S_J)}, 7")
        e("s_add_u32 s60, s56, s57          ; mb")
        e(f"s_lshr_b32 s56, {s(S_XI)}, 1")
        e("s_lshl_b32 s56, s56, 2")
        e(f"s_lshr_b32 s57, {s(S_J)}, 3")
        e("s_add_u32 s56, s56, s57          ; n'")
        e("s_and_b32 s61, s56, 7            ; db")
        e("s_lshr_b32 s69, s56, 3           ; kh")

    def g2_issue_w(self, sbuf, sk):
        e = self.e
        e(f"s_add_u32 m0, {s(sbuf)}, s63")
        for ii in range(4):
            e(f"buffer_load_dwordx4 {v(6+ii)}, {s(SRD_B,4)}, {s(sk)} offen lds")
            if ii < 3: e("s_add_u32 m0, m0, 1024")

    def g2_issue_t(self, sbuf):
        e = self.e
        e("s_mul_i32 s56, s85, 7")
        e("s_add_u32 s56, s56, s84")
        e("s_lshl_b32 s56, s56, 13")
        e("s_add_u32 s66, s90, s56")
        e(f"s_add_u32 m0, {s(sbuf)}, s62")
        for ii in range(4):
            e(f"buffer_load_dwordx4 v2, {s(SRD_WS,4)}, s66 offen sc1 lds")
            if ii < 3:
                e("s_add_u32 m0, m0, 1024"); e("s_add_u32 s66, s66, 1024")

    def g2_w_off(self):
        e = self.e
        e("s_lshl_b32 s56, s84, 1")
        e("s_add_u32 s56, s56, s87          ; 2q + half")
        e("s_cmp_ge_u32 s84, 3")
        e("s_addc_u32 s56, s56, 0")
        e("s_mul_i32 s57, s87, 7")
        e("s_add_u32 s57, s57, 6            ; half ? 13 : 6")
        e("s_cmp_eq_u32 s84, 6")
        e("s_cselect_b32 s56, s57, s56")
        e("s_lshl_b32 s56, s56, 4")
        e("s_add_u32 s56, s56, s86")
        e("s_lshl_b32 s65, s56, 11")

    def g2_adv(self, own=False):
        e = self.e
        if own:
            e("s_add_u32 s84, s84, 2")
        else:
            e("s_add_u32 s91, s91, 2")
            self.g2_pos()
        e("s_lshl_b32 s56, s69, 3")
        e("s_add_u32 s56, s56, s85")
        e("s_mul_i32 s86, s56, 224")
        self.g2_w_off()

    def g2_pos(self):
        e = self.e
        e("s_mul_i32 s56, s61, 7")
        e("s_cmp_ge_u32 s91, s56")
        e("s_cselect_b32 s56, 6, 0")
        e("s_add_u32 s56, s56, s91          ; Q")
        e("s_mul_i32 s85, s56, 9363")
        e("s_lshr_b32 s85, s85, 16")
        e("s_mul_i32 s57, s85, 7")
        e("s_sub_u32 s84, s56, s57")

    def g2_loader_pre(self):
        e = self.e
        self.g2_ids()
        self.srd(SRD_B, S_W2, F_ * D_ * 2)
        e(f"s_sub_u32 s58, {s(S_WV)}, 4       ; lw")
        e("v_lshrrev_b32 v13, 4, v0")
        e("v_and_b32 v14, 15, v0")
        e("v_lshrrev_b32 v15, 1, v14")
        e("v_and_b32 v16, 1, v14")
        e("v_xor_b32 v15, v15, v13")
        e("v_lshlrev_b32 v17, 11, v13")
        e("v_lshl_add_u32 v17, v16, 4, v17")
        e("s_lshl_b32 s59, s61, 8            ; db*256")
        e("v_add_u32 v17, s59, v17")
        if self.o.get("g2_mix", False):
            e("s_add_u32 s56, s61, 1")
            e("s_and_b32 s56, s56, 7")
            e("s_sub_u32 s56, s56, s61")
            e("s_lshl_b32 s56, s56, 8")
        else:
            e("s_mov_b32 s56, 0")
        for ii in range(4):
            x4 = 4 if (ii >> 1) & 1 else 0
            e(f"v_xor_b32 v18, {x4}, v15")
            e("v_lshrrev_b32 v19, 2, v18")
            e("v_mul_lo_u32 v19, v19, s56")
            e("v_lshl_add_u32 v18, v18, 5, v17")
            e("v_add_u32 v18, v18, v19")
            e(f"v_add_u32 {v(6+ii)}, {ii*4*2048}, v18")
        e("v_lshlrev_b32 v2, 4, v0")
        e("s_lshl_b32 s62, s58, 12")
        e(f"s_add_u32 s63, s62, 16384")
        e("s_mov_b32 s85, s61               ; local block = db: start with this workgroup's own G1 tile")
        e("s_lshl_b32 s86, s69, 3")
        e("s_add_u32 s86, s86, s85")
        e("s_mul_i32 s86, s86, 224")
        e("s_lshr_b32 s84, s58, 1           ; q = lw>>1")
        e("s_and_b32 s87, s58, 1            ; half")
        self.g2_w_off()
        e("s_mul_i32 s90, s60, 112")
        e("s_mul_i32 s56, s69, 56")
        e("s_add_u32 s90, s90, s56")
        e("s_lshl_b32 s90, s90, 13")
        e("s_lshl_b32 s56, s87, 12")
        e("s_add_u32 s90, s90, s56")
        e(f"s_add_u32 s90, s90, {WS_HM}")

    def g2_loader(self):
        e = self.e
        STG = self.G2_STG
        self.g2_loader_pre()
        e("s_mov_b32 s64, 0")
        def to_shared():
            e("s_lshr_b32 s91, s58, 1")
            e("s_sub_u32 s91, s91, 2")
            self.g2_adv()
        if self.o.get("w2_late", False):
            self.g2_issue_w(64, 65)
            self.g2_adv(own=True)
            e("s_waitcnt vmcnt(0)")
            e("s_barrier                        ; A = B_0")
            for st in range(1, 3):
                e(f"s_add_u32 s64, s64, {STG}")
                self.g2_issue_w(64, 65)
                if st == 1: self.g2_adv(own=True)
            e(f"s_add_u32 s64, s64, {STG}")
            to_shared()
        else:
            for st in range(3):
                self.g2_issue_w(64, 65)
                if st < 2: self.g2_adv(own=True)
                e(f"s_add_u32 s64, s64, {STG}")
            to_shared()
            e("s_waitcnt vmcnt(8)")
            e("s_barrier                        ; A = B_0")
        e("s_waitcnt vmcnt(4)")
        e("s_barrier")
        self.stamp("g2_b1")
        Lp = self.newlabel("g2pub")
        e(f"s_cmp_eq_u32 {s(S_WV)}, 4"); e(f"s_cbranch_scc0 {Lp}"); self.publish(5); self.label(Lp)
        e("s_waitcnt vmcnt(0)")
        e("s_barrier                        ; B_2")
        e("v_and_b32 v20, 7, v0")
        e("s_lshl_b32 s56, s69, 3")
        e("v_add_u32 v21, s56, v20")
        e("v_mov_b32 v20, s60")
        self.wg_of(40, 20, 21, 26)
        e("s_xor_b32 s56, s2, 4")
        e("v_mov_b32 v20, s56")
        e("v_bfe_u32 v21, v0, 3, 1")
        e("v_cmp_eq_u32 vcc, 1, v21")
        e("v_cndmask_b32 v40, v40, v20, vcc")
        self.flag_addr(40, 26)
        if not self.o.get("nosync"):
            e("s_mov_b64 exec, 0xffff")
            self.poll_addr(5, 40, 41)
            e("s_mov_b64 exec, -1")
        self.stamp("g2_dep")
        def stage():
            self.g2_issue_t(64)
            self.g2_issue_w(64, 65)
            self.g2_adv()
            e(f"s_add_u32 s64, s64, {STG}")
            e(f"s_cmp_eq_u32 s64, {5*STG}")
            e("s_cselect_b32 s64, 0, s64")
        if self.o.get("g2_ramp", True):
            stage(); stage()
            e("s_waitcnt vmcnt(8)")
            e("s_barrier                        ; B_3")
            self.stamp("g2_b3")
            stage(); stage()
            e("s_waitcnt vmcnt(16)")
            e("s_barrier                        ; B_4")
            stage(); stage()
            e("s_waitcnt vmcnt(24)")
            e("s_barrier                        ; B_5")
            e("s_mov_b32 s67, 5")
        else:
            for st in range(3, 7): stage()
            e("s_waitcnt vmcnt(24)")
            e("s_barrier                        ; B_3")
            self.stamp("g2_b3")
            e("s_mov_b32 s67, 3")
        pre = self.o.get("prealloc", False)
        if pre:
            self.srd(SRD_A, S_OUT, S_ * D_ * 2)
            e("s_and_b32 s56, s58, 1")
            e("s_lshl_b32 s56, s56, 6")
            e("s_lshl_b32 s57, s60, 7")
            e("s_add_u32 s56, s56, s57")
            e("s_lshl_b32 s57, s69, 5")
            e("s_add_u32 s56, s56, s57")
            e("v_lshrrev_b32 v22, 3, v0")
            e("v_add_u32 v22, s56, v22")
            e("v_lshlrev_b32 v22, 11, v22")
            e("v_and_b32 v23, 7, v0")
            e("v_lshl_add_u32 v22, v23, 4, v22")
            e("s_lshr_b32 s56, s58, 1")
            e("s_lshl_b32 s56, s56, 7")
            e("s_lshl_b32 s57, s61, 8")
            e("s_add_u32 s56, s56, s57")
            e("v_add_u32 v22, s56, v22")
        L = self.newlabel("g2l"); Lw = self.newlabel("g2lw"); Lb = self.newlabel("g2lb")
        def waits(cases):
            for per, cnt in cases:
                Ln = self.newlabel("g2w")
                e(f"s_cmp_eq_u32 s67, {per}")
                e(f"s_cbranch_scc0 {Ln}")
                e(f"s_waitcnt vmcnt({cnt})")
                e(f"s_branch {Lb}")
                self.label(Ln)
        self.label(L)
        if pre:
            Lo = self.newlabel("g2o")
            e("s_sub_u32 s56, s67, 4")
            e("s_cmp_lt_u32 s56, 4")
            e(f"s_cbranch_scc0 {Lo}")
            e("s_lshl_b32 s56, s56, 14          ; 8 rows * 2048")
            e(f"buffer_store_dwordx4 v[24:27], v22, {s(SRD_A,4)}, s56 offen sc1")
            self.label(Lo)
        e("s_cmp_ge_u32 s67, 24")
        e(f"s_cbranch_scc1 {Lw}")
        self.g2_issue_t(64)
        self.g2_issue_w(64, 65)
        self.g2_adv()
        e(f"s_add_u32 s64, s64, {STG}")
        e(f"s_cmp_eq_u32 s64, {5*STG}")
        e("s_cselect_b32 s64, 0, s64")
        e("s_waitcnt vmcnt(24)")
        e(f"s_branch {Lb}")
        self.label(Lw)
        Lw1 = self.newlabel("g2lw1")
        e("s_cmp_eq_u32 s67, 24")
        e(f"s_cbranch_scc0 {Lw1}")
        e("v_lshrrev_b32 v20, 2, v0")
        e("s_lshl_b32 s56, s58, 5")
        e("v_add_u32 v20, s56, v20")
        e("v_lshlrev_b32 v20, 8, v20          ; row*256")
        e("v_and_b32 v21, 3, v0")
        e("v_lshl_add_u32 v20, v21, 4, v20")
        e("s_lshr_b32 s57, s58, 1")
        self.g2_dbh(59, 61, 57)
        e("s_lshl_b32 s56, s60, 18")
        e("s_lshl_b32 s57, s59, 15            ; 128db'*256")
        e("s_add_u32 s56, s56, s57")
        e("s_lshl_b32 s57, s69, 6             ; 32kh*2")
        e("s_add_u32 s56, s56, s57")
        e(f"s_add_u32 s56, s56, {WS_HT}")
        for ii in range(4):
            wt, hh = ii >> 1, ii & 1
            e(f"s_add_u32 s57, s56, {wt*128 + hh*16*256}")
            e("s_lshl_b32 s59, s58, 11          ; 32lw*64")
            e(f"s_add_u32 m0, s59, {self.G2_RES + wt*8192 + hh*1024}")
            e(f"buffer_load_dwordx4 v20, {s(SRD_WS,4)}, s57 offen sc1 lds")
        e("s_waitcnt vmcnt(20)")
        e(f"s_branch {Lb}")
        self.label(Lw1)
        waits([(25, 12), (26, 4)])
        e("s_waitcnt vmcnt(0)")
        self.label(Lb)
        e("s_barrier")
        e("s_add_u32 s67, s67, 1")
        e("s_cmp_lt_u32 s67, 28")
        e(f"s_cbranch_scc1 {L}")

    G2_X, G2_Y, G2_ACC = 8, 40, 72
    def g2_frag_reads(self, base, u):
        r = []
        for tt in range(4): r.append(f"ds_read_b128 {v(base + 16 + 4*tt, 4)}, v6 offset:{u*8192 + tt*256}")
        for dt in range(4):
            for h in range(2):
                r.append(f"ds_read_b64_tr_b16 {v(base + 4*dt + 2*h, 2)}, {v(2+dt)} offset:{u*8192 + h*1024}")
        return r

    def g2_half(self, mf_base, rd_base, rd_u, first=False, reads=True, tail=(), waits=None):
        e = self.e
        rds = self.g2_frag_reads(rd_base, rd_u) if reads else []
        fill = list(rds) + list(tail)
        i = 0; k = 0
        for dt in range(4):
            for tt in range(4):
                a = self.G2_ACC + (dt*4 + tt)*4
                if waits and k in waits: e(waits[k])
                e(f"v_mfma_f32_16x16x32_bf16 {v(a,4)}, {v(mf_base + 4*dt, 4)}, {v(mf_base + 16 + 4*tt, 4)}, {'0' if first else v(a,4)}")
                if i < len(fill): e(fill[i]); i += 1
                k += 1
        while i < len(fill): e(fill[i]); i += 1

    def g2_compute(self):
        e = self.e
        X, Y, STG = self.G2_X, self.G2_Y, self.G2_STG
        self.g2_ids()
        e(f"s_lshr_b32 s58, {s(S_WV)}, 1      ; wd")
        e(f"s_and_b32 s59, {s(S_WV)}, 1       ; wt")
        e("v_lshrrev_b32 v13, 4, v0          ; g")
        e("v_and_b32 v14, 15, v0             ; n")
        e("v_lshrrev_b32 v15, 2, v14         ; r")
        e("v_and_b32 v16, 3, v14             ; c")
        e("v_lshl_add_u32 v17, v13, 3, v15   ; row = 8g + r")
        e("v_and_b32 v18, 1, v13")
        e("v_lshl_or_b32 v20, v18, 2, v15    ; f(row)")
        e("v_lshlrev_b32 v21, 8, v17")
        e("v_lshl_add_u32 v21, v16, 3, v21")
        e("v_add_u32 v21, 16384, v21")
        e("s_lshl_b32 s57, s58, 2            ; 4*wd")
        for dt in range(4):
            e(f"s_add_u32 s56, s57, {dt}")
            e("v_xor_b32 v22, s56, v20")
            e(f"v_lshl_add_u32 {v(2+dt)}, v22, 5, v21")
        e("v_lshlrev_b32 v22, 11, v13")
        e("v_lshl_add_u32 v22, v14, 4, v22")
        e("s_lshl_b32 s56, s59, 10")
        e("v_add_u32 v6, s56, v22")
        e("s_waitcnt lgkmcnt(0)")
        e("s_barrier                        ; A = B_0")
        self.stamp("g2_loop")
        e("s_mov_b32 s64, 0")
        e(f"s_mov_b32 s62, {STG}")
        e(f"s_mov_b32 s63, {(-4*STG) & 0xffffffff}")
        def adv():
            return ["s_add_u32 s64, s64, 1", "s_cmp_eq_u32 s64, 4"]
        def adv2():
            return [f"v_add_u32 {v(r)}, s65, {v(r)}" for r in range(2, 7)]
        pre = ["s_add_u32 s64, s64, 1", "s_cmp_eq_u32 s64, 5", "s_cselect_b32 s65, s63, s62", "s_cselect_b32 s64, 0, s64"]
        WX = {0: "s_waitcnt lgkmcnt(6)", 4: "s_waitcnt lgkmcnt(8)", 8: "s_waitcnt lgkmcnt(10)", 12: "s_waitcnt lgkmcnt(12)"}
        if self.o.get("g2_fullwait"): WX = {0: "s_waitcnt lgkmcnt(0)"}
        for r in self.g2_frag_reads(X, 0): e(r)
        for p in pre: e(p)
        e("s_waitcnt lgkmcnt(0)")
        self.g2_half(X, Y, 1, first=True, tail=adv2()[:4])
        e(adv2()[4])
        e("s_waitcnt vmcnt(0) lgkmcnt(0)")
        e("s_barrier                        ; B_1")
        e("s_mov_b32 s67, 0")
        L = self.newlabel("g2c")
        self.label(L)
        for k in range(3):
            self.g2_half(Y, X, 0, tail=pre)
            self.g2_half(X, Y, 1, tail=adv2()[:4], waits=WX)
            e(adv2()[4])
            if k == 2:
                e("s_add_u32 s67, s67, 1"); e("s_cmp_lt_u32 s67, 9")
            e("s_waitcnt lgkmcnt(0)")
            e("s_barrier")
        e(f"s_cbranch_scc1 {L}")
        self.g2_half(Y, None, 0, reads=False)
        self.stamp("g2_loopend")

    def g2_epilogue(self):
        e = self.e
        ACC = self.G2_ACC
        Lk = self.newlabel("g2k")
        e("s_cmp_eq_u32 s69, 0")
        e(f"s_cbranch_scc1 {Lk}")
        for dt in range(4):
            for r in range(8):
                a = ACC + dt*16 + r
                e(f"v_swap_b32 {v(a)}, {v(a+8)}")
        self.label(Lk)
        e("s_xor_b32 s56, s2, 4")
        e("s_lshl_b32 s56, s56, 15")
        e(f"s_lshl_b32 s57, {s(S_WV)}, 13")
        e("s_add_u32 s56, s56, s57")
        e(f"s_add_u32 s62, s56, {WS_EX}")
        e("v_lshlrev_b32 v8, 4, v0")
        for dt in range(4):
            for tk in range(2):
                i = dt*2 + tk
                e(f"s_add_u32 s56, s62, {1024*i}")
                e(f"buffer_store_dwordx4 {v(ACC + dt*16 + 8 + 4*tk, 4)}, v8, {s(SRD_WS,4)}, s56 offen sc1")
        e("v_lshrrev_b32 v13, 4, v0          ; g")
        e("v_and_b32 v14, 15, v0             ; n")
        e("v_lshrrev_b32 v15, 2, v14")
        e("v_and_b32 v16, 3, v14")
        e("v_lshl_add_u32 v17, v13, 2, v15   ; 4g + r")
        e("v_lshlrev_b32 v17, 6, v17")
        e("v_lshl_add_u32 v17, v16, 3, v17")
        e("s_lshl_b32 s56, s59, 13")
        e("s_lshl_b32 s57, s58, 12           ; 64wd*64")
        e("s_add_u32 s56, s56, s57")
        e(f"s_add_u32 s56, s56, {self.G2_RES}")
        e("v_add_u32 v17, s56, v17")
        RS = 168
        for dt in range(4):
            for tk in range(2):
                e(f"ds_read_b64_tr_b16 {v(RS + 2*(2*dt+tk), 2)}, v17 offset:{dt*16*64 + tk*32}")
        pass

    def g2_epilogue2(self):
        e = self.e
        ACC = self.G2_ACC; RS = 168; B2 = 234
        e("s_lshl_b32 s56, s2, 15")
        e(f"s_lshl_b32 s57, {s(S_WV)}, 13")
        e("s_add_u32 s56, s56, s57")
        e(f"s_add_u32 s62, s56, {WS_EX}")
        IN = 136
        for i in range(1, 8): e(f"s_add_u32 {s(80+i)}, s62, {1024*i}")
        e("s_mov_b32 s80, s62")
        self.srd(SRD_A, S_OUT, S_ * D_ * 2)
        e(f"s_lshl_b32 s56, {s(S_WV)}, 12")
        e("v_and_b32 v10, 1, v13")
        e("v_lshlrev_b32 v10, 1, v10")
        e("v_lshrrev_b32 v11, 1, v13")
        e("v_add_u32 v10, v10, v11")
        e("v_and_b32 v11, 7, v14")
        for dp in range(2):
            e(f"v_add_u32 v12, {4*dp}, v10")
            e("v_xor_b32 v12, v12, v11")
            e("v_lshlrev_b32 v12, 4, v12")
            e("v_lshl_add_u32 v12, v14, 7, v12")
            e(f"v_add_u32 {v(32+dp)}, s56, v12")
        e("v_lshrrev_b32 v11, 3, v0           ; l>>3")
        e("v_and_b32 v12, 7, v0")
        e("v_xor_b32 v10, v12, v11")
        e("v_lshlrev_b32 v10, 4, v10")
        e("v_lshl_add_u32 v10, v11, 7, v10")
        e("v_add_u32 v34, s56, v10")
        e("s_lshl_b32 s56, s60, 7")
        e("s_lshl_b32 s57, s59, 6")
        e("s_add_u32 s56, s56, s57")
        e("s_lshl_b32 s57, s69, 5")
        e("s_add_u32 s56, s56, s57")
        e("v_add_u32 v9, s56, v11")
        e("v_lshlrev_b32 v9, 11, v9")
        e("v_lshl_add_u32 v9, v12, 4, v9")
        self.g2_dbh(56, 61, 58)
        e("s_lshl_b32 s56, s56, 8")
        e("s_lshl_b32 s57, s58, 7")
        e("s_add_u32 s63, s56, s57")
        BF = 40
        for dt in range(4):
            self.unpack(BF+4*dt,   B2+2*dt,   0); self.unpack(BF+4*dt+1, B2+2*dt,   1)
            self.unpack(BF+4*dt+2, B2+2*dt+1, 0); self.unpack(BF+4*dt+3, B2+2*dt+1, 1)
        L = self.newlabel("g2in"); Lx = self.newlabel("g2inx")
        def watch():
            L1 = self.newlabel("g2w1"); L1x = self.newlabel("g2w1x")
            e("s_mov_b32 s57, 0x40000")
            e("s_mov_b32 exec_lo, 0"); e("s_mov_b32 exec_hi, 0x80000000")
            self.label(L1)
            e(f"buffer_load_dword v35, v8, {s(SRD_WS,4)}, s87 offen offset:12 sc1")
            e("s_sub_u32 s57, s57, 1")
            e("s_cmp_eq_u32 s57, 0")
            e(f"s_cbranch_scc1 {L1x}")
            e("s_waitcnt vmcnt(0)")
            e("v_cmp_eq_u32 vcc, -1, v35")
            e(f"s_cbranch_vccnz {L1}")
            self.label(L1x)
            e("s_waitcnt vmcnt(0)")
            e("s_mov_b64 exec, -1")
        mode = self.o.get("ex_mode", "watch")
        if mode == "watch": watch()
        elif mode == "spec":
            for i in range(8):
                e(f"buffer_load_dwordx4 {v(IN+4*i,4)}, v8, {s(SRD_WS,4)}, {s(80+i)} offen sc1")
            e("s_waitcnt vmcnt(0)")
            e(f"v_max_u32 v35, {v(IN)}, {v(IN+3)}")
            for i in range(1, 8):
                e(f"v_max3_u32 v35, v35, {v(IN+4*i)}, {v(IN+4*i+3)}")
            e("v_cmp_eq_u32 vcc, -1, v35")
            e(f"s_cbranch_vccz {Lx}")
            watch()
        e("s_mov_b32 s57, 0x40000")
        self.label(L)
        for i in range(8):
            e(f"buffer_load_dwordx4 {v(IN+4*i,4)}, v8, {s(SRD_WS,4)}, {s(80+i)} offen sc1")
        e("s_sub_u32 s57, s57, 1")
        e("s_cmp_eq_u32 s57, 0")
        e(f"s_cbranch_scc1 {Lx}")
        e("s_waitcnt vmcnt(0)")
        e(f"v_max_u32 v35, {v(IN)}, {v(IN+3)}")
        for i in range(1, 8):
            e(f"v_max3_u32 v35, v35, {v(IN+4*i)}, {v(IN+4*i+3)}")
        e("v_cmp_eq_u32 vcc, -1, v35")
        e(f"s_cbranch_vccnz {L}")
        self.label(Lx)
        e("s_waitcnt vmcnt(0) lgkmcnt(0)")
        self.stamp("g2_got")
        k = 0
        for tk in range(2):
            for dp in range(2):
                O = 56 + 4*(k & 1); k += 1
                for dd in range(2):
                    dt = 2*dp + dd
                    i = dt*2 + tk
                    a = ACC + dt*16 + 4*tk
                    T = 64
                    r0 = RS + 2*i
                    self.unpack(T, r0, 0); self.unpack(T+1, r0, 1); self.unpack(T+2, r0+1, 0); self.unpack(T+3, r0+1, 1)
                    for h in range(2):
                        e(f"v_pk_add_f32 {v(a+2*h,2)}, {v(a+2*h,2)}, {v(IN+4*i+2*h,2)}")
                        e(f"v_pk_add_f32 {v(T+2*h,2)}, {v(T+2*h,2)}, {v(BF+4*dt+2*h,2)}")
                        e(f"v_pk_add_f32 {v(a+2*h,2)}, {v(a+2*h,2)}, {v(T+2*h,2)}")
                        e(f"v_cvt_pk_bf16_f32 {v(O+2*dd+h)}, {v(a+2*h)}, {v(a+2*h+1)}")
                e(f"v_permlane16_swap_b32 {v(O)}, {v(O+2)}")
                e(f"v_permlane16_swap_b32 {v(O+1)}, {v(O+3)}")
                e(f"ds_write_b128 {v(32+dp)}, {v(O,4)} offset:{tk*2048}")
        e("s_waitcnt lgkmcnt(0)")
        for i in range(4): e(f"ds_read_b128 {v(72+4*i,4)}, v34 offset:{1024*i}")
        for i in range(4):
            e(f"s_add_u32 s56, s63, {i*8*2048}")
            e(f"s_waitcnt lgkmcnt({3-i})")
            e(f"buffer_store_dwordx4 {v(72+4*i,4)}, v9, {s(SRD_A,4)}, s56 offen {self.o.get('out_aux', 'sc1 nt')}")

    def g2(self):
        e = self.e
        Lc = self.newlabel("g2comp"); Le = self.newlabel("g2end")
        e(f"s_cmp_lt_u32 {s(S_WV)}, 4")
        e(f"s_cbranch_scc1 {Lc}")
        self.g2_loader()
        L0 = self.newlabel("g2ep")
        e(f"s_cmp_lg_u32 {s(S_WV)}, 4")
        e(f"s_cbranch_scc1 {L0}")
        e("s_cmp_lg_u32 s2, 0")
        e(f"s_cbranch_scc1 {L0}")
        e(f"v_mov_b32 v254, {s(S_EP)}")
        e(f"v_mov_b32 v255, {WS_EPOCH}")
        e("s_mov_b64 exec, 1")
        e(f"buffer_store_dword v254, v255, {s(SRD_WS,4)}, 0 offen sc1")
        e("s_mov_b64 exec, -1")
        self.label(L0)
        e(f"s_branch {Le}")
        self.label(Lc)
        self.g2_compute()
        self.g2_epilogue()
        self.g2_epilogue2()
        self.label(Le)

    def finish(self):
        self.label("L_end")
        self.e("s_endpgm")

def wrap(body, lds=LDS_BYTES):
    hdr = f"""; Kernarg layout for this problem (112 bytes, ptrs only, base s[0:1]):
;
; One persistent launch, 256 workgroups (one per CU) x 8 waves, four phases handed over through d_ws
;   P : kv = shortconv(k)*v transposed per channel; x transposed; LayerNorm statistics of x
;   C : long causal convolution per channel as block-Toeplitz bf16 MFMA (fp32 accumulate), gate, residual -> h^T
; @launch grid=(256,1,1) block=(512,1,1) lds={lds}
.amdgcn_target "amdgcn-amd-amdhsa--gfx950"
.text
.globl {KNAME}
.p2align 8
.type {KNAME},@function
{KNAME}:
"""
    tail = f"""
.section .rodata,"a"
.p2align 6
.amdhsa_kernel {KNAME}
  .amdhsa_next_free_vgpr 256
  .amdhsa_next_free_sgpr 102
  .amdhsa_accum_offset 256
  .amdhsa_group_segment_fixed_size 0
  .amdhsa_kernarg_size 112
  .amdhsa_user_sgpr_count 2
  .amdhsa_user_sgpr_kernarg_segment_ptr 1
  .amdhsa_system_sgpr_workgroup_id_x 1
  .amdhsa_float_denorm_mode_32 3
.end_amdhsa_kernel
"""
    return hdr + body + tail

def build(opts, ret_g=False):
    g = G(opts)
    g.prologue()
    g.stamp("start", defer=True)
    ph = opts["phases"]
    if "p" in ph:
        g.phase_p()
    else:
        g.epoch_ready()
    if "c" in ph:
        g.phase_c()
        g.stamp("c_end")
        g.signal(3, pf_w2=(opts.get("prefetch_w", True) and opts.get("pf2_at") == "sig"))
        g.stamp("c_sig")
    if "g1" in ph:
        g.g1()
        g.stamp("g1_end")
    if "g2" in ph:
        g.g2()
        g.stamp("g2_end")
    g.stamp_flush()
    g.finish()
    src = wrap(g.finalize())
    return (src, g) if ret_g else src

if __name__ == "__main__":
    out = build(dict(phases=["p", "c", "g1", "g2"]))
    path = sys.argv[1] if len(sys.argv) > 1 else "sequential_preLN__ssm_conv_h3__mixer_channel_mlp__prompt.s"
    open(path, "w").write(out)
    print("wrote", path, len(out))
```

```python
import sys
from asmb import Asm, v, s

KNAME = "sequential_preLN__ssm_conv_h3__mixer_channel_mlp__prompt_kernel"
S_, D_, F_ = 2048, 1024, 3584

WS_FLAGS = 0
WS_EPOCH = 32768
WS_ST    = 65536
WS_TSP   = 131072
WS_CSP   = 393216
WS_STAMP = 786432
WS_XR    = 1 << 20
WS_XT    = 5 << 20
WS_HT    = 9 << 20
WS_HM    = 13 << 20
WS_EX    = 28 << 20
WS_SIZE  = 64 << 20

S_X, S_K, S_V, S_SH, S_SSMK, S_SSMD, S_BX, S_W1 = 8, 10, 12, 14, 16, 18, 20, 22
S_B1, S_W2, S_B2, S_OUT = 24, 26, 28, 30
S_DBG, S_WS = 32, 34
SRD_WS, SRD_A, SRD_B, SRD_C = 36, 40, 44, 48
S_WV, S_XI, S_J, S_EP = 52, 53, 54, 55

LDS_BYTES = 163840

class G(Asm):
    def __init__(self, opts):
        super().__init__()
        self.o = opts
        self.stamp_names = []
        self.deferred = []
        self.nt = " nt" if opts.get("nt", False) else ""

    def srd(self, dst, ptr, nbytes):
        self.e(f"s_mov_b32 {s(dst)}, {s(ptr)}")
        self.e(f"s_mov_b32 {s(dst+1)}, {s(ptr+1)}")
        self.e(f"s_mov_b32 {s(dst+2)}, {nbytes}")
        self.e(f"s_mov_b32 {s(dst+3)}, 0x20000")

    def stamp(self, name, defer=False):
        if not self.o.get("stamps"): return
        if name in self.stamp_names: i = self.stamp_names.index(name)
        else:
            i = len(self.stamp_names)
            assert i < 32
            self.stamp_names.append(name)
        op = 's_memtime' if self.o.get('cyc') else 's_memrealtime'
        if defer:
            k = len(self.deferred)
            assert k < 5
            self.deferred.append((i, 70 + 2*k))
            self.e(f"{op} s[{70+2*k}:{71+2*k}]")
            return
        self.e(f"{op} s[100:101]")
        self.e("s_waitcnt lgkmcnt(0)")
        self.e(f"v_writelane_b32 v253, s100, {i}")

    def stamp_commit(self):
        if not self.o.get("stamps"): return
        self.e("s_waitcnt lgkmcnt(0)")
        for i, r in self.deferred: self.e(f"v_writelane_b32 v253, s{r}, {i}")
        self.deferred = []

    def tick(self, i): pass
    def tick_flush(self, n): pass

    def stamp_flush_debug(self):
        e = self.e
        sel = self.o["dbg_sel"]
        self.srd(SRD_A, S_DBG, 256)
        for wave in (0, 4):
            L = self.newlabel("dbgf")
            e(f"s_cmp_lg_u32 {s(S_WV)}, {wave}")
            e(f"s_cbranch_scc1 {L}")
            for i, (nm, w) in enumerate(sel):
                if w != wave: continue
                idx = self.stamp_names.index(nm)
                e(f"v_readlane_b32 s98, v253, {idx}")
                if nm == "start": e("s_not_b32 s98, s98")
                e("v_mov_b32 v254, s98")
                e(f"v_mov_b32 v255, {4*i}")
                e("s_mov_b64 exec, 1")
                e(f"buffer_atomic_umax v254, v255, {s(SRD_A,4)}, 0 offen")
                e("s_mov_b64 exec, -1")
            self.label(L)

    def stamp_flush(self):
        if not self.o.get("stamps"): return
        if self.o.get("dbg_sel"): return self.stamp_flush_debug()
        L = self.newlabel("tf")
        self.e(f"s_and_b32 s98, {s(S_WV)}, 3")
        self.e("s_cmp_lg_u32 s98, 0")
        self.e(f"s_cbranch_scc1 {L}")
        self.e(f"s_lshl_b32 s98, s2, 8")
        self.e(f"s_lshl_b32 s99, {s(S_WV)}, 5")
        self.e("s_add_u32 s98, s98, s99")
        self.e(f"s_add_u32 s98, s98, {WS_STAMP}")
        self.e("v_lshlrev_b32 v255, 2, v0")
        self.e("v_add_u32 v255, s98, v255")
        self.e("s_mov_b32 exec_hi, 0")
        self.e(f"buffer_store_dword v253, v255, {s(SRD_WS,4)}, 0 offen")
        self.e("s_mov_b64 exec, -1")
        self.label(L)

    def prologue(self):
        e = self.e
        e("s_cmp_ge_u32 s2, 256")
        e("s_cbranch_scc1 L_end")
        e("s_load_dwordx16 s[8:23], s[0:1], 0")
        e("s_load_dwordx8 s[24:31], s[0:1], 64")
        e("s_load_dwordx4 s[32:35], s[0:1], 96")
        e("v_lshrrev_b32 v1, 6, v0")
        e(f"v_readfirstlane_b32 {s(S_WV)}, v1")
        e("v_and_b32 v0, 63, v0")
        e(f"s_and_b32 {s(S_XI)}, s2, 7")
        e(f"s_lshr_b32 {s(S_J)}, s2, 3")
        for r in range(200, 211): e(f"v_mov_b32 {v(r)}, 0")
        e(f"v_mov_b32 v2, {self.C_CNT}")
        e("v_mov_b32 v3, 0")
        e("v_lshl_add_u32 v2, v0, 2, v2")
        e("ds_write_b32 v2, v3")
        e("s_waitcnt lgkmcnt(0)")
        e("s_barrier")
        self.srd(SRD_WS, S_WS, WS_SIZE)
        e(f"s_load_dword {s(S_EP)}, {s(S_WS,2)}, {WS_EPOCH}")

    def lds_count(self, idx, target, then):
        e = self.e
        L = self.newlabel("cnt")
        e(f"v_mov_b32 v250, {self.C_CNT + 4*idx}")
        e("v_mov_b32 v251, 1")
        e("s_mov_b64 exec, 1")
        e("ds_add_rtn_u32 v252, v250, v251")
        e("s_waitcnt lgkmcnt(0)")
        e("v_readfirstlane_b32 s56, v252")
        e("s_mov_b64 exec, -1")
        if then is not None:
            e(f"s_cmp_eq_u32 s56, {target-1}")
            e(f"s_cbranch_scc0 {L}")
            then()
            self.label(L)

    def lds_wait(self, idx, target):
        e = self.e
        L = self.newlabel("lw"); Lx = self.newlabel("lwx")
        e(f"v_mov_b32 v250, {self.C_CNT + 4*idx}")
        e("s_mov_b32 s57, 0x400000")
        self.label(L)
        e("ds_read_b32 v251, v250")
        e("s_sub_u32 s57, s57, 1")
        e("s_cmp_eq_u32 s57, 0")
        e(f"s_cbranch_scc1 {Lx}")
        e("s_waitcnt lgkmcnt(0)")
        e("v_readfirstlane_b32 s56, v251")
        e(f"s_cmp_lt_u32 s56, {target}")
        e(f"s_cbranch_scc1 {L}")
        self.label(Lx)
        e("s_waitcnt lgkmcnt(0)")

    def code_prefetch(self):
        e = self.e
        e("s_getpc_b64 s[56:57]")
        self.label("L_pc")
        e(f"s_sub_u32 s56, s56, L_pc-{KNAME}")
        e("s_subb_u32 s57, s57, 0")
        e(f"s_lshl_b32 s60, {s(S_WV)}, 13")
        e("v_lshlrev_b32 v244, 7, v0")
        e("v_add_u32 v244, s60, v244")
        e(f"v_min_u32 v244, L_end-{KNAME}, v244")
        e("global_load_dword v245, v244, s[56:57]")

    def epoch_ready(self):
        e = self.e
        e("s_waitcnt lgkmcnt(0)")
        e(f"s_and_b32 {s(S_EP)}, {s(S_EP)}, 0xfffffff0")
        e(f"s_add_u32 {s(S_EP)}, {s(S_EP)}, 16")

    def signal(self, p, wave=0, pf_w2=False):
        e = self.e
        e("s_waitcnt vmcnt(0) lgkmcnt(0)")
        e("s_barrier")
        L = self.newlabel("sig")
        e(f"s_cmp_lg_u32 {s(S_WV)}, {wave}")
        e(f"s_cbranch_scc1 {L}")
        self.publish(p)
        self.label(L)
        if pf_w2:
            L = self.newlabel("sgp")
            e(f"s_cmp_ge_u32 {s(S_WV)}, 4")
            e(f"s_cbranch_scc1 {L}")
            self.prefetch_w(2, S_WV)
            self.label(L)

    def poll_all(self, p, t0=248, sleep=0, arr=0):
        e = self.e
        L = self.newlabel("poll"); Lx = self.newlabel("pollx")
        e(f"s_add_u32 s56, {s(S_EP)}, {p}")
        e(f"v_lshlrev_b32 {v(t0+4)}, 7, v0")
        if arr: e(f"v_add_u32 {v(t0+4)}, {8192*arr}, {v(t0+4)}")
        e("s_mov_b32 s57, 0x100000")
        self.label(L)
        if sleep: e(f"s_sleep {sleep}")
        e(f"buffer_load_dwordx4 {v(t0,4)}, {v(t0+4)}, {s(SRD_WS,4)}, 0 offen sc1")
        e("s_sub_u32 s57, s57, 1")
        e("s_cmp_eq_u32 s57, 0")
        e(f"s_cbranch_scc1 {Lx}")
        e("s_waitcnt vmcnt(0)")
        for i in range(4):
            e(f"v_subrev_u32 {v(t0+i)}, s56, {v(t0+i)}")
        e(f"v_max_u32 {v(t0)}, {v(t0)}, {v(t0+1)}")
        e(f"v_max3_u32 {v(t0)}, {v(t0)}, {v(t0+2)}, {v(t0+3)}")
        e(f"v_cmp_le_u32 vcc, 16, {v(t0)}")
        e(f"s_cbranch_vccnz {L}")
        self.label(Lx)
        e("s_waitcnt vmcnt(0)")

    def poll_group(self, p, t0=248, sleep=0, arr=0):
        e = self.e
        L = self.newlabel("pollg"); Lx = self.newlabel("pollgx")
        e(f"s_add_u32 s56, {s(S_EP)}, {p}")
        e(f"v_and_b32 {v(t0+4)}, 7, v0")
        e(f"v_lshlrev_b32 {v(t0+4)}, 7, {v(t0+4)}")
        e(f"s_lshl_b32 s57, {s(S_XI)}, 10")
        if arr: e(f"s_add_u32 s57, s57, {8192*arr}")
        e(f"v_add_u32 {v(t0+4)}, s57, {v(t0+4)}")
        e("s_mov_b32 s57, 0x100000")
        self.label(L)
        if sleep: e(f"s_sleep {sleep}")
        e("s_mov_b64 exec, 0xff")
        e(f"buffer_load_dwordx4 {v(t0,4)}, {v(t0+4)}, {s(SRD_WS,4)}, 0 offen sc1")
        e("s_sub_u32 s57, s57, 1")
        e("s_cmp_eq_u32 s57, 0")
        e(f"s_cbranch_scc1 {Lx}")
        e("s_waitcnt vmcnt(0)")
        for i in range(4):
            e(f"v_subrev_u32 {v(t0+i)}, s56, {v(t0+i)}")
        e(f"v_max_u32 {v(t0)}, {v(t0)}, {v(t0+1)}")
        e(f"v_max3_u32 {v(t0)}, {v(t0)}, {v(t0+2)}, {v(t0+3)}")
        e(f"v_cmp_le_u32 vcc, 16, {v(t0)}")
        e(f"s_cbranch_vccnz {L}")
        self.label(Lx)
        e("s_waitcnt vmcnt(0)")
        e("s_mov_b64 exec, -1")

    def wait_all(self, p, wave=0):
        e = self.e
        if self.o.get("nosync"):
            e("s_barrier"); return
        L = self.newlabel("wa")
        e(f"s_cmp_lg_u32 {s(S_WV)}, {wave}")
        e(f"s_cbranch_scc1 {L}")
        self.poll_all(p)
        self.label(L)
        e("s_barrier")

    def allreduce_add(self, regs, tmp):
        e = self.e
        for mod in ("quad_perm:[1,0,3,2]", "quad_perm:[2,3,0,1]", "row_half_mirror", "row_mirror"):
            for r in regs:
                e(f"v_add_f32_dpp {v(r)}, {v(r)}, {v(r)} {mod} row_mask:0xf bank_mask:0xf")
        for op in ("v_permlane16_swap_b32", "v_permlane32_swap_b32"):
            for r, t in zip(regs, tmp): e(f"v_mov_b32 {v(t)}, {v(r)}")
            for r, t in zip(regs, tmp): e(f"{op} {v(t)}, {v(r)}")
            for r, t in zip(regs, tmp): e(f"v_add_f32 {v(r)}, {v(r)}, {v(t)}")

    def round_bf16(self, dst, src):
        self.e(f"v_cvt_pk_bf16_f32 {v(dst)}, {v(src)}, {v(src)}")
        self.e(f"v_and_b32 {v(dst)}, 0xffff0000, {v(dst)}")

    C_HC, C_HSTR, C_HCH = 0, 4160, 16640
    C_XR, C_XCH = 66560, 4608
    C_ST = 84992
    C_EX = 101376
    C_XT = 134144
    C_CNT = 150528

    def unpack(self, dst, src, hi):
        if hi: self.e(f"v_and_b32 {v(dst)}, 0xffff0000, {v(src)}")
        else:  self.e(f"v_lshlrev_b32 {v(dst)}, 16, {v(src)}")

    def chC(self, dst):
        e = self.e
        e(f"s_and_b32 s58, {s(S_WV)}, 3")
        e(f"s_lshl_b32 s56, {s(S_XI)}, 7")
        e(f"s_lshl_b32 s57, {s(S_J)}, 2")
        e("s_add_u32 s56, s56, s57")
        e(f"s_add_u32 {s(dst)}, s56, s58")

    def lds_transpose_setup(self):
        e = self.e
        e(f"s_lshl_b32 s56, {s(S_WV)}, 12")
        e(f"s_add_u32 s56, s56, {self.C_EX}")
        e("v_xor_b32 v126, v1, v2")
        e("v_lshlrev_b32 v126, 4, v126")
        e("v_lshl_add_u32 v126, v2, 9, v126")
        e("v_add_u32 v126, s56, v126")
        e("v_lshrrev_b32 v127, 5, v0")
        e("v_lshl_add_u32 v128, v1, 7, s56")
        for i in range(4):
            e(f"v_add_u32 v129, {2*i}, v127")
            e("v_xor_b32 v129, v129, v2")
            e(f"v_lshl_add_u32 {v(130+i)}, v129, 4, v128")

    def h_loads(self):
        e = self.e
        e("s_lshl_b32 s56, s63, 12")
        e(f"s_add_u32 {s(SRD_C)}, {s(S_SSMK)}, s56")
        e(f"s_addc_u32 {s(SRD_C+1)}, {s(S_SSMK+1)}, 0")
        e(f"s_mov_b32 {s(SRD_C+2)}, 4096")
        e(f"s_mov_b32 {s(SRD_C+3)}, 0x20000")
        e("v_lshlrev_b32 v8, 4, v0")
        e("v_subrev_u32 v9, 32, v8")
        for it in range(5):
            if it: e(f"v_add_u32 v9, 1024, v9")
            e(f"buffer_load_dwordx4 {v(140+6*it,4)}, v9, {s(SRD_C,4)}, 0 offen{self.nt}")
            e(f"buffer_load_dwordx2 {v(140+6*it+4,2)}, v9, {s(SRD_C,4)}, 0 offen offset:16{self.nt}")

    def h_build(self, younger=0):
        e = self.e
        e(f"s_mul_i32 s56, s58, {self.C_HCH}")
        e("v_add_u32 v8, s56, v8")
        T = 172
        for it in range(5):
            a = 140 + 6*it
            e(f"s_waitcnt vmcnt({2*(4-it) + younger})")
            if it == 4: e("s_mov_b64 exec, 15")
            off = 1024 * it
            e(f"ds_write_b128 v8, {v(a,4)} offset:{self.C_HC + off}")
            for d in range(4): e(f"v_mov_b32 {v(T+d)}, {v(a+1+d)}")
            e(f"ds_write_b128 v8, {v(T,4)} offset:{self.C_HC + 2*self.C_HSTR + off}")
            for d in range(4): e(f"v_alignbit_b32 {v(T+4+d)}, {v(a+d+1)}, {v(a+d)}, 16")
            e(f"ds_write_b128 v8, {v(T+4,4)} offset:{self.C_HC + 1*self.C_HSTR + off}")
            for d in range(4): e(f"v_alignbit_b32 {v(T+8+d)}, {v(a+d+2)}, {v(a+d+1)}, 16")
            e(f"ds_write_b128 v8, {v(T+8,4)} offset:{self.C_HC + 3*self.C_HSTR + off}")
            T = 184 if T == 172 else 172
        e("s_mov_b64 exec, -1")

    def phase_p(self):
        e = self.e
        Lb = self.newlabel("p_b"); Le = self.newlabel("p_e")
        self.chC(63)
        e("v_lshrrev_b32 v1, 3, v0           ; pbk")
        e("v_and_b32 v2, 7, v0               ; cq")
        if self.o.get("p_rot"):
            e(f"s_add_u32 s56, {s(S_XI)}, {s(S_J)}")
            e("s_and_b32 s56, s56, 7")
            e("s_lshl_b32 s56, s56, 7")
        else:
            e(f"s_lshl_b32 s56, {s(S_XI)}, 7")
        e("s_lshl_b32 s57, s58, 5")
        e("s_add_u32 s59, s56, s57            ; 128cb + 32w")
        e("v_lshl_add_u32 v3, v2, 2, s59      ; ch0")
        e(f"s_lshl_b32 s56, {s(S_J)}, 6")
        e("v_lshl_add_u32 v4, v1, 3, s56")
        e("v_lshlrev_b32 v5, 11, v4")
        e("v_lshl_add_u32 v5, v3, 1, v5")
        e(f"s_cmp_ge_u32 {s(S_WV)}, 4")
        e(f"s_cbranch_scc1 {Lb}")
        self.srd(SRD_A, S_K, S_ * D_ * 2)
        self.srd(SRD_B, S_V, S_ * D_ * 2)
        self.srd(SRD_C, S_SH, D_ * 8)
        KD, VD, WD = 10, 32, 48
        e("v_subrev_u32 v120, 6144, v5")
        for i in range(1, 6): e(f"v_add_u32 {v(120+i)}, {4096*i}, v120")
        for i in range(11):
            e(f"buffer_load_dwordx2 {v(KD+2*i,2)}, {v(120+i//2)}, {s(SRD_A,4)}, 0 offen offset:{2048*(i&1)}{self.nt}")
        e("v_lshlrev_b32 v7, 3, v3            ; ch0*8")
        e(f"buffer_load_dwordx4 {v(WD,4)}, v7, {s(SRD_C,4)}, 0 offen")
        e(f"buffer_load_dwordx4 {v(WD+4,4)}, v7, {s(SRD_C,4)}, 0 offen offset:16")
        for p in range(8):
            i = p + 3
            e(f"buffer_load_dwordx2 {v(VD+2*p,2)}, {v(120+i//2)}, {s(SRD_B,4)}, 0 offen offset:{2048*(i&1)}{self.nt}")
        self.g2_b2_load()
        extra = 4
        if self.o.get("code_pf", True):
            self.code_prefetch(); extra += 1
        e("v_mov_b32 v8, 0"); e("v_mov_b32 v9, 0")
        e(f"s_mul_i32 s56, s58, {self.C_XCH}")
        e(f"s_add_u32 s56, s56, {self.C_XR + 4096}")
        e("v_lshl_add_u32 v6, v0, 3, s56")
        e("ds_write_b64 v6, v[8:9]")
        self.lds_transpose_setup()
        e("v_lshlrev_b32 v6, 4, v2")
        e(f"s_lshl_b32 s56, {s(S_J)}, 7")
        e("s_sub_u32 s56, 4080, s56")
        e("v_sub_u32 v6, s56, v6")
        e("v_add_u32 v7, s59, v1")
        e("v_lshl_add_u32 v6, v7, 12, v6")
        e(f"v_add_u32 v6, {WS_XR}, v6")
        for c in range(1, 4): e(f"s_mov_b32 {s(64+c)}, {8*4096*c}")
        e("s_mov_b32 s64, 0")
        WP, KP, R, VP, O = 56, 64, 86, 102, 104
        pass
        e(f"s_waitcnt vmcnt({8 + extra})")
        for cp in range(2):
            for j in range(4):
                self.unpack(WP + 2*j,     WD + 2*(2*cp)   + (j >> 1), j & 1)
                self.unpack(WP + 2*j + 1, WD + 2*(2*cp+1) + (j >> 1), j & 1)
            for i in range(11):
                self.unpack(KP + 2*i,     KD + 2*i + cp, 0)
                self.unpack(KP + 2*i + 1, KD + 2*i + cp, 1)
            if cp == 0:
                e(f"s_waitcnt vmcnt({extra})")
            for p in range(8):
                r = R + 2*p
                e(f"v_pk_mul_f32 {v(r,2)}, {v(KP+2*(p+3),2)}, {v(WP,2)}")
                for j in range(1, 4):
                    e(f"v_pk_fma_f32 {v(r,2)}, {v(KP+2*(p+3-j),2)}, {v(WP+2*j,2)}, {v(r,2)}")
                self.unpack(VP,     VD + 2*p + cp, 0)
                self.unpack(VP + 1, VD + 2*p + cp, 1)
                e(f"v_pk_mul_f32 {v(r,2)}, {v(r,2)}, {v(VP,2)}")
            for cc in range(2):
                c = 2*cp + cc
                for j in range(4):
                    e(f"v_cvt_pk_bf16_f32 {v(O+4*c+j)}, {v(R+2*(7-2*j)+cc)}, {v(R+2*(6-2*j)+cc)}")
                e(f"ds_write_b128 v126, {v(O+4*c,4)} offset:{128*c}")
        e("s_waitcnt lgkmcnt(0)")
        for i in range(4): e(f"ds_read_b128 {v(O+4*i,4)}, {v(130+i)} offset:{1024*i}")
        for i in range(4):
            e(f"s_waitcnt lgkmcnt({3-i})")
            e(f"buffer_store_dwordx4 {v(O+4*i,4)}, v6, {s(SRD_WS,4)}, {s(64+i)} offen {self.o.get('xr_aux', 'sc1')}")
        self.stamp("p_stored", defer=True)
        if self.o.get("x_late", False):
            e(f"v_mov_b32 v250, {self.C_CNT + 4*5}")
            e("v_mov_b32 v251, 1")
            e("s_mov_b64 exec, 1")
            e("ds_add_u32 v250, v251")
            e("s_mov_b64 exec, -1")
        e("s_and_b32 s56, s63, 0xfffffffe")
        e("s_lshl_b32 s56, s56, 1")
        e(f"s_load_dword s69, {s(S_SSMD,2)}, s56")
        self.epoch_ready()
        self.stamp_commit()
        e("s_waitcnt vmcnt(0)")
        self.lds_count(0, 4, lambda: self.publish(1))
        self.stamp("p_sig")
        e(f"s_branch {Le}")
        self.label(Lb)
        if self.o.get("stamps"): self.deferred = [(self.stamp_names.index("start"), 70)]
        self.srd(SRD_A, S_X, S_ * D_ * 2)
        XD, SD = 10, 26
        e("s_lshl_b32 s56, s2, 3")
        e("s_lshl_b32 s57, s58, 1")
        e("s_add_u32 s62, s56, s57            ; R0 = 8w + 2w'")
        e("s_lshl_b32 s56, s62, 11")
        e("v_lshl_add_u32 v6, v0, 4, s56")
        for i in range(4):
            e(f"buffer_load_dwordx4 {v(SD+4*i,4)}, v6, {s(SRD_A,4)}, 0 offen offset:{1024*i}{self.nt}")
        self.h_loads()
        e("v_mov_b32 v120, v5")
        for i in range(1, 4): e(f"v_add_u32 {v(120+i)}, {4096*i}, v5")
        for p in range(8):
            e(f"buffer_load_dwordx2 {v(XD+2*p,2)}, {v(120+p//2)}, {s(SRD_A,4)}, 0 offen offset:{2048*(p&1)}{self.nt}")
        self.g1_b1_load()
        e("s_and_b32 s56, s63, 0xfffffffe")
        e("s_lshl_b32 s56, s56, 1")
        e(f"s_load_dword s69, {s(S_SSMD,2)}, s56")
        U = 44
        e("s_waitcnt vmcnt(19)")
        for r in range(2):
            for d in range(8):
                self.unpack(U+16*r+2*d, SD+8*r+d, 0)
                self.unpack(U+16*r+2*d+1, SD+8*r+d, 1)
        SUM = [80, 81]; TMP = [82, 83]; VAR = [86, 87]
        for r in range(2):
            b = U + 16*r
            e(f"v_pk_add_f32 v[84:85], {v(b,2)}, {v(b+2,2)}")
            for d in range(2, 8):
                e(f"v_pk_add_f32 v[84:85], v[84:85], {v(b+2*d,2)}")
            e(f"v_add_f32 {v(SUM[r])}, v84, v85")
        self.allreduce_add(SUM, TMP)
        for r in range(2):
            e(f"v_mul_f32 {v(SUM[r])}, 0x3a800000, {v(SUM[r])}")
        for r in range(2):
            b = U + 16*r
            for d in range(0, 16, 2):
                e(f"v_sub_f32 {v(b+d)}, {v(b+d)}, {v(SUM[r])}")
                e(f"v_sub_f32 {v(b+d+1)}, {v(b+d+1)}, {v(SUM[r])}")
            e(f"v_pk_mul_f32 v[84:85], {v(b,2)}, {v(b,2)}")
            for d in range(1, 8):
                e(f"v_pk_fma_f32 v[84:85], {v(b+2*d,2)}, {v(b+2*d,2)}, v[84:85]")
            e(f"v_add_f32 {v(VAR[r])}, v84, v85")
        self.allreduce_add(VAR, TMP)
        ST = 88
        for r in range(2):
            e(f"v_mul_f32 {v(VAR[r])}, 0x3a800000, {v(VAR[r])}")
            self.round_bf16(VAR[r], VAR[r])
            e(f"v_add_f32 {v(VAR[r])}, 0x3727c5ac, {v(VAR[r])}")
            self.round_bf16(VAR[r], VAR[r])
            e(f"v_sqrt_f32 {v(VAR[r])}, {v(VAR[r])}")
            self.round_bf16(VAR[r], VAR[r])
            e(f"v_rcp_f32 {v(ST+2*r+1)}, {v(VAR[r])}")
            self.round_bf16(ST + 2*r, SUM[r])
        e("s_lshl_b32 s56, s62, 3")
        e(f"s_add_u32 s56, s56, {WS_ST}")
        e("v_mov_b32 v6, s56")
        e("s_mov_b64 exec, 1")
        e(f"buffer_store_dwordx4 {v(ST,4)}, v6, {s(SRD_WS,4)}, 0 offen sc1")
        e("s_mov_b64 exec, -1")
        self.h_build(younger=10)
        e("s_waitcnt lgkmcnt(0)")
        self.lds_count(1, 4, None)
        self.stamp_commit()
        self.stamp("p_hb")
        self.epoch_ready()
        e("s_waitcnt vmcnt(0)")
        self.lds_count(2, 4, lambda: self.publish(1, arr=1))
        self.stamp("p_stsig")
        self.lds_transpose_setup()
        e("v_lshlrev_b32 v6, 4, v2")
        e(f"s_lshl_b32 s56, {s(S_J)}, 7")
        e("v_add_u32 v6, s56, v6")
        e("v_add_u32 v7, s59, v1")
        e("v_lshl_add_u32 v6, v7, 12, v6")
        e(f"v_add_u32 v7, {WS_XT}, v6")
        for c in range(1, 4): e(f"s_mov_b32 {s(64+c)}, {8*4096*c}")
        e("s_mov_b32 s64, 0")
        e("s_mov_b32 s60, 0x05040100")
        e("s_mov_b32 s61, 0x07060302")
        O = 104
        for c in range(4):
            sel = s(61) if c & 1 else s(60)
            for j in range(4):
                e(f"v_perm_b32 {v(O+4*c+j)}, {v(XD+2*(2*j+1)+(c>>1))}, {v(XD+2*(2*j)+(c>>1))}, {sel}")
            e(f"ds_write_b128 v126, {v(O+4*c,4)} offset:{128*c}")
        for i in range(4): e(f"ds_read_b128 {v(O+4*i,4)}, {v(130+i)} offset:{1024*i}")
        e("s_waitcnt lgkmcnt(0)")
        if self.o.get("xt_late", True):
            self.lds_wait(6, 4)
        for i in range(4):
            e(f"buffer_store_dwordx4 {v(O+4*i,4)}, v7, {s(SRD_WS,4)}, {s(64+i)} offen {self.o.get('xt_aux', 'sc1')}")
        self.stamp("p_stored")
        e("s_waitcnt vmcnt(0)")
        self.lds_count(7, 4, lambda: self.publish(1, arr=2))
        self.stamp("p_sig")
        self.label(Le)

    def publish(self, p, arr=0):
        e = self.e
        e(f"s_add_u32 s56, {s(S_EP)}, {p}")
        e("v_mov_b32 v254, s56")
        e(f"s_lshl_b32 s57, {s(S_XI)}, 10")
        e(f"s_lshr_b32 s56, {s(S_J)}, 2")
        e("s_lshl_b32 s56, s56, 7")
        e("s_add_u32 s57, s57, s56")
        e(f"s_and_b32 s56, {s(S_J)}, 3")
        e("s_lshl_b32 s56, s56, 2")
        e("s_add_u32 s57, s57, s56")
        if arr: e(f"s_add_u32 s57, s57, {8192*arr}")
        e("v_mov_b32 v255, s57")
        e("s_mov_b64 exec, 1")
        e(f"buffer_store_dword v254, v255, {s(SRD_WS,4)}, 0 offen sc1")
        e("s_mov_b64 exec, -1")

    def phase_c(self):
        e = self.e
        Lh = self.newlabel("c_help"); Lj = self.newlabel("c_join"); Lep = self.newlabel("c_epi")
        e(f"s_cmp_ge_u32 {s(S_WV)}, 4")
        e(f"s_cbranch_scc1 {Lh}")
        self.chC(63)
        e("v_lshlrev_b32 v1, 4, v0            ; lane*16")
        Lp = self.newlabel("c_p"); Lp2 = self.newlabel("c_p2")
        e(f"s_cmp_eq_u32 {s(S_WV)}, 0")
        e(f"s_cbranch_scc0 {Lp}")
        if not self.o.get("nosync"): self.poll_group(1, sleep=self.o.get("g_sleep", 4))
        self.lds_count(4, 1, None)
        e(f"s_branch {Lp2}")
        self.label(Lp)
        self.lds_wait(4, 1)
        self.label(Lp2)
        self.stamp("c_start")
        e("s_lshl_b32 s56, s63, 12")
        e(f"s_add_u32 s60, s56, {WS_XR}")
        e(f"s_mul_i32 s56, s58, {self.C_XCH}")
        e(f"s_add_u32 m0, s56, {self.C_XR}")
        for i in range(4):
            e(f"buffer_load_dwordx4 v1, {s(SRD_WS,4)}, s60 offen sc1 lds")
            if i < 3: e("s_add_u32 m0, m0, 1024"); e("s_add_u32 s60, s60, 1024")
        if self.o.get("xt_late", True):
            e(f"v_mov_b32 v250, {self.C_CNT + 4*6}")
            e("v_mov_b32 v251, 1")
            e("s_mov_b64 exec, 1")
            e("ds_add_u32 v250, v251")
            e("s_mov_b64 exec, -1")
        e("v_and_b32 v2, 15, v0               ; n / m")
        e("v_lshrrev_b32 v3, 4, v0            ; g / rho")
        e("v_add_u32 v6, 1, v2")
        e("v_and_b32 v7, 3, v6")
        e(f"v_mul_u32_u24 v7, {self.C_HSTR}, v7")
        e("v_and_b32 v6, 0x1c, v6")
        e("v_lshl_add_u32 v7, v6, 1, v7")
        e("v_lshl_add_u32 v7, v3, 4, v7")
        e(f"s_mul_i32 s56, s58, {self.C_HCH}")
        e(f"s_add_u32 s56, s56, {self.C_HC}")
        e("v_add_u32 v8, s56, v7              ; v8 = A base")
        e("v_lshlrev_b32 v6, 5, v2")
        e("v_lshlrev_b32 v7, 4, v3")
        e("v_sub_u32 v6, v7, v6")
        e(f"s_mul_i32 s56, s58, {self.C_XCH}")
        e(f"s_add_u32 s56, s56, {self.C_XR + 480}")
        e("v_add_u32 v9, s56, v6              ; v9 = B base")
        self.lds_wait(1, 4)
        e("s_waitcnt vmcnt(0)")
        if self.o.get("tlb_touch", False): self.tlb_touch()
        if self.o.get("prefetch_w1", False): self.prefetch_w(1, 58)
        if self.o.get("prefetch_w", True) and self.o.get("pf2_at") == "conv": self.prefetch_w(2, 58)
        self.stamp("c_loop")
        ACC = 10
        FA = [42, 106]; FB = [74, 138]
        def reads(st, tt):
            r = []
            for i in range(8):
                r.append(f"ds_read_b128 {v(FB[st]+4*i,4)}, v9 offset:{512*(7-i) + 64*tt}")
                for hh in range(2):
                    r.append(f"ds_read_b64 {v(FA[st]+4*i+2*hh,2)}, v8 offset:{512*i + 64*tt + 8*hh}")
            return r
        pairs = sorted([(q, cp) for q in range(8) for cp in range(8 - q)], key=lambda t: (max(t), t[0] + t[1]))
        for r in reads(0, 0): e(r)
        for tt in range(8):
            st = tt & 1
            e("s_waitcnt lgkmcnt(0)")
            nxt = reads(st ^ 1, tt + 1) if tt < 7 else []
            seen = set(); i = 0
            for (q, cp) in pairs:
                c = q + cp
                a = ACC + 4*c
                src = "0" if (tt == 0 and c not in seen) else v(a, 4)
                seen.add(c)
                e(f"v_mfma_f32_16x16x32_bf16 {v(a,4)}, {v(FA[st]+4*q,4)}, {v(FB[st]+4*cp,4)}, {src}")
                if i < len(nxt): e(nxt[i]); i += 1
        self.stamp("c_loopend")
        e(f"s_lshl_b32 s56, s58, 12")
        e(f"s_add_u32 s56, s56, {self.C_EX + 16384}")
        e("v_add_u32 v6, s56, v1")
        for i in range(4): e(f"ds_write_b128 v6, {v(ACC+16+4*i,4)} offset:{1024*i}")
        e("s_waitcnt lgkmcnt(0)")
        e("s_barrier")
        e(f"s_branch {Lep}")
        self.label(Lh)
        early = "g1" in self.o["phases"] and self.o.get("g1_early", True)
        if early:
            self.g1_ids()
            self.g1_loader_setup()
        self.chC(63)
        Lq = self.newlabel("c_q"); Lq2 = self.newlabel("c_q2")
        e("v_lshlrev_b32 v1, 4, v0")
        Lx = self.newlabel("c_x"); L5 = self.newlabel("c_w5")
        par = self.o.get("x_par", True)
        e(f"s_cmp_eq_u32 {s(S_WV)}, 4")
        e(f"s_cbranch_scc0 {Lq}")
        if not self.o.get("nosync"): self.poll_all(1, sleep=self.o.get('x_sleep', 8), arr=1)
        self.stamp("c_xpoll")
        e(f"s_mov_b32 s60, {WS_ST}")
        e(f"s_mov_b32 m0, {self.C_ST}")
        for i in range(16):
            e(f"buffer_load_dwordx4 v1, {s(SRD_WS,4)}, s60 offen sc1 lds")
            if i < 15: e("s_add_u32 m0, m0, 1024"); e("s_add_u32 s60, s60, 1024")
        if par:
            self.lds_wait(8, 1)
        else:
            if not self.o.get("nosync"): self.poll_group(1, sleep=self.o.get('g_sleep', 4), arr=2)
            self.stamp("c_xtpoll")
            self.lds_count(8, 1, None)
        e(f"s_branch {Lx}")
        self.label(Lq)
        if par:
            e(f"s_cmp_eq_u32 {s(S_WV)}, 5")
            e(f"s_cbranch_scc0 {L5}")
            if not self.o.get("nosync"): self.poll_group(1, sleep=self.o.get('g_sleep', 4), arr=2)
            self.stamp("c_xtpoll")
            self.lds_count(8, 1, None)
            e(f"s_branch {Lx}")
            self.label(L5)
        self.lds_wait(8, 1)
        self.label(Lx)
        e("s_lshl_b32 s56, s63, 12")
        e(f"s_add_u32 s60, s56, {WS_XT}")
        e("s_lshl_b32 s56, s58, 12")
        e(f"s_add_u32 m0, s56, {self.C_XT}")
        for i in range(4):
            e(f"buffer_load_dwordx4 v1, {s(SRD_WS,4)}, s60 offen sc1 lds")
            if i < 3: e("s_add_u32 m0, m0, 1024"); e("s_add_u32 s60, s60, 1024")
        e("s_waitcnt vmcnt(0)")
        self.stamp("c_xjob")
        if self.o.get("prealloc", False):
            L5 = self.newlabel("c_5")
            e(f"s_cmp_eq_u32 {s(S_WV)}, 5")
            e(f"s_cbranch_scc0 {L5}")
            e("v_lshrrev_b32 v1, 4, v0")
            e("v_lshlrev_b32 v1, 18, v1")
            e("v_and_b32 v2, 15, v0")
            e("v_lshl_add_u32 v1, v2, 4, v1")
            e("s_and_b32 s56, s63, 0xfffffffc")
            e("s_lshl_b32 s56, s56, 8")
            e(f"s_add_u32 s60, s56, {WS_HT}")
            for c in range(4):
                for mq in range(4):
                    e(f"s_add_u32 s56, s60, {c*256 + mq*4*262144}")
                    e(f"buffer_store_dwordx4 v[12:15], v1, {s(SRD_WS,4)}, s56 offen sc1")
            e("s_waitcnt vmcnt(0)")
            self.label(L5)
        if "g2" in self.o["phases"] and self.o.get("sent_c"):
            e(f"s_cmp_lt_u32 {s(S_WV)}, 6")
            e(f"s_cbranch_scc1 {Lq2}")
            e("s_lshl_b32 s56, s2, 15")
            e(f"s_sub_u32 s57, {s(S_WV)}, 6")
            e("s_lshl_b32 s57, s57, 14")
            e("s_add_u32 s56, s56, s57")
            e(f"s_add_u32 s60, s56, {WS_EX}")
            e("v_lshlrev_b32 v1, 4, v0")
            for r in range(4): e(f"v_mov_b32 {v(12+r)}, -1")
            for i in range(16):
                e(f"buffer_store_dwordx4 v[12:15], v1, {s(SRD_WS,4)}, s60 offen sc1")
                if i < 15: e("s_add_u32 s60, s60, 1024")
        self.label(Lq2)
        self.stamp("c_loopend")
        e("s_barrier")
        self.chC(63)
        e("v_lshlrev_b32 v1, 4, v0")
        e("v_and_b32 v2, 15, v0")
        e("v_lshrrev_b32 v3, 4, v0")
        e(f"s_lshl_b32 s56, s58, 12")
        e(f"s_add_u32 s56, s56, {self.C_EX + 16384}")
        e("v_add_u32 v6, s56, v1")
        for i in range(4): e(f"ds_read_b128 {v(ACC+4*i,4)}, v6 offset:{1024*i}")
        self.label(Lep)
        pass
        e(f"s_lshr_b32 s59, {s(S_WV)}, 2       ; kh")
        e("v_and_b32 v4, 1, v3")
        e("s_lshl_b32 s56, s59, 2")
        e("v_add_u32 v4, s56, v4")
        e("v_lshlrev_b32 v4, 8, v4")
        e("v_lshl_add_u32 v4, v2, 4, v4")
        e("v_lshrrev_b32 v5, 1, v3")
        e("v_lshl_add_u32 v4, v5, 3, v4       ; v4 = s (pair 0)")
        KV, STT, XE = 42, 50, 82
        e("v_sub_u32 v5, 2040, v4")
        e("v_lshlrev_b32 v5, 1, v5")
        e(f"s_mul_i32 s56, s58, {self.C_XCH}")
        e(f"s_add_u32 s56, s56, {self.C_XR - 1024}")
        e("v_add_u32 v5, s56, v5")
        e(f"ds_read_b128 {v(KV,4)}, v5 offset:1024")
        e(f"ds_read_b128 {v(KV+4,4)}, v5")
        e("s_lshl_b32 s56, s58, 12")
        e(f"s_add_u32 s56, s56, {self.C_XT}")
        e("v_lshl_add_u32 v5, v4, 1, s56")
        e(f"ds_read_b128 {v(XE,4)}, v5")
        e(f"ds_read_b128 {v(XE+4,4)}, v5 offset:1024")
        e("v_lshlrev_b32 v5, 3, v4")
        e(f"v_add_u32 v5, {self.C_ST}, v5")
        for p in range(2):
            for i in range(4):
                e(f"ds_read_b128 {v(STT+16*p+4*i,4)}, v5 offset:{4096*p + 16*i}")
        e("v_lshrrev_b32 v5, 7, v4")
        e("v_lshlrev_b32 v5, 18, v5")
        e("v_and_b32 v6, 127, v4")
        e("v_lshl_add_u32 v5, v6, 1, v5")
        e("s_lshl_b32 s56, s63, 8")
        e(f"s_add_u32 s60, s56, {WS_HT}")
        e(f"s_add_u32 s62, s60, {4 << 18}")
        e("s_and_b32 s56, s63, 1")
        e("s_lshl_b32 s56, s56, 4")
        e("s_lshr_b32 s61, s69, s56")
        e("s_lshl_b32 s61, s61, 16")
        e("s_waitcnt lgkmcnt(0)")
        H = 110
        for p in range(2):
            a = ACC + 8*p; b = a + 4
            for r in range(4):
                e(f"v_permlane16_swap_b32 {v(a+r)}, {v(b+r)}")
            for el in range(8):
                y = a + el
                xr_ = XE + 4*p + (el >> 1)
                kj = KV + 4*p + ((7 - el) >> 1)
                t0 = H + 16 + (el & 1) * 4
                self.unpack(t0, xr_, el & 1)
                self.unpack(t0 + 1, kj, 1 - (el & 1))
                m_ = STT + 16*p + 2*el
                e(f"v_fmac_f32 {v(y)}, s61, {v(t0+1)}")
                e(f"v_sub_f32 {v(t0+2)}, {v(t0)}, {v(m_)}")
                e(f"v_mul_f32 {v(t0+2)}, {v(t0+2)}, {v(m_+1)}")
                e(f"v_fma_f32 {v(H+el)}, {v(t0+2)}, {v(y)}, {v(t0)}")
            O = H + 8
            for j in range(4):
                e(f"v_cvt_pk_bf16_f32 {v(O+j)}, {v(H+2*j)}, {v(H+2*j+1)}")
            e(f"buffer_store_dwordx4 {v(O,4)}, v5, {s(SRD_WS,4)}, {s(60 if p == 0 else 62)} offen {self.o.get('ht_aux', 'sc1')}")
            H = 140

    def tlb_touch(self):
        e = self.e
        L = self.newlabel("tlb")
        e(f"s_cmp_lg_u32 {s(S_WV)}, 0")
        e(f"s_cbranch_scc1 {L}")
        e("v_min_u32 v244, 23, v0")
        e("v_lshlrev_b32 v244, 20, v244")
        e(f"v_add_u32 v244, {WS_HM + 4096}, v244")
        e(f"buffer_load_dword v243, v244, {s(SRD_WS,4)}, 0 offen")
        self.srd(SRD_A, S_OUT, S_ * D_ * 2)
        e("v_min_u32 v244, 3, v0")
        e("v_lshlrev_b32 v244, 20, v244")
        e(f"buffer_load_dword v242, v244, {s(SRD_A,4)}, 0 offen")
        self.label(L)

    def prefetch_w(self, which, swave):
        e = self.e
        ptr = S_W1 if which == 1 else S_W2
        gran = self.o.get("pf_gran", 128)
        self.srd(SRD_C, ptr, D_ * F_ * 2)
        e("s_lshl_b32 s56, s2, 2")
        e(f"s_add_u32 s56, s56, {s(swave)}")
        e("s_mul_i32 s56, s56, 56*128")
        e("v_min_u32 v247, 55, v0")
        e("v_lshlrev_b32 v247, 7, v247")
        e("v_add_u32 v247, s56, v247")
        e(f"buffer_load_dword v246, v247, {s(SRD_C,4)}, 0 offen")
        if gran == 64: e(f"buffer_load_dword v245, v247, {s(SRD_C,4)}, 0 offen offset:64")

    G1_STG = 45056
    G1_TOK, G1_W = 0, 16384
    G1_AST = 135168
    G1_CS  = 136192
    G1_B1  = 137216
    G1_CNT = 138240

    def g1_ids(self):
        e = self.e
        e(f"s_and_b32 s56, {s(S_XI)}, 1")
        e("s_lshl_b32 s56, s56, 3")
        e(f"s_and_b32 s57, {s(S_J)}, 7")
        e("s_add_u32 s60, s56, s57          ; mb")
        e(f"s_lshr_b32 s56, {s(S_XI)}, 1")
        e("s_lshl_b32 s56, s56, 2")
        e(f"s_lshr_b32 s57, {s(S_J)}, 3")
        e("s_add_u32 s61, s56, s57          ; nb")

    def wg_of(self, dst, vmb, vnb, t):
        e = self.e
        e(f"v_lshrrev_b32 {v(dst)}, 3, {v(vmb)}")
        e(f"v_lshrrev_b32 {v(t)}, 2, {v(vnb)}")
        e(f"v_lshl_add_u32 {v(dst)}, {v(t)}, 1, {v(dst)}      ; x")
        e(f"v_and_b32 {v(t)}, 7, {v(vmb)}")
        e(f"v_lshl_add_u32 {v(dst)}, {v(t)}, 3, {v(dst)}")
        e(f"v_and_b32 {v(t)}, 3, {v(vnb)}")
        e(f"v_lshl_add_u32 {v(dst)}, {v(t)}, 6, {v(dst)}")

    def flag_addr(self, dst, t):
        e = self.e
        e(f"v_and_b32 {v(t)}, 7, {v(dst)}")
        e(f"v_lshlrev_b32 {v(t)}, 10, {v(t)}")
        e(f"v_lshrrev_b32 {v(t+1)}, 5, {v(dst)}")
        e(f"v_lshl_add_u32 {v(t)}, {v(t+1)}, 7, {v(t)}")
        e(f"v_bfe_u32 {v(dst)}, {v(dst)}, 3, 2")
        e(f"v_lshl_add_u32 {v(dst)}, {v(dst)}, 2, {v(t)}")

    def poll_addr(self, p, va, vd):
        e = self.e
        L = self.newlabel("pa"); Lx = self.newlabel("pax")
        e(f"s_add_u32 s56, {s(S_EP)}, {p}")
        e("s_mov_b32 s57, 0x100000")
        self.label(L)
        e(f"buffer_load_dword {v(vd)}, {v(va)}, {s(SRD_WS,4)}, 0 offen sc1")
        e("s_sub_u32 s57, s57, 1")
        e("s_cmp_eq_u32 s57, 0")
        e(f"s_cbranch_scc1 {Lx}")
        e("s_waitcnt vmcnt(0)")
        e(f"v_subrev_u32 {v(vd)}, s56, {v(vd)}")
        e(f"v_cmp_le_u32 vcc, 16, {v(vd)}")
        e(f"s_cbranch_vccnz {L}")
        self.label(Lx)
        e("s_waitcnt vmcnt(0)")

    def g1_loader_setup(self):
        e = self.e
        e(f"s_sub_u32 s58, {s(S_WV)}, 4       ; lw")
        e("v_lshrrev_b32 v13, 4, v0          ; g = lane>>4")
        e("v_and_b32 v14, 15, v0             ; p")
        e("v_lshrrev_b32 v15, 1, v14         ; b'")
        e("v_and_b32 v16, 1, v14             ; half")
        e("v_xor_b32 v15, v15, v13           ; b' ^ (row&3)")
        e("s_lshl_b32 s59, s58, 4")
        e("v_add_u32 v17, s59, v13")
        e("v_lshlrev_b32 v17, 8, v17         ; *256")
        e("v_lshl_add_u32 v17, v16, 4, v17")
        e("s_lshl_b32 s59, s60, 18           ; mb*262144")
        e(f"s_add_u32 s59, s59, {WS_HT}")
        e("v_add_u32 v17, s59, v17")
        for ii in range(4):
            x4 = 4 if (ii >> 1) & 1 else 0
            e(f"v_xor_b32 v18, {x4}, v15")
            e("v_lshl_add_u32 v18, v18, 5, v17")
            e(f"v_add_u32 {v(200+ii)}, {ii*4*256}, v18")
        e("s_mov_b32 s59, 0x924924a          ; ceil(2^32/28)")
        for ii in range(7):
            e(f"v_add_u32 v13, {64*ii}, v0")
            e("v_mul_hi_u32 v14, s59, v13        ; row_local")
            e("v_mul_u32_u24 v15, 28, v14")
            e("v_sub_u32 v15, v13, v15           ; p")
            e("v_bfe_u32 v16, v14, 3, 1          ; bit3(row)")
            e("v_lshrrev_b32 v17, 1, v15         ; b'")
            e("v_xor_b32 v17, v17, v16           ; b")
            e("v_and_b32 v15, 1, v15")
            e("v_lshlrev_b32 v15, 4, v15")
            e("v_lshl_add_u32 v15, v17, 5, v15   ; b*32 + half*16")
            e("v_mul_u32_u24 v14, 7168, v14")
            e(f"v_add_u32 {v(204+ii)}, v14, v15")
        e("s_mul_i32 s59, s58, 16*7168")
        e("s_mul_i32 s57, s61, 448")
        e("s_add_u32 s59, s59, s57")
        for ii in range(7):
            e(f"v_add_u32 {v(204+ii)}, s59, {v(204+ii)}")

    def g1_loader_bases(self):
        e = self.e
        e(f"s_sub_u32 s58, {s(S_WV)}, 4       ; lw")
        e("s_lshl_b32 s62, s58, 12")
        e("s_mul_i32 s63, s58, 7168")
        e(f"s_add_u32 s63, s63, {self.G1_W}")

    def g1_issue_w(self, sbuf, sk):
        e = self.e
        if self.o.get("g1_nodma"): return
        e(f"s_add_u32 m0, {s(sbuf)}, s63")
        for ii in range(7):
            e(f"buffer_load_dwordx4 {v(204+ii)}, {s(SRD_B,4)}, {s(sk)} offen lds")
            if ii < 6: e("s_add_u32 m0, m0, 1024")

    def g1_issue_t(self, sbuf, sk):
        e = self.e
        if self.o.get("g1_nodma"): return
        e(f"s_add_u32 m0, {s(sbuf)}, s62")
        for ii in range(4):
            e(f"buffer_load_dwordx4 {v(200+ii)}, {s(SRD_WS,4)}, {s(sk)} offen {self.o.get('t_aux', 'sc1')} lds")
            if ii < 3: e("s_add_u32 m0, m0, 1024")

    def g1_next_k(self):
        e = self.e
        e("s_add_u32 s68, s68, 1")
        e("s_and_b32 s68, s68, 15")
        e(f"s_mul_i32 s65, s68, {64*7168}")
        e(f"s_lshl_b32 s66, s68, 14")

    def g1_side_col(self):
        e = self.e
        e("v_lshrrev_b32 v20, 4, v0          ; g")
        e("v_and_b32 v21, 15, v0")
        e("v_lshrrev_b32 v22, 2, v21         ; r")
        e("v_and_b32 v23, 3, v21             ; c")
        e("v_lshl_add_u32 v24, v20, 3, v22   ; row = 8g + r")
        e("v_and_b32 v25, 1, v20             ; g&1")
        e("v_mul_u32_u24 v27, 448, v24")
        e("v_lshl_add_u32 v27, v23, 3, v27")
        e(f"v_add_u32 v27, {self.G1_W}, v27")
        WF, ONE, DC = 48, 80, 100
        for i in range(4):
            e(f"s_add_u32 s56, s58, {4*i}")
            e("s_min_u32 s56, s56, 13")
            e(f"s_mov_b32 {s(84+i)}, s56")
            e("v_xor_b32 v28, s56, v25")
            e(f"v_lshl_add_u32 {v(116+i)}, v28, 5, v27")
        for i in range(4):
            for u in range(2):
                for h in range(2):
                    e(f"ds_read_b64_tr_b16 {v(WF+8*i+4*u+2*h,2)}, {v(116+i)} offset:{u*32*448 + h*4*448}")
        for r in range(4): e(f"v_mov_b32 {v(ONE+r)}, 0x3f803f80")
        e("s_waitcnt lgkmcnt(0)")
        for u in range(2):
            for i in range(4):
                e(f"v_mfma_f32_16x16x32_bf16 {v(DC+4*i,4)}, {v(WF+8*i+4*u,4)}, {v(ONE,4)}, {'0' if u == 0 else v(DC+4*i,4)}")
        e("s_lshl_b32 s56, s61, 4")
        e("s_add_u32 s56, s56, s60")
        e("s_lshl_b32 s56, s56, 10")
        e(f"s_add_u32 s56, s56, {WS_CSP}")
        e("v_lshl_add_u32 v28, v20, 4, s56")
        e("s_mov_b32 exec_lo, 0x00010001"); e("s_mov_b32 exec_hi, 0x00010001")
        for i in range(4):
            e(f"s_lshl_b32 s56, {s(84+i)}, 6")
            e(f"buffer_store_dwordx4 {v(DC+4*i,4)}, v28, {s(SRD_WS,4)}, s56 offen sc1")
        e("s_mov_b64 exec, -1")

    def g1_tok_mfma(self, base, first):
        e = self.e
        ONE, D1, D2 = 224, 208, 216
        La = self.newlabel("g1t"); Lb = self.newlabel("g1t2")
        e("s_cmp_eq_u32 s58, 0")
        e(f"s_cbranch_scc0 {La}")
        for pas in range(2):
            if pas == 1: self.label(La)
            for i in range(2):
                t = v(base + 28 + 4*(2*pas + i), 4)
                e(f"v_mfma_f32_16x16x32_bf16 {v(D1+4*i,4)}, {v(ONE,4)}, {t}, {'0' if first else v(D1+4*i,4)}")
                e(f"v_mfma_f32_16x16x32_bf16 {v(D2+4*i,4)}, {t}, {t}, {'0' if first else v(D2+4*i,4)}")
            if pas == 0: e(f"s_branch {Lb}")
        self.label(Lb)

    def g1_tok_store(self):
        e = self.e
        D1, D2 = 208, 216
        e("s_lshl_b32 s56, s60, 4")
        e("s_add_u32 s56, s56, s61")
        e("s_lshl_b32 s56, s56, 10")
        e(f"s_add_u32 s56, s56, {WS_TSP}")
        e("s_lshl_b32 s57, s59, 9            ; 4wt*16*8")
        e("s_add_u32 s56, s56, s57")
        e("s_lshl_b32 s57, s58, 8            ; 2wf*16*8")
        e("s_add_u32 s56, s56, s57")
        e("v_and_b32 v228, 15, v0")
        e("v_lshl_add_u32 v228, v228, 3, s56")
        e("s_mov_b32 s80, 0x22222222"); e("s_mov_b32 s81, 0x22222222")
        e("s_mov_b32 s82, 0x44444444"); e("s_mov_b32 s83, 0x44444444")
        e("s_mov_b32 vcc_lo, 0x88888888"); e("s_mov_b32 vcc_hi, 0x88888888")
        for i in range(2):
            o = 230 + 2*i
            e(f"v_mov_b32 {v(o)}, {v(D1+4*i)}")
            e(f"v_cndmask_b32 {v(o+1)}, {v(D2+4*i)}, {v(D2+4*i+1)}, s[80:81]")
            e(f"v_cndmask_b32 {v(o+1)}, {v(o+1)}, {v(D2+4*i+2)}, s[82:83]")
            e(f"v_cndmask_b32 {v(o+1)}, {v(o+1)}, {v(D2+4*i+3)}, vcc")
        e("s_mov_b32 exec_lo, 0x00f0000f"); e("s_mov_b32 exec_hi, 0xf0000f00")
        for i in range(2):
            e(f"buffer_store_dwordx2 {v(230+2*i,2)}, v228, {s(SRD_WS,4)}, 0 offen offset:{128*i} sc1")
        e("s_mov_b64 exec, -1")

    def g1_side_signal(self):
        e = self.e
        L = self.newlabel("g1s")
        e(f"v_mov_b32 v20, {self.G1_CNT}")
        e("v_mov_b32 v21, 1")
        e("s_mov_b64 exec, 1")
        e("ds_add_rtn_u32 v22, v20, v21")
        e("s_waitcnt lgkmcnt(0)")
        e("v_readfirstlane_b32 s56, v22")
        e("s_mov_b64 exec, -1")
        e("s_cmp_eq_u32 s56, 3")
        e(f"s_cbranch_scc0 {L}")
        self.publish(4)
        self.label(L)

    def g1_side_poll_issue(self):
        e = self.e
        e("v_and_b32 v20, 15, v0")
        e("v_bfe_u32 v21, v0, 4, 1")
        e("v_cmp_eq_u32 vcc, 0, v21")
        e("v_mov_b32 v22, s60"); e("v_mov_b32 v23, s61")
        e("v_cndmask_b32 v24, v20, v22, vcc")
        e("v_cndmask_b32 v25, v23, v20, vcc")
        self.wg_of(40, 24, 25, 26)
        self.flag_addr(40, 26)
        e(f"buffer_load_dword v41, v40, {s(SRD_WS,4)}, 0 offen sc1")

    def g1_side_loads(self):
        e = self.e
        L = self.newlabel("g1p")
        e(f"s_add_u32 s56, {s(S_EP)}, 4")
        e("v_subrev_u32 v41, s56, v41")
        e("v_cmp_le_u32 vcc, 16, v41")
        e(f"s_cbranch_vccz {L}")
        if not self.o.get("nosync"): self.poll_addr(4, 40, 41)
        self.label(L)
        e("v_and_b32 v20, 31, v0")
        e("s_lshl_b32 s56, s58, 5")
        e("v_add_u32 v42, s56, v20            ; token")
        e("v_lshrrev_b32 v21, 5, v0")
        e("v_lshlrev_b32 v21, 13, v21         ; hf*8*1024")
        e("v_lshl_add_u32 v21, v42, 3, v21")
        e("s_lshl_b32 s56, s60, 14")
        e(f"s_add_u32 s56, s56, {WS_TSP}")
        e("v_add_u32 v21, s56, v21")
        for jj in range(8):
            if jj == 4: e("v_add_u32 v21, 4096, v21")
            e(f"buffer_load_dwordx2 {v(44+2*jj,2)}, v21, {s(SRD_WS,4)}, 0 offen offset:{1024*(jj&3)} sc1")
        e("v_and_b32 v20, 15, v0")
        e("v_min_u32 v20, 13, v20")
        e("s_mul_i32 s56, s58, 14")
        e("v_add_u32 v43, s56, v20            ; fq")
        e("v_lshrrev_b32 v21, 4, v0")
        e("v_lshlrev_b32 v21, 12, v21")
        e("v_lshl_add_u32 v21, v43, 4, v21")
        e("s_lshl_b32 s56, s61, 14")
        e(f"s_add_u32 s56, s56, {WS_CSP}")
        e("v_add_u32 v21, s56, v21")
        for jj in range(4):
            e(f"buffer_load_dwordx4 {v(60+4*jj,4)}, v21, {s(SRD_WS,4)}, 0 offen offset:{1024*jj} sc1")

    def g1_b1_load(self):
        e = self.e
        self.srd(SRD_B, S_B1, F_ * 2)
        e(f"s_lshr_b32 s56, {s(S_XI)}, 1")
        e("s_lshl_b32 s56, s56, 2")
        e(f"s_lshr_b32 s57, {s(S_J)}, 3")
        e("s_add_u32 s56, s56, s57          ; nb")
        e("s_mul_i32 s56, s56, 448")
        e("v_and_b32 v240, 15, v0")
        e("v_min_u32 v240, 13, v240")
        e("s_mul_i32 s57, s58, 14")
        e("v_add_u32 v240, s57, v240")
        e("v_lshl_add_u32 v240, v240, 3, s56")
        e(f"buffer_load_dwordx2 v[240:241], v240, {s(SRD_B,4)}, 0 offen")

    def g1_side_final_tok(self):
        e = self.e
        for jj in range(1, 8): e(f"v_pk_add_f32 v[44:45], v[44:45], {v(44+2*jj,2)}")
        e("v_mov_b32 v46, v44"); e("v_mov_b32 v47, v45")
        e("v_permlane32_swap_b32 v46, v44"); e("v_permlane32_swap_b32 v47, v45")
        e("v_add_f32 v44, v44, v46"); e("v_add_f32 v45, v45, v47")
        e("v_mul_f32 v44, 0x3a800000, v44      ; mu")
        e("v_mul_f32 v45, 0x3a800000, v45      ; E[h^2]")
        e("v_fma_f32 v45, -v44, v44, v45       ; var")
        e("v_max_f32 v45, 0, v45")
        self.round_bf16(46, 44)
        self.round_bf16(47, 45)
        e("v_add_f32 v47, 0x3727c5ac, v47")
        self.round_bf16(47, 47)
        e("v_sqrt_f32 v47, v47")
        self.round_bf16(47, 47)
        e("v_rcp_f32 v48, v47                  ; 1/sd1")
        e("v_sub_f32 v49, v44, v46")
        e("v_mul_f32 v49, v49, v48             ; mean(y1)")
        self.round_bf16(49, 49)
        e("v_mul_f32 v50, v45, v48")
        e("v_mul_f32 v50, v50, v48             ; var(y1)")
        self.round_bf16(50, 50)
        e("v_add_f32 v50, 0x3727c5ac, v50")
        self.round_bf16(50, 50)
        e("v_sqrt_f32 v50, v50")
        self.round_bf16(50, 50)
        e("v_rcp_f32 v50, v50")
        e("v_mul_f32 v52, v48, v50")
        e("v_fma_f32 v51, v49, v47, v46        ; M = m1 + m2*sd1")
        e("v_mul_f32 v53, v52, v51             ; am")
        e(f"v_lshlrev_b32 v20, 3, v42")
        e(f"v_add_u32 v20, {self.G1_AST}, v20")
        e("s_mov_b32 exec_hi, 0")
        e("ds_write_b64 v20, v[52:53]")
        e("s_mov_b64 exec, -1")
        e("s_waitcnt lgkmcnt(0)")

    def g1_side_final_col(self):
        e = self.e
        for jj in range(1, 4):
            e(f"v_pk_add_f32 v[60:61], v[60:61], {v(60+4*jj,2)}")
            e(f"v_pk_add_f32 v[62:63], v[62:63], {v(62+4*jj,2)}")
        for op in ("v_permlane16_swap_b32", "v_permlane32_swap_b32"):
            for r in range(4): e(f"v_mov_b32 {v(64+r)}, {v(60+r)}")
            for r in range(4): e(f"{op} {v(64+r)}, {v(60+r)}")
            for r in range(4): e(f"v_add_f32 {v(60+r)}, {v(60+r)}, {v(64+r)}")
        self.unpack(68, 240, 0); self.unpack(69, 240, 1); self.unpack(70, 241, 0); self.unpack(71, 241, 1)
        e("v_lshlrev_b32 v20, 4, v43")
        e(f"v_add_u32 v20, {self.G1_CS}, v20")
        e("s_mov_b64 exec, 0x3fff")
        e("ds_write_b128 v20, v[60:63]")
        e(f"ds_write_b128 v20, v[68:71] offset:{self.G1_B1 - self.G1_CS}")
        e("s_mov_b64 exec, -1")
        e("s_waitcnt lgkmcnt(0)")

    def g1_loader(self):
        e = self.e
        STG = self.G1_STG
        side = not self.o.get("g1_noside")
        self.srd(SRD_B, S_W1, D_ * F_ * 2)
        if not ("c" in self.o["phases"] and self.o.get("g1_early", True)): self.g1_loader_setup()
        self.g1_loader_bases()
        if self.o.get("g1_norot"): e("s_mov_b32 s68, 0")
        else:
            mm, mn = self.o.get("g1_rot", (9, 1))
            e(f"s_mul_i32 s68, s60, {mm}")
            e(f"s_mul_i32 s56, s61, {mn}")
            e("s_add_u32 s68, s68, s56")
        e("s_sub_u32 s68, s68, 1")
        self.g1_next_k()
        e("s_mov_b32 s64, 0")
        both = self.o.get("g1_wboth", True)
        self.g1_issue_w(64, 65)
        e("s_mov_b32 s88, s66")
        self.g1_next_k()
        if both:
            e(f"s_mov_b32 s64, {STG}")
            self.g1_issue_w(64, 65)
        self.stamp("g1_wiss")
        e("s_waitcnt vmcnt(%d)" % (7 if both else 0))
        e("s_barrier                        ; W(r) resident")
        self.stamp("g1_wres")
        if side: self.g1_side_col()
        self.stamp("g1_col")
        self.g1_dep_wait()
        self.stamp("g1_dep")
        e("s_mov_b32 s64, 0")
        self.g1_issue_t(64, 88)
        e(f"s_mov_b32 s64, {STG}")
        if not both: self.g1_issue_w(64, 65)
        self.g1_issue_t(64, 66)
        e("s_waitcnt vmcnt(%d) lgkmcnt(0)" % (4 if both else 11))
        e("s_barrier                        ; B_0")
        e("s_mov_b32 s67, 0                 ; period i")
        e(f"s_mov_b32 s64, {2*STG}")
        sent = "g2" in self.o["phases"] and not self.o.get("sent_c")
        if sent:
            e("s_lshl_b32 s89, s2, 15")
            e("s_lshl_b32 s56, s58, 13")
            e("s_add_u32 s89, s89, s56")
            e(f"s_add_u32 s89, s89, {WS_EX}")
            e("v_lshlrev_b32 v128, 4, v0")
            for r in range(4): e(f"v_mov_b32 {v(132+r)}, -1")
        pre = self.o.get("prealloc", False)
        if pre:
            e("s_mul_i32 s89, s60, 112")
            e("s_mul_i32 s56, s61, 7")
            e("s_add_u32 s89, s89, s56")
            e("s_lshl_b32 s89, s89, 13")
            e("s_mul_i32 s56, s58, 14336")
            e("s_add_u32 s89, s89, s56")
            e(f"s_add_u32 s89, s89, {WS_HM}")
            e("v_lshlrev_b32 v128, 4, v0")
        L = self.newlabel("g1l"); Lw = self.newlabel("g1lw"); Lb = self.newlabel("g1lb")
        def hook(per, fn):
            La = self.newlabel("g1a"); e(f"s_cmp_eq_u32 s67, {per}"); e(f"s_cbranch_scc0 {La}"); fn(); self.label(La)
        self.label(L)
        if side:
            hook(12, self.g1_side_poll_issue)
        e("s_cmp_ge_u32 s67, 14")
        e(f"s_cbranch_scc1 {Lw}")
        self.g1_next_k()
        self.g1_issue_w(64, 65)
        self.g1_issue_t(64, 66)
        e(f"s_add_u32 s64, s64, {STG}")
        e(f"s_cmp_eq_u32 s64, {3*STG}")
        e("s_cselect_b32 s64, 0, s64")
        def special(per, fn, cnt):
            La = self.newlabel("g1a"); e(f"s_cmp_eq_u32 s67, {per}"); e(f"s_cbranch_scc0 {La}")
            if fn: fn()
            e(f"s_waitcnt vmcnt({cnt})"); e(f"s_branch {Lb}"); self.label(La)
        if side: special(13, self.g1_side_loads, 23)
        if sent:
            special(0, lambda: self.g1_sent_store(), 12)
            La = self.newlabel("g1s8")
            e("s_cmp_lt_u32 s67, 8"); e(f"s_cbranch_scc0 {La}")
            self.g1_sent_store()
            e("s_waitcnt vmcnt(13)")
            if side:
                def pub8():
                    Lp = self.newlabel("g1pub")
                    e(f"s_cmp_eq_u32 {s(S_WV)}, 4"); e(f"s_cbranch_scc0 {Lp}"); self.publish(4); self.label(Lp)
                hook(3, pub8)
            e(f"s_branch {Lb}")
            self.label(La)
        e("s_waitcnt vmcnt(11)")
        if side and not sent:
            def pub():
                Lp = self.newlabel("g1pub")
                e(f"s_cmp_eq_u32 {s(S_WV)}, 4"); e(f"s_cbranch_scc0 {Lp}"); self.publish(4); self.label(Lp)
            hook(3, pub)
        e(f"s_branch {Lb}")
        self.label(Lw)
        L15 = self.newlabel("g1l15")
        e("s_cmp_eq_u32 s67, 14")
        e(f"s_cbranch_scc0 {L15}")
        e("s_waitcnt vmcnt(%d)" % (12 if side else 0))
        pf2 = self.o.get("prefetch_w", True) and self.o.get("pf2_at", "g1end") == "g1end"
        if pf2: self.prefetch_w(2, 58)
        e(f"s_branch {Lb}")
        self.label(L15)
        e("s_waitcnt vmcnt(%d)" % ((2 if self.o.get("pf_gran", 128) == 64 else 1) if pf2 else 0))
        if side: self.g1_side_final_tok()
        self.label(Lb)
        e("s_barrier")
        e("s_add_u32 s67, s67, 1")
        e("s_cmp_lt_u32 s67, 16")
        e(f"s_cbranch_scc1 {L}")

    def g1_sent_store(self):
        self.e(f"buffer_store_dwordx4 v[132:135], v128, {s(SRD_WS,4)}, s89 offen sc1")
        self.e("s_add_u32 s89, s89, 1024")

    def g1_dep_wait(self):
        if "c" in self.o["phases"]: self.wait_all(3, wave=4)
        else: self.e("s_barrier")

    G1_X, G1_Y, G1_ACC = 8, 52, 96
    def g1_frag_reads(self, base, u):
        r = []
        def wread(ft):
            areg = 2 if ft % 2 == 0 else 3
            return [f"ds_read_b64_tr_b16 {v(base + 4*ft + 2*h, 2)}, {v(areg)} offset:{32*ft + u*32*448 + h*4*448}" for h in range(2)]
        def tread(tt):
            return [f"ds_read_b64_tr_b16 {v(base + 28 + 4*tt + 2*h, 2)}, {v(4+tt)} offset:{u*8192 + h*1024}" for h in range(2)]
        for tt in range(4): r += tread(tt)
        for ft in range(7): r += wread(ft)
        return r

    def g1_half(self, mf_base, rd_base, rd_u, first=False, mfma=True, reads=True, tail=(), waits=None):
        e = self.e
        rds = self.g1_frag_reads(rd_base, rd_u) if (reads and not self.o.get("g1_noreads")) else []
        if self.o.get("g1_nomfma"): mfma = False
        mf = []
        if mfma:
            for ft in range(7):
                for tt in range(4):
                    a = self.G1_ACC + (ft * 4 + tt) * 4
                    c = "0" if first else v(a, 4)
                    mf.append(f"v_mfma_f32_16x16x32_bf16 {v(a,4)}, {v(mf_base + 4*ft, 4)}, {v(mf_base + 28 + 4*tt, 4)}, {c}")
        fill = list(rds) + list(tail)
        i = 0
        for k, m in enumerate(mf):
            if waits and k in waits: e(waits[k])
            e(m)
            if i < len(fill): e(fill[i]); i += 1
        while i < len(fill): e(fill[i]); i += 1

    def g1_compute_setup(self):
        e = self.e
        e(f"s_lshr_b32 s58, {s(S_WV)}, 1      ; wf")
        e(f"s_and_b32 s59, {s(S_WV)}, 1       ; wt")
        e("v_lshrrev_b32 v13, 4, v0          ; g")
        e("v_and_b32 v14, 15, v0")
        e("v_lshrrev_b32 v15, 2, v14         ; r")
        e("v_and_b32 v16, 3, v14             ; c")
        e("v_lshl_add_u32 v17, v13, 3, v15   ; row = 8g + r")
        e("v_and_b32 v18, 1, v13             ; g&1")
        e("v_mul_u32_u24 v19, 448, v17")
        e("v_lshl_add_u32 v19, v16, 3, v19")
        e("s_mul_i32 s57, s58, 224           ; 32*7*wf")
        e(f"s_add_u32 s57, s57, {self.G1_W}")
        e("v_add_u32 v19, s57, v19")
        e("v_lshlrev_b32 v20, 5, v18         ; 32*(g&1)")
        e("v_add_u32 v21, v19, v20")
        e("v_sub_u32 v22, v19, v20")
        e("s_cmp_eq_u32 s58, 0")
        e("s_cselect_b64 vcc, -1, 0")
        e("v_cndmask_b32 v2, v22, v21, vcc")
        e("v_cndmask_b32 v3, v21, v22, vcc")
        e("v_lshl_or_b32 v20, v18, 2, v15    ; f(row)")
        e("v_lshlrev_b32 v21, 8, v17")
        e("v_lshl_add_u32 v21, v16, 3, v21")
        e("s_lshl_b32 s57, s59, 2            ; 4*wt")
        for tt in range(4):
            e(f"s_add_u32 s56, s57, {tt}")
            e("v_xor_b32 v22, s56, v20")
            e(f"v_lshl_add_u32 {v(4+tt)}, v22, 5, v21")

    def g1_compute(self):
        e = self.e
        X, Y = self.G1_X, self.G1_Y
        STG = self.G1_STG
        self.g1_compute_setup()
        side = not self.o.get("g1_noside")
        for r in range(4): e(f"v_mov_b32 {v(224+r)}, 0x3f803f80")
        e("s_barrier                        ; W(r) resident")
        self.g1_dep_wait()
        e("s_barrier                        ; B_0")
        self.stamp("g1_loop")
        def adv(delta):
            return [f"v_add_u32 {v(r)}, {delta & 0xffffffff:#x}, {v(r)}" for r in range(2, 8)]
        W5 = {0: "s_waitcnt lgkmcnt(4)", 20: "s_waitcnt lgkmcnt(15)"}
        for r in self.g1_frag_reads(X, 0): e(r)
        e("s_waitcnt lgkmcnt(0)")
        self.g1_half(X, Y, 1, first=True, tail=adv(STG))
        if side: self.g1_tok_mfma(X, True)
        e("s_waitcnt lgkmcnt(0)")
        if side:
            self.g1_tok_mfma(Y, False)
            self.g1_tok_store()
        e("s_barrier                        ; B_1")
        e("s_mov_b32 s67, 0")
        L = self.newlabel("g1c")
        self.label(L)
        for k in range(3):
            delta = STG if k != 1 else -2 * STG
            self.g1_half(Y, X, 0)
            tail = adv(delta)
            if k == 2: tail = tail[:5] + ["s_add_u32 s67, s67, 1"] + tail[5:]
            self.g1_half(X, Y, 1, tail=tail, waits=(W5 if not self.o.get("g1_noreads") else None))
            if k == 2: e("s_cmp_lt_u32 s67, 5")
            e("s_waitcnt vmcnt(0) lgkmcnt(0)" if k == 1 else "s_waitcnt lgkmcnt(0)")
            e("s_barrier")
            if self.o.get("per_stamps"):
                e("s_memrealtime s[100:101]")
                e("s_mul_i32 s98, s67, 3")
                e(f"s_add_u32 s98, s98, {k + (0 if k < 2 else -3)}")
                e("s_mov_b32 m0, s98")
                e("s_waitcnt lgkmcnt(0)")
                e("v_writelane_b32 v252, s100, m0")
                if k == 2: e("s_cmp_lt_u32 s67, 5")
        e(f"s_cbranch_scc1 {L}")
        self.g1_half(Y, None, 0, reads=False)
        if self.o.get("per_stamps"):
            e("s_lshl_b32 s98, s2, 8")
            e(f"s_add_u32 s98, s98, {WS_STAMP + 65536}")
            e("v_lshlrev_b32 v251, 2, v0")
            e("v_add_u32 v251, s98, v251")
            Lq = self.newlabel("pst")
            e(f"s_cmp_lg_u32 {s(S_WV)}, 0"); e(f"s_cbranch_scc1 {Lq}")
            e(f"buffer_store_dword v252, v251, {s(SRD_WS,4)}, 0 offen")
            self.label(Lq)
        self.stamp("g1_loopend")

    def g1_epilogue(self):
        e = self.e
        ACC = self.G1_ACC
        own = "g2" in self.o["phases"]
        e("v_and_b32 v2, 15, v0               ; n")
        e("v_lshrrev_b32 v3, 4, v0            ; g / rho")
        e("s_lshl_b32 s56, s59, 9")
        e(f"s_add_u32 s56, s56, {self.G1_AST}")
        e("v_lshl_add_u32 v4, v2, 3, s56")
        AS = 8
        for tt in range(4): e(f"ds_read_b64 {v(AS+2*tt,2)}, v4 offset:{128*tt}")
        e("s_mul_i32 s56, s58, 448")
        e(f"s_add_u32 s56, s56, {self.G1_CS}")
        e("v_lshl_add_u32 v5, v3, 4, s56")
        CB = 16
        for ft in range(7):
            e(f"ds_read_b128 {v(CB+8*ft,4)}, v5 offset:{64*ft}")
            e(f"ds_read_b128 {v(CB+8*ft+4,4)}, v5 offset:{64*ft + self.G1_B1 - self.G1_CS}")
        c2 = -2.0 * 0.7978845608028654 * 1.4426950408889634
        c1 = c2 * 0.044715
        import struct
        fb = lambda x: "0x%08x" % struct.unpack("<I", struct.pack("<f", x))[0]
        C1, C2, ONE = 72, 74, 76
        for r, val in ((C1, c1), (C2, c2), (ONE, 1.0)):
            e(f"v_mov_b32 {v(r)}, {fb(val)}"); e(f"v_mov_b32 {v(r+1)}, {fb(val)}")
        e("v_and_b32 v79, 1, v3               ; rho&1")
        e("v_lshrrev_b32 v81, 1, v3           ; rho>>1")
        e("v_lshl_add_u32 v80, v79, 1, v81")
        e("v_lshlrev_b32 v80, 11, v80")
        e("v_lshl_add_u32 v82, v2, 4, v80")
        e("s_lshl_b32 s56, s58, 1")
        e("v_add_u32 v80, s56, v81")
        e("v_lshlrev_b32 v80, 11, v80")
        e("v_lshl_add_u32 v80, v79, 8, v80")
        e("v_lshl_add_u32 v83, v2, 4, v80")
        e("s_mul_i32 s62, s60, 112")
        e("s_mul_i32 s56, s61, 7")
        e("s_add_u32 s62, s62, s56")
        e("s_lshl_b32 s62, s62, 13")
        e("s_lshl_b32 s56, s59, 10")
        e("s_add_u32 s62, s62, s56")
        e(f"s_add_u32 s62, s62, {WS_HM}")
        e("s_mul_i32 s56, s58, 3*8192")
        e("s_add_u32 s63, s62, s56")
        if own:
            for fp in range(3):
                e("s_mul_i32 s56, s58, 3")
                e(f"s_add_u32 s56, s56, {fp}")
                e("s_lshr_b32 s57, s56, 1")
                e("s_lshl_b32 s57, s57, 15")
                e("s_and_b32 s56, s56, 1")
                e("s_lshl_b32 s56, s56, 13")
                e("s_add_u32 s56, s56, s57")
                e("s_lshl_b32 s57, s59, 10")
                e("s_add_u32 s56, s56, s57")
                e(f"v_add_u32 {v(84+fp)}, s56, v82")
        e("s_waitcnt lgkmcnt(0)")
        def gelu_tile(ft, tt, out, T):
            a = ACC + (ft*4 + tt)*4
            cs, b1 = CB + 8*ft, CB + 8*ft + 4
            A = AS + 2*tt
            for h in range(2):
                e(f"v_pk_fma_f32 {v(T+2*h,2)}, {v(A,2)}, {v(cs+2*h,2)}, {v(b1+2*h,2)} op_sel:[1,0,0] op_sel_hi:[1,1,1] neg_lo:[1,0,0] neg_hi:[1,0,0]")
            for h in range(2):
                e(f"v_pk_fma_f32 {v(a+2*h,2)}, {v(A,2)}, {v(a+2*h,2)}, {v(T+2*h,2)} op_sel:[0,0,0] op_sel_hi:[0,1,1]")
            for h in range(2): e(f"v_pk_mul_f32 {v(T+2*h,2)}, {v(a+2*h,2)}, {v(a+2*h,2)}")
            for h in range(2): e(f"v_pk_fma_f32 {v(T+2*h,2)}, {v(T+2*h,2)}, {v(C1,2)}, {v(C2,2)}")
            for h in range(2): e(f"v_pk_mul_f32 {v(T+2*h,2)}, {v(T+2*h,2)}, {v(a+2*h,2)}")
            for r in range(4): e(f"v_exp_f32 {v(T+r)}, {v(T+r)}")
            for h in range(2): e(f"v_pk_add_f32 {v(T+2*h,2)}, {v(T+2*h,2)}, {v(ONE,2)}")
            for r in range(4): e(f"v_rcp_f32 {v(T+r)}, {v(T+r)}")
            for h in range(2): e(f"v_pk_mul_f32 {v(a+2*h,2)}, {v(a+2*h,2)}, {v(T+2*h,2)}")
            for h in range(2): e(f"v_cvt_pk_bf16_f32 {v(out+h)}, {v(a+2*h)}, {v(a+2*h+1)}")
        aux = self.o.get('hm_aux', 'sc1')
        k = 0
        for fp in range(3):
            for tt in range(4):
                O = 208 + 4 * (k & 1); T = 216 + 4 * (k & 1); k += 1
                gelu_tile(2*fp, tt, O, T)
                gelu_tile(2*fp + 1, tt, O + 2, T)
                e(f"v_permlane16_swap_b32 {v(O)}, {v(O+2)}")
                e(f"v_permlane16_swap_b32 {v(O+1)}, {v(O+3)}")
                e(f"s_add_u32 s56, s63, {fp*8192 + tt*256}")
                e(f"buffer_store_dwordx4 {v(O,4)}, v82, {s(SRD_WS,4)}, s56 offen {aux}")
                if own: e(f"ds_write_b128 {v(84+fp)}, {v(O,4)} offset:{tt*256}")
        for tp in range(2):
            O = 208 + 4 * (k & 1); T = 216 + 4 * (k & 1); k += 1
            gelu_tile(6, 2*tp, O, T)
            gelu_tile(6, 2*tp + 1, O + 2, T)
            e(f"v_permlane16_swap_b32 {v(O)}, {v(O+2)}")
            e(f"v_permlane16_swap_b32 {v(O+1)}, {v(O+3)}")
            e(f"s_add_u32 s56, s62, {6*8192 + 2*tp*256}")
            e(f"buffer_store_dwordx4 {v(O,4)}, v83, {s(SRD_WS,4)}, s56 offen {aux}")

    def g1(self):
        e = self.e
        own = "g2" in self.o["phases"]
        self.g1_ids()
        Lc = self.newlabel("g1comp"); Le = self.newlabel("g1end")
        e(f"s_cmp_lt_u32 {s(S_WV)}, 4")
        e(f"s_cbranch_scc1 {Lc}")
        self.g1_loader()
        if not self.o.get("g1_noside"): self.g1_side_final_col()
        e("s_barrier")
        e(f"s_branch {Le}")
        self.label(Lc)
        self.g1_compute()
        e("s_barrier                        ; H")
        self.g1_epilogue()
        self.stamp("g1_epi")
        if not own:
            e("s_waitcnt vmcnt(0)")
        self.label(Le)
        if not own:
            e("s_barrier")
            L = self.newlabel("g1sig")
            e(f"s_cmp_lg_u32 {s(S_WV)}, 0")
            e(f"s_cbranch_scc1 {L}")
            self.publish(5)
            self.label(L)

    G2_STG = 32768
    G2_NBUF = 5
    G2_RES = 98304

    def g2_b2_load(self):
        e = self.e
        self.srd(SRD_A, S_B2, D_ * 2)
        e(f"s_lshr_b32 s56, {s(S_XI)}, 1")
        e("s_lshl_b32 s56, s56, 2")
        e(f"s_lshr_b32 s57, {s(S_J)}, 3")
        e("s_add_u32 s56, s56, s57")
        e("s_and_b32 s56, s56, 7            ; db")
        e(f"s_lshr_b32 s57, {s(S_WV)}, 1     ; wd")
        self.g2_dbh(56, 56, 57)
        e("s_lshl_b32 s56, s56, 8")
        e("s_lshl_b32 s57, s57, 7")
        e("s_add_u32 s56, s56, s57")
        e("v_lshrrev_b32 v234, 4, v0")
        e("v_lshl_add_u32 v242, v234, 3, s56")
        for dt in range(4): e(f"buffer_load_dwordx2 {v(234+2*dt,2)}, v242, {s(SRD_A,4)}, 0 offen offset:{32*dt}")

    def g2_dbh(self, dst, sdb, shalf):
        e = self.e
        if self.o.get("g2_mix", False):
            e(f"s_add_u32 {s(dst)}, {s(sdb)}, {s(shalf)}")
            e(f"s_and_b32 {s(dst)}, {s(dst)}, 7")
        else:
            e(f"s_mov_b32 {s(dst)}, {s(sdb)}")

    def g2_ids(self):
        e = self.e
        e(f"s_and_b32 s56, {s(S_XI)}, 1")
        e("s_lshl_b32 s56, s56, 3")
        e(f"s_and_b32 s57, {s(S_J)}, 7")
        e("s_add_u32 s60, s56, s57          ; mb")
        e(f"s_lshr_b32 s56, {s(S_XI)}, 1")
        e("s_lshl_b32 s56, s56, 2")
        e(f"s_lshr_b32 s57, {s(S_J)}, 3")
        e("s_add_u32 s56, s56, s57          ; n'")
        e("s_and_b32 s61, s56, 7            ; db")
        e("s_lshr_b32 s69, s56, 3           ; kh")

    def g2_issue_w(self, sbuf, sk):
        e = self.e
        e(f"s_add_u32 m0, {s(sbuf)}, s63")
        for ii in range(4):
            e(f"buffer_load_dwordx4 {v(6+ii)}, {s(SRD_B,4)}, {s(sk)} offen lds")
            if ii < 3: e("s_add_u32 m0, m0, 1024")

    def g2_issue_t(self, sbuf):
        e = self.e
        e("s_mul_i32 s56, s85, 7")
        e("s_add_u32 s56, s56, s84")
        e("s_lshl_b32 s56, s56, 13")
        e("s_add_u32 s66, s90, s56")
        e(f"s_add_u32 m0, {s(sbuf)}, s62")
        for ii in range(4):
            e(f"buffer_load_dwordx4 v2, {s(SRD_WS,4)}, s66 offen sc1 lds")
            if ii < 3:
                e("s_add_u32 m0, m0, 1024"); e("s_add_u32 s66, s66, 1024")

    def g2_w_off(self):
        e = self.e
        e("s_lshl_b32 s56, s84, 1")
        e("s_add_u32 s56, s56, s87          ; 2q + half")
        e("s_cmp_ge_u32 s84, 3")
        e("s_addc_u32 s56, s56, 0")
        e("s_mul_i32 s57, s87, 7")
        e("s_add_u32 s57, s57, 6            ; half ? 13 : 6")
        e("s_cmp_eq_u32 s84, 6")
        e("s_cselect_b32 s56, s57, s56")
        e("s_lshl_b32 s56, s56, 4")
        e("s_add_u32 s56, s56, s86")
        e("s_lshl_b32 s65, s56, 11")

    def g2_adv(self, own=False):
        e = self.e
        if own:
            e("s_add_u32 s84, s84, 2")
        else:
            e("s_add_u32 s91, s91, 2")
            self.g2_pos()
        e("s_lshl_b32 s56, s69, 3")
        e("s_add_u32 s56, s56, s85")
        e("s_mul_i32 s86, s56, 224")
        self.g2_w_off()

    def g2_pos(self):
        e = self.e
        e("s_mul_i32 s56, s61, 7")
        e("s_cmp_ge_u32 s91, s56")
        e("s_cselect_b32 s56, 6, 0")
        e("s_add_u32 s56, s56, s91          ; Q")
        e("s_mul_i32 s85, s56, 9363")
        e("s_lshr_b32 s85, s85, 16")
        e("s_mul_i32 s57, s85, 7")
        e("s_sub_u32 s84, s56, s57")

    def g2_loader_pre(self):
        e = self.e
        self.g2_ids()
        self.srd(SRD_B, S_W2, F_ * D_ * 2)
        e(f"s_sub_u32 s58, {s(S_WV)}, 4       ; lw")
        e("v_lshrrev_b32 v13, 4, v0")
        e("v_and_b32 v14, 15, v0")
        e("v_lshrrev_b32 v15, 1, v14")
        e("v_and_b32 v16, 1, v14")
        e("v_xor_b32 v15, v15, v13")
        e("v_lshlrev_b32 v17, 11, v13")
        e("v_lshl_add_u32 v17, v16, 4, v17")
        e("s_lshl_b32 s59, s61, 8            ; db*256")
        e("v_add_u32 v17, s59, v17")
        if self.o.get("g2_mix", False):
            e("s_add_u32 s56, s61, 1")
            e("s_and_b32 s56, s56, 7")
            e("s_sub_u32 s56, s56, s61")
            e("s_lshl_b32 s56, s56, 8")
        else:
            e("s_mov_b32 s56, 0")
        for ii in range(4):
            x4 = 4 if (ii >> 1) & 1 else 0
            e(f"v_xor_b32 v18, {x4}, v15")
            e("v_lshrrev_b32 v19, 2, v18")
            e("v_mul_lo_u32 v19, v19, s56")
            e("v_lshl_add_u32 v18, v18, 5, v17")
            e("v_add_u32 v18, v18, v19")
            e(f"v_add_u32 {v(6+ii)}, {ii*4*2048}, v18")
        e("v_lshlrev_b32 v2, 4, v0")
        e("s_lshl_b32 s62, s58, 12")
        e(f"s_add_u32 s63, s62, 16384")
        e("s_mov_b32 s85, s61               ; local block = db: start with this workgroup's own G1 tile")
        e("s_lshl_b32 s86, s69, 3")
        e("s_add_u32 s86, s86, s85")
        e("s_mul_i32 s86, s86, 224")
        e("s_lshr_b32 s84, s58, 1           ; q = lw>>1")
        e("s_and_b32 s87, s58, 1            ; half")
        self.g2_w_off()
        e("s_mul_i32 s90, s60, 112")
        e("s_mul_i32 s56, s69, 56")
        e("s_add_u32 s90, s90, s56")
        e("s_lshl_b32 s90, s90, 13")
        e("s_lshl_b32 s56, s87, 12")
        e("s_add_u32 s90, s90, s56")
        e(f"s_add_u32 s90, s90, {WS_HM}")

    def g2_loader(self):
        e = self.e
        STG = self.G2_STG
        self.g2_loader_pre()
        e("s_mov_b32 s64, 0")
        def to_shared():
            e("s_lshr_b32 s91, s58, 1")
            e("s_sub_u32 s91, s91, 2")
            self.g2_adv()
        if self.o.get("w2_late", False):
            self.g2_issue_w(64, 65)
            self.g2_adv(own=True)
            e("s_waitcnt vmcnt(0)")
            e("s_barrier                        ; A = B_0")
            for st in range(1, 3):
                e(f"s_add_u32 s64, s64, {STG}")
                self.g2_issue_w(64, 65)
                if st == 1: self.g2_adv(own=True)
            e(f"s_add_u32 s64, s64, {STG}")
            to_shared()
        else:
            for st in range(3):
                self.g2_issue_w(64, 65)
                if st < 2: self.g2_adv(own=True)
                e(f"s_add_u32 s64, s64, {STG}")
            to_shared()
            e("s_waitcnt vmcnt(8)")
            e("s_barrier                        ; A = B_0")
        Lp = self.newlabel("g2pub")
        if self.o.get("pub_early", True):
            e(f"s_cmp_eq_u32 {s(S_WV)}, 4"); e(f"s_cbranch_scc0 {Lp}"); self.publish(5); self.label(Lp)
            e("s_waitcnt vmcnt(4)")
            e("s_barrier                        ; B_1")
            self.stamp("g2_b1")
            e("s_waitcnt vmcnt(0)")
        else:
            e("s_waitcnt vmcnt(4)")
            e("s_barrier")
            self.stamp("g2_b1")
            e(f"s_cmp_eq_u32 {s(S_WV)}, 4"); e(f"s_cbranch_scc0 {Lp}"); self.publish(5); self.label(Lp)
            e("s_waitcnt vmcnt(0)")
        e("s_barrier                        ; B_2")
        e("v_and_b32 v20, 7, v0")
        e("s_lshl_b32 s56, s69, 3")
        e("v_add_u32 v21, s56, v20")
        e("v_mov_b32 v20, s60")
        self.wg_of(40, 20, 21, 26)
        e("s_xor_b32 s56, s2, 4")
        e("v_mov_b32 v20, s56")
        e("v_bfe_u32 v21, v0, 3, 1")
        e("v_cmp_eq_u32 vcc, 1, v21")
        e("v_cndmask_b32 v40, v40, v20, vcc")
        self.flag_addr(40, 26)
        if not self.o.get("nosync"):
            e("s_mov_b64 exec, 0xffff")
            self.poll_addr(5, 40, 41)
            e("s_mov_b64 exec, -1")
        self.stamp("g2_dep")
        def stage():
            self.g2_issue_t(64)
            self.g2_issue_w(64, 65)
            self.g2_adv()
            e(f"s_add_u32 s64, s64, {STG}")
            e(f"s_cmp_eq_u32 s64, {5*STG}")
            e("s_cselect_b32 s64, 0, s64")
        if self.o.get("g2_ramp", True):
            stage(); stage()
            e("s_waitcnt vmcnt(8)")
            e("s_barrier                        ; B_3")
            self.stamp("g2_b3")
            stage(); stage()
            e("s_waitcnt vmcnt(16)")
            e("s_barrier                        ; B_4")
            stage(); stage()
            e("s_waitcnt vmcnt(24)")
            e("s_barrier                        ; B_5")
            e("s_mov_b32 s67, 5")
        else:
            for st in range(3, 7): stage()
            e("s_waitcnt vmcnt(24)")
            e("s_barrier                        ; B_3")
            self.stamp("g2_b3")
            e("s_mov_b32 s67, 3")
        pre = self.o.get("prealloc", False)
        if pre:
            self.srd(SRD_A, S_OUT, S_ * D_ * 2)
            e("s_and_b32 s56, s58, 1")
            e("s_lshl_b32 s56, s56, 6")
            e("s_lshl_b32 s57, s60, 7")
            e("s_add_u32 s56, s56, s57")
            e("s_lshl_b32 s57, s69, 5")
            e("s_add_u32 s56, s56, s57")
            e("v_lshrrev_b32 v22, 3, v0")
            e("v_add_u32 v22, s56, v22")
            e("v_lshlrev_b32 v22, 11, v22")
            e("v_and_b32 v23, 7, v0")
            e("v_lshl_add_u32 v22, v23, 4, v22")
            e("s_lshr_b32 s56, s58, 1")
            e("s_lshl_b32 s56, s56, 7")
            e("s_lshl_b32 s57, s61, 8")
            e("s_add_u32 s56, s56, s57")
            e("v_add_u32 v22, s56, v22")
        L = self.newlabel("g2l"); Lw = self.newlabel("g2lw"); Lb = self.newlabel("g2lb")
        def waits(cases):
            for per, cnt in cases:
                Ln = self.newlabel("g2w")
                e(f"s_cmp_eq_u32 s67, {per}")
                e(f"s_cbranch_scc0 {Ln}")
                e(f"s_waitcnt vmcnt({cnt})")
                e(f"s_branch {Lb}")
                self.label(Ln)
        self.label(L)
        if pre:
            Lo = self.newlabel("g2o")
            e("s_sub_u32 s56, s67, 4")
            e("s_cmp_lt_u32 s56, 4")
            e(f"s_cbranch_scc0 {Lo}")
            e("s_lshl_b32 s56, s56, 14          ; 8 rows * 2048")
            e(f"buffer_store_dwordx4 v[24:27], v22, {s(SRD_A,4)}, s56 offen sc1")
            self.label(Lo)
        e("s_cmp_ge_u32 s67, 24")
        e(f"s_cbranch_scc1 {Lw}")
        self.g2_issue_t(64)
        self.g2_issue_w(64, 65)
        self.g2_adv()
        e(f"s_add_u32 s64, s64, {STG}")
        e(f"s_cmp_eq_u32 s64, {5*STG}")
        e("s_cselect_b32 s64, 0, s64")
        e("s_waitcnt vmcnt(24)")
        e(f"s_branch {Lb}")
        self.label(Lw)
        Lw1 = self.newlabel("g2lw1")
        e("s_cmp_eq_u32 s67, 24")
        e(f"s_cbranch_scc0 {Lw1}")
        e("v_lshrrev_b32 v20, 2, v0")
        e("s_lshl_b32 s56, s58, 5")
        e("v_add_u32 v20, s56, v20")
        e("v_lshlrev_b32 v20, 8, v20          ; row*256")
        e("v_and_b32 v21, 3, v0")
        e("v_lshl_add_u32 v20, v21, 4, v20")
        e("s_lshr_b32 s57, s58, 1")
        self.g2_dbh(59, 61, 57)
        e("s_lshl_b32 s56, s60, 18")
        e("s_lshl_b32 s57, s59, 15            ; 128db'*256")
        e("s_add_u32 s56, s56, s57")
        e("s_lshl_b32 s57, s69, 6             ; 32kh*2")
        e("s_add_u32 s56, s56, s57")
        e(f"s_add_u32 s56, s56, {WS_HT}")
        for ii in range(4):
            wt, hh = ii >> 1, ii & 1
            e(f"s_add_u32 s57, s56, {wt*128 + hh*16*256}")
            e("s_lshl_b32 s59, s58, 11          ; 32lw*64")
            e(f"s_add_u32 m0, s59, {self.G2_RES + wt*8192 + hh*1024}")
            e(f"buffer_load_dwordx4 v20, {s(SRD_WS,4)}, s57 offen sc1 lds")
        e("s_waitcnt vmcnt(20)")
        e(f"s_branch {Lb}")
        self.label(Lw1)
        waits([(25, 12), (26, 4)])
        e("s_waitcnt vmcnt(0)")
        self.label(Lb)
        e("s_barrier")
        e("s_add_u32 s67, s67, 1")
        e("s_cmp_lt_u32 s67, 28")
        e(f"s_cbranch_scc1 {L}")

    G2_X, G2_Y, G2_ACC = 8, 40, 72
    def g2_frag_reads(self, base, u):
        r = []
        for tt in range(4): r.append(f"ds_read_b128 {v(base + 16 + 4*tt, 4)}, v6 offset:{u*8192 + tt*256}")
        for dt in range(4):
            for h in range(2):
                r.append(f"ds_read_b64_tr_b16 {v(base + 4*dt + 2*h, 2)}, {v(2+dt)} offset:{u*8192 + h*1024}")
        return r

    def g2_half(self, mf_base, rd_base, rd_u, first=False, reads=True, tail=(), waits=None):
        e = self.e
        rds = self.g2_frag_reads(rd_base, rd_u) if reads else []
        fill = list(rds) + list(tail)
        i = 0; k = 0
        for dt in range(4):
            for tt in range(4):
                a = self.G2_ACC + (dt*4 + tt)*4
                if waits and k in waits: e(waits[k])
                e(f"v_mfma_f32_16x16x32_bf16 {v(a,4)}, {v(mf_base + 4*dt, 4)}, {v(mf_base + 16 + 4*tt, 4)}, {'0' if first else v(a,4)}")
                if i < len(fill): e(fill[i]); i += 1
                k += 1
        while i < len(fill): e(fill[i]); i += 1

    def g2_compute(self):
        e = self.e
        X, Y, STG = self.G2_X, self.G2_Y, self.G2_STG
        self.g2_ids()
        e(f"s_lshr_b32 s58, {s(S_WV)}, 1      ; wd")
        e(f"s_and_b32 s59, {s(S_WV)}, 1       ; wt")
        e("v_lshrrev_b32 v13, 4, v0          ; g")
        e("v_and_b32 v14, 15, v0             ; n")
        e("v_lshrrev_b32 v15, 2, v14         ; r")
        e("v_and_b32 v16, 3, v14             ; c")
        e("v_lshl_add_u32 v17, v13, 3, v15   ; row = 8g + r")
        e("v_and_b32 v18, 1, v13")
        e("v_lshl_or_b32 v20, v18, 2, v15    ; f(row)")
        e("v_lshlrev_b32 v21, 8, v17")
        e("v_lshl_add_u32 v21, v16, 3, v21")
        e("v_add_u32 v21, 16384, v21")
        e("s_lshl_b32 s57, s58, 2            ; 4*wd")
        for dt in range(4):
            e(f"s_add_u32 s56, s57, {dt}")
            e("v_xor_b32 v22, s56, v20")
            e(f"v_lshl_add_u32 {v(2+dt)}, v22, 5, v21")
        e("v_lshlrev_b32 v22, 11, v13")
        e("v_lshl_add_u32 v22, v14, 4, v22")
        e("s_lshl_b32 s56, s59, 10")
        e("v_add_u32 v6, s56, v22")
        if self.o.get("pub_early", True):
            e("s_waitcnt vmcnt(0) lgkmcnt(0)")
        else:
            e("s_waitcnt lgkmcnt(0)")
        e("s_barrier                        ; A = B_0")
        self.stamp("g2_loop")
        e("s_mov_b32 s64, 0")
        e(f"s_mov_b32 s62, {STG}")
        e(f"s_mov_b32 s63, {(-4*STG) & 0xffffffff}")
        def adv():
            return ["s_add_u32 s64, s64, 1", "s_cmp_eq_u32 s64, 4"]
        def adv2():
            return [f"v_add_u32 {v(r)}, s65, {v(r)}" for r in range(2, 7)]
        pre = ["s_add_u32 s64, s64, 1", "s_cmp_eq_u32 s64, 5", "s_cselect_b32 s65, s63, s62", "s_cselect_b32 s64, 0, s64"]
        WX = {0: "s_waitcnt lgkmcnt(6)", 4: "s_waitcnt lgkmcnt(8)", 8: "s_waitcnt lgkmcnt(10)", 12: "s_waitcnt lgkmcnt(12)"}
        if self.o.get("g2_fullwait"): WX = {0: "s_waitcnt lgkmcnt(0)"}
        for r in self.g2_frag_reads(X, 0): e(r)
        for p in pre: e(p)
        e("s_waitcnt lgkmcnt(0)")
        self.g2_half(X, Y, 1, first=True, tail=adv2()[:4])
        e(adv2()[4])
        e("s_waitcnt vmcnt(0) lgkmcnt(0)")
        e("s_barrier                        ; B_1")
        e("s_mov_b32 s67, 0")
        L = self.newlabel("g2c")
        self.label(L)
        for k in range(3):
            self.g2_half(Y, X, 0, tail=pre)
            self.g2_half(X, Y, 1, tail=adv2()[:4], waits=WX)
            e(adv2()[4])
            if k == 2:
                e("s_add_u32 s67, s67, 1"); e("s_cmp_lt_u32 s67, 9")
            e("s_waitcnt lgkmcnt(0)")
            e("s_barrier")
        e(f"s_cbranch_scc1 {L}")
        self.g2_half(Y, None, 0, reads=False)
        self.stamp("g2_loopend")

    def g2_epilogue(self):
        e = self.e
        ACC = self.G2_ACC
        Lk = self.newlabel("g2k")
        e("s_cmp_eq_u32 s69, 0")
        e(f"s_cbranch_scc1 {Lk}")
        for dt in range(4):
            for r in range(8):
                a = ACC + dt*16 + r
                e(f"v_swap_b32 {v(a)}, {v(a+8)}")
        self.label(Lk)
        e("s_xor_b32 s56, s2, 4")
        e("s_lshl_b32 s56, s56, 15")
        e(f"s_lshl_b32 s57, {s(S_WV)}, 13")
        e("s_add_u32 s56, s56, s57")
        e(f"s_add_u32 s62, s56, {WS_EX}")
        e("v_lshlrev_b32 v8, 4, v0")
        for dt in range(4):
            for tk in range(2):
                i = dt*2 + tk
                e(f"s_add_u32 s56, s62, {1024*i}")
                e(f"buffer_store_dwordx4 {v(ACC + dt*16 + 8 + 4*tk, 4)}, v8, {s(SRD_WS,4)}, s56 offen sc1")
        e("v_lshrrev_b32 v13, 4, v0          ; g")
        e("v_and_b32 v14, 15, v0             ; n")
        e("v_lshrrev_b32 v15, 2, v14")
        e("v_and_b32 v16, 3, v14")
        e("v_lshl_add_u32 v17, v13, 2, v15   ; 4g + r")
        e("v_lshlrev_b32 v17, 6, v17")
        e("v_lshl_add_u32 v17, v16, 3, v17")
        e("s_lshl_b32 s56, s59, 13")
        e("s_lshl_b32 s57, s58, 12           ; 64wd*64")
        e("s_add_u32 s56, s56, s57")
        e(f"s_add_u32 s56, s56, {self.G2_RES}")
        e("v_add_u32 v17, s56, v17")
        RS = 168
        for dt in range(4):
            for tk in range(2):
                e(f"ds_read_b64_tr_b16 {v(RS + 2*(2*dt+tk), 2)}, v17 offset:{dt*16*64 + tk*32}")
        pass

    def g2_epilogue2(self):
        e = self.e
        ACC = self.G2_ACC; RS = 168; B2 = 234
        e("s_lshl_b32 s56, s2, 15")
        e(f"s_lshl_b32 s57, {s(S_WV)}, 13")
        e("s_add_u32 s56, s56, s57")
        e(f"s_add_u32 s62, s56, {WS_EX}")
        IN = 136
        for i in range(1, 8): e(f"s_add_u32 {s(80+i)}, s62, {1024*i}")
        e("s_mov_b32 s80, s62")
        self.srd(SRD_A, S_OUT, S_ * D_ * 2)
        e(f"s_lshl_b32 s56, {s(S_WV)}, 12")
        e("v_and_b32 v10, 1, v13")
        e("v_lshlrev_b32 v10, 1, v10")
        e("v_lshrrev_b32 v11, 1, v13")
        e("v_add_u32 v10, v10, v11")
        e("v_and_b32 v11, 7, v14")
        for dp in range(2):
            e(f"v_add_u32 v12, {4*dp}, v10")
            e("v_xor_b32 v12, v12, v11")
            e("v_lshlrev_b32 v12, 4, v12")
            e("v_lshl_add_u32 v12, v14, 7, v12")
            e(f"v_add_u32 {v(32+dp)}, s56, v12")
        e("v_lshrrev_b32 v11, 3, v0           ; l>>3")
        e("v_and_b32 v12, 7, v0")
        e("v_xor_b32 v10, v12, v11")
        e("v_lshlrev_b32 v10, 4, v10")
        e("v_lshl_add_u32 v10, v11, 7, v10")
        e("v_add_u32 v34, s56, v10")
        e("s_lshl_b32 s56, s60, 7")
        e("s_lshl_b32 s57, s59, 6")
        e("s_add_u32 s56, s56, s57")
        e("s_lshl_b32 s57, s69, 5")
        e("s_add_u32 s56, s56, s57")
        e("v_add_u32 v9, s56, v11")
        e("v_lshlrev_b32 v9, 11, v9")
        e("v_lshl_add_u32 v9, v12, 4, v9")
        self.g2_dbh(56, 61, 58)
        e("s_lshl_b32 s56, s56, 8")
        e("s_lshl_b32 s57, s58, 7")
        e("s_add_u32 s63, s56, s57")
        BF = 40
        for dt in range(4):
            self.unpack(BF+4*dt,   B2+2*dt,   0); self.unpack(BF+4*dt+1, B2+2*dt,   1)
            self.unpack(BF+4*dt+2, B2+2*dt+1, 0); self.unpack(BF+4*dt+3, B2+2*dt+1, 1)
        L = self.newlabel("g2in"); Lx = self.newlabel("g2inx")
        def watch():
            L1 = self.newlabel("g2w1"); L1x = self.newlabel("g2w1x")
            e("s_mov_b32 s57, 0x40000")
            e("s_mov_b32 exec_lo, 0"); e("s_mov_b32 exec_hi, 0x80000000")
            self.label(L1)
            e(f"buffer_load_dword v35, v8, {s(SRD_WS,4)}, s87 offen offset:12 sc1")
            e("s_sub_u32 s57, s57, 1")
            e("s_cmp_eq_u32 s57, 0")
            e(f"s_cbranch_scc1 {L1x}")
            e("s_waitcnt vmcnt(0)")
            e("v_cmp_eq_u32 vcc, -1, v35")
            e(f"s_cbranch_vccnz {L1}")
            self.label(L1x)
            e("s_waitcnt vmcnt(0)")
            e("s_mov_b64 exec, -1")
        mode = self.o.get("ex_mode", "watch")
        if mode == "watch": watch()
        elif mode == "spec":
            for i in range(8):
                e(f"buffer_load_dwordx4 {v(IN+4*i,4)}, v8, {s(SRD_WS,4)}, {s(80+i)} offen sc1")
            e("s_waitcnt vmcnt(0)")
            e(f"v_max_u32 v35, {v(IN)}, {v(IN+3)}")
            for i in range(1, 8):
                e(f"v_max3_u32 v35, v35, {v(IN+4*i)}, {v(IN+4*i+3)}")
            e("v_cmp_eq_u32 vcc, -1, v35")
            e(f"s_cbranch_vccz {Lx}")
            watch()
        e("s_mov_b32 s57, 0x40000")
        self.label(L)
        for i in range(8):
            e(f"buffer_load_dwordx4 {v(IN+4*i,4)}, v8, {s(SRD_WS,4)}, {s(80+i)} offen sc1")
        e("s_sub_u32 s57, s57, 1")
        e("s_cmp_eq_u32 s57, 0")
        e(f"s_cbranch_scc1 {Lx}")
        e("s_waitcnt vmcnt(0)")
        e(f"v_max_u32 v35, {v(IN)}, {v(IN+3)}")
        for i in range(1, 8):
            e(f"v_max3_u32 v35, v35, {v(IN+4*i)}, {v(IN+4*i+3)}")
        e("v_cmp_eq_u32 vcc, -1, v35")
        e(f"s_cbranch_vccnz {L}")
        self.label(Lx)
        e("s_waitcnt vmcnt(0) lgkmcnt(0)")
        self.stamp("g2_got")
        k = 0
        for tk in range(2):
            for dp in range(2):
                O = 56 + 4*(k & 1); k += 1
                for dd in range(2):
                    dt = 2*dp + dd
                    i = dt*2 + tk
                    a = ACC + dt*16 + 4*tk
                    T = 64
                    r0 = RS + 2*i
                    self.unpack(T, r0, 0); self.unpack(T+1, r0, 1); self.unpack(T+2, r0+1, 0); self.unpack(T+3, r0+1, 1)
                    for h in range(2):
                        e(f"v_pk_add_f32 {v(a+2*h,2)}, {v(a+2*h,2)}, {v(IN+4*i+2*h,2)}")
                        e(f"v_pk_add_f32 {v(T+2*h,2)}, {v(T+2*h,2)}, {v(BF+4*dt+2*h,2)}")
                        e(f"v_pk_add_f32 {v(a+2*h,2)}, {v(a+2*h,2)}, {v(T+2*h,2)}")
                        e(f"v_cvt_pk_bf16_f32 {v(O+2*dd+h)}, {v(a+2*h)}, {v(a+2*h+1)}")
                e(f"v_permlane16_swap_b32 {v(O)}, {v(O+2)}")
                e(f"v_permlane16_swap_b32 {v(O+1)}, {v(O+3)}")
                e(f"ds_write_b128 {v(32+dp)}, {v(O,4)} offset:{tk*2048}")
        e("s_waitcnt lgkmcnt(0)")
        for i in range(4): e(f"ds_read_b128 {v(72+4*i,4)}, v34 offset:{1024*i}")
        for i in range(4):
            e(f"s_add_u32 s56, s63, {i*8*2048}")
            e(f"s_waitcnt lgkmcnt({3-i})")
            e(f"buffer_store_dwordx4 {v(72+4*i,4)}, v9, {s(SRD_A,4)}, s56 offen {self.o.get('out_aux', 'sc1 nt')}")

    def g2(self):
        e = self.e
        Lc = self.newlabel("g2comp"); Le = self.newlabel("g2end")
        e(f"s_cmp_lt_u32 {s(S_WV)}, 4")
        e(f"s_cbranch_scc1 {Lc}")
        self.g2_loader()
        L0 = self.newlabel("g2ep")
        e(f"s_cmp_lg_u32 {s(S_WV)}, 4")
        e(f"s_cbranch_scc1 {L0}")
        e("s_cmp_lg_u32 s2, 0")
        e(f"s_cbranch_scc1 {L0}")
        e(f"v_mov_b32 v254, {s(S_EP)}")
        e(f"v_mov_b32 v255, {WS_EPOCH}")
        e("s_mov_b64 exec, 1")
        e(f"buffer_store_dword v254, v255, {s(SRD_WS,4)}, 0 offen sc1")
        e("s_mov_b64 exec, -1")
        self.label(L0)
        e(f"s_branch {Le}")
        self.label(Lc)
        self.g2_compute()
        self.g2_epilogue()
        self.g2_epilogue2()
        self.label(Le)

    def finish(self):
        self.label("L_end")
        self.e("s_endpgm")

def wrap(body, lds=LDS_BYTES):
    hdr = f"""; Kernarg layout for this problem (112 bytes, ptrs only, base s[0:1]):
;
; One persistent launch, 256 workgroups (one per CU) x 8 waves, four phases handed over through d_ws
;   P : kv = shortconv(k)*v transposed per channel; x transposed; LayerNorm statistics of x
;   C : long causal convolution per channel as block-Toeplitz bf16 MFMA (fp32 accumulate), gate, residual -> h^T
; @launch grid=(256,1,1) block=(512,1,1) lds={lds}
.amdgcn_target "amdgcn-amd-amdhsa--gfx950"
.text
.globl {KNAME}
.p2align 8
.type {KNAME},@function
{KNAME}:
"""
    tail = f"""
.section .rodata,"a"
.p2align 6
.amdhsa_kernel {KNAME}
  .amdhsa_next_free_vgpr 256
  .amdhsa_next_free_sgpr 102
  .amdhsa_accum_offset 256
  .amdhsa_group_segment_fixed_size 0
  .amdhsa_kernarg_size 112
  .amdhsa_user_sgpr_count 2
  .amdhsa_user_sgpr_kernarg_segment_ptr 1
  .amdhsa_system_sgpr_workgroup_id_x 1
  .amdhsa_float_denorm_mode_32 3
.end_amdhsa_kernel
"""
    return hdr + body + tail

def build(opts, ret_g=False):
    g = G(opts)
    g.prologue()
    g.stamp("start", defer=True)
    ph = opts["phases"]
    if "p" in ph:
        g.phase_p()
    else:
        g.epoch_ready()
    if "c" in ph:
        g.phase_c()
        g.stamp("c_end")
        g.signal(3, pf_w2=(opts.get("prefetch_w", True) and opts.get("pf2_at") == "sig"))
        g.stamp("c_sig")
    if "g1" in ph:
        g.g1()
        g.stamp("g1_end")
    if "g2" in ph:
        g.g2()
        g.stamp("g2_end")
    g.stamp_flush()
    g.finish()
    src = wrap(g.finalize())
    return (src, g) if ret_g else src

if __name__ == "__main__":
    out = build(dict(phases=["p", "c", "g1", "g2"]))
    path = sys.argv[1] if len(sys.argv) > 1 else "sequential_preLN__ssm_conv_h3__mixer_channel_mlp__prompt.s"
    open(path, "w").write(out)
    print("wrote", path, len(out))
```

```python
import sys
from asmb import Asm, v, s

KNAME = "sequential_preLN__ssm_conv_h3__mixer_channel_mlp__prompt_kernel"
S_, D_, F_ = 2048, 1024, 3584

WS_FLAGS = 0
WS_EPOCH = 32768
WS_ST    = 65536
WS_TSP   = 131072
WS_CSP   = 393216
WS_STAMP = 786432
WS_XR    = 1 << 20
WS_XT    = 5 << 20
WS_HT    = 9 << 20
WS_HM    = 13 << 20
WS_EX    = 28 << 20
WS_SIZE  = 64 << 20

S_X, S_K, S_V, S_SH, S_SSMK, S_SSMD, S_BX, S_W1 = 8, 10, 12, 14, 16, 18, 20, 22
S_B1, S_W2, S_B2, S_OUT = 24, 26, 28, 30
S_DBG, S_WS = 32, 34
SRD_WS, SRD_A, SRD_B, SRD_C = 36, 40, 44, 48
S_WV, S_XI, S_J, S_EP = 52, 53, 54, 55

LDS_BYTES = 163840

class G(Asm):
    def __init__(self, opts):
        super().__init__()
        self.o = opts
        self.stamp_names = []
        self.deferred = []
        self.nt = " nt" if opts.get("nt", False) else ""

    def srd(self, dst, ptr, nbytes):
        self.e(f"s_mov_b32 {s(dst)}, {s(ptr)}")
        self.e(f"s_mov_b32 {s(dst+1)}, {s(ptr+1)}")
        self.e(f"s_mov_b32 {s(dst+2)}, {nbytes}")
        self.e(f"s_mov_b32 {s(dst+3)}, 0x20000")

    def stamp(self, name, defer=False):
        if not self.o.get("stamps"): return
        if name in self.stamp_names: i = self.stamp_names.index(name)
        else:
            i = len(self.stamp_names)
            assert i < 32
            self.stamp_names.append(name)
        op = 's_memtime' if self.o.get('cyc') else 's_memrealtime'
        if defer:
            k = len(self.deferred)
            assert k < 5
            self.deferred.append((i, 70 + 2*k))
            self.e(f"{op} s[{70+2*k}:{71+2*k}]")
            return
        self.e(f"{op} s[100:101]")
        self.e("s_waitcnt lgkmcnt(0)")
        self.e(f"v_writelane_b32 v253, s100, {i}")

    def stamp_commit(self):
        if not self.o.get("stamps"): return
        self.e("s_waitcnt lgkmcnt(0)")
        for i, r in self.deferred: self.e(f"v_writelane_b32 v253, s{r}, {i}")
        self.deferred = []

    def tick(self, i): pass
    def tick_flush(self, n): pass

    def stamp_flush_debug(self):
        e = self.e
        sel = self.o["dbg_sel"]
        self.srd(SRD_A, S_DBG, 256)
        for wave in (0, 4):
            L = self.newlabel("dbgf")
            e(f"s_cmp_lg_u32 {s(S_WV)}, {wave}")
            e(f"s_cbranch_scc1 {L}")
            for i, (nm, w) in enumerate(sel):
                if w != wave: continue
                idx = self.stamp_names.index(nm)
                e(f"v_readlane_b32 s98, v253, {idx}")
                if nm == "start": e("s_not_b32 s98, s98")
                e("v_mov_b32 v254, s98")
                e(f"v_mov_b32 v255, {4*i}")
                e("s_mov_b64 exec, 1")
                e(f"buffer_atomic_umax v254, v255, {s(SRD_A,4)}, 0 offen")
                e("s_mov_b64 exec, -1")
            self.label(L)

    def stamp_flush(self):
        if not self.o.get("stamps"): return
        if self.o.get("dbg_sel"): return self.stamp_flush_debug()
        L = self.newlabel("tf")
        self.e(f"s_and_b32 s98, {s(S_WV)}, 3")
        self.e("s_cmp_lg_u32 s98, 0")
        self.e(f"s_cbranch_scc1 {L}")
        self.e(f"s_lshl_b32 s98, s2, 8")
        self.e(f"s_lshl_b32 s99, {s(S_WV)}, 5")
        self.e("s_add_u32 s98, s98, s99")
        self.e(f"s_add_u32 s98, s98, {WS_STAMP}")
        self.e("v_lshlrev_b32 v255, 2, v0")
        self.e("v_add_u32 v255, s98, v255")
        self.e("s_mov_b32 exec_hi, 0")
        self.e(f"buffer_store_dword v253, v255, {s(SRD_WS,4)}, 0 offen")
        self.e("s_mov_b64 exec, -1")
        self.label(L)

    def prologue(self):
        e = self.e
        e("s_cmp_ge_u32 s2, 256")
        e("s_cbranch_scc1 L_end")
        e("s_load_dwordx16 s[8:23], s[0:1], 0")
        e("s_load_dwordx8 s[24:31], s[0:1], 64")
        e("s_load_dwordx4 s[32:35], s[0:1], 96")
        e("v_lshrrev_b32 v1, 6, v0")
        e(f"v_readfirstlane_b32 {s(S_WV)}, v1")
        e("v_and_b32 v0, 63, v0")
        e(f"s_and_b32 {s(S_XI)}, s2, 7")
        e(f"s_lshr_b32 {s(S_J)}, s2, 3")
        for r in range(200, 211): e(f"v_mov_b32 {v(r)}, 0")
        e(f"v_mov_b32 v2, {self.C_CNT}")
        e("v_mov_b32 v3, 0")
        e("v_lshl_add_u32 v2, v0, 2, v2")
        e("ds_write_b32 v2, v3")
        e("s_waitcnt lgkmcnt(0)")
        e("s_barrier")
        self.srd(SRD_WS, S_WS, WS_SIZE)
        e(f"s_load_dword {s(S_EP)}, {s(S_WS,2)}, {WS_EPOCH}")

    def lds_count(self, idx, target, then):
        e = self.e
        L = self.newlabel("cnt")
        e(f"v_mov_b32 v250, {self.C_CNT + 4*idx}")
        e("v_mov_b32 v251, 1")
        e("s_mov_b64 exec, 1")
        e("ds_add_rtn_u32 v252, v250, v251")
        e("s_waitcnt lgkmcnt(0)")
        e("v_readfirstlane_b32 s56, v252")
        e("s_mov_b64 exec, -1")
        if then is not None:
            e(f"s_cmp_eq_u32 s56, {target-1}")
            e(f"s_cbranch_scc0 {L}")
            then()
            self.label(L)

    def lds_wait(self, idx, target):
        e = self.e
        L = self.newlabel("lw"); Lx = self.newlabel("lwx")
        e(f"v_mov_b32 v250, {self.C_CNT + 4*idx}")
        e("s_mov_b32 s57, 0x400000")
        self.label(L)
        e("ds_read_b32 v251, v250")
        e("s_sub_u32 s57, s57, 1")
        e("s_cmp_eq_u32 s57, 0")
        e(f"s_cbranch_scc1 {Lx}")
        e("s_waitcnt lgkmcnt(0)")
        e("v_readfirstlane_b32 s56, v251")
        e(f"s_cmp_lt_u32 s56, {target}")
        e(f"s_cbranch_scc1 {L}")
        self.label(Lx)
        e("s_waitcnt lgkmcnt(0)")

    def code_prefetch(self):
        e = self.e
        e("s_getpc_b64 s[56:57]")
        self.label("L_pc")
        e(f"s_sub_u32 s56, s56, L_pc-{KNAME}")
        e("s_subb_u32 s57, s57, 0")
        e(f"s_lshl_b32 s60, {s(S_WV)}, 13")
        e("v_lshlrev_b32 v244, 7, v0")
        e("v_add_u32 v244, s60, v244")
        e(f"v_min_u32 v244, L_end-{KNAME}, v244")
        e("global_load_dword v245, v244, s[56:57]")

    def epoch_ready(self):
        e = self.e
        e("s_waitcnt lgkmcnt(0)")
        e(f"s_and_b32 {s(S_EP)}, {s(S_EP)}, 0xfffffff0")
        e(f"s_add_u32 {s(S_EP)}, {s(S_EP)}, 16")

    def signal(self, p, wave=0, pf_w2=False):
        e = self.e
        e("s_waitcnt vmcnt(0) lgkmcnt(0)")
        e("s_barrier")
        L = self.newlabel("sig")
        e(f"s_cmp_lg_u32 {s(S_WV)}, {wave}")
        e(f"s_cbranch_scc1 {L}")
        self.publish(p)
        self.label(L)
        if pf_w2:
            L = self.newlabel("sgp")
            e(f"s_cmp_ge_u32 {s(S_WV)}, 4")
            e(f"s_cbranch_scc1 {L}")
            self.prefetch_w(2, S_WV)
            self.label(L)

    def poll_all(self, p, t0=248, sleep=0, arr=0):
        e = self.e
        L = self.newlabel("poll"); Lx = self.newlabel("pollx")
        e(f"s_add_u32 s56, {s(S_EP)}, {p}")
        e(f"v_lshlrev_b32 {v(t0+4)}, 7, v0")
        if arr: e(f"v_add_u32 {v(t0+4)}, {8192*arr}, {v(t0+4)}")
        e("s_mov_b32 s57, 0x200000")
        self.label(L)
        if sleep: e(f"s_sleep {sleep}")
        e(f"buffer_load_dwordx4 {v(t0,4)}, {v(t0+4)}, {s(SRD_WS,4)}, 0 offen sc1")
        e("s_sub_u32 s57, s57, 1")
        e("s_cmp_eq_u32 s57, 0")
        e(f"s_cbranch_scc1 {Lx}")
        e("s_waitcnt vmcnt(0)")
        for i in range(4):
            e(f"v_subrev_u32 {v(t0+i)}, s56, {v(t0+i)}")
        e(f"v_max_u32 {v(t0)}, {v(t0)}, {v(t0+1)}")
        e(f"v_max3_u32 {v(t0)}, {v(t0)}, {v(t0+2)}, {v(t0+3)}")
        e(f"v_cmp_le_u32 vcc, 16, {v(t0)}")
        e(f"s_cbranch_vccnz {L}")
        self.label(Lx)
        e("s_waitcnt vmcnt(0)")

    def poll_group(self, p, t0=248, sleep=0, arr=0):
        e = self.e
        L = self.newlabel("pollg"); Lx = self.newlabel("pollgx")
        e(f"s_add_u32 s56, {s(S_EP)}, {p}")
        e(f"v_and_b32 {v(t0+4)}, 7, v0")
        e(f"v_lshlrev_b32 {v(t0+4)}, 7, {v(t0+4)}")
        e(f"s_lshl_b32 s57, {s(S_XI)}, 10")
        if arr: e(f"s_add_u32 s57, s57, {8192*arr}")
        e(f"v_add_u32 {v(t0+4)}, s57, {v(t0+4)}")
        e("s_mov_b32 s57, 0x200000")
        self.label(L)
        if sleep: e(f"s_sleep {sleep}")
        e("s_mov_b64 exec, 0xff")
        e(f"buffer_load_dwordx4 {v(t0,4)}, {v(t0+4)}, {s(SRD_WS,4)}, 0 offen sc1")
        e("s_sub_u32 s57, s57, 1")
        e("s_cmp_eq_u32 s57, 0")
        e(f"s_cbranch_scc1 {Lx}")
        e("s_waitcnt vmcnt(0)")
        for i in range(4):
            e(f"v_subrev_u32 {v(t0+i)}, s56, {v(t0+i)}")
        e(f"v_max_u32 {v(t0)}, {v(t0)}, {v(t0+1)}")
        e(f"v_max3_u32 {v(t0)}, {v(t0)}, {v(t0+2)}, {v(t0+3)}")
        e(f"v_cmp_le_u32 vcc, 16, {v(t0)}")
        e(f"s_cbranch_vccnz {L}")
        self.label(Lx)
        e("s_waitcnt vmcnt(0)")
        e("s_mov_b64 exec, -1")

    def wait_all(self, p, wave=0):
        e = self.e
        if self.o.get("nosync"):
            e("s_barrier"); return
        L = self.newlabel("wa")
        e(f"s_cmp_lg_u32 {s(S_WV)}, {wave}")
        e(f"s_cbranch_scc1 {L}")
        self.poll_all(p)
        self.label(L)
        e("s_barrier")

    def allreduce_add(self, regs, tmp):
        e = self.e
        for mod in ("quad_perm:[1,0,3,2]", "quad_perm:[2,3,0,1]", "row_half_mirror", "row_mirror"):
            for r in regs:
                e(f"v_add_f32_dpp {v(r)}, {v(r)}, {v(r)} {mod} row_mask:0xf bank_mask:0xf")
        for op in ("v_permlane16_swap_b32", "v_permlane32_swap_b32"):
            for r, t in zip(regs, tmp): e(f"v_mov_b32 {v(t)}, {v(r)}")
            for r, t in zip(regs, tmp): e(f"{op} {v(t)}, {v(r)}")
            for r, t in zip(regs, tmp): e(f"v_add_f32 {v(r)}, {v(r)}, {v(t)}")

    def round_bf16(self, dst, src):
        self.e(f"v_cvt_pk_bf16_f32 {v(dst)}, {v(src)}, {v(src)}")
        self.e(f"v_and_b32 {v(dst)}, 0xffff0000, {v(dst)}")

    C_HC, C_HSTR, C_HCH = 0, 4160, 16640
    C_XR, C_XCH = 66560, 4608
    C_ST = 84992
    C_EX = 101376
    C_XT = 134144
    C_CNT = 150528

    def unpack(self, dst, src, hi):
        if hi: self.e(f"v_and_b32 {v(dst)}, 0xffff0000, {v(src)}")
        else:  self.e(f"v_lshlrev_b32 {v(dst)}, 16, {v(src)}")

    def chC(self, dst):
        e = self.e
        e(f"s_and_b32 s58, {s(S_WV)}, 3")
        e(f"s_lshl_b32 s56, {s(S_XI)}, 7")
        e(f"s_lshl_b32 s57, {s(S_J)}, 2")
        e("s_add_u32 s56, s56, s57")
        e(f"s_add_u32 {s(dst)}, s56, s58")

    def lds_transpose_setup(self):
        e = self.e
        e(f"s_lshl_b32 s56, {s(S_WV)}, 12")
        e(f"s_add_u32 s56, s56, {self.C_EX}")
        e("v_xor_b32 v126, v1, v2")
        e("v_lshlrev_b32 v126, 4, v126")
        e("v_lshl_add_u32 v126, v2, 9, v126")
        e("v_add_u32 v126, s56, v126")
        e("v_lshrrev_b32 v127, 5, v0")
        e("v_lshl_add_u32 v128, v1, 7, s56")
        for i in range(4):
            e(f"v_add_u32 v129, {2*i}, v127")
            e("v_xor_b32 v129, v129, v2")
            e(f"v_lshl_add_u32 {v(130+i)}, v129, 4, v128")

    def h_loads(self):
        e = self.e
        e("s_lshl_b32 s56, s63, 12")
        e(f"s_add_u32 {s(SRD_C)}, {s(S_SSMK)}, s56")
        e(f"s_addc_u32 {s(SRD_C+1)}, {s(S_SSMK+1)}, 0")
        e(f"s_mov_b32 {s(SRD_C+2)}, 4096")
        e(f"s_mov_b32 {s(SRD_C+3)}, 0x20000")
        e("v_lshlrev_b32 v8, 4, v0")
        e("v_subrev_u32 v9, 32, v8")
        for it in range(5):
            if it: e(f"v_add_u32 v9, 1024, v9")
            e(f"buffer_load_dwordx4 {v(140+6*it,4)}, v9, {s(SRD_C,4)}, 0 offen{self.nt}")
            e(f"buffer_load_dwordx2 {v(140+6*it+4,2)}, v9, {s(SRD_C,4)}, 0 offen offset:16{self.nt}")

    def h_build(self, younger=0):
        e = self.e
        e(f"s_mul_i32 s56, s58, {self.C_HCH}")
        e("v_add_u32 v8, s56, v8")
        T = 172
        for it in range(5):
            a = 140 + 6*it
            e(f"s_waitcnt vmcnt({2*(4-it) + younger})")
            if it == 4: e("s_mov_b64 exec, 15")
            off = 1024 * it
            e(f"ds_write_b128 v8, {v(a,4)} offset:{self.C_HC + off}")
            for d in range(4): e(f"v_mov_b32 {v(T+d)}, {v(a+1+d)}")
            e(f"ds_write_b128 v8, {v(T,4)} offset:{self.C_HC + 2*self.C_HSTR + off}")
            for d in range(4): e(f"v_alignbit_b32 {v(T+4+d)}, {v(a+d+1)}, {v(a+d)}, 16")
            e(f"ds_write_b128 v8, {v(T+4,4)} offset:{self.C_HC + 1*self.C_HSTR + off}")
            for d in range(4): e(f"v_alignbit_b32 {v(T+8+d)}, {v(a+d+2)}, {v(a+d+1)}, 16")
            e(f"ds_write_b128 v8, {v(T+8,4)} offset:{self.C_HC + 3*self.C_HSTR + off}")
            T = 184 if T == 172 else 172
        e("s_mov_b64 exec, -1")

    def phase_p(self):
        e = self.e
        Lb = self.newlabel("p_b"); Le = self.newlabel("p_e")
        self.chC(63)
        e("v_lshrrev_b32 v1, 3, v0           ; pbk")
        e("v_and_b32 v2, 7, v0               ; cq")
        if self.o.get("p_rot"):
            e(f"s_add_u32 s56, {s(S_XI)}, {s(S_J)}")
            e("s_and_b32 s56, s56, 7")
            e("s_lshl_b32 s56, s56, 7")
        else:
            e(f"s_lshl_b32 s56, {s(S_XI)}, 7")
        e("s_lshl_b32 s57, s58, 5")
        e("s_add_u32 s59, s56, s57            ; 128cb + 32w")
        e("v_lshl_add_u32 v3, v2, 2, s59      ; ch0")
        e(f"s_lshl_b32 s56, {s(S_J)}, 6")
        e("v_lshl_add_u32 v4, v1, 3, s56")
        e("v_lshlrev_b32 v5, 11, v4")
        e("v_lshl_add_u32 v5, v3, 1, v5")
        e(f"s_cmp_ge_u32 {s(S_WV)}, 4")
        e(f"s_cbranch_scc1 {Lb}")
        self.srd(SRD_A, S_K, S_ * D_ * 2)
        self.srd(SRD_B, S_V, S_ * D_ * 2)
        self.srd(SRD_C, S_SH, D_ * 8)
        KD, VD, WD = 10, 32, 48
        e("v_subrev_u32 v120, 6144, v5")
        for i in range(1, 6): e(f"v_add_u32 {v(120+i)}, {4096*i}, v120")
        for i in range(11):
            e(f"buffer_load_dwordx2 {v(KD+2*i,2)}, {v(120+i//2)}, {s(SRD_A,4)}, 0 offen offset:{2048*(i&1)}{self.nt}")
        e("v_lshlrev_b32 v7, 3, v3            ; ch0*8")
        e(f"buffer_load_dwordx4 {v(WD,4)}, v7, {s(SRD_C,4)}, 0 offen")
        e(f"buffer_load_dwordx4 {v(WD+4,4)}, v7, {s(SRD_C,4)}, 0 offen offset:16")
        for p in range(8):
            i = p + 3
            e(f"buffer_load_dwordx2 {v(VD+2*p,2)}, {v(120+i//2)}, {s(SRD_B,4)}, 0 offen offset:{2048*(i&1)}{self.nt}")
        self.g2_b2_load()
        extra = 4
        if self.o.get("code_pf", True):
            self.code_prefetch(); extra += 1
        e("v_mov_b32 v8, 0"); e("v_mov_b32 v9, 0")
        e(f"s_mul_i32 s56, s58, {self.C_XCH}")
        e(f"s_add_u32 s56, s56, {self.C_XR + 4096}")
        e("v_lshl_add_u32 v6, v0, 3, s56")
        e("ds_write_b64 v6, v[8:9]")
        self.lds_transpose_setup()
        e("v_lshlrev_b32 v6, 4, v2")
        e(f"s_lshl_b32 s56, {s(S_J)}, 7")
        e("s_sub_u32 s56, 4080, s56")
        e("v_sub_u32 v6, s56, v6")
        e("v_add_u32 v7, s59, v1")
        e("v_lshl_add_u32 v6, v7, 12, v6")
        e(f"v_add_u32 v6, {WS_XR}, v6")
        for c in range(1, 4): e(f"s_mov_b32 {s(64+c)}, {8*4096*c}")
        e("s_mov_b32 s64, 0")
        WP, KP, R, VP, O = 56, 64, 86, 102, 104
        pass
        e(f"s_waitcnt vmcnt({8 + extra})")
        for cp in range(2):
            for j in range(4):
                self.unpack(WP + 2*j,     WD + 2*(2*cp)   + (j >> 1), j & 1)
                self.unpack(WP + 2*j + 1, WD + 2*(2*cp+1) + (j >> 1), j & 1)
            for i in range(11):
                self.unpack(KP + 2*i,     KD + 2*i + cp, 0)
                self.unpack(KP + 2*i + 1, KD + 2*i + cp, 1)
            if cp == 0:
                e(f"s_waitcnt vmcnt({extra})")
            for p in range(8):
                r = R + 2*p
                e(f"v_pk_mul_f32 {v(r,2)}, {v(KP+2*(p+3),2)}, {v(WP,2)}")
                for j in range(1, 4):
                    e(f"v_pk_fma_f32 {v(r,2)}, {v(KP+2*(p+3-j),2)}, {v(WP+2*j,2)}, {v(r,2)}")
                self.unpack(VP,     VD + 2*p + cp, 0)
                self.unpack(VP + 1, VD + 2*p + cp, 1)
                e(f"v_pk_mul_f32 {v(r,2)}, {v(r,2)}, {v(VP,2)}")
            for cc in range(2):
                c = 2*cp + cc
                for j in range(4):
                    e(f"v_cvt_pk_bf16_f32 {v(O+4*c+j)}, {v(R+2*(7-2*j)+cc)}, {v(R+2*(6-2*j)+cc)}")
                e(f"ds_write_b128 v126, {v(O+4*c,4)} offset:{128*c}")
        e("s_waitcnt lgkmcnt(0)")
        for i in range(4): e(f"ds_read_b128 {v(O+4*i,4)}, {v(130+i)} offset:{1024*i}")
        for i in range(4):
            e(f"s_waitcnt lgkmcnt({3-i})")
            e(f"buffer_store_dwordx4 {v(O+4*i,4)}, v6, {s(SRD_WS,4)}, {s(64+i)} offen {self.o.get('xr_aux', 'sc1')}")
        self.stamp("p_stored", defer=True)
        if self.o.get("x_late", False):
            e(f"v_mov_b32 v250, {self.C_CNT + 4*5}")
            e("v_mov_b32 v251, 1")
            e("s_mov_b64 exec, 1")
            e("ds_add_u32 v250, v251")
            e("s_mov_b64 exec, -1")
        e("s_and_b32 s56, s63, 0xfffffffe")
        e("s_lshl_b32 s56, s56, 1")
        e(f"s_load_dword s69, {s(S_SSMD,2)}, s56")
        self.epoch_ready()
        self.stamp_commit()
        e("s_waitcnt vmcnt(0)")
        self.lds_count(0, 4, lambda: self.publish(1))
        self.stamp("p_sig")
        e(f"s_branch {Le}")
        self.label(Lb)
        if self.o.get("stamps"): self.deferred = [(self.stamp_names.index("start"), 70)]
        self.srd(SRD_A, S_X, S_ * D_ * 2)
        XD, SD = 10, 26
        e("s_lshl_b32 s56, s2, 3")
        e("s_lshl_b32 s57, s58, 1")
        e("s_add_u32 s62, s56, s57            ; R0 = 8w + 2w'")
        e("s_lshl_b32 s56, s62, 11")
        e("v_lshl_add_u32 v6, v0, 4, s56")
        for i in range(4):
            e(f"buffer_load_dwordx4 {v(SD+4*i,4)}, v6, {s(SRD_A,4)}, 0 offen offset:{1024*i}{self.nt}")
        self.h_loads()
        e("v_mov_b32 v120, v5")
        for i in range(1, 4): e(f"v_add_u32 {v(120+i)}, {4096*i}, v5")
        for p in range(8):
            e(f"buffer_load_dwordx2 {v(XD+2*p,2)}, {v(120+p//2)}, {s(SRD_A,4)}, 0 offen offset:{2048*(p&1)}{self.nt}")
        self.g1_b1_load()
        e("s_and_b32 s56, s63, 0xfffffffe")
        e("s_lshl_b32 s56, s56, 1")
        e(f"s_load_dword s69, {s(S_SSMD,2)}, s56")
        U = 44
        e("s_waitcnt vmcnt(19)")
        for r in range(2):
            for d in range(8):
                self.unpack(U+16*r+2*d, SD+8*r+d, 0)
                self.unpack(U+16*r+2*d+1, SD+8*r+d, 1)
        SUM = [80, 81]; TMP = [82, 83]; VAR = [86, 87]
        for r in range(2):
            b = U + 16*r
            e(f"v_pk_add_f32 v[84:85], {v(b,2)}, {v(b+2,2)}")
            for d in range(2, 8):
                e(f"v_pk_add_f32 v[84:85], v[84:85], {v(b+2*d,2)}")
            e(f"v_add_f32 {v(SUM[r])}, v84, v85")
        self.allreduce_add(SUM, TMP)
        for r in range(2):
            e(f"v_mul_f32 {v(SUM[r])}, 0x3a800000, {v(SUM[r])}")
        for r in range(2):
            b = U + 16*r
            for d in range(0, 16, 2):
                e(f"v_sub_f32 {v(b+d)}, {v(b+d)}, {v(SUM[r])}")
                e(f"v_sub_f32 {v(b+d+1)}, {v(b+d+1)}, {v(SUM[r])}")
            e(f"v_pk_mul_f32 v[84:85], {v(b,2)}, {v(b,2)}")
            for d in range(1, 8):
                e(f"v_pk_fma_f32 v[84:85], {v(b+2*d,2)}, {v(b+2*d,2)}, v[84:85]")
            e(f"v_add_f32 {v(VAR[r])}, v84, v85")
        self.allreduce_add(VAR, TMP)
        ST = 88
        for r in range(2):
            e(f"v_mul_f32 {v(VAR[r])}, 0x3a800000, {v(VAR[r])}")
            self.round_bf16(VAR[r], VAR[r])
            e(f"v_add_f32 {v(VAR[r])}, 0x3727c5ac, {v(VAR[r])}")
            self.round_bf16(VAR[r], VAR[r])
            e(f"v_sqrt_f32 {v(VAR[r])}, {v(VAR[r])}")
            self.round_bf16(VAR[r], VAR[r])
            e(f"v_rcp_f32 {v(ST+2*r+1)}, {v(VAR[r])}")
            self.round_bf16(ST + 2*r, SUM[r])
        e("s_lshl_b32 s56, s62, 3")
        e(f"s_add_u32 s56, s56, {WS_ST}")
        e("v_mov_b32 v6, s56")
        e("s_mov_b64 exec, 1")
        e(f"buffer_store_dwordx4 {v(ST,4)}, v6, {s(SRD_WS,4)}, 0 offen sc1")
        e("s_mov_b64 exec, -1")
        self.h_build(younger=10)
        e("s_waitcnt lgkmcnt(0)")
        self.lds_count(1, 4, None)
        self.stamp_commit()
        self.stamp("p_hb")
        self.epoch_ready()
        e("s_waitcnt vmcnt(0)")
        self.lds_count(2, 4, lambda: self.publish(1, arr=1))
        self.stamp("p_stsig")
        self.lds_transpose_setup()
        e("v_lshlrev_b32 v6, 4, v2")
        e(f"s_lshl_b32 s56, {s(S_J)}, 7")
        e("v_add_u32 v6, s56, v6")
        e("v_add_u32 v7, s59, v1")
        e("v_lshl_add_u32 v6, v7, 12, v6")
        e(f"v_add_u32 v7, {WS_XT}, v6")
        for c in range(1, 4): e(f"s_mov_b32 {s(64+c)}, {8*4096*c}")
        e("s_mov_b32 s64, 0")
        e("s_mov_b32 s60, 0x05040100")
        e("s_mov_b32 s61, 0x07060302")
        O = 104
        for c in range(4):
            sel = s(61) if c & 1 else s(60)
            for j in range(4):
                e(f"v_perm_b32 {v(O+4*c+j)}, {v(XD+2*(2*j+1)+(c>>1))}, {v(XD+2*(2*j)+(c>>1))}, {sel}")
            e(f"ds_write_b128 v126, {v(O+4*c,4)} offset:{128*c}")
        for i in range(4): e(f"ds_read_b128 {v(O+4*i,4)}, {v(130+i)} offset:{1024*i}")
        e("s_waitcnt lgkmcnt(0)")
        if self.o.get("xt_late", True):
            self.lds_wait(6, 4)
        for i in range(4):
            e(f"buffer_store_dwordx4 {v(O+4*i,4)}, v7, {s(SRD_WS,4)}, {s(64+i)} offen {self.o.get('xt_aux', 'sc1')}")
        self.stamp("p_stored")
        e("s_waitcnt vmcnt(0)")
        self.lds_count(7, 4, lambda: self.publish(1, arr=2))
        self.stamp("p_sig")
        self.label(Le)

    def publish(self, p, arr=0):
        e = self.e
        e(f"s_add_u32 s56, {s(S_EP)}, {p}")
        e("v_mov_b32 v254, s56")
        e(f"s_lshl_b32 s57, {s(S_XI)}, 10")
        e(f"s_lshr_b32 s56, {s(S_J)}, 2")
        e("s_lshl_b32 s56, s56, 7")
        e("s_add_u32 s57, s57, s56")
        e(f"s_and_b32 s56, {s(S_J)}, 3")
        e("s_lshl_b32 s56, s56, 2")
        e("s_add_u32 s57, s57, s56")
        if arr: e(f"s_add_u32 s57, s57, {8192*arr}")
        e("v_mov_b32 v255, s57")
        e("s_mov_b64 exec, 1")
        e(f"buffer_store_dword v254, v255, {s(SRD_WS,4)}, 0 offen sc1")
        e("s_mov_b64 exec, -1")

    def phase_c(self):
        e = self.e
        Lh = self.newlabel("c_help"); Lj = self.newlabel("c_join"); Lep = self.newlabel("c_epi")
        e(f"s_cmp_ge_u32 {s(S_WV)}, 4")
        e(f"s_cbranch_scc1 {Lh}")
        self.chC(63)
        e("v_lshlrev_b32 v1, 4, v0            ; lane*16")
        Lp = self.newlabel("c_p"); Lp2 = self.newlabel("c_p2")
        e(f"s_cmp_eq_u32 {s(S_WV)}, 0")
        e(f"s_cbranch_scc0 {Lp}")
        if not self.o.get("nosync"): self.poll_group(1, sleep=self.o.get("g_sleep", 4))
        self.lds_count(4, 1, None)
        e(f"s_branch {Lp2}")
        self.label(Lp)
        self.lds_wait(4, 1)
        self.label(Lp2)
        self.stamp("c_start")
        e("s_lshl_b32 s56, s63, 12")
        e(f"s_add_u32 s60, s56, {WS_XR}")
        e(f"s_mul_i32 s56, s58, {self.C_XCH}")
        e(f"s_add_u32 m0, s56, {self.C_XR}")
        for i in range(4):
            e(f"buffer_load_dwordx4 v1, {s(SRD_WS,4)}, s60 offen sc1 lds")
            if i < 3: e("s_add_u32 m0, m0, 1024"); e("s_add_u32 s60, s60, 1024")
        if self.o.get("xt_late", True):
            e(f"v_mov_b32 v250, {self.C_CNT + 4*6}")
            e("v_mov_b32 v251, 1")
            e("s_mov_b64 exec, 1")
            e("ds_add_u32 v250, v251")
            e("s_mov_b64 exec, -1")
        e("v_and_b32 v2, 15, v0               ; n / m")
        e("v_lshrrev_b32 v3, 4, v0            ; g / rho")
        e("v_add_u32 v6, 1, v2")
        e("v_and_b32 v7, 3, v6")
        e(f"v_mul_u32_u24 v7, {self.C_HSTR}, v7")
        e("v_and_b32 v6, 0x1c, v6")
        e("v_lshl_add_u32 v7, v6, 1, v7")
        e("v_lshl_add_u32 v7, v3, 4, v7")
        e(f"s_mul_i32 s56, s58, {self.C_HCH}")
        e(f"s_add_u32 s56, s56, {self.C_HC}")
        e("v_add_u32 v8, s56, v7              ; v8 = A base")
        e("v_lshlrev_b32 v6, 5, v2")
        e("v_lshlrev_b32 v7, 4, v3")
        e("v_sub_u32 v6, v7, v6")
        e(f"s_mul_i32 s56, s58, {self.C_XCH}")
        e(f"s_add_u32 s56, s56, {self.C_XR + 480}")
        e("v_add_u32 v9, s56, v6              ; v9 = B base")
        self.lds_wait(1, 4)
        e("s_waitcnt vmcnt(0)")
        if self.o.get("tlb_touch", False): self.tlb_touch()
        if self.o.get("prefetch_w1", False): self.prefetch_w(1, 58)
        if self.o.get("prefetch_w", True) and self.o.get("pf2_at") == "conv": self.prefetch_w(2, 58)
        self.stamp("c_loop")
        ACC = 10
        FA = [42, 106]; FB = [74, 138]
        def reads(st, tt):
            r = []
            for i in range(8):
                r.append(f"ds_read_b128 {v(FB[st]+4*i,4)}, v9 offset:{512*(7-i) + 64*tt}")
                for hh in range(2):
                    r.append(f"ds_read_b64 {v(FA[st]+4*i+2*hh,2)}, v8 offset:{512*i + 64*tt + 8*hh}")
            return r
        pairs = sorted([(q, cp) for q in range(8) for cp in range(8 - q)], key=lambda t: (max(t), t[0] + t[1]))
        for r in reads(0, 0): e(r)
        for tt in range(8):
            st = tt & 1
            e("s_waitcnt lgkmcnt(0)")
            nxt = reads(st ^ 1, tt + 1) if tt < 7 else []
            seen = set(); i = 0
            for (q, cp) in pairs:
                c = q + cp
                a = ACC + 4*c
                src = "0" if (tt == 0 and c not in seen) else v(a, 4)
                seen.add(c)
                e(f"v_mfma_f32_16x16x32_bf16 {v(a,4)}, {v(FA[st]+4*q,4)}, {v(FB[st]+4*cp,4)}, {src}")
                if i < len(nxt): e(nxt[i]); i += 1
        self.stamp("c_loopend")
        e(f"s_lshl_b32 s56, s58, 12")
        e(f"s_add_u32 s56, s56, {self.C_EX + 16384}")
        e("v_add_u32 v6, s56, v1")
        for i in range(4): e(f"ds_write_b128 v6, {v(ACC+16+4*i,4)} offset:{1024*i}")
        e("s_waitcnt lgkmcnt(0)")
        e("s_barrier")
        e(f"s_branch {Lep}")
        self.label(Lh)
        early = "g1" in self.o["phases"] and self.o.get("g1_early", True)
        if early:
            self.g1_ids()
            self.g1_loader_setup()
        self.chC(63)
        Lq = self.newlabel("c_q"); Lq2 = self.newlabel("c_q2")
        e("v_lshlrev_b32 v1, 4, v0")
        Lx = self.newlabel("c_x"); L5 = self.newlabel("c_w5")
        par = self.o.get("x_par", True)
        e(f"s_cmp_eq_u32 {s(S_WV)}, 4")
        e(f"s_cbranch_scc0 {Lq}")
        if not self.o.get("nosync"): self.poll_all(1, sleep=self.o.get('x_sleep', 8), arr=1)
        self.stamp("c_xpoll")
        e(f"s_mov_b32 s60, {WS_ST}")
        e(f"s_mov_b32 m0, {self.C_ST}")
        for i in range(16):
            e(f"buffer_load_dwordx4 v1, {s(SRD_WS,4)}, s60 offen sc1 lds")
            if i < 15: e("s_add_u32 m0, m0, 1024"); e("s_add_u32 s60, s60, 1024")
        if par:
            self.lds_wait(8, 1)
        else:
            if not self.o.get("nosync"): self.poll_group(1, sleep=self.o.get('g_sleep', 4), arr=2)
            self.stamp("c_xtpoll")
            self.lds_count(8, 1, None)
        e(f"s_branch {Lx}")
        self.label(Lq)
        if par:
            e(f"s_cmp_eq_u32 {s(S_WV)}, 5")
            e(f"s_cbranch_scc0 {L5}")
            if not self.o.get("nosync"): self.poll_group(1, sleep=self.o.get('g_sleep', 4), arr=2)
            self.stamp("c_xtpoll")
            self.lds_count(8, 1, None)
            e(f"s_branch {Lx}")
            self.label(L5)
        self.lds_wait(8, 1)
        self.label(Lx)
        e("s_lshl_b32 s56, s63, 12")
        e(f"s_add_u32 s60, s56, {WS_XT}")
        e("s_lshl_b32 s56, s58, 12")
        e(f"s_add_u32 m0, s56, {self.C_XT}")
        for i in range(4):
            e(f"buffer_load_dwordx4 v1, {s(SRD_WS,4)}, s60 offen sc1 lds")
            if i < 3: e("s_add_u32 m0, m0, 1024"); e("s_add_u32 s60, s60, 1024")
        e("s_waitcnt vmcnt(0)")
        self.stamp("c_xjob")
        if self.o.get("prealloc", False):
            L5 = self.newlabel("c_5")
            e(f"s_cmp_eq_u32 {s(S_WV)}, 5")
            e(f"s_cbranch_scc0 {L5}")
            e("v_lshrrev_b32 v1, 4, v0")
            e("v_lshlrev_b32 v1, 18, v1")
            e("v_and_b32 v2, 15, v0")
            e("v_lshl_add_u32 v1, v2, 4, v1")
            e("s_and_b32 s56, s63, 0xfffffffc")
            e("s_lshl_b32 s56, s56, 8")
            e(f"s_add_u32 s60, s56, {WS_HT}")
            for c in range(4):
                for mq in range(4):
                    e(f"s_add_u32 s56, s60, {c*256 + mq*4*262144}")
                    e(f"buffer_store_dwordx4 v[12:15], v1, {s(SRD_WS,4)}, s56 offen sc1")
            e("s_waitcnt vmcnt(0)")
            self.label(L5)
        if "g2" in self.o["phases"] and self.o.get("sent_c"):
            e(f"s_cmp_lt_u32 {s(S_WV)}, 6")
            e(f"s_cbranch_scc1 {Lq2}")
            e("s_lshl_b32 s56, s2, 15")
            e(f"s_sub_u32 s57, {s(S_WV)}, 6")
            e("s_lshl_b32 s57, s57, 14")
            e("s_add_u32 s56, s56, s57")
            e(f"s_add_u32 s60, s56, {WS_EX}")
            e("v_lshlrev_b32 v1, 4, v0")
            for r in range(4): e(f"v_mov_b32 {v(12+r)}, -1")
            for i in range(16):
                e(f"buffer_store_dwordx4 v[12:15], v1, {s(SRD_WS,4)}, s60 offen sc1")
                if i < 15: e("s_add_u32 s60, s60, 1024")
        self.label(Lq2)
        self.stamp("c_loopend")
        e("s_barrier")
        self.chC(63)
        e("v_lshlrev_b32 v1, 4, v0")
        e("v_and_b32 v2, 15, v0")
        e("v_lshrrev_b32 v3, 4, v0")
        e(f"s_lshl_b32 s56, s58, 12")
        e(f"s_add_u32 s56, s56, {self.C_EX + 16384}")
        e("v_add_u32 v6, s56, v1")
        for i in range(4): e(f"ds_read_b128 {v(ACC+4*i,4)}, v6 offset:{1024*i}")
        self.label(Lep)
        pass
        e(f"s_lshr_b32 s59, {s(S_WV)}, 2       ; kh")
        e("v_and_b32 v4, 1, v3")
        e("s_lshl_b32 s56, s59, 2")
        e("v_add_u32 v4, s56, v4")
        e("v_lshlrev_b32 v4, 8, v4")
        e("v_lshl_add_u32 v4, v2, 4, v4")
        e("v_lshrrev_b32 v5, 1, v3")
        e("v_lshl_add_u32 v4, v5, 3, v4       ; v4 = s (pair 0)")
        KV, STT, XE = 42, 50, 82
        e("v_sub_u32 v5, 2040, v4")
        e("v_lshlrev_b32 v5, 1, v5")
        e(f"s_mul_i32 s56, s58, {self.C_XCH}")
        e(f"s_add_u32 s56, s56, {self.C_XR - 1024}")
        e("v_add_u32 v5, s56, v5")
        e(f"ds_read_b128 {v(KV,4)}, v5 offset:1024")
        e(f"ds_read_b128 {v(KV+4,4)}, v5")
        e("s_lshl_b32 s56, s58, 12")
        e(f"s_add_u32 s56, s56, {self.C_XT}")
        e("v_lshl_add_u32 v5, v4, 1, s56")
        e(f"ds_read_b128 {v(XE,4)}, v5")
        e(f"ds_read_b128 {v(XE+4,4)}, v5 offset:1024")
        e("v_lshlrev_b32 v5, 3, v4")
        e(f"v_add_u32 v5, {self.C_ST}, v5")
        for p in range(2):
            for i in range(4):
                e(f"ds_read_b128 {v(STT+16*p+4*i,4)}, v5 offset:{4096*p + 16*i}")
        e("v_lshrrev_b32 v5, 7, v4")
        e("v_lshlrev_b32 v5, 18, v5")
        e("v_and_b32 v6, 127, v4")
        e("v_lshl_add_u32 v5, v6, 1, v5")
        e("s_lshl_b32 s56, s63, 8")
        e(f"s_add_u32 s60, s56, {WS_HT}")
        e(f"s_add_u32 s62, s60, {4 << 18}")
        e("s_and_b32 s56, s63, 1")
        e("s_lshl_b32 s56, s56, 4")
        e("s_lshr_b32 s61, s69, s56")
        e("s_lshl_b32 s61, s61, 16")
        e("s_waitcnt lgkmcnt(0)")
        H = 110
        for p in range(2):
            a = ACC + 8*p; b = a + 4
            for r in range(4):
                e(f"v_permlane16_swap_b32 {v(a+r)}, {v(b+r)}")
            for el in range(8):
                y = a + el
                xr_ = XE + 4*p + (el >> 1)
                kj = KV + 4*p + ((7 - el) >> 1)
                t0 = H + 16 + (el & 1) * 4
                self.unpack(t0, xr_, el & 1)
                self.unpack(t0 + 1, kj, 1 - (el & 1))
                m_ = STT + 16*p + 2*el
                e(f"v_fmac_f32 {v(y)}, s61, {v(t0+1)}")
                e(f"v_sub_f32 {v(t0+2)}, {v(t0)}, {v(m_)}")
                e(f"v_mul_f32 {v(t0+2)}, {v(t0+2)}, {v(m_+1)}")
                e(f"v_fma_f32 {v(H+el)}, {v(t0+2)}, {v(y)}, {v(t0)}")
            O = H + 8
            for j in range(4):
                e(f"v_cvt_pk_bf16_f32 {v(O+j)}, {v(H+2*j)}, {v(H+2*j+1)}")
            e(f"buffer_store_dwordx4 {v(O,4)}, v5, {s(SRD_WS,4)}, {s(60 if p == 0 else 62)} offen {self.o.get('ht_aux', 'sc1')}")
            H = 140

    def tlb_touch(self):
        e = self.e
        L = self.newlabel("tlb")
        e(f"s_cmp_lg_u32 {s(S_WV)}, 0")
        e(f"s_cbranch_scc1 {L}")
        e("v_min_u32 v244, 23, v0")
        e("v_lshlrev_b32 v244, 20, v244")
        e(f"v_add_u32 v244, {WS_HM + 4096}, v244")
        e(f"buffer_load_dword v243, v244, {s(SRD_WS,4)}, 0 offen")
        self.srd(SRD_A, S_OUT, S_ * D_ * 2)
        e("v_min_u32 v244, 3, v0")
        e("v_lshlrev_b32 v244, 20, v244")
        e(f"buffer_load_dword v242, v244, {s(SRD_A,4)}, 0 offen")
        self.label(L)

    def prefetch_w(self, which, swave):
        e = self.e
        ptr = S_W1 if which == 1 else S_W2
        gran = self.o.get("pf_gran", 128)
        self.srd(SRD_C, ptr, D_ * F_ * 2)
        e("s_lshl_b32 s56, s2, 2")
        e(f"s_add_u32 s56, s56, {s(swave)}")
        e("s_mul_i32 s56, s56, 56*128")
        e("v_min_u32 v247, 55, v0")
        e("v_lshlrev_b32 v247, 7, v247")
        e("v_add_u32 v247, s56, v247")
        e(f"buffer_load_dword v246, v247, {s(SRD_C,4)}, 0 offen")
        if gran == 64: e(f"buffer_load_dword v245, v247, {s(SRD_C,4)}, 0 offen offset:64")

    G1_STG = 45056
    G1_TOK, G1_W = 0, 16384
    G1_AST = 135168
    G1_CS  = 136192
    G1_B1  = 137216
    G1_CNT = 138240

    def g1_ids(self):
        e = self.e
        e(f"s_and_b32 s56, {s(S_XI)}, 1")
        e("s_lshl_b32 s56, s56, 3")
        e(f"s_and_b32 s57, {s(S_J)}, 7")
        e("s_add_u32 s60, s56, s57          ; mb")
        e(f"s_lshr_b32 s56, {s(S_XI)}, 1")
        e("s_lshl_b32 s56, s56, 2")
        e(f"s_lshr_b32 s57, {s(S_J)}, 3")
        e("s_add_u32 s61, s56, s57          ; nb")

    def wg_of(self, dst, vmb, vnb, t):
        e = self.e
        e(f"v_lshrrev_b32 {v(dst)}, 3, {v(vmb)}")
        e(f"v_lshrrev_b32 {v(t)}, 2, {v(vnb)}")
        e(f"v_lshl_add_u32 {v(dst)}, {v(t)}, 1, {v(dst)}      ; x")
        e(f"v_and_b32 {v(t)}, 7, {v(vmb)}")
        e(f"v_lshl_add_u32 {v(dst)}, {v(t)}, 3, {v(dst)}")
        e(f"v_and_b32 {v(t)}, 3, {v(vnb)}")
        e(f"v_lshl_add_u32 {v(dst)}, {v(t)}, 6, {v(dst)}")

    def flag_addr(self, dst, t):
        e = self.e
        e(f"v_and_b32 {v(t)}, 7, {v(dst)}")
        e(f"v_lshlrev_b32 {v(t)}, 10, {v(t)}")
        e(f"v_lshrrev_b32 {v(t+1)}, 5, {v(dst)}")
        e(f"v_lshl_add_u32 {v(t)}, {v(t+1)}, 7, {v(t)}")
        e(f"v_bfe_u32 {v(dst)}, {v(dst)}, 3, 2")
        e(f"v_lshl_add_u32 {v(dst)}, {v(dst)}, 2, {v(t)}")

    def poll_addr(self, p, va, vd):
        e = self.e
        L = self.newlabel("pa"); Lx = self.newlabel("pax")
        e(f"s_add_u32 s56, {s(S_EP)}, {p}")
        e("s_mov_b32 s57, 0x200000")
        self.label(L)
        e(f"buffer_load_dword {v(vd)}, {v(va)}, {s(SRD_WS,4)}, 0 offen sc1")
        e("s_sub_u32 s57, s57, 1")
        e("s_cmp_eq_u32 s57, 0")
        e(f"s_cbranch_scc1 {Lx}")
        e("s_waitcnt vmcnt(0)")
        e(f"v_subrev_u32 {v(vd)}, s56, {v(vd)}")
        e(f"v_cmp_le_u32 vcc, 16, {v(vd)}")
        e(f"s_cbranch_vccnz {L}")
        self.label(Lx)
        e("s_waitcnt vmcnt(0)")

    def g1_loader_setup(self):
        e = self.e
        e(f"s_sub_u32 s58, {s(S_WV)}, 4       ; lw")
        e("v_lshrrev_b32 v13, 4, v0          ; g = lane>>4")
        e("v_and_b32 v14, 15, v0             ; p")
        e("v_lshrrev_b32 v15, 1, v14         ; b'")
        e("v_and_b32 v16, 1, v14             ; half")
        e("v_xor_b32 v15, v15, v13           ; b' ^ (row&3)")
        e("s_lshl_b32 s59, s58, 4")
        e("v_add_u32 v17, s59, v13")
        e("v_lshlrev_b32 v17, 8, v17         ; *256")
        e("v_lshl_add_u32 v17, v16, 4, v17")
        e("s_lshl_b32 s59, s60, 18           ; mb*262144")
        e(f"s_add_u32 s59, s59, {WS_HT}")
        e("v_add_u32 v17, s59, v17")
        for ii in range(4):
            x4 = 4 if (ii >> 1) & 1 else 0
            e(f"v_xor_b32 v18, {x4}, v15")
            e("v_lshl_add_u32 v18, v18, 5, v17")
            e(f"v_add_u32 {v(200+ii)}, {ii*4*256}, v18")
        e("s_mov_b32 s59, 0x924924a          ; ceil(2^32/28)")
        for ii in range(7):
            e(f"v_add_u32 v13, {64*ii}, v0")
            e("v_mul_hi_u32 v14, s59, v13        ; row_local")
            e("v_mul_u32_u24 v15, 28, v14")
            e("v_sub_u32 v15, v13, v15           ; p")
            e("v_bfe_u32 v16, v14, 3, 1          ; bit3(row)")
            e("v_lshrrev_b32 v17, 1, v15         ; b'")
            e("v_xor_b32 v17, v17, v16           ; b")
            e("v_and_b32 v15, 1, v15")
            e("v_lshlrev_b32 v15, 4, v15")
            e("v_lshl_add_u32 v15, v17, 5, v15   ; b*32 + half*16")
            e("v_mul_u32_u24 v14, 7168, v14")
            e(f"v_add_u32 {v(204+ii)}, v14, v15")
        e("s_mul_i32 s59, s58, 16*7168")
        e("s_mul_i32 s57, s61, 448")
        e("s_add_u32 s59, s59, s57")
        for ii in range(7):
            e(f"v_add_u32 {v(204+ii)}, s59, {v(204+ii)}")

    def g1_loader_bases(self):
        e = self.e
        e(f"s_sub_u32 s58, {s(S_WV)}, 4       ; lw")
        e("s_lshl_b32 s62, s58, 12")
        e("s_mul_i32 s63, s58, 7168")
        e(f"s_add_u32 s63, s63, {self.G1_W}")

    def g1_issue_w(self, sbuf, sk):
        e = self.e
        if self.o.get("g1_nodma"): return
        e(f"s_add_u32 m0, {s(sbuf)}, s63")
        for ii in range(7):
            e(f"buffer_load_dwordx4 {v(204+ii)}, {s(SRD_B,4)}, {s(sk)} offen lds")
            if ii < 6: e("s_add_u32 m0, m0, 1024")

    def g1_issue_t(self, sbuf, sk):
        e = self.e
        if self.o.get("g1_nodma"): return
        e(f"s_add_u32 m0, {s(sbuf)}, s62")
        for ii in range(4):
            e(f"buffer_load_dwordx4 {v(200+ii)}, {s(SRD_WS,4)}, {s(sk)} offen {self.o.get('t_aux', 'sc1')} lds")
            if ii < 3: e("s_add_u32 m0, m0, 1024")

    def g1_next_k(self):
        e = self.e
        e("s_add_u32 s68, s68, 1")
        e("s_and_b32 s68, s68, 15")
        e(f"s_mul_i32 s65, s68, {64*7168}")
        e(f"s_lshl_b32 s66, s68, 14")

    def g1_side_col(self):
        e = self.e
        e("v_lshrrev_b32 v20, 4, v0          ; g")
        e("v_and_b32 v21, 15, v0")
        e("v_lshrrev_b32 v22, 2, v21         ; r")
        e("v_and_b32 v23, 3, v21             ; c")
        e("v_lshl_add_u32 v24, v20, 3, v22   ; row = 8g + r")
        e("v_and_b32 v25, 1, v20             ; g&1")
        e("v_mul_u32_u24 v27, 448, v24")
        e("v_lshl_add_u32 v27, v23, 3, v27")
        e(f"v_add_u32 v27, {self.G1_W}, v27")
        WF, ONE, DC = 48, 80, 100
        for i in range(4):
            e(f"s_add_u32 s56, s58, {4*i}")
            e("s_min_u32 s56, s56, 13")
            e(f"s_mov_b32 {s(84+i)}, s56")
            e("v_xor_b32 v28, s56, v25")
            e(f"v_lshl_add_u32 {v(116+i)}, v28, 5, v27")
        for i in range(4):
            for u in range(2):
                for h in range(2):
                    e(f"ds_read_b64_tr_b16 {v(WF+8*i+4*u+2*h,2)}, {v(116+i)} offset:{u*32*448 + h*4*448}")
        for r in range(4): e(f"v_mov_b32 {v(ONE+r)}, 0x3f803f80")
        e("s_waitcnt lgkmcnt(0)")
        for u in range(2):
            for i in range(4):
                e(f"v_mfma_f32_16x16x32_bf16 {v(DC+4*i,4)}, {v(WF+8*i+4*u,4)}, {v(ONE,4)}, {'0' if u == 0 else v(DC+4*i,4)}")
        e("s_lshl_b32 s56, s61, 4")
        e("s_add_u32 s56, s56, s60")
        e("s_lshl_b32 s56, s56, 10")
        e(f"s_add_u32 s56, s56, {WS_CSP}")
        e("v_lshl_add_u32 v28, v20, 4, s56")
        e("s_mov_b32 exec_lo, 0x00010001"); e("s_mov_b32 exec_hi, 0x00010001")
        for i in range(4):
            e(f"s_lshl_b32 s56, {s(84+i)}, 6")
            e(f"buffer_store_dwordx4 {v(DC+4*i,4)}, v28, {s(SRD_WS,4)}, s56 offen sc1")
        e("s_mov_b64 exec, -1")

    def g1_tok_mfma(self, base, first):
        e = self.e
        ONE, D1, D2 = 224, 208, 216
        La = self.newlabel("g1t"); Lb = self.newlabel("g1t2")
        e("s_cmp_eq_u32 s58, 0")
        e(f"s_cbranch_scc0 {La}")
        for pas in range(2):
            if pas == 1: self.label(La)
            for i in range(2):
                t = v(base + 28 + 4*(2*pas + i), 4)
                e(f"v_mfma_f32_16x16x32_bf16 {v(D1+4*i,4)}, {v(ONE,4)}, {t}, {'0' if first else v(D1+4*i,4)}")
                e(f"v_mfma_f32_16x16x32_bf16 {v(D2+4*i,4)}, {t}, {t}, {'0' if first else v(D2+4*i,4)}")
            if pas == 0: e(f"s_branch {Lb}")
        self.label(Lb)

    def g1_tok_store(self):
        e = self.e
        D1, D2 = 208, 216
        e("s_lshl_b32 s56, s60, 4")
        e("s_add_u32 s56, s56, s61")
        e("s_lshl_b32 s56, s56, 10")
        e(f"s_add_u32 s56, s56, {WS_TSP}")
        e("s_lshl_b32 s57, s59, 9            ; 4wt*16*8")
        e("s_add_u32 s56, s56, s57")
        e("s_lshl_b32 s57, s58, 8            ; 2wf*16*8")
        e("s_add_u32 s56, s56, s57")
        e("v_and_b32 v228, 15, v0")
        e("v_lshl_add_u32 v228, v228, 3, s56")
        e("s_mov_b32 s80, 0x22222222"); e("s_mov_b32 s81, 0x22222222")
        e("s_mov_b32 s82, 0x44444444"); e("s_mov_b32 s83, 0x44444444")
        e("s_mov_b32 vcc_lo, 0x88888888"); e("s_mov_b32 vcc_hi, 0x88888888")
        for i in range(2):
            o = 230 + 2*i
            e(f"v_mov_b32 {v(o)}, {v(D1+4*i)}")
            e(f"v_cndmask_b32 {v(o+1)}, {v(D2+4*i)}, {v(D2+4*i+1)}, s[80:81]")
            e(f"v_cndmask_b32 {v(o+1)}, {v(o+1)}, {v(D2+4*i+2)}, s[82:83]")
            e(f"v_cndmask_b32 {v(o+1)}, {v(o+1)}, {v(D2+4*i+3)}, vcc")
        e("s_mov_b32 exec_lo, 0x00f0000f"); e("s_mov_b32 exec_hi, 0xf0000f00")
        for i in range(2):
            e(f"buffer_store_dwordx2 {v(230+2*i,2)}, v228, {s(SRD_WS,4)}, 0 offen offset:{128*i} sc1")
        e("s_mov_b64 exec, -1")

    def g1_side_signal(self):
        e = self.e
        L = self.newlabel("g1s")
        e(f"v_mov_b32 v20, {self.G1_CNT}")
        e("v_mov_b32 v21, 1")
        e("s_mov_b64 exec, 1")
        e("ds_add_rtn_u32 v22, v20, v21")
        e("s_waitcnt lgkmcnt(0)")
        e("v_readfirstlane_b32 s56, v22")
        e("s_mov_b64 exec, -1")
        e("s_cmp_eq_u32 s56, 3")
        e(f"s_cbranch_scc0 {L}")
        self.publish(4)
        self.label(L)

    def g1_side_poll_issue(self):
        e = self.e
        e("v_and_b32 v20, 15, v0")
        e("v_bfe_u32 v21, v0, 4, 1")
        e("v_cmp_eq_u32 vcc, 0, v21")
        e("v_mov_b32 v22, s60"); e("v_mov_b32 v23, s61")
        e("v_cndmask_b32 v24, v20, v22, vcc")
        e("v_cndmask_b32 v25, v23, v20, vcc")
        self.wg_of(40, 24, 25, 26)
        self.flag_addr(40, 26)
        e(f"buffer_load_dword v41, v40, {s(SRD_WS,4)}, 0 offen sc1")

    def g1_side_loads(self):
        e = self.e
        L = self.newlabel("g1p")
        e(f"s_add_u32 s56, {s(S_EP)}, 4")
        e("v_subrev_u32 v41, s56, v41")
        e("v_cmp_le_u32 vcc, 16, v41")
        e(f"s_cbranch_vccz {L}")
        if not self.o.get("nosync"): self.poll_addr(4, 40, 41)
        self.label(L)
        e("v_and_b32 v20, 31, v0")
        e("s_lshl_b32 s56, s58, 5")
        e("v_add_u32 v42, s56, v20            ; token")
        e("v_lshrrev_b32 v21, 5, v0")
        e("v_lshlrev_b32 v21, 13, v21         ; hf*8*1024")
        e("v_lshl_add_u32 v21, v42, 3, v21")
        e("s_lshl_b32 s56, s60, 14")
        e(f"s_add_u32 s56, s56, {WS_TSP}")
        e("v_add_u32 v21, s56, v21")
        for jj in range(8):
            if jj == 4: e("v_add_u32 v21, 4096, v21")
            e(f"buffer_load_dwordx2 {v(44+2*jj,2)}, v21, {s(SRD_WS,4)}, 0 offen offset:{1024*(jj&3)} sc1")
        e("v_and_b32 v20, 15, v0")
        e("v_min_u32 v20, 13, v20")
        e("s_mul_i32 s56, s58, 14")
        e("v_add_u32 v43, s56, v20            ; fq")
        e("v_lshrrev_b32 v21, 4, v0")
        e("v_lshlrev_b32 v21, 12, v21")
        e("v_lshl_add_u32 v21, v43, 4, v21")
        e("s_lshl_b32 s56, s61, 14")
        e(f"s_add_u32 s56, s56, {WS_CSP}")
        e("v_add_u32 v21, s56, v21")
        for jj in range(4):
            e(f"buffer_load_dwordx4 {v(60+4*jj,4)}, v21, {s(SRD_WS,4)}, 0 offen offset:{1024*jj} sc1")

    def g1_b1_load(self):
        e = self.e
        self.srd(SRD_B, S_B1, F_ * 2)
        e(f"s_lshr_b32 s56, {s(S_XI)}, 1")
        e("s_lshl_b32 s56, s56, 2")
        e(f"s_lshr_b32 s57, {s(S_J)}, 3")
        e("s_add_u32 s56, s56, s57          ; nb")
        e("s_mul_i32 s56, s56, 448")
        e("v_and_b32 v240, 15, v0")
        e("v_min_u32 v240, 13, v240")
        e("s_mul_i32 s57, s58, 14")
        e("v_add_u32 v240, s57, v240")
        e("v_lshl_add_u32 v240, v240, 3, s56")
        e(f"buffer_load_dwordx2 v[240:241], v240, {s(SRD_B,4)}, 0 offen")

    def g1_side_final_tok(self):
        e = self.e
        for jj in range(1, 8): e(f"v_pk_add_f32 v[44:45], v[44:45], {v(44+2*jj,2)}")
        e("v_mov_b32 v46, v44"); e("v_mov_b32 v47, v45")
        e("v_permlane32_swap_b32 v46, v44"); e("v_permlane32_swap_b32 v47, v45")
        e("v_add_f32 v44, v44, v46"); e("v_add_f32 v45, v45, v47")
        e("v_mul_f32 v44, 0x3a800000, v44      ; mu")
        e("v_mul_f32 v45, 0x3a800000, v45      ; E[h^2]")
        e("v_fma_f32 v45, -v44, v44, v45       ; var")
        e("v_max_f32 v45, 0, v45")
        self.round_bf16(46, 44)
        self.round_bf16(47, 45)
        e("v_add_f32 v47, 0x3727c5ac, v47")
        self.round_bf16(47, 47)
        e("v_sqrt_f32 v47, v47")
        self.round_bf16(47, 47)
        e("v_rcp_f32 v48, v47                  ; 1/sd1")
        e("v_sub_f32 v49, v44, v46")
        e("v_mul_f32 v49, v49, v48             ; mean(y1)")
        self.round_bf16(49, 49)
        e("v_mul_f32 v50, v45, v48")
        e("v_mul_f32 v50, v50, v48             ; var(y1)")
        self.round_bf16(50, 50)
        e("v_add_f32 v50, 0x3727c5ac, v50")
        self.round_bf16(50, 50)
        e("v_sqrt_f32 v50, v50")
        self.round_bf16(50, 50)
        e("v_rcp_f32 v50, v50")
        e("v_mul_f32 v52, v48, v50")
        e("v_fma_f32 v51, v49, v47, v46        ; M = m1 + m2*sd1")
        e("v_mul_f32 v53, v52, v51             ; am")
        e(f"v_lshlrev_b32 v20, 3, v42")
        e(f"v_add_u32 v20, {self.G1_AST}, v20")
        e("s_mov_b32 exec_hi, 0")
        e("ds_write_b64 v20, v[52:53]")
        e("s_mov_b64 exec, -1")
        e("s_waitcnt lgkmcnt(0)")

    def g1_side_final_col(self):
        e = self.e
        for jj in range(1, 4):
            e(f"v_pk_add_f32 v[60:61], v[60:61], {v(60+4*jj,2)}")
            e(f"v_pk_add_f32 v[62:63], v[62:63], {v(62+4*jj,2)}")
        for op in ("v_permlane16_swap_b32", "v_permlane32_swap_b32"):
            for r in range(4): e(f"v_mov_b32 {v(64+r)}, {v(60+r)}")
            for r in range(4): e(f"{op} {v(64+r)}, {v(60+r)}")
            for r in range(4): e(f"v_add_f32 {v(60+r)}, {v(60+r)}, {v(64+r)}")
        self.unpack(68, 240, 0); self.unpack(69, 240, 1); self.unpack(70, 241, 0); self.unpack(71, 241, 1)
        e("v_lshlrev_b32 v20, 4, v43")
        e(f"v_add_u32 v20, {self.G1_CS}, v20")
        e("s_mov_b64 exec, 0x3fff")
        e("ds_write_b128 v20, v[60:63]")
        e(f"ds_write_b128 v20, v[68:71] offset:{self.G1_B1 - self.G1_CS}")
        e("s_mov_b64 exec, -1")
        e("s_waitcnt lgkmcnt(0)")

    def g1_loader(self):
        e = self.e
        STG = self.G1_STG
        side = not self.o.get("g1_noside")
        self.srd(SRD_B, S_W1, D_ * F_ * 2)
        if not ("c" in self.o["phases"] and self.o.get("g1_early", True)): self.g1_loader_setup()
        self.g1_loader_bases()
        if self.o.get("g1_norot"): e("s_mov_b32 s68, 0")
        else:
            mm, mn = self.o.get("g1_rot", (9, 1))
            e(f"s_mul_i32 s68, s60, {mm}")
            e(f"s_mul_i32 s56, s61, {mn}")
            e("s_add_u32 s68, s68, s56")
        e("s_sub_u32 s68, s68, 1")
        self.g1_next_k()
        e("s_mov_b32 s64, 0")
        both = self.o.get("g1_wboth", True)
        self.g1_issue_w(64, 65)
        e("s_mov_b32 s88, s66")
        self.g1_next_k()
        if both:
            e(f"s_mov_b32 s64, {STG}")
            self.g1_issue_w(64, 65)
        self.stamp("g1_wiss")
        e("s_waitcnt vmcnt(%d)" % (7 if both else 0))
        e("s_barrier                        ; W(r) resident")
        self.stamp("g1_wres")
        if side: self.g1_side_col()
        self.stamp("g1_col")
        self.g1_dep_wait()
        self.stamp("g1_dep")
        e("s_mov_b32 s64, 0")
        self.g1_issue_t(64, 88)
        e(f"s_mov_b32 s64, {STG}")
        if not both: self.g1_issue_w(64, 65)
        self.g1_issue_t(64, 66)
        e("s_waitcnt vmcnt(%d) lgkmcnt(0)" % (4 if both else 11))
        e("s_barrier                        ; B_0")
        e("s_mov_b32 s67, 0                 ; period i")
        e(f"s_mov_b32 s64, {2*STG}")
        sent = "g2" in self.o["phases"] and not self.o.get("sent_c")
        if sent:
            e("s_lshl_b32 s89, s2, 15")
            e("s_lshl_b32 s56, s58, 13")
            e("s_add_u32 s89, s89, s56")
            e(f"s_add_u32 s89, s89, {WS_EX}")
            e("v_lshlrev_b32 v128, 4, v0")
            for r in range(4): e(f"v_mov_b32 {v(132+r)}, -1")
        pre = self.o.get("prealloc", False)
        if pre:
            e("s_mul_i32 s89, s60, 112")
            e("s_mul_i32 s56, s61, 7")
            e("s_add_u32 s89, s89, s56")
            e("s_lshl_b32 s89, s89, 13")
            e("s_mul_i32 s56, s58, 14336")
            e("s_add_u32 s89, s89, s56")
            e(f"s_add_u32 s89, s89, {WS_HM}")
            e("v_lshlrev_b32 v128, 4, v0")
        L = self.newlabel("g1l"); Lw = self.newlabel("g1lw"); Lb = self.newlabel("g1lb")
        def hook(per, fn):
            La = self.newlabel("g1a"); e(f"s_cmp_eq_u32 s67, {per}"); e(f"s_cbranch_scc0 {La}"); fn(); self.label(La)
        self.label(L)
        if side:
            hook(12, self.g1_side_poll_issue)
        e("s_cmp_ge_u32 s67, 14")
        e(f"s_cbranch_scc1 {Lw}")
        self.g1_next_k()
        self.g1_issue_w(64, 65)
        self.g1_issue_t(64, 66)
        e(f"s_add_u32 s64, s64, {STG}")
        e(f"s_cmp_eq_u32 s64, {3*STG}")
        e("s_cselect_b32 s64, 0, s64")
        def special(per, fn, cnt):
            La = self.newlabel("g1a"); e(f"s_cmp_eq_u32 s67, {per}"); e(f"s_cbranch_scc0 {La}")
            if fn: fn()
            e(f"s_waitcnt vmcnt({cnt})"); e(f"s_branch {Lb}"); self.label(La)
        if side: special(13, self.g1_side_loads, 23)
        if sent:
            special(0, lambda: self.g1_sent_store(), 12)
            La = self.newlabel("g1s8")
            e("s_cmp_lt_u32 s67, 8"); e(f"s_cbranch_scc0 {La}")
            self.g1_sent_store()
            e("s_waitcnt vmcnt(13)")
            if side:
                def pub8():
                    Lp = self.newlabel("g1pub")
                    e(f"s_cmp_eq_u32 {s(S_WV)}, 4"); e(f"s_cbranch_scc0 {Lp}"); self.publish(4); self.label(Lp)
                hook(3, pub8)
            e(f"s_branch {Lb}")
            self.label(La)
        e("s_waitcnt vmcnt(11)")
        if side and not sent:
            def pub():
                Lp = self.newlabel("g1pub")
                e(f"s_cmp_eq_u32 {s(S_WV)}, 4"); e(f"s_cbranch_scc0 {Lp}"); self.publish(4); self.label(Lp)
            hook(3, pub)
        e(f"s_branch {Lb}")
        self.label(Lw)
        L15 = self.newlabel("g1l15")
        e("s_cmp_eq_u32 s67, 14")
        e(f"s_cbranch_scc0 {L15}")
        e("s_waitcnt vmcnt(%d)" % (12 if side else 0))
        pf2 = self.o.get("prefetch_w", True) and self.o.get("pf2_at", "g1end") == "g1end"
        if pf2: self.prefetch_w(2, 58)
        e(f"s_branch {Lb}")
        self.label(L15)
        e("s_waitcnt vmcnt(%d)" % ((2 if self.o.get("pf_gran", 128) == 64 else 1) if pf2 else 0))
        if side: self.g1_side_final_tok()
        self.label(Lb)
        e("s_barrier")
        e("s_add_u32 s67, s67, 1")
        e("s_cmp_lt_u32 s67, 16")
        e(f"s_cbranch_scc1 {L}")

    def g1_sent_store(self):
        self.e(f"buffer_store_dwordx4 v[132:135], v128, {s(SRD_WS,4)}, s89 offen sc1")
        self.e("s_add_u32 s89, s89, 1024")

    def g1_dep_wait(self):
        if "c" in self.o["phases"]: self.wait_all(3, wave=4)
        else: self.e("s_barrier")

    G1_X, G1_Y, G1_ACC = 8, 52, 96
    def g1_frag_reads(self, base, u):
        r = []
        def wread(ft):
            areg = 2 if ft % 2 == 0 else 3
            return [f"ds_read_b64_tr_b16 {v(base + 4*ft + 2*h, 2)}, {v(areg)} offset:{32*ft + u*32*448 + h*4*448}" for h in range(2)]
        def tread(tt):
            return [f"ds_read_b64_tr_b16 {v(base + 28 + 4*tt + 2*h, 2)}, {v(4+tt)} offset:{u*8192 + h*1024}" for h in range(2)]
        for tt in range(4): r += tread(tt)
        for ft in range(7): r += wread(ft)
        return r

    def g1_half(self, mf_base, rd_base, rd_u, first=False, mfma=True, reads=True, tail=(), waits=None):
        e = self.e
        rds = self.g1_frag_reads(rd_base, rd_u) if (reads and not self.o.get("g1_noreads")) else []
        if self.o.get("g1_nomfma"): mfma = False
        mf = []
        if mfma:
            for ft in range(7):
                for tt in range(4):
                    a = self.G1_ACC + (ft * 4 + tt) * 4
                    c = "0" if first else v(a, 4)
                    mf.append(f"v_mfma_f32_16x16x32_bf16 {v(a,4)}, {v(mf_base + 4*ft, 4)}, {v(mf_base + 28 + 4*tt, 4)}, {c}")
        fill = list(rds) + list(tail)
        i = 0
        for k, m in enumerate(mf):
            if waits and k in waits: e(waits[k])
            e(m)
            if i < len(fill): e(fill[i]); i += 1
        while i < len(fill): e(fill[i]); i += 1

    def g1_compute_setup(self):
        e = self.e
        e(f"s_lshr_b32 s58, {s(S_WV)}, 1      ; wf")
        e(f"s_and_b32 s59, {s(S_WV)}, 1       ; wt")
        e("v_lshrrev_b32 v13, 4, v0          ; g")
        e("v_and_b32 v14, 15, v0")
        e("v_lshrrev_b32 v15, 2, v14         ; r")
        e("v_and_b32 v16, 3, v14             ; c")
        e("v_lshl_add_u32 v17, v13, 3, v15   ; row = 8g + r")
        e("v_and_b32 v18, 1, v13             ; g&1")
        e("v_mul_u32_u24 v19, 448, v17")
        e("v_lshl_add_u32 v19, v16, 3, v19")
        e("s_mul_i32 s57, s58, 224           ; 32*7*wf")
        e(f"s_add_u32 s57, s57, {self.G1_W}")
        e("v_add_u32 v19, s57, v19")
        e("v_lshlrev_b32 v20, 5, v18         ; 32*(g&1)")
        e("v_add_u32 v21, v19, v20")
        e("v_sub_u32 v22, v19, v20")
        e("s_cmp_eq_u32 s58, 0")
        e("s_cselect_b64 vcc, -1, 0")
        e("v_cndmask_b32 v2, v22, v21, vcc")
        e("v_cndmask_b32 v3, v21, v22, vcc")
        e("v_lshl_or_b32 v20, v18, 2, v15    ; f(row)")
        e("v_lshlrev_b32 v21, 8, v17")
        e("v_lshl_add_u32 v21, v16, 3, v21")
        e("s_lshl_b32 s57, s59, 2            ; 4*wt")
        for tt in range(4):
            e(f"s_add_u32 s56, s57, {tt}")
            e("v_xor_b32 v22, s56, v20")
            e(f"v_lshl_add_u32 {v(4+tt)}, v22, 5, v21")

    def g1_compute(self):
        e = self.e
        X, Y = self.G1_X, self.G1_Y
        STG = self.G1_STG
        self.g1_compute_setup()
        side = not self.o.get("g1_noside")
        for r in range(4): e(f"v_mov_b32 {v(224+r)}, 0x3f803f80")
        e("s_barrier                        ; W(r) resident")
        self.g1_dep_wait()
        e("s_barrier                        ; B_0")
        self.stamp("g1_loop")
        def adv(delta):
            return [f"v_add_u32 {v(r)}, {delta & 0xffffffff:#x}, {v(r)}" for r in range(2, 8)]
        W5 = {0: "s_waitcnt lgkmcnt(4)", 20: "s_waitcnt lgkmcnt(15)"}
        for r in self.g1_frag_reads(X, 0): e(r)
        e("s_waitcnt lgkmcnt(0)")
        self.g1_half(X, Y, 1, first=True, tail=adv(STG))
        if side: self.g1_tok_mfma(X, True)
        e("s_waitcnt lgkmcnt(0)")
        if side:
            self.g1_tok_mfma(Y, False)
            self.g1_tok_store()
        e("s_barrier                        ; B_1")
        e("s_mov_b32 s67, 0")
        L = self.newlabel("g1c")
        self.label(L)
        for k in range(3):
            delta = STG if k != 1 else -2 * STG
            self.g1_half(Y, X, 0)
            tail = adv(delta)
            if k == 2: tail = tail[:5] + ["s_add_u32 s67, s67, 1"] + tail[5:]
            self.g1_half(X, Y, 1, tail=tail, waits=(W5 if not self.o.get("g1_noreads") else None))
            if k == 2: e("s_cmp_lt_u32 s67, 5")
            e("s_waitcnt vmcnt(0) lgkmcnt(0)" if k == 1 else "s_waitcnt lgkmcnt(0)")
            e("s_barrier")
            if self.o.get("per_stamps"):
                e("s_memrealtime s[100:101]")
                e("s_mul_i32 s98, s67, 3")
                e(f"s_add_u32 s98, s98, {k + (0 if k < 2 else -3)}")
                e("s_mov_b32 m0, s98")
                e("s_waitcnt lgkmcnt(0)")
                e("v_writelane_b32 v252, s100, m0")
                if k == 2: e("s_cmp_lt_u32 s67, 5")
        e(f"s_cbranch_scc1 {L}")
        self.g1_half(Y, None, 0, reads=False)
        if self.o.get("per_stamps"):
            e("s_lshl_b32 s98, s2, 8")
            e(f"s_add_u32 s98, s98, {WS_STAMP + 65536}")
            e("v_lshlrev_b32 v251, 2, v0")
            e("v_add_u32 v251, s98, v251")
            Lq = self.newlabel("pst")
            e(f"s_cmp_lg_u32 {s(S_WV)}, 0"); e(f"s_cbranch_scc1 {Lq}")
            e(f"buffer_store_dword v252, v251, {s(SRD_WS,4)}, 0 offen")
            self.label(Lq)
        self.stamp("g1_loopend")

    def g1_epilogue(self):
        e = self.e
        ACC = self.G1_ACC
        own = "g2" in self.o["phases"]
        e("v_and_b32 v2, 15, v0               ; n")
        e("v_lshrrev_b32 v3, 4, v0            ; g / rho")
        e("s_lshl_b32 s56, s59, 9")
        e(f"s_add_u32 s56, s56, {self.G1_AST}")
        e("v_lshl_add_u32 v4, v2, 3, s56")
        AS = 8
        for tt in range(4): e(f"ds_read_b64 {v(AS+2*tt,2)}, v4 offset:{128*tt}")
        e("s_mul_i32 s56, s58, 448")
        e(f"s_add_u32 s56, s56, {self.G1_CS}")
        e("v_lshl_add_u32 v5, v3, 4, s56")
        CB = 16
        for ft in range(7):
            e(f"ds_read_b128 {v(CB+8*ft,4)}, v5 offset:{64*ft}")
            e(f"ds_read_b128 {v(CB+8*ft+4,4)}, v5 offset:{64*ft + self.G1_B1 - self.G1_CS}")
        c2 = -2.0 * 0.7978845608028654 * 1.4426950408889634
        c1 = c2 * 0.044715
        import struct
        fb = lambda x: "0x%08x" % struct.unpack("<I", struct.pack("<f", x))[0]
        C1, C2, ONE = 72, 74, 76
        for r, val in ((C1, c1), (C2, c2), (ONE, 1.0)):
            e(f"v_mov_b32 {v(r)}, {fb(val)}"); e(f"v_mov_b32 {v(r+1)}, {fb(val)}")
        e("v_and_b32 v79, 1, v3               ; rho&1")
        e("v_lshrrev_b32 v81, 1, v3           ; rho>>1")
        e("v_lshl_add_u32 v80, v79, 1, v81")
        e("v_lshlrev_b32 v80, 11, v80")
        e("v_lshl_add_u32 v82, v2, 4, v80")
        e("s_lshl_b32 s56, s58, 1")
        e("v_add_u32 v80, s56, v81")
        e("v_lshlrev_b32 v80, 11, v80")
        e("v_lshl_add_u32 v80, v79, 8, v80")
        e("v_lshl_add_u32 v83, v2, 4, v80")
        e("s_mul_i32 s62, s60, 112")
        e("s_mul_i32 s56, s61, 7")
        e("s_add_u32 s62, s62, s56")
        e("s_lshl_b32 s62, s62, 13")
        e("s_lshl_b32 s56, s59, 10")
        e("s_add_u32 s62, s62, s56")
        e(f"s_add_u32 s62, s62, {WS_HM}")
        e("s_mul_i32 s56, s58, 3*8192")
        e("s_add_u32 s63, s62, s56")
        if own:
            for fp in range(3):
                e("s_mul_i32 s56, s58, 3")
                e(f"s_add_u32 s56, s56, {fp}")
                e("s_lshr_b32 s57, s56, 1")
                e("s_lshl_b32 s57, s57, 15")
                e("s_and_b32 s56, s56, 1")
                e("s_lshl_b32 s56, s56, 13")
                e("s_add_u32 s56, s56, s57")
                e("s_lshl_b32 s57, s59, 10")
                e("s_add_u32 s56, s56, s57")
                e(f"v_add_u32 {v(84+fp)}, s56, v82")
        e("s_waitcnt lgkmcnt(0)")
        def gelu_tile(ft, tt, out, T):
            a = ACC + (ft*4 + tt)*4
            cs, b1 = CB + 8*ft, CB + 8*ft + 4
            A = AS + 2*tt
            for h in range(2):
                e(f"v_pk_fma_f32 {v(T+2*h,2)}, {v(A,2)}, {v(cs+2*h,2)}, {v(b1+2*h,2)} op_sel:[1,0,0] op_sel_hi:[1,1,1] neg_lo:[1,0,0] neg_hi:[1,0,0]")
            for h in range(2):
                e(f"v_pk_fma_f32 {v(a+2*h,2)}, {v(A,2)}, {v(a+2*h,2)}, {v(T+2*h,2)} op_sel:[0,0,0] op_sel_hi:[0,1,1]")
            for h in range(2): e(f"v_pk_mul_f32 {v(T+2*h,2)}, {v(a+2*h,2)}, {v(a+2*h,2)}")
            for h in range(2): e(f"v_pk_fma_f32 {v(T+2*h,2)}, {v(T+2*h,2)}, {v(C1,2)}, {v(C2,2)}")
            for h in range(2): e(f"v_pk_mul_f32 {v(T+2*h,2)}, {v(T+2*h,2)}, {v(a+2*h,2)}")
            for r in range(4): e(f"v_exp_f32 {v(T+r)}, {v(T+r)}")
            for h in range(2): e(f"v_pk_add_f32 {v(T+2*h,2)}, {v(T+2*h,2)}, {v(ONE,2)}")
            for r in range(4): e(f"v_rcp_f32 {v(T+r)}, {v(T+r)}")
            for h in range(2): e(f"v_pk_mul_f32 {v(a+2*h,2)}, {v(a+2*h,2)}, {v(T+2*h,2)}")
            for h in range(2): e(f"v_cvt_pk_bf16_f32 {v(out+h)}, {v(a+2*h)}, {v(a+2*h+1)}")
        aux = self.o.get('hm_aux', 'sc1')
        k = 0
        for fp in range(3):
            for tt in range(4):
                O = 208 + 4 * (k & 1); T = 216 + 4 * (k & 1); k += 1
                gelu_tile(2*fp, tt, O, T)
                gelu_tile(2*fp + 1, tt, O + 2, T)
                e(f"v_permlane16_swap_b32 {v(O)}, {v(O+2)}")
                e(f"v_permlane16_swap_b32 {v(O+1)}, {v(O+3)}")
                e(f"s_add_u32 s56, s63, {fp*8192 + tt*256}")
                e(f"buffer_store_dwordx4 {v(O,4)}, v82, {s(SRD_WS,4)}, s56 offen {aux}")
                if own: e(f"ds_write_b128 {v(84+fp)}, {v(O,4)} offset:{tt*256}")
        for tp in range(2):
            O = 208 + 4 * (k & 1); T = 216 + 4 * (k & 1); k += 1
            gelu_tile(6, 2*tp, O, T)
            gelu_tile(6, 2*tp + 1, O + 2, T)
            e(f"v_permlane16_swap_b32 {v(O)}, {v(O+2)}")
            e(f"v_permlane16_swap_b32 {v(O+1)}, {v(O+3)}")
            e(f"s_add_u32 s56, s62, {6*8192 + 2*tp*256}")
            e(f"buffer_store_dwordx4 {v(O,4)}, v83, {s(SRD_WS,4)}, s56 offen {aux}")

    def g1(self):
        e = self.e
        own = "g2" in self.o["phases"]
        self.g1_ids()
        Lc = self.newlabel("g1comp"); Le = self.newlabel("g1end")
        e(f"s_cmp_lt_u32 {s(S_WV)}, 4")
        e(f"s_cbranch_scc1 {Lc}")
        self.g1_loader()
        if not self.o.get("g1_noside"): self.g1_side_final_col()
        e("s_barrier")
        e(f"s_branch {Le}")
        self.label(Lc)
        self.g1_compute()
        e("s_barrier                        ; H")
        self.g1_epilogue()
        self.stamp("g1_epi")
        if not own:
            e("s_waitcnt vmcnt(0)")
        self.label(Le)
        if not own:
            e("s_barrier")
            L = self.newlabel("g1sig")
            e(f"s_cmp_lg_u32 {s(S_WV)}, 0")
            e(f"s_cbranch_scc1 {L}")
            self.publish(5)
            self.label(L)

    G2_STG = 32768
    G2_NBUF = 5
    G2_RES = 98304

    def g2_b2_load(self):
        e = self.e
        self.srd(SRD_A, S_B2, D_ * 2)
        e(f"s_lshr_b32 s56, {s(S_XI)}, 1")
        e("s_lshl_b32 s56, s56, 2")
        e(f"s_lshr_b32 s57, {s(S_J)}, 3")
        e("s_add_u32 s56, s56, s57")
        e("s_and_b32 s56, s56, 7            ; db")
        e(f"s_lshr_b32 s57, {s(S_WV)}, 1     ; wd")
        self.g2_dbh(56, 56, 57)
        e("s_lshl_b32 s56, s56, 8")
        e("s_lshl_b32 s57, s57, 7")
        e("s_add_u32 s56, s56, s57")
        e("v_lshrrev_b32 v234, 4, v0")
        e("v_lshl_add_u32 v242, v234, 3, s56")
        for dt in range(4): e(f"buffer_load_dwordx2 {v(234+2*dt,2)}, v242, {s(SRD_A,4)}, 0 offen offset:{32*dt}")

    def g2_dbh(self, dst, sdb, shalf):
        e = self.e
        if self.o.get("g2_mix", False):
            e(f"s_add_u32 {s(dst)}, {s(sdb)}, {s(shalf)}")
            e(f"s_and_b32 {s(dst)}, {s(dst)}, 7")
        else:
            e(f"s_mov_b32 {s(dst)}, {s(sdb)}")

    def g2_ids(self):
        e = self.e
        e(f"s_and_b32 s56, {s(S_XI)}, 1")
        e("s_lshl_b32 s56, s56, 3")
        e(f"s_and_b32 s57, {s(S_J)}, 7")
        e("s_add_u32 s60, s56, s57          ; mb")
        e(f"s_lshr_b32 s56, {s(S_XI)}, 1")
        e("s_lshl_b32 s56, s56, 2")
        e(f"s_lshr_b32 s57, {s(S_J)}, 3")
        e("s_add_u32 s56, s56, s57          ; n'")
        e("s_and_b32 s61, s56, 7            ; db")
        e("s_lshr_b32 s69, s56, 3           ; kh")

    def g2_issue_w(self, sbuf, sk):
        e = self.e
        e(f"s_add_u32 m0, {s(sbuf)}, s63")
        for ii in range(4):
            e(f"buffer_load_dwordx4 {v(6+ii)}, {s(SRD_B,4)}, {s(sk)} offen lds")
            if ii < 3: e("s_add_u32 m0, m0, 1024")

    def g2_issue_t(self, sbuf):
        e = self.e
        e("s_mul_i32 s56, s85, 7")
        e("s_add_u32 s56, s56, s84")
        e("s_lshl_b32 s56, s56, 13")
        e("s_add_u32 s66, s90, s56")
        e(f"s_add_u32 m0, {s(sbuf)}, s62")
        for ii in range(4):
            e(f"buffer_load_dwordx4 v2, {s(SRD_WS,4)}, s66 offen sc1 lds")
            if ii < 3:
                e("s_add_u32 m0, m0, 1024"); e("s_add_u32 s66, s66, 1024")

    def g2_w_off(self):
        e = self.e
        e("s_lshl_b32 s56, s84, 1")
        e("s_add_u32 s56, s56, s87          ; 2q + half")
        e("s_cmp_ge_u32 s84, 3")
        e("s_addc_u32 s56, s56, 0")
        e("s_mul_i32 s57, s87, 7")
        e("s_add_u32 s57, s57, 6            ; half ? 13 : 6")
        e("s_cmp_eq_u32 s84, 6")
        e("s_cselect_b32 s56, s57, s56")
        e("s_lshl_b32 s56, s56, 4")
        e("s_add_u32 s56, s56, s86")
        e("s_lshl_b32 s65, s56, 11")

    def g2_adv(self, own=False):
        e = self.e
        if own:
            e("s_add_u32 s84, s84, 2")
        else:
            e("s_add_u32 s91, s91, 2")
            self.g2_pos()
        e("s_lshl_b32 s56, s69, 3")
        e("s_add_u32 s56, s56, s85")
        e("s_mul_i32 s86, s56, 224")
        self.g2_w_off()

    def g2_pos(self):
        e = self.e
        e("s_mul_i32 s56, s61, 7")
        e("s_cmp_ge_u32 s91, s56")
        e("s_cselect_b32 s56, 6, 0")
        e("s_add_u32 s56, s56, s91          ; Q")
        e("s_mul_i32 s85, s56, 9363")
        e("s_lshr_b32 s85, s85, 16")
        e("s_mul_i32 s57, s85, 7")
        e("s_sub_u32 s84, s56, s57")

    def g2_loader_pre(self):
        e = self.e
        self.g2_ids()
        self.srd(SRD_B, S_W2, F_ * D_ * 2)
        e(f"s_sub_u32 s58, {s(S_WV)}, 4       ; lw")
        e("v_lshrrev_b32 v13, 4, v0")
        e("v_and_b32 v14, 15, v0")
        e("v_lshrrev_b32 v15, 1, v14")
        e("v_and_b32 v16, 1, v14")
        e("v_xor_b32 v15, v15, v13")
        e("v_lshlrev_b32 v17, 11, v13")
        e("v_lshl_add_u32 v17, v16, 4, v17")
        e("s_lshl_b32 s59, s61, 8            ; db*256")
        e("v_add_u32 v17, s59, v17")
        if self.o.get("g2_mix", False):
            e("s_add_u32 s56, s61, 1")
            e("s_and_b32 s56, s56, 7")
            e("s_sub_u32 s56, s56, s61")
            e("s_lshl_b32 s56, s56, 8")
        else:
            e("s_mov_b32 s56, 0")
        for ii in range(4):
            x4 = 4 if (ii >> 1) & 1 else 0
            e(f"v_xor_b32 v18, {x4}, v15")
            e("v_lshrrev_b32 v19, 2, v18")
            e("v_mul_lo_u32 v19, v19, s56")
            e("v_lshl_add_u32 v18, v18, 5, v17")
            e("v_add_u32 v18, v18, v19")
            e(f"v_add_u32 {v(6+ii)}, {ii*4*2048}, v18")
        e("v_lshlrev_b32 v2, 4, v0")
        e("s_lshl_b32 s62, s58, 12")
        e(f"s_add_u32 s63, s62, 16384")
        e("s_mov_b32 s85, s61               ; local block = db: start with this workgroup's own G1 tile")
        e("s_lshl_b32 s86, s69, 3")
        e("s_add_u32 s86, s86, s85")
        e("s_mul_i32 s86, s86, 224")
        e("s_lshr_b32 s84, s58, 1           ; q = lw>>1")
        e("s_and_b32 s87, s58, 1            ; half")
        self.g2_w_off()
        e("s_mul_i32 s90, s60, 112")
        e("s_mul_i32 s56, s69, 56")
        e("s_add_u32 s90, s90, s56")
        e("s_lshl_b32 s90, s90, 13")
        e("s_lshl_b32 s56, s87, 12")
        e("s_add_u32 s90, s90, s56")
        e(f"s_add_u32 s90, s90, {WS_HM}")

    def g2_loader(self):
        e = self.e
        STG = self.G2_STG
        self.g2_loader_pre()
        e("s_mov_b32 s64, 0")
        def to_shared():
            e("s_lshr_b32 s91, s58, 1")
            e("s_sub_u32 s91, s91, 2")
            self.g2_adv()
        if self.o.get("w2_late", False):
            self.g2_issue_w(64, 65)
            self.g2_adv(own=True)
            e("s_waitcnt vmcnt(0)")
            e("s_barrier                        ; A = B_0")
            for st in range(1, 3):
                e(f"s_add_u32 s64, s64, {STG}")
                self.g2_issue_w(64, 65)
                if st == 1: self.g2_adv(own=True)
            e(f"s_add_u32 s64, s64, {STG}")
            to_shared()
        else:
            for st in range(3):
                self.g2_issue_w(64, 65)
                if st < 2: self.g2_adv(own=True)
                e(f"s_add_u32 s64, s64, {STG}")
            to_shared()
            e("s_waitcnt vmcnt(8)")
            e("s_barrier                        ; A = B_0")
        Lp = self.newlabel("g2pub")
        if self.o.get("pub_early", True):
            e(f"s_cmp_eq_u32 {s(S_WV)}, 4"); e(f"s_cbranch_scc0 {Lp}"); self.publish(5); self.label(Lp)
            e("s_waitcnt vmcnt(4)")
            e("s_barrier                        ; B_1")
            self.stamp("g2_b1")
            e("s_waitcnt vmcnt(0)")
        else:
            e("s_waitcnt vmcnt(4)")
            e("s_barrier")
            self.stamp("g2_b1")
            e(f"s_cmp_eq_u32 {s(S_WV)}, 4"); e(f"s_cbranch_scc0 {Lp}"); self.publish(5); self.label(Lp)
            e("s_waitcnt vmcnt(0)")
        e("s_barrier                        ; B_2")
        e("v_and_b32 v20, 7, v0")
        e("s_lshl_b32 s56, s69, 3")
        e("v_add_u32 v21, s56, v20")
        e("v_mov_b32 v20, s60")
        self.wg_of(40, 20, 21, 26)
        e("s_xor_b32 s56, s2, 4")
        e("v_mov_b32 v20, s56")
        e("v_bfe_u32 v21, v0, 3, 1")
        e("v_cmp_eq_u32 vcc, 1, v21")
        e("v_cndmask_b32 v40, v40, v20, vcc")
        self.flag_addr(40, 26)
        if not self.o.get("nosync"):
            e("s_mov_b64 exec, 0xffff")
            self.poll_addr(5, 40, 41)
            e("s_mov_b64 exec, -1")
        self.stamp("g2_dep")
        def stage():
            self.g2_issue_t(64)
            self.g2_issue_w(64, 65)
            self.g2_adv()
            e(f"s_add_u32 s64, s64, {STG}")
            e(f"s_cmp_eq_u32 s64, {5*STG}")
            e("s_cselect_b32 s64, 0, s64")
        if self.o.get("g2_ramp", True):
            stage(); stage()
            e("s_waitcnt vmcnt(8)")
            e("s_barrier                        ; B_3")
            self.stamp("g2_b3")
            stage(); stage()
            e("s_waitcnt vmcnt(16)")
            e("s_barrier                        ; B_4")
            stage(); stage()
            e("s_waitcnt vmcnt(24)")
            e("s_barrier                        ; B_5")
            e("s_mov_b32 s67, 5")
        else:
            for st in range(3, 7): stage()
            e("s_waitcnt vmcnt(24)")
            e("s_barrier                        ; B_3")
            self.stamp("g2_b3")
            e("s_mov_b32 s67, 3")
        pre = self.o.get("prealloc", False)
        if pre:
            self.srd(SRD_A, S_OUT, S_ * D_ * 2)
            e("s_and_b32 s56, s58, 1")
            e("s_lshl_b32 s56, s56, 6")
            e("s_lshl_b32 s57, s60, 7")
            e("s_add_u32 s56, s56, s57")
            e("s_lshl_b32 s57, s69, 5")
            e("s_add_u32 s56, s56, s57")
            e("v_lshrrev_b32 v22, 3, v0")
            e("v_add_u32 v22, s56, v22")
            e("v_lshlrev_b32 v22, 11, v22")
            e("v_and_b32 v23, 7, v0")
            e("v_lshl_add_u32 v22, v23, 4, v22")
            e("s_lshr_b32 s56, s58, 1")
            e("s_lshl_b32 s56, s56, 7")
            e("s_lshl_b32 s57, s61, 8")
            e("s_add_u32 s56, s56, s57")
            e("v_add_u32 v22, s56, v22")
        L = self.newlabel("g2l"); Lw = self.newlabel("g2lw"); Lb = self.newlabel("g2lb")
        def waits(cases):
            for per, cnt in cases:
                Ln = self.newlabel("g2w")
                e(f"s_cmp_eq_u32 s67, {per}")
                e(f"s_cbranch_scc0 {Ln}")
                e(f"s_waitcnt vmcnt({cnt})")
                e(f"s_branch {Lb}")
                self.label(Ln)
        self.label(L)
        if pre:
            Lo = self.newlabel("g2o")
            e("s_sub_u32 s56, s67, 4")
            e("s_cmp_lt_u32 s56, 4")
            e(f"s_cbranch_scc0 {Lo}")
            e("s_lshl_b32 s56, s56, 14          ; 8 rows * 2048")
            e(f"buffer_store_dwordx4 v[24:27], v22, {s(SRD_A,4)}, s56 offen sc1")
            self.label(Lo)
        e("s_cmp_ge_u32 s67, 24")
        e(f"s_cbranch_scc1 {Lw}")
        self.g2_issue_t(64)
        self.g2_issue_w(64, 65)
        self.g2_adv()
        e(f"s_add_u32 s64, s64, {STG}")
        e(f"s_cmp_eq_u32 s64, {5*STG}")
        e("s_cselect_b32 s64, 0, s64")
        e("s_waitcnt vmcnt(24)")
        e(f"s_branch {Lb}")
        self.label(Lw)
        Lw1 = self.newlabel("g2lw1")
        e("s_cmp_eq_u32 s67, 24")
        e(f"s_cbranch_scc0 {Lw1}")
        e("v_lshrrev_b32 v20, 2, v0")
        e("s_lshl_b32 s56, s58, 5")
        e("v_add_u32 v20, s56, v20")
        e("v_lshlrev_b32 v20, 8, v20          ; row*256")
        e("v_and_b32 v21, 3, v0")
        e("v_lshl_add_u32 v20, v21, 4, v20")
        e("s_lshr_b32 s57, s58, 1")
        self.g2_dbh(59, 61, 57)
        e("s_lshl_b32 s56, s60, 18")
        e("s_lshl_b32 s57, s59, 15            ; 128db'*256")
        e("s_add_u32 s56, s56, s57")
        e("s_lshl_b32 s57, s69, 6             ; 32kh*2")
        e("s_add_u32 s56, s56, s57")
        e(f"s_add_u32 s56, s56, {WS_HT}")
        for ii in range(4):
            wt, hh = ii >> 1, ii & 1
            e(f"s_add_u32 s57, s56, {wt*128 + hh*16*256}")
            e("s_lshl_b32 s59, s58, 11          ; 32lw*64")
            e(f"s_add_u32 m0, s59, {self.G2_RES + wt*8192 + hh*1024}")
            e(f"buffer_load_dwordx4 v20, {s(SRD_WS,4)}, s57 offen sc1 lds")
        e("s_waitcnt vmcnt(20)")
        e(f"s_branch {Lb}")
        self.label(Lw1)
        waits([(25, 12), (26, 4)])
        e("s_waitcnt vmcnt(0)")
        self.label(Lb)
        e("s_barrier")
        e("s_add_u32 s67, s67, 1")
        e("s_cmp_lt_u32 s67, 28")
        e(f"s_cbranch_scc1 {L}")

    G2_X, G2_Y, G2_ACC = 8, 40, 72
    def g2_frag_reads(self, base, u):
        r = []
        for tt in range(4): r.append(f"ds_read_b128 {v(base + 16 + 4*tt, 4)}, v6 offset:{u*8192 + tt*256}")
        for dt in range(4):
            for h in range(2):
                r.append(f"ds_read_b64_tr_b16 {v(base + 4*dt + 2*h, 2)}, {v(2+dt)} offset:{u*8192 + h*1024}")
        return r

    def g2_half(self, mf_base, rd_base, rd_u, first=False, reads=True, tail=(), waits=None):
        e = self.e
        rds = self.g2_frag_reads(rd_base, rd_u) if reads else []
        fill = list(rds) + list(tail)
        i = 0; k = 0
        for dt in range(4):
            for tt in range(4):
                a = self.G2_ACC + (dt*4 + tt)*4
                if waits and k in waits: e(waits[k])
                e(f"v_mfma_f32_16x16x32_bf16 {v(a,4)}, {v(mf_base + 4*dt, 4)}, {v(mf_base + 16 + 4*tt, 4)}, {'0' if first else v(a,4)}")
                if i < len(fill): e(fill[i]); i += 1
                k += 1
        while i < len(fill): e(fill[i]); i += 1

    def g2_compute(self):
        e = self.e
        X, Y, STG = self.G2_X, self.G2_Y, self.G2_STG
        self.g2_ids()
        e(f"s_lshr_b32 s58, {s(S_WV)}, 1      ; wd")
        e(f"s_and_b32 s59, {s(S_WV)}, 1       ; wt")
        e("v_lshrrev_b32 v13, 4, v0          ; g")
        e("v_and_b32 v14, 15, v0             ; n")
        e("v_lshrrev_b32 v15, 2, v14         ; r")
        e("v_and_b32 v16, 3, v14             ; c")
        e("v_lshl_add_u32 v17, v13, 3, v15   ; row = 8g + r")
        e("v_and_b32 v18, 1, v13")
        e("v_lshl_or_b32 v20, v18, 2, v15    ; f(row)")
        e("v_lshlrev_b32 v21, 8, v17")
        e("v_lshl_add_u32 v21, v16, 3, v21")
        e("v_add_u32 v21, 16384, v21")
        e("s_lshl_b32 s57, s58, 2            ; 4*wd")
        for dt in range(4):
            e(f"s_add_u32 s56, s57, {dt}")
            e("v_xor_b32 v22, s56, v20")
            e(f"v_lshl_add_u32 {v(2+dt)}, v22, 5, v21")
        e("v_lshlrev_b32 v22, 11, v13")
        e("v_lshl_add_u32 v22, v14, 4, v22")
        e("s_lshl_b32 s56, s59, 10")
        e("v_add_u32 v6, s56, v22")
        if self.o.get("pub_early", True):
            e("s_waitcnt vmcnt(0) lgkmcnt(0)")
        else:
            e("s_waitcnt lgkmcnt(0)")
        e("s_barrier                        ; A = B_0")
        self.stamp("g2_loop")
        e("s_mov_b32 s64, 0")
        e(f"s_mov_b32 s62, {STG}")
        e(f"s_mov_b32 s63, {(-4*STG) & 0xffffffff}")
        def adv():
            return ["s_add_u32 s64, s64, 1", "s_cmp_eq_u32 s64, 4"]
        def adv2():
            return [f"v_add_u32 {v(r)}, s65, {v(r)}" for r in range(2, 7)]
        pre = ["s_add_u32 s64, s64, 1", "s_cmp_eq_u32 s64, 5", "s_cselect_b32 s65, s63, s62", "s_cselect_b32 s64, 0, s64"]
        WX = {0: "s_waitcnt lgkmcnt(6)", 4: "s_waitcnt lgkmcnt(8)", 8: "s_waitcnt lgkmcnt(10)", 12: "s_waitcnt lgkmcnt(12)"}
        if self.o.get("g2_fullwait"): WX = {0: "s_waitcnt lgkmcnt(0)"}
        for r in self.g2_frag_reads(X, 0): e(r)
        for p in pre: e(p)
        e("s_waitcnt lgkmcnt(0)")
        self.g2_half(X, Y, 1, first=True, tail=adv2()[:4])
        e(adv2()[4])
        e("s_waitcnt vmcnt(0) lgkmcnt(0)")
        e("s_barrier                        ; B_1")
        e("s_mov_b32 s67, 0")
        L = self.newlabel("g2c")
        self.label(L)
        for k in range(3):
            self.g2_half(Y, X, 0, tail=pre)
            self.g2_half(X, Y, 1, tail=adv2()[:4], waits=WX)
            e(adv2()[4])
            if k == 2:
                e("s_add_u32 s67, s67, 1"); e("s_cmp_lt_u32 s67, 9")
            e("s_waitcnt lgkmcnt(0)")
            e("s_barrier")
        e(f"s_cbranch_scc1 {L}")
        self.g2_half(Y, None, 0, reads=False)
        self.stamp("g2_loopend")

    def g2_epilogue(self):
        e = self.e
        ACC = self.G2_ACC
        Lk = self.newlabel("g2k")
        e("s_cmp_eq_u32 s69, 0")
        e(f"s_cbranch_scc1 {Lk}")
        for dt in range(4):
            for r in range(8):
                a = ACC + dt*16 + r
                e(f"v_swap_b32 {v(a)}, {v(a+8)}")
        self.label(Lk)
        e("s_xor_b32 s56, s2, 4")
        e("s_lshl_b32 s56, s56, 15")
        e(f"s_lshl_b32 s57, {s(S_WV)}, 13")
        e("s_add_u32 s56, s56, s57")
        e(f"s_add_u32 s62, s56, {WS_EX}")
        e("v_lshlrev_b32 v8, 4, v0")
        for dt in range(4):
            for tk in range(2):
                i = dt*2 + tk
                e(f"s_add_u32 s56, s62, {1024*i}")
                e(f"buffer_store_dwordx4 {v(ACC + dt*16 + 8 + 4*tk, 4)}, v8, {s(SRD_WS,4)}, s56 offen sc1")
        e("v_lshrrev_b32 v13, 4, v0          ; g")
        e("v_and_b32 v14, 15, v0             ; n")
        e("v_lshrrev_b32 v15, 2, v14")
        e("v_and_b32 v16, 3, v14")
        e("v_lshl_add_u32 v17, v13, 2, v15   ; 4g + r")
        e("v_lshlrev_b32 v17, 6, v17")
        e("v_lshl_add_u32 v17, v16, 3, v17")
        e("s_lshl_b32 s56, s59, 13")
        e("s_lshl_b32 s57, s58, 12           ; 64wd*64")
        e("s_add_u32 s56, s56, s57")
        e(f"s_add_u32 s56, s56, {self.G2_RES}")
        e("v_add_u32 v17, s56, v17")
        RS = 168
        for dt in range(4):
            for tk in range(2):
                e(f"ds_read_b64_tr_b16 {v(RS + 2*(2*dt+tk), 2)}, v17 offset:{dt*16*64 + tk*32}")
        pass

    def g2_epilogue2(self):
        e = self.e
        ACC = self.G2_ACC; RS = 168; B2 = 234
        e("s_lshl_b32 s56, s2, 15")
        e(f"s_lshl_b32 s57, {s(S_WV)}, 13")
        e("s_add_u32 s56, s56, s57")
        e(f"s_add_u32 s62, s56, {WS_EX}")
        IN = 136
        for i in range(1, 8): e(f"s_add_u32 {s(80+i)}, s62, {1024*i}")
        e("s_mov_b32 s80, s62")
        self.srd(SRD_A, S_OUT, S_ * D_ * 2)
        e(f"s_lshl_b32 s56, {s(S_WV)}, 12")
        e("v_and_b32 v10, 1, v13")
        e("v_lshlrev_b32 v10, 1, v10")
        e("v_lshrrev_b32 v11, 1, v13")
        e("v_add_u32 v10, v10, v11")
        e("v_and_b32 v11, 7, v14")
        for dp in range(2):
            e(f"v_add_u32 v12, {4*dp}, v10")
            e("v_xor_b32 v12, v12, v11")
            e("v_lshlrev_b32 v12, 4, v12")
            e("v_lshl_add_u32 v12, v14, 7, v12")
            e(f"v_add_u32 {v(32+dp)}, s56, v12")
        e("v_lshrrev_b32 v11, 3, v0           ; l>>3")
        e("v_and_b32 v12, 7, v0")
        e("v_xor_b32 v10, v12, v11")
        e("v_lshlrev_b32 v10, 4, v10")
        e("v_lshl_add_u32 v10, v11, 7, v10")
        e("v_add_u32 v34, s56, v10")
        e("s_lshl_b32 s56, s60, 7")
        e("s_lshl_b32 s57, s59, 6")
        e("s_add_u32 s56, s56, s57")
        e("s_lshl_b32 s57, s69, 5")
        e("s_add_u32 s56, s56, s57")
        e("v_add_u32 v9, s56, v11")
        e("v_lshlrev_b32 v9, 11, v9")
        e("v_lshl_add_u32 v9, v12, 4, v9")
        self.g2_dbh(56, 61, 58)
        e("s_lshl_b32 s56, s56, 8")
        e("s_lshl_b32 s57, s58, 7")
        e("s_add_u32 s63, s56, s57")
        BF = 40
        for dt in range(4):
            self.unpack(BF+4*dt,   B2+2*dt,   0); self.unpack(BF+4*dt+1, B2+2*dt,   1)
            self.unpack(BF+4*dt+2, B2+2*dt+1, 0); self.unpack(BF+4*dt+3, B2+2*dt+1, 1)
        L = self.newlabel("g2in"); Lx = self.newlabel("g2inx")
        def watch():
            L1 = self.newlabel("g2w1"); L1x = self.newlabel("g2w1x")
            e("s_mov_b32 s57, 0x200000")
            e("s_mov_b32 exec_lo, 0"); e("s_mov_b32 exec_hi, 0x80000000")
            self.label(L1)
            e(f"buffer_load_dword v35, v8, {s(SRD_WS,4)}, s87 offen offset:12 sc1")
            e("s_sub_u32 s57, s57, 1")
            e("s_cmp_eq_u32 s57, 0")
            e(f"s_cbranch_scc1 {L1x}")
            e("s_waitcnt vmcnt(0)")
            e("v_cmp_eq_u32 vcc, -1, v35")
            e(f"s_cbranch_vccnz {L1}")
            self.label(L1x)
            e("s_waitcnt vmcnt(0)")
            e("s_mov_b64 exec, -1")
        mode = self.o.get("ex_mode", "watch")
        if mode == "watch": watch()
        elif mode == "spec":
            for i in range(8):
                e(f"buffer_load_dwordx4 {v(IN+4*i,4)}, v8, {s(SRD_WS,4)}, {s(80+i)} offen sc1")
            e("s_waitcnt vmcnt(0)")
            e(f"v_max_u32 v35, {v(IN)}, {v(IN+3)}")
            for i in range(1, 8):
                e(f"v_max3_u32 v35, v35, {v(IN+4*i)}, {v(IN+4*i+3)}")
            e("v_cmp_eq_u32 vcc, -1, v35")
            e(f"s_cbranch_vccz {Lx}")
            watch()
        e("s_mov_b32 s57, 0x200000")
        self.label(L)
        for i in range(8):
            e(f"buffer_load_dwordx4 {v(IN+4*i,4)}, v8, {s(SRD_WS,4)}, {s(80+i)} offen sc1")
        e("s_sub_u32 s57, s57, 1")
        e("s_cmp_eq_u32 s57, 0")
        e(f"s_cbranch_scc1 {Lx}")
        e("s_waitcnt vmcnt(0)")
        e(f"v_max_u32 v35, {v(IN)}, {v(IN+3)}")
        for i in range(1, 8):
            e(f"v_max3_u32 v35, v35, {v(IN+4*i)}, {v(IN+4*i+3)}")
        e("v_cmp_eq_u32 vcc, -1, v35")
        e(f"s_cbranch_vccnz {L}")
        self.label(Lx)
        e("s_waitcnt vmcnt(0) lgkmcnt(0)")
        self.stamp("g2_got")
        k = 0
        for tk in range(2):
            for dp in range(2):
                O = 56 + 4*(k & 1); k += 1
                for dd in range(2):
                    dt = 2*dp + dd
                    i = dt*2 + tk
                    a = ACC + dt*16 + 4*tk
                    T = 64
                    r0 = RS + 2*i
                    self.unpack(T, r0, 0); self.unpack(T+1, r0, 1); self.unpack(T+2, r0+1, 0); self.unpack(T+3, r0+1, 1)
                    for h in range(2):
                        e(f"v_pk_add_f32 {v(a+2*h,2)}, {v(a+2*h,2)}, {v(IN+4*i+2*h,2)}")
                        e(f"v_pk_add_f32 {v(T+2*h,2)}, {v(T+2*h,2)}, {v(BF+4*dt+2*h,2)}")
                        e(f"v_pk_add_f32 {v(a+2*h,2)}, {v(a+2*h,2)}, {v(T+2*h,2)}")
                        e(f"v_cvt_pk_bf16_f32 {v(O+2*dd+h)}, {v(a+2*h)}, {v(a+2*h+1)}")
                e(f"v_permlane16_swap_b32 {v(O)}, {v(O+2)}")
                e(f"v_permlane16_swap_b32 {v(O+1)}, {v(O+3)}")
                e(f"ds_write_b128 {v(32+dp)}, {v(O,4)} offset:{tk*2048}")
        e("s_waitcnt lgkmcnt(0)")
        for i in range(4): e(f"ds_read_b128 {v(72+4*i,4)}, v34 offset:{1024*i}")
        for i in range(4):
            e(f"s_add_u32 s56, s63, {i*8*2048}")
            e(f"s_waitcnt lgkmcnt({3-i})")
            e(f"buffer_store_dwordx4 {v(72+4*i,4)}, v9, {s(SRD_A,4)}, s56 offen {self.o.get('out_aux', 'sc1 nt')}")

    def g2(self):
        e = self.e
        Lc = self.newlabel("g2comp"); Le = self.newlabel("g2end")
        e(f"s_cmp_lt_u32 {s(S_WV)}, 4")
        e(f"s_cbranch_scc1 {Lc}")
        self.g2_loader()
        L0 = self.newlabel("g2ep")
        e(f"s_cmp_lg_u32 {s(S_WV)}, 4")
        e(f"s_cbranch_scc1 {L0}")
        e("s_cmp_lg_u32 s2, 0")
        e(f"s_cbranch_scc1 {L0}")
        e(f"v_mov_b32 v254, {s(S_EP)}")
        e(f"v_mov_b32 v255, {WS_EPOCH}")
        e("s_mov_b64 exec, 1")
        e(f"buffer_store_dword v254, v255, {s(SRD_WS,4)}, 0 offen sc1")
        e("s_mov_b64 exec, -1")
        self.label(L0)
        e(f"s_branch {Le}")
        self.label(Lc)
        self.g2_compute()
        self.g2_epilogue()
        self.g2_epilogue2()
        self.label(Le)

    def finish(self):
        self.label("L_end")
        self.e("s_endpgm")

def wrap(body, lds=LDS_BYTES):
    hdr = f"""; Kernarg layout for this problem (112 bytes, ptrs only, base s[0:1]):
;
; One persistent launch, 256 workgroups (one per CU) x 8 waves, four phases handed over through d_ws
;   P : kv = shortconv(k)*v transposed per channel; x transposed; LayerNorm statistics of x
;   C : long causal convolution per channel as block-Toeplitz bf16 MFMA (fp32 accumulate), gate, residual -> h^T
; @launch grid=(256,1,1) block=(512,1,1) lds={lds}
.amdgcn_target "amdgcn-amd-amdhsa--gfx950"
.text
.globl {KNAME}
.p2align 8
.type {KNAME},@function
{KNAME}:
"""
    tail = f"""
.section .rodata,"a"
.p2align 6
.amdhsa_kernel {KNAME}
  .amdhsa_next_free_vgpr 256
  .amdhsa_next_free_sgpr 102
  .amdhsa_accum_offset 256
  .amdhsa_group_segment_fixed_size 0
  .amdhsa_kernarg_size 112
  .amdhsa_user_sgpr_count 2
  .amdhsa_user_sgpr_kernarg_segment_ptr 1
  .amdhsa_system_sgpr_workgroup_id_x 1
  .amdhsa_float_denorm_mode_32 3
.end_amdhsa_kernel
"""
    return hdr + body + tail

def build(opts, ret_g=False):
    g = G(opts)
    g.prologue()
    g.stamp("start", defer=True)
    ph = opts["phases"]
    if "p" in ph:
        g.phase_p()
    else:
        g.epoch_ready()
    if "c" in ph:
        g.phase_c()
        g.stamp("c_end")
        g.signal(3, pf_w2=(opts.get("prefetch_w", True) and opts.get("pf2_at") == "sig"))
        g.stamp("c_sig")
    if "g1" in ph:
        g.g1()
        g.stamp("g1_end")
    if "g2" in ph:
        g.g2()
        g.stamp("g2_end")
    g.stamp_flush()
    g.finish()
    src = wrap(g.finalize())
    return (src, g) if ret_g else src

if __name__ == "__main__":
    out = build(dict(phases=["p", "c", "g1", "g2"]))
    path = sys.argv[1] if len(sys.argv) > 1 else "sequential_preLN__ssm_conv_h3__mixer_channel_mlp__prompt.s"
    open(path, "w").write(out)
    print("wrote", path, len(out))
```
